```python
import torch

def _softmax(x, axis=-1):
    return torch.softmax(x, dim=axis)

def _gelu(x):
    return torch.nn.functional.gelu(x, approximate='tanh')

def _silu(x):
    return torch.nn.functional.silu(x)

def _sigmoid(x):
    return torch.sigmoid(x)

def _layernorm(x, axis=-1, eps=1e-05):
    m = x.mean(dim=axis, keepdim=True)
    v = x.var(dim=axis, keepdim=True, unbiased=False)
    return (x - m) / torch.sqrt(v + eps)

def _scatter_add(tgt, idx, src, axis=0):
    return tgt.clone().index_add_(axis, idx, src)

def _segment_sum(src, seg, n):
    out = torch.zeros((n,) + src.shape[1:], dtype=src.dtype)
    return out.index_add_(0, seg, src)

def _pad(x, pw):
    flat = tuple((v for pair in reversed(pw) for v in pair))
    return torch.nn.functional.pad(x, flat)
kernel_name = 'gated_mix__memory_aug_recurrent_mem_tr__dense_activation_silu__prompt'

def setup_inputs():

    _w = lambda a: (lambda t: t.to(torch.bfloat16) if t.is_floating_point() else t)(torch.as_tensor(a))

    def _A_setup():
        B, S, Dm = (1, 2048, 448)
        H, Dh = (16, 256)
        M, seg = (8, 32)
        seg = min(seg, S)
        S = S // seg * seg
        return {'x': _w((lambda *s: torch.randn(*s, dtype=torch.bfloat16) * 0.05)(B, S, Dm)), 'mem0': _w((lambda *s: torch.randn(*s, dtype=torch.bfloat16) * 0.4)(B, M, Dm)), 'Wq': _w((lambda *s: torch.randn(*s, dtype=torch.bfloat16) * 6.4)(Dm, H, Dh) * Dm ** (-0.5)), 'Wk': _w((lambda *s: torch.randn(*s, dtype=torch.bfloat16) * 6.4)(Dm, H, Dh) * Dm ** (-0.5)), 'Wv': _w((lambda *s: torch.randn(*s, dtype=torch.bfloat16) * 0.4)(Dm, H, Dh) * Dm ** (-0.5)), 'Wo': _w((lambda *s: torch.randn(*s, dtype=torch.bfloat16) * 0.4)(H, Dh, Dm) * (H * Dh) ** (-0.5)), 'seg_len': seg}
    _A_in = _A_setup()

    def _B_setup():
        B, S, D, F = (1, 2048, 448, 1792)
        return {'x': _w((lambda *s: torch.randn(*s, dtype=torch.bfloat16) * 0.05)(B, S, D)), 'w1': _w((lambda *s: torch.randn(*s, dtype=torch.bfloat16) * 3.2)(D, F) * D ** (-0.5)), 'w2': _w((lambda *s: torch.randn(*s, dtype=torch.bfloat16) * 0.2)(F, D) * F ** (-0.5))}
    _B_in = _B_setup()
    return {'A_x': _A_in['x'], 'A_mem0': _A_in['mem0'], 'A_Wq': _A_in['Wq'], 'A_Wk': _A_in['Wk'], 'A_Wv': _A_in['Wv'], 'A_Wo': _A_in['Wo'], 'A_seg_len': _A_in['seg_len'], 'B_x': _B_in['x'], 'B_w1': _B_in['w1'], 'B_w2': _B_in['w2'], 'gate_w': _w((lambda *s: torch.randn(*s, dtype=torch.bfloat16) * 0.05)(448) * 16.0)}

def reference(A_x, A_mem0, A_Wq, A_Wk, A_Wv, A_Wo, A_seg_len, B_x, B_w1, B_w2, gate_w):

    def _A_ref(x, mem0, Wq, Wk, Wv, Wo, seg_len):
        B, S, Dm = x.shape
        H, Dh = (Wq.shape[1], Wq.shape[2])
        M = mem0.shape[1]
        scale = Dh ** (-0.5)
        n_seg = S // seg_len
        L = M + seg_len
        idx = torch.arange(L)
        mask = (idx[:, None] < M) | (idx[:, None] >= idx[None, :])
        mem = mem0
        outs = []
        for s in range(n_seg):
            xs = x[:, s * seg_len:(s + 1) * seg_len, :].clone()
            h = torch.concatenate([mem, xs], axis=1)
            q = torch.einsum('btd,dhe->bhte', h, Wq)
            k = torch.einsum('btd,dhe->bhte', h, Wk)
            v = torch.einsum('btd,dhe->bhte', h, Wv)
            scores = torch.einsum('bhqe,bhke->bhqk', q, k) * scale
            scores = torch.where(mask[None, None], scores, -1000000000.0)
            p = _softmax(scores, axis=-1)
            o = torch.einsum('bhqk,bhke->bhqe', p, v)
            o = torch.einsum('bhte,hed->btd', o, Wo)
            mem = o[:, :M, :].clone()
            outs.append(o[:, M:, :])
        return torch.concatenate(outs, axis=1)

    def _B_ref(x, w1, w2):
        h = torch.einsum('bsd,df->bsf', x, w1)
        h = _silu(h)
        out = torch.einsum('bsf,fd->bsd', h, w2)
        return out
    x = A_x
    g = _sigmoid((x * gate_w).sum(-1, keepdims=True))
    a = _A_ref(x, A_mem0, A_Wq, A_Wk, A_Wv, A_Wo, A_seg_len)
    b = _B_ref(x, B_w1, B_w2)
    return g * a + (1 - g) * b
```

```python
class Asm:
    def __init__(self):
        self.lines = []
        self._uid = 0
    def __call__(self, s=""):
        for l in s.split("\n"):
            l = l.strip()
            if not l:
                continue
            if l.endswith(":") or l.startswith("."):
                self.lines.append(l)
            elif l.startswith(";"):
                self.lines.append("    " + l)
            else:
                self.lines.append("    " + l)
    def raw(self, s):
        self.lines.append(s)
    def label(self, name):
        self.lines.append(name + ":")
    def uid(self, p="L"):
        self._uid += 1
        return f"{p}_{self._uid}"
    def text(self):
        return "\n".join(self.lines) + "\n"

def v(i, n=1):
    if i >= 256:
        assert i + n <= 512
        j = i - 256
        return f"a{j}" if n == 1 else f"a[{j}:{j+n-1}]"
    assert i + n <= 256, (i, n)
    return f"v{i}" if n == 1 else f"v[{i}:{i+n-1}]"

def s(i, n=1):
    return f"s{i}" if n == 1 else f"s[{i}:{i+n-1}]"

def kernel_head(a, name):
    a(f".globl {name}")
    a(".p2align 8")
    a(f".type {name},@function")
    a.label(name)

def kernel_desc(a, name, vgpr=512, sgpr=102, accum=256, kernarg=112):
    a('.section .rodata,"a"')
    a(".p2align 6")
    a(f".amdhsa_kernel {name}")
    a.raw(f"  .amdhsa_next_free_vgpr {vgpr}")
    a.raw(f"  .amdhsa_next_free_sgpr {sgpr}")
    a.raw(f"  .amdhsa_accum_offset {accum}")
    a.raw("  .amdhsa_group_segment_fixed_size 0")
    a.raw(f"  .amdhsa_kernarg_size {kernarg}")
    a.raw("  .amdhsa_user_sgpr_count 2")
    a.raw("  .amdhsa_user_sgpr_kernarg_segment_ptr 1")
    a.raw("  .amdhsa_system_sgpr_workgroup_id_x 1")
    a.raw("  .amdhsa_float_denorm_mode_32 3")
    a(".end_amdhsa_kernel")
    a(".text")

def srd(a, d, base, nbytes, off=0):
    if off:
        a(f"s_add_u32 s{d}, s{base}, {off}")
        a(f"s_addc_u32 s{d+1}, s{base+1}, 0")
    else:
        a(f"s_mov_b32 s{d}, s{base}")
        a(f"s_mov_b32 s{d+1}, s{base+1}")
    a(f"s_mov_b32 s{d+2}, {nbytes}")
    a(f"s_mov_b32 s{d+3}, 0x00020000")
```

```python
import sys
from asmlib import *
from layout import *
import k1 as K1
NAME = 'gated_mix__memory_aug_recurrent_mem_tr__dense_activation_silu__prompt'
def gen(only=None, o=None):
    a = Asm()
    a.raw(f"; @launch kernel=prep_kernel grid=(256,1,1) block=(256,1,1) lds={K1.K1_LDS}")
    if only != 'k1':
        import k2 as K2
        a.raw(f"; @launch kernel={NAME}_kernel grid=(256,1,1) block=(256,1,1) lds={K2.K2_LDS}")
    a('.amdgcn_target "amdgcn-amd-amdhsa--gfx950"'); a('.text')
    K1.k1(a, "prep_kernel")
    if only != 'k1': K2.k2(a, NAME + "_kernel", o)
    kernel_desc(a, "prep_kernel", vgpr=256, accum=256)
    if only != 'k1': kernel_desc(a, NAME + "_kernel", vgpr=512, accum=256)
    return a.text()
if __name__ == '__main__':
    only = sys.argv[1] if len(sys.argv) > 1 else None
    open('out.s', 'w').write(gen(only))
```

```python
from asmlib import *
from layout import *
K1_LDS = 114688
MF = "v_mfma_f32_32x32x16_bf16"

def k1(a, name):
    kernel_head(a, name)
    S_WS, S_P, S_S, S_X, S_GW = "s[4:7]", "s[8:11]", "s[12:15]", "s[16:19]", "s[20:23]"
    ACC, PV, FR = 0, 112, 176
    vT, vT2, vB0, vB1, vST, vAD = 208, 209, 210, 211, 212, 216
    a(f"""
    s_cmp_ge_u32 s2, 256
    s_cbranch_scc1 K1_end
    s_load_dwordx2 s[24:25], s[0:1], 0
    s_load_dwordx8 s[28:35], s[0:1], 16
    s_load_dwordx2 s[26:27], s[0:1], 80
    s_load_dwordx2 s[36:37], s[0:1], 104
    s_and_b32 s40, s2, 31                      ; matrix: 0..15 A, 16..31 B
    s_lshr_b32 s41, s2, 5
    s_and_b32 s42, s41, 1
    s_lshr_b32 s43, s41, 1
    s_and_b32 s44, s40, 15                     ; head
    v_lshrrev_b32 v{vT}, 6, v0
    v_and_b32 v0, 63, v0
    v_readfirstlane_b32 s45, v{vT}             ; wave
    s_waitcnt lgkmcnt(0)
    """)
    srd(a, 4, 36, WS_BYTES); srd(a, 16, 24, X_BYTES); srd(a, 20, 26, 896)
    a(f"""
    s_cmp_ge_u32 s40, 16
    s_cselect_b32 s8, s32, s28
    s_cselect_b32 s9, s33, s29
    s_cselect_b32 s12, s34, s30
    s_cselect_b32 s13, s35, s31
    s_mov_b32 s10, {W_BYTES}
    s_mov_b32 s11, 0x00020000
    s_mov_b32 s14, {W_BYTES}
    s_mov_b32 s15, 0x00020000
    s_lshl_b32 s46, s43, 2
    s_add_u32 s46, s46, s45
    v_lshrrev_b32 v1, 5, v0                    ; hi
    v_and_b32 v2, 31, v0                       ; c32
    v_mov_b32 v220, v1
    v_mov_b32 v221, v2
    v_mov_b32 v222, v0
    s_cmp_ge_u32 s40, 16
    s_cbranch_scc1 K1_sharedB
    """)
    a(f"""
    v_xor_b32 v{vT}, v221, v220
    v_lshlrev_b32 v{vT}, 4, v{vT}
    v_lshl_add_u32 v{vT}, v220, 13, v{vT}
    s_mul_i32 s47, s42, {224*8192}
    s_lshl_b32 s48, s44, 9
    s_add_u32 s47, s47, s48
    s_mul_i32 s48, s45, {56*8192}
    s_add_u32 s47, s47, s48
    s_mul_i32 s49, s45, {28*1024}
    s_and_b32 s50, s45, 1
    s_lshl_b32 s50, s50, 7                     ; (56*w & 15) << 4
    v_xor_b32 v{vT}, s50, v{vT}
    """)
    for i in range(8): a(f"v_xor_b32 v{vAD+i - 0 if False else 224+i}, {(2*i & 15) << 4}, v{vT}")
    for i in range(28):
        a(f"s_mov_b32 m0, s49\n s_add_u32 s49, s49, 1024")
        a(f"buffer_load_dwordx4 v{224 + i % 8}, {S_S}, s47 offen lds")
        a(f"s_add_u32 s47, s47, 16384")
    a(f"""
    v_and_b32 v{vT}, 15, v221
    v_lshrrev_b32 v{vT2}, 4, v221
    v_lshl_add_u32 v{vT}, v{vT}, 1, v{vT2}
    v_and_b32 v{vT2}, 15, v{vT}
    v_xor_b32 v{vT2}, v{vT2}, v220
    v_lshlrev_b32 v{vT2}, 4, v{vT2}
    v_lshl_add_u32 v{vB0}, v{vT}, 9, v{vT2}
    v_add_u32 v{vB1}, 0x10000, v{vB0}
    s_branch K1_private
    K1_sharedB:
    """)
    for i in range(7):
        a(f"""
        v_add_u32 v{vT}, {64*i}, v222
        v_mul_u32_u24 v{vT2}, 2341, v{vT}
        v_lshrrev_b32 v{vT2}, 16, v{vT2}           ; /28
        v_mul_u32_u24 v{vB0}, 28, v{vT2}
        v_sub_u32 v{vT}, v{vT}, v{vB0}
        v_mul_u32_u24 v{vT2}, 896, v{vT2}
        v_lshl_add_u32 v{224+i}, v{vT}, 4, v{vT2}
        """)
    a(f"""
    s_mul_i32 s47, s44, 229376
    s_mul_i32 s48, s42, 448
    s_add_u32 s47, s47, s48
    s_mul_i32 s48, s45, {64*896}
    s_add_u32 s47, s47, s48
    s_mul_i32 s49, s45, {28*1024}
    """)
    for i in range(28):
        a(f"s_mov_b32 m0, s49\n s_add_u32 s49, s49, 1024")
        a(f"buffer_load_dwordx4 v{224 + i % 7}, {S_S}, s47 offen lds")
        if i % 7 == 6: a(f"s_add_u32 s47, s47, {16*896}")
    a(f"""
    v_lshrrev_b32 v{vT}, 2, v222
    v_and_b32 v{vT}, 3, v{vT}
    v_lshl_add_u32 v{vT}, v220, 3, v{vT}
    v_mul_u32_u24 v{vB0}, 448, v{vT}
    v_bfe_u32 v{vT}, v222, 4, 1
    v_lshl_add_u32 v{vB0}, v{vT}, 5, v{vB0}
    v_and_b32 v{vT}, 3, v222
    v_lshl_add_u32 v{vB0}, v{vT}, 3, v{vB0}
    v_add_u32 v{vB1}, {9*7168}, v{vB0}
    K1_private:
    s_cmp_ge_u32 s46, 14
    s_cbranch_scc1 K1_side
    """)
    a(f"""
    v_and_b32 v{vT}, 0x13, v221
    v_bfe_u32 v{vT2}, v221, 2, 1
    v_lshl_add_u32 v{vT}, v{vT2}, 3, v{vT}
    v_bfe_u32 v{vT2}, v221, 3, 1
    v_lshl_add_u32 v{vT}, v{vT2}, 2, v{vT}
    v_lshlrev_b32 v{vT}, 13, v{vT}
    v_lshl_add_u32 v{vT}, v220, 4, v{vT}
    s_lshl_b32 s47, s46, 18
    s_lshl_b32 s48, s44, 9
    s_add_u32 s47, s47, s48
    """)
    for t in range(16): a(f"buffer_load_dwordx4 {v(PV+4*t,4)}, v{vT}, {S_P}, s47 offen offset:{32*t}")
    for r in range(112): a(f"v_mov_b32 v{ACC+r}, 0")
    a(f"""
    v_lshrrev_b32 v{vT}, 4, v221
    v_and_b32 v{vT2}, 15, v221
    v_lshlrev_b32 v{vST}, 4, v{vT2}
    v_lshl_add_u32 v{vST}, v220, 8, v{vST}
    s_lshr_b32 s47, s46, 1
    s_lshl_b32 s47, s47, 11
    s_and_b32 s48, s46, 1
    s_lshl_b32 s48, s48, 10
    s_add_u32 s47, s47, s48                    ; T*2048 + half*1024
    s_waitcnt vmcnt(0)
    s_barrier
    s_cmp_ge_u32 s40, 16
    s_cbranch_scc1 K1_mainB
    """)
    NR = 6
    def main(kind):
        seq = [(t, p) for t in range(16) for p in range(7)]
        nper = 1 if kind == 'A' else 2
        def fetch(n):
            t, p = seq[n]; r = FR + 4*(n % NR)
            if kind == 'A':
                if p == 0: a(f"v_xor_b32 v{vAD + (t&1)*2}, {t << 5}, v{vB0}\n v_xor_b32 v{vAD + (t&1)*2 + 1}, {t << 5}, v{vB1}")
                a(f"ds_read_b128 {v(r,4)}, v{vAD + (t&1)*2 + (p >= 4)} offset:{(p & 3)*16384}")
            else:
                b, tt = (vB0, t) if t < 9 else (vB1, t - 9)
                a(f"ds_read_b64_tr_b16 {v(r,2)}, v{b} offset:{tt*7168 + p*64}")
                a(f"ds_read_b64_tr_b16 {v(r+2,2)}, v{b} offset:{tt*7168 + p*64 + 1792}")
        for n in range(NR-1): fetch(n)
        for n, (t, p) in enumerate(seq):
            if n + NR - 1 < len(seq): fetch(n + NR - 1)
            left = min(NR - 1, len(seq) - 1 - n)
            a(f"s_waitcnt lgkmcnt({left*nper})")
            a(f"{MF} {v(ACC+16*p,16)}, {v(PV+4*t,4)}, {v(FR+4*(n % NR),4)}, {v(ACC+16*p,16)}")
    def epilogue(scale, pstride):
        for p in range(7):
            for be in range(2):
                r = ACC + 16*p + 8*be
                if scale:
                    for q in range(8): a(f"v_mul_f32 v{r+q}, s51, v{r+q}")
                for q in range(4): a(f"v_cvt_pk_bf16_f32 v{r+q}, v{r+2*q}, v{r+2*q+1}")
                a(f"buffer_store_dwordx4 {v(r,4)}, v{vST}, {S_WS}, s47 offen offset:{512*be}")
            if p < 6: a(f"s_add_u32 s47, s47, {pstride}")
    main('A')
    a(f"""
    v_mul_u32_u24 v{vT}, 14336, v{vT}
    v_add_u32 v{vST}, v{vST}, v{vT}
    s_lshl_b32 s48, s44, 1
    s_add_u32 s48, s48, s42
    s_mul_i32 s48, s48, {A_RANK}
    s_add_u32 s47, s47, s48
    s_mov_b32 s51, 0x3db8aa3b                  ; log2(e)/16
    s_nop 7
    """)
    epilogue(True, 2*14336)
    a("s_endpgm\n K1_mainB:")
    main('B')
    a(f"""
    v_mul_u32_u24 v{vT}, {B_CT}, v{vT}
    v_add_u32 v{vST}, v{vST}, v{vT}
    s_mul_i32 s48, s42, {14*B_CT}
    s_mul_i32 s49, s44, {7*2048}
    s_add_u32 s47, s47, s48
    s_add_u32 s47, s47, s49
    s_add_u32 s47, s47, {WS_B}
    s_nop 7
    """)
    epilogue(False, 2*B_CT)
    a("s_endpgm")
    a(f"""
    K1_side:
    s_lshl_b32 s46, s40, 1
    s_add_u32 s46, s46, s42                    ; segment
    s_mul_i32 s47, s46, {32*896}
    s_cmp_eq_u32 s45, 3
    s_cbranch_scc1 K1_side3
    v_mul_u32_u24 v{vT}, 896, v221
    v_lshl_add_u32 v{vT}, v220, 4, v{vT}
    v_lshlrev_b32 v{vT2}, 4, v220
    v_lshlrev_b32 v{vST}, 4, v222
    """)
    for t in range(28): a(f"buffer_load_dwordx4 {v(4*t,4)}, v{vT}, {S_X}, s47 offen offset:{32*t}")
    a(f"s_add_u32 s47, s47, {WS_XG}\n v_mov_b32 v{vB0}, 0\n v_mov_b32 v{vB1}, 0")
    for t0 in range(0, 28, 14):
        for t in range(t0, t0+14): a(f"buffer_load_dwordx4 {v(112+4*(t-t0),4)}, v{vT2}, {S_GW}, 0 offen offset:{32*t}")
        a("s_waitcnt vmcnt(0)")
        if t0 == 0: a("s_barrier")
        for t in range(t0, t0+14):
            if t and t % 4 == 0: a("s_add_u32 s47, s47, 4096")
            a(f"buffer_store_dwordx4 {v(4*t,4)}, v{vST}, {S_WS}, s47 offen offset:{(t%4)*1024}")
            for q in range(4): a(f"v_dot2_f32_bf16 v{vB0 + (q&1)}, v{4*t+q}, v{112+4*(t-t0)+q}, v{vB0 + (q&1)}")
    a(f"""
    s_nop 2
    v_add_f32 v{vB0}, v{vB0}, v{vB1}
    v_mov_b32 v{vB1}, v{vB0}
    s_nop 1
    v_permlane32_swap_b32 v{vB0}, v{vB1}
    v_add_f32 v{vB0}, v{vB0}, v{vB1}
    v_mul_f32 v{vB0}, 0xbfb8aa3b, v{vB0}
    v_exp_f32 v{vB0}, v{vB0}
    s_nop 0
    v_add_f32 v{vB0}, 1.0, v{vB0}
    v_rcp_f32 v{vB0}, v{vB0}
    v_lshlrev_b32 v{vT}, 2, v221
    s_lshl_b32 s47, s46, 7
    s_add_u32 s47, s47, {WS_G}
    buffer_store_dword v{vB0}, v{vT}, {S_WS}, s47 offen
    s_endpgm
    K1_side3:
    v_and_b32 v{vT}, 15, v222
    v_mul_u32_u24 v{vT}, 896, v{vT}
    v_lshrrev_b32 v{vT2}, 4, v222
    v_lshl_add_u32 v{vT}, v{vT2}, 4, v{vT}
    v_lshlrev_b32 v{vST}, 4, v222
    s_add_u32 s48, s47, {16*896}
    """)
    for j in range(2):
        for kt in range(2):
            for hh in range(7):
                n = (j*2 + kt)*7 + hh
                a(f"buffer_load_dwordx4 {v(4*n,4)}, v{vT}, {S_X}, s{47+kt} offen offset:{448*j + 64*hh}")
    for r in range(4): a(f"v_mov_b32 v{120+r}, -1")
    a(f"""
    v_mov_b32 v124, 0
    v_lshlrev_b32 v{vT2}, 7, v222
    v_cmp_gt_u32 vcc, 8, v222
    v_mov_b32 v125, 0x7ff00000
    s_lshl_b32 s49, s46, 10
    v_cndmask_b32 v{vT2}, v125, v{vT2}, vcc
    s_add_u32 s49, s49, {WS_CNT}
    buffer_store_dword v124, v{vT2}, {S_WS}, s49 offen
    s_lshl_b32 s49, s46, 13
    s_add_u32 s49, s49, {WS_MO}
    """)
    for q in range(7):
        if q == 4: a("s_add_u32 s49, s49, 4096")
        a(f"buffer_store_dwordx4 v[120:123], v{vST}, {S_WS}, s49 offen offset:{(q%4)*1024}")
    a(f"s_add_u32 s47, s47, {WS_XP}\n s_waitcnt vmcnt(8)\n s_barrier")
    for n in range(28):
        if n and n % 4 == 0: a("s_add_u32 s47, s47, 4096")
        a(f"v_swap_b32 v{4*n+1}, v{4*n+2}")
        a(f"buffer_store_dwordx4 {v(4*n,4)}, v{vST}, {S_WS}, s47 offen offset:{(n%4)*1024}")
    a("K1_end:\n s_endpgm")
```

```python
from asmlib import *
from layout import *
import team
from team import S_WS, S_DBG, SM, OOB, nops
K2_LDS = team.TEAM_LDS
L_BC = K2_LDS - 16
MF32 = "v_mfma_f32_32x32x16_bf16"
MF16 = "v_mfma_f32_16x16x32_bf16"
S_W = "s[8:11]"
sWAVE, sROLE, sSEG, sBUD = 17, 16, 20, 35
sA, sB, sC, sD, sE, sF = 36, 37, 38, 39, 40, 41
N_TB, N_TA, N_TH, N_TU, N_O1, N_O2 = 28, 28, 14, 28, 32, 56
T_TB = 0; T_TA = T_TB + N_TB; T_TH = T_TA + N_TA; T_TU = T_TH + N_TH; T_O1 = T_TU + N_TU; T_O2 = T_O1 + N_O1; T_END = T_O2 + N_O2
D_TEAM, D_SYNC, D_TICK = 0, 64, 128
vL16, vCA, vCT = 250, 251, 252

def lane_setup(a):
    a(f"""
    v_mbcnt_lo_u32_b32 v0, -1, 0
    v_mbcnt_hi_u32_b32 v0, -1, v0
    v_lshlrev_b32 v{vL16}, 4, v0
    v_mov_b32 v{vCA}, 0
    v_lshrrev_b32 v1, 5, v0                 ; hi
    v_and_b32 v2, 31, v0                    ; c32
    v_and_b32 v3, 15, v0                    ; c
    v_lshrrev_b32 v4, 4, v0                 ; g
    """)

def wait_cnt(a, kind, n):
    L = a.uid("W")
    a(f"""
    s_lshl_b32 s{sF}, s{sSEG}, 10
    s_add_u32 s{sF}, s{sF}, {WS_CNT + kind}
    {L}:
    buffer_load_dword v{vCT}, v{vCA}, {S_WS}, s{sF} offen sc1
    s_waitcnt vmcnt(0)
    v_cmp_gt_u32 vcc, {n}, v{vCT}
    s_cbranch_vccz {L}_ok
    s_sub_u32 s{sBUD}, s{sBUD}, 1
    s_cmp_lg_u32 s{sBUD}, 0
    s_cbranch_scc1 {L}
    s_endpgm
    {L}_ok:
    """)

def arrive(a, kind, s_seg):
    L = a.uid("AR")
    a(f"""
    s_cmp_lg_u32 s{sWAVE}, 0
    s_cbranch_scc1 {L}
    s_lshl_b32 s{sF}, s{s_seg}, 10
    s_add_u32 s{sF}, s{sF}, {WS_CNT + kind}
    v_mov_b32 v{vCT}, 1
    s_mov_b64 exec, 1
    buffer_atomic_add v{vCT}, v{vCA}, {S_WS}, s{sF} offen
    s_mov_b64 exec, -1
    {L}:
    """)

def perm_rho(a, dst, tmp):
    a(f"""
    v_and_b32 v{dst}, 0x13, v2
    v_bfe_u32 v{tmp}, v2, 2, 1
    v_lshl_add_u32 v{dst}, v{tmp}, 3, v{dst}
    v_bfe_u32 v{tmp}, v2, 3, 1
    v_lshl_add_u32 v{dst}, v{tmp}, 2, v{dst}
    """)

def fetch_m(a, P, t0, lds):
    a(f"""
    s_lshl_b32 s{sA}, s{sSEG}, 13
    s_add_u32 s{sA}, s{sA}, {WS_MO}
    s_lshl_b32 s{sB}, s{sWAVE}, 10
    s_add_u32 s{sA}, s{sA}, s{sB}
    s_add_u32 s{sC}, s{sWAVE}, 4
    s_min_u32 s{sC}, s{sC}, 6
    s_sub_u32 s{sC}, s{sC}, s{sWAVE}
    s_lshl_b32 s{sC}, s{sC}, 10
    s_add_u32 s{sD}, s{sA}, s{sC}
    v_add_u32 v{t0+8}, s{sB}, v{vL16}
    v_add_u32 v{t0+9}, s{sC}, v{t0+8}
    {P}_m1:
    buffer_load_dword v{vCT}, v{vCA}, {S_WS}, s{sA} offen sc1
    s_waitcnt vmcnt(0)
    v_cmp_eq_u32 vcc, -1, v{vCT}
    s_cbranch_vccnz {P}_mbud
    buffer_load_dwordx4 {v(t0,4)}, v{vL16}, {S_WS}, s{sA} offen sc1
    buffer_load_dwordx4 {v(t0+4,4)}, v{vL16}, {S_WS}, s{sD} offen sc1
    s_waitcnt vmcnt(0)
    v_max3_u32 v{vCT}, v{t0}, v{t0+1}, v{t0+2}
    v_max3_u32 v{vCT}, v{vCT}, v{t0+3}, v{t0+4}
    v_max3_u32 v{vCT}, v{vCT}, v{t0+5}, v{t0+6}
    v_max_u32 v{vCT}, v{vCT}, v{t0+7}
    v_cmp_eq_u32 vcc, -1, v{vCT}
    s_cbranch_vccz {P}_mok
    {P}_mbud:
    s_sub_u32 s{sBUD}, s{sBUD}, 1
    s_cmp_lg_u32 s{sBUD}, 0
    s_cbranch_scc1 {P}_m1
    s_endpgm
    {P}_mok:
    ds_write_b128 v{t0+8}, {v(t0,4)} offset:{lds}
    ds_write_b128 v{t0+9}, {v(t0+4,4)} offset:{lds}
    s_waitcnt lgkmcnt(0)
    s_barrier
    """)

def gw(a, kind):
    P = "G" + kind
    W = lambda u, t: 256 + (u*28 + t)*4
    ACC, FR, TM, vOUT, vG = 16, 48, 72, 8, 9
    NR = 6
    step = 2 if kind == 'H' else 1
    cnt = {'B': C_VO, 'A': C_Y, 'H': C_H}[kind]
    a(f"{P}_entry:")
    lane_setup(a)
    if kind == 'B':
        a(f"""
        s_lshr_b32 s{sA}, s{sROLE}, 1
        s_and_b32 s{sB}, s{sROLE}, 1
        s_lshl_b32 s{sB}, s{sB}, 3
        s_lshl_b32 s{sC}, s{sWAVE}, 1
        s_add_u32 s{sB}, s{sB}, s{sC}
        v_lshlrev_b32 v5, 4, v3
        v_lshl_add_u32 v5, v1, 8, v5
        v_bfe_u32 v6, v0, 4, 1
        v_lshl_add_u32 v{vOUT}, v6, 14, v5
        v_mul_u32_u24 v6, {B_CT}, v6
        v_add_u32 v5, v5, v6
        s_mul_i32 s{sD}, s{sA}, {2*B_CT}
        s_mul_i32 s{sE}, s{sB}, 14336
        s_add_u32 s{sD}, s{sD}, s{sE}
        s_add_u32 s{sD}, s{sD}, {WS_B}
        s_lshl_b32 s42, s{sA}, 15
        s_lshl_b32 s{sE}, s{sB}, 10
        s_add_u32 s42, s42, s{sE}
        s_add_u32 s42, s42, {WS_VO}
        s_mov_b32 s{sSEG}, 0
        """)
        ustride, ostep = 14336, VO_STEP
    elif kind == 'A':
        perm_rho(a, 5, 6)
        a(f"""
        v_and_b32 v6, 1, v5
        v_mul_u32_u24 v6, 14336, v6
        v_lshrrev_b32 v5, 1, v5
        v_lshl_add_u32 v5, v5, 4, v6
        v_lshl_add_u32 v5, v1, 8, v5
        v_mov_b32 v{vOUT}, v{vL16}
        s_lshl_b32 s{sA}, s{sROLE}, 3
        s_lshl_b32 s{sC}, s{sWAVE}, 1
        s_add_u32 s{sA}, s{sA}, s{sC}
        s_mul_i32 s{sD}, s{sA}, 28672
        s_lshl_b32 s42, s{sA}, 11
        s_add_u32 s42, s42, {WS_Y}
        s_mov_b32 s{sSEG}, 0
        """)
        ustride, ostep = 28672, VO_STEP
    if kind in 'BA':
        for u in range(2):
            for t in range(28):
                if t and t % 8 == 0: a(f"s_add_u32 s{sD}, s{sD}, 4096")
                a(f"buffer_load_dwordx4 {v(W(u,t),4)}, v5, {S_WS}, s{sD} offen offset:{(t%8)*512}")
            if u == 0: a(f"s_add_u32 s{sD}, s{sD}, {ustride - 3*4096}")
    else:
        srd(a, 8, 66, F_BYTES)
        a(f"""
        s_and_b32 s{sSEG}, s{sROLE}, 1
        s_lshr_b32 s{sA}, s{sROLE}, 1
        s_lshl_b32 s{sA}, s{sA}, 2
        s_add_u32 s{sA}, s{sA}, s{sWAVE}
        s_lshl_b32 s{sD}, s{sA}, 7
        s_lshl_b32 s42, s{sA}, 12
        s_mul_i32 s{sE}, s{sSEG}, {H_STEP}
        s_add_u32 s42, s42, s{sE}
        s_add_u32 s42, s42, {WS_H}
        v_lshrrev_b32 v5, 3, v0
        v_mul_u32_u24 v5, 3584, v5
        v_and_b32 v6, 7, v0
        v_lshl_add_u32 v5, v6, 4, v5
        v_bfe_u32 v6, v0, 2, 2
        v_lshl_add_u32 v6, v1, 3, v6
        v_lshlrev_b32 v6, 7, v6
        v_bfe_u32 v7, v0, 4, 1
        v_lshl_add_u32 v6, v7, 5, v6
        v_lshl_add_u32 v{vOUT}, v7, 10, 0
        v_and_b32 v7, 1, v0
        v_lshl_add_u32 v6, v7, 4, v6
        v_bfe_u32 v7, v0, 1, 1
        v_lshl_add_u32 v6, v7, 3, v6
        s_mul_i32 s{sE}, s{sWAVE}, 14336
        v_add_u32 v6, s{sE}, v6
        v_lshl_add_u32 v{vOUT}, v1, 8, v{vOUT}
        v_lshl_add_u32 v{vOUT}, v3, 4, v{vOUT}
        v_lshlrev_b32 v10, 2, v2
        """)
        for rnd in range(4):
            for q in range(14):
                a(f"s_add_u32 m0, s{sE}, {q*1024}\n s_nop 0")
                a(f"buffer_load_dwordx4 v5, {S_W}, s{sD} offen lds")
                a(f"s_add_u32 s{sD}, s{sD}, {8*3584}")
            a("s_waitcnt vmcnt(0)")
            for u in range(2):
                for tt in range(7):
                    for z in range(2):
                        a(f"ds_read_b64_tr_b16 {v(W(u, rnd*7+tt) + 2*z, 2)}, v6 offset:{tt*2048 + z*512 + u*64}")
            a("s_waitcnt lgkmcnt(0)")
        a("s_barrier")
        ostep = H_STEP
    nst = 4
    def xdma():
        for q in range(7):
            if q % 4 == 0: a(f"s_add_u32 m0, s43, {q*1024}\n s_add_u32 s{sE}, s44, {q*1024}")
            a(f"buffer_load_dwordx4 v{vL16}, {S_WS}, s{sE} offen offset:{(q%4)*1024} lds")
        a(f"s_xor_b32 s43, s43, 0x8000\n s_add_u32 s44, s44, {step*28672}")
    a(f"""
    s_mul_i32 s43, s{sWAVE}, 7168
    s_mul_i32 s44, s{sSEG}, 28672
    s_add_u32 s44, s44, s43
    s_add_u32 s44, s44, {WS_XG}
    v_mov_b32 v11, v{vL16}
    s_mov_b32 s45, 0
    """)
    xdma()
    a("s_waitcnt vmcnt(0)")
    a(f"{P}_loop:")
    a(f"s_waitcnt vmcnt({nst})\n s_barrier")
    a(f"s_cmp_lt_u32 s45, 2\n s_cbranch_scc1 {P}_noar\n s_sub_u32 s46, s{sSEG}, {2*step}")
    arrive(a, cnt, 46)
    a(f"{P}_noar:")
    if kind == 'H':
        a(f"s_lshl_b32 s{sE}, s{sSEG}, 7\n s_add_u32 s{sE}, s{sE}, {WS_G}")
        a(f"buffer_load_dword v{vG}, v10, {S_WS}, s{sE} offen")
    xdma()
    fetch = lambda t: a(f"ds_read_b128 {v(FR+4*(t % NR),4)}, v11 offset:{t*1024}")
    for t in range(NR-1): fetch(t)
    for t in range(28):
        if t + NR - 1 < 28: fetch(t + NR - 1)
        a(f"s_waitcnt lgkmcnt({min(NR-1, 27-t)})")
        x = v(FR+4*(t % NR), 4)
        for u in range(2):
            c = "0" if t == 0 else v(ACC+16*u, 16)
            if kind == 'B': a(f"{MF32} {v(ACC+16*u,16)}, {x}, {v(W(u,t),4)}, {c}")
            else:           a(f"{MF32} {v(ACC+16*u,16)}, {v(W(u,t),4)}, {x}, {c}")
    a("v_xor_b32 v11, 0x8000, v11")
    if kind == 'H': a(f"s_waitcnt vmcnt(7)\n v_sub_f32 v{vG}, 1.0, v{vG}")
    a("s_nop 9")
    for u in range(2):
        if kind == 'H':
            for h0 in range(0, 16, 8):
                r = ACC + 16*u + h0
                for q in range(8): a(f"v_mul_f32 v{TM+16+q}, 0xbfb8aa3b, v{r+q}")
                for q in range(8): a(f"v_exp_f32 v{TM+16+q}, v{TM+16+q}")
                for q in range(8): a(f"v_add_f32 v{TM+16+q}, 1.0, v{TM+16+q}\n v_mul_f32 v{r+q}, v{vG}, v{r+q}")
                for q in range(8): a(f"v_rcp_f32 v{TM+16+q}, v{TM+16+q}")
                a("s_nop 0")
                for q in range(8): a(f"v_mul_f32 v{r+q}, v{TM+16+q}, v{r+q}")
        for be in range(2):
            r = ACC + 16*u + 8*be; t = TM + 8*u + 4*be
            order = (0, 4, 2, 6) if kind == 'B' else (0, 2, 4, 6)
            for q in range(4): a(f"v_cvt_pk_bf16_f32 v{t+q}, v{r+order[q]}, v{r+order[q]+1}")
            off = {'B': u*1024 + be*512, 'A': u*2048 + be*1024, 'H': u*2048 + be*512}[kind]
            a(f"buffer_store_dwordx4 {v(t,4)}, v{vOUT}, {S_WS}, s42 offen offset:{off} sc1")
    a(f"""
    s_add_u32 s42, s42, {step*ostep}
    s_add_u32 s45, s45, 1
    s_add_u32 s{sSEG}, s{sSEG}, {step}
    s_cmp_lt_u32 s{sSEG}, 64
    s_cbranch_scc1 {P}_loop
    s_waitcnt vmcnt(0)
    s_barrier
    s_sub_u32 s46, s{sSEG}, {2*step}
    """)
    arrive(a, cnt, 46)
    a(f"s_sub_u32 s46, s{sSEG}, {step}")
    arrive(a, cnt, 46)
    a("s_branch L_next_free")

def tu(a):
    P = "TU"
    W = lambda hh, k: 256 + (hh*7 + k)*8
    M, D, T, AD, t0 = 16, 48, 64, 72, 80
    a(f"{P}_entry:")
    lane_setup(a)
    a(f"""
    s_mul_i32 s{sD}, s{sROLE}, {B_CT}
    s_mul_i32 s{sE}, s{sWAVE}, {4*14336}
    s_add_u32 s{sD}, s{sD}, s{sE}
    s_add_u32 s{sD}, s{sD}, {WS_B}
    """)
    for i in range(56):
        if i and i % 4 == 0: a(f"s_add_u32 s{sD}, s{sD}, 4096")
        a(f"buffer_load_dwordx4 {v(256+4*i,4)}, v{vL16}, {S_WS}, s{sD} offen offset:{(i%4)*1024}")
    a(f"""
    v_and_b32 v5, 1, v0
    v_cmp_eq_u32 vcc, 1, v5
    v_mov_b32 v8, 0x44444444
    v_mov_b32 v6, 0xeeeeeeee
    v_cndmask_b32 v8, v8, v6, vcc
    v_lshlrev_b32 v6, 8, v4
    v_lshl_add_u32 v6, v5, 2, v6
    v_bfe_u32 v5, v0, 1, 3
    v_lshl_add_u32 v6, v5, 4, v6
    s_lshl_b32 s42, s{sROLE}, 12
    s_lshl_b32 s{sE}, s{sWAVE}, 10
    s_add_u32 s42, s42, s{sE}
    s_add_u32 s42, s42, {WS_UM}
    s_mov_b32 s{sSEG}, 0
    """)
    for k in range(7): a(f"v_add_u32 v{AD+k}, {k*1024}, v6")
    a(f"{P}_loop:")
    for r in range(16): a(f"v_mov_b32 v{D+r}, 0")
    fetch_m(a, P, t0, 0)
    for k in range(7):
        a(f"ds_read2_b32 {v(M+4*k,2)}, v{AD+k} offset0:0 offset1:2")
        a(f"ds_read2_b32 {v(M+4*k+2,2)}, v{AD+k} offset0:32 offset1:34")
    for k in range(7):
        a(f"s_waitcnt lgkmcnt({12-2*k})")
        for hh in range(4): a(f"{SM} {v(D+4*hh,4)}, {v(M+4*k,4)}, {v(W(hh,k),8)}, v8")
    a("s_nop 4")
    for hh in range(4):
        d = D + 4*hh
        a(f"v_add_f32 v{d}, v{d}, v{d+1}\n v_add_f32 v{d+2}, v{d+2}, v{d+3}\n v_cvt_pk_bf16_f32 v{T+hh}, v{d}, v{d+2}")
    a(f"buffer_store_dwordx4 {v(T,4)}, v{vL16}, {S_WS}, s42 offen sc1")
    a("s_waitcnt vmcnt(0)\n s_barrier")
    arrive(a, C_UM, sSEG)
    a(f"""
    s_add_u32 s42, s42, {UM_STEP}
    s_add_u32 s{sSEG}, s{sSEG}, 1
    s_cmp_lt_u32 s{sSEG}, 64
    s_cbranch_scc1 {P}_loop
    s_branch L_next
    """)

def o1(a):
    P = "O1"
    Y = lambda t: 256 + 4*t
    SX, SMM, FR, T, t0 = 16, 32, 48, 72, 88
    vG, vPX, vPM, vRW, vKM, vMX = 8, 9, 10, 11, 12, 13
    NR = 6; L_MM = 28672
    a(f"{P}_entry:")
    lane_setup(a)
    a(f"""
    s_lshr_b32 s{sSEG}, s{sROLE}, 2
    s_and_b32 s43, s{sROLE}, 3
    s_lshl_b32 s44, s43, 2
    s_add_u32 s44, s44, s{sWAVE}               ; head
    v_bfe_u32 v5, v0, 4, 1
    v_lshlrev_b32 v5, 10, v5
    v_lshl_add_u32 v5, v3, 4, v5               ; rt*1024 + c*16
    v_lshl_add_u32 v{vPX}, v1, 8, v5
    s_lshl_b32 s{sA}, s44, 11
    v_add_u32 v{vPX}, s{sA}, v{vPX}
    v_lshl_add_u32 v{vPM}, v1, 9, v5
    s_lshl_b32 s{sA}, s43, 11
    s_lshl_b32 s{sB}, s{sWAVE}, 2
    s_add_u32 s{sA}, s{sA}, s{sB}
    s_add_u32 s{sA}, s{sA}, 32768
    v_add_u32 v{vPM}, s{sA}, v{vPM}
    v_lshlrev_b32 v5, 2, v1
    v_sub_u32 v{vRW}, v2, v5
    v_and_b32 v5, 7, v0
    v_lshlrev_b32 v5, 4, v5
    v_lshl_add_u32 v{vKM}, v1, 7, v5
    v_lshlrev_b32 v14, 2, v2
    s_mul_i32 s45, s{sWAVE}, 7168
    """)
    a(f"{P}_loop:")
    a(f"""
    s_mul_i32 s{sA}, s{sSEG}, 28672
    s_add_u32 s{sA}, s{sA}, s45
    s_add_u32 s{sA}, s{sA}, {WS_XG}
    """)
    for q in range(7):
        if q % 4 == 0: a(f"s_add_u32 m0, s45, {q*1024}\n s_add_u32 s{sE}, s{sA}, {q*1024}")
        a(f"buffer_load_dwordx4 v{vL16}, {S_WS}, s{sE} offen offset:{(q%4)*1024} lds")
    a(f"s_lshl_b32 s{sE}, s{sSEG}, 7\n s_add_u32 s{sE}, s{sE}, {WS_G}")
    a(f"buffer_load_dword v{vG}, v14, {S_WS}, s{sE} offen")
    wait_cnt(a, C_Y, 28)
    a(f"""
    s_mul_i32 s{sA}, s{sSEG}, {VO_STEP}
    s_mul_i32 s{sB}, s44, 28672
    s_add_u32 s{sA}, s{sA}, s{sB}
    s_add_u32 s{sA}, s{sA}, {WS_Y}
    """)
    for t in range(28):
        if t and t % 4 == 0: a(f"s_add_u32 s{sA}, s{sA}, 4096")
        a(f"buffer_load_dwordx4 {v(Y(t),4)}, v{vL16}, {S_WS}, s{sA} offen offset:{(t%4)*1024} sc1")
    a("s_barrier")
    def scores(acc, base, stride, off0, vm):
        fetch = lambda t: a(f"ds_read_b128 {v(FR+4*(t % NR),4)}, v{base} offset:{off0 + t*stride}")
        for t in range(NR-1): fetch(t)
        for t in range(28):
            if t + NR - 1 < 28: fetch(t + NR - 1)
            a(f"s_waitcnt lgkmcnt({min(NR-1, 27-t)})" + (f" vmcnt({27-t})" if vm else ""))
            a(f"{MF32} {v(acc,16)}, {v(FR+4*(t % NR),4)}, {v(Y(t),4)}, {'0' if t == 0 else v(acc,16)}")
    scores(SX, vL16, 1024, 0, True)
    a(f"v_mov_b32 v{T}, 0xff800000\n s_nop 10")
    for b in range(4):
        for r in range(4):
            a(f"v_cmp_le_i32 vcc, {8*b+r}, v{vRW}\n s_nop 1\n v_cndmask_b32 v{SX+4*b+r}, v{T}, v{SX+4*b+r}, vcc")
    a(f"v_max3_f32 v{vMX}, v{SX}, v{SX+1}, v{SX+2}")
    for r in range(3, 15, 2): a(f"v_max3_f32 v{vMX}, v{vMX}, v{SX+r}, v{SX+r+1}")
    a(f"v_max_f32 v{vMX}, v{vMX}, v{SX+15}")
    fetch_m(a, P, t0, L_MM)
    scores(SMM, vKM, 256, L_MM, False)
    a("s_nop 11")
    a(f"v_max3_f32 v{vMX}, v{vMX}, v{SMM}, v{SMM+1}\n v_max3_f32 v{vMX}, v{vMX}, v{SMM+2}, v{SMM+3}")
    a(f"v_mov_b32 v{T}, v{vMX}\n s_nop 1\n v_permlane32_swap_b32 v{T}, v{vMX}\n v_max_f32 v{vMX}, v{vMX}, v{T}")
    vals = [SX+r for r in range(16)] + [SMM+r for r in range(4)]
    for r in vals: a(f"v_sub_f32 v{r}, v{r}, v{vMX}")
    for r in vals: a(f"v_exp_f32 v{r}, v{r}")
    a(f"v_add_f32 v{T}, v{vals[0]}, v{vals[1]}\n v_add_f32 v{T+1}, v{vals[2]}, v{vals[3]}")
    for i in range(4, 20, 2): a(f"v_add_f32 v{T}, v{T}, v{vals[i]}\n v_add_f32 v{T+1}, v{T+1}, v{vals[i+1]}")
    a(f"v_add_f32 v{T}, v{T}, v{T+1}\n v_mov_b32 v{T+1}, v{T}\n s_nop 1\n v_permlane32_swap_b32 v{T}, v{T+1}\n v_add_f32 v{T}, v{T}, v{T+1}")
    a(f"v_rcp_f32 v{T}, v{T}\n s_nop 0\n v_mul_f32 v{T}, v{T}, v{vG}")
    for r in vals: a(f"v_mul_f32 v{r}, v{r}, v{T}")
    a(f"s_mul_i32 s{sA}, s{sSEG}, {PX_STEP}\n s_add_u32 s{sA}, s{sA}, {WS_PX}")
    for be in range(2):
        for q, o in enumerate((0, 4, 2, 6)): a(f"v_cvt_pk_bf16_f32 v{T+4+4*be+q}, v{SX+8*be+o}, v{SX+8*be+o+1}")
        a(f"buffer_store_dwordx4 {v(T+4+4*be,4)}, v{vPX}, {S_WS}, s{sA} offen offset:{512*be} sc1")
    for q in range(2):
        a(f"v_cvt_pk_bf16_f32 v{T+12+q}, v{SMM+2*q}, v{SMM+2*q+1}")
        a(f"buffer_store_dword v{T+12+q}, v{vPM}, {S_WS}, s{sA} offen offset:{256*q} sc1")
    a("s_waitcnt vmcnt(0)\n s_barrier")
    arrive(a, C_P, sSEG)
    a(f"""
    s_add_u32 s{sSEG}, s{sSEG}, 8
    s_cmp_lt_u32 s{sSEG}, 64
    s_cbranch_scc1 {P}_loop
    s_branch L_next
    """)

def o2(a):
    P = "O2"
    W = lambda t, ct: 256 + (t*4 + ct)*4
    ACC, HF, VO = 16, 48, 160
    PXR, PMR, UMR = HF, HF + 32, HF + 40
    vRW_, vRR, vOA = 8, 9, 10
    a(f"{P}_entry:")
    lane_setup(a)
    srd(a, 8, 68, F_BYTES)
    a(f"""
    s_mul_i32 s{sSEG}, s{sROLE}, 9363
    s_lshr_b32 s{sSEG}, s{sSEG}, 16            ; role / 7
    s_mul_i32 s{sA}, s{sSEG}, 7
    s_sub_u32 s43, s{sROLE}, s{sA}
    s_mul_i32 s{sD}, s{sWAVE}, {448*896}
    s_lshl_b32 s{sA}, s43, 7
    s_add_u32 s{sD}, s{sD}, s{sA}
    v_lshrrev_b32 v5, 3, v0
    v_mul_u32_u24 v5, 896, v5
    v_and_b32 v6, 7, v0
    v_lshl_add_u32 v5, v6, 4, v5
    v_bfe_u32 v6, v0, 2, 2
    v_lshl_add_u32 v6, v4, 3, v6
    v_lshlrev_b32 v6, 7, v6
    v_and_b32 v7, 3, v0
    v_lshl_add_u32 v6, v7, 3, v6
    s_lshl_b32 s{sE}, s{sWAVE}, 14
    v_add_u32 v6, s{sE}, v6
    """)
    for rnd, nt in enumerate((4, 4, 4, 2)):
        for q in range(4*nt):
            a(f"s_add_u32 m0, s{sE}, {q*1024}\n s_nop 0")
            a(f"buffer_load_dwordx4 v5, {S_W}, s{sD} offen lds")
            a(f"s_add_u32 s{sD}, s{sD}, {8*896}")
        a("s_waitcnt vmcnt(0)")
        for tt in range(nt):
            for ct in range(4):
                for z in range(2):
                    a(f"ds_read_b64_tr_b16 {v(W(rnd*4+tt, ct) + 2*z, 2)}, v6 offset:{tt*4096 + z*512 + ct*32}")
        a("s_waitcnt lgkmcnt(0)")
    srd(a, 8, 70, X_BYTES)
    a(f"""
    s_barrier
    v_mul_u32_u24 v{vRW_}, 272, v3
    v_lshl_add_u32 v{vRW_}, v4, 4, v{vRW_}
    s_mul_i32 s{sA}, s{sWAVE}, 8704
    v_add_u32 v{vRW_}, s{sA}, v{vRW_}
    v_lshrrev_b32 v5, 3, v0
    s_lshl_b32 s{sA}, s{sWAVE}, 3
    v_add_u32 v5, s{sA}, v5
    v_and_b32 v6, 7, v0
    v_mul_u32_u24 v{vRR}, 272, v5
    v_lshl_add_u32 v{vRR}, v6, 5, v{vRR}
    v_mul_u32_u24 v{vOA}, 896, v5
    v_lshl_add_u32 v{vOA}, v6, 4, v{vOA}
    s_lshl_b32 s{sA}, s43, 7
    v_add_u32 v{vOA}, s{sA}, v{vOA}
    """)
    a(f"{P}_loop:")
    wait_cnt(a, C_H, 7)
    a(f"""
    s_mul_i32 s{sA}, s{sSEG}, {H_STEP}
    s_mul_i32 s{sB}, s{sWAVE}, {14*2048}
    s_add_u32 s{sA}, s{sA}, s{sB}
    s_add_u32 s{sA}, s{sA}, {WS_H}
    """)
    for i in range(28):
        if i and i % 4 == 0: a(f"s_add_u32 s{sA}, s{sA}, 4096")
        a(f"buffer_load_dwordx4 {v(HF+4*i,4)}, v{vL16}, {S_WS}, s{sA} offen offset:{(i%4)*1024} sc1")
    acc = lambda ct, rt: v(ACC + (ct*2 + rt)*4, 4)
    for t in range(14):
        for rt in range(2):
            a(f"s_waitcnt vmcnt({27 - 2*t - rt})")
            for ct in range(4): a(f"{MF16} {acc(ct,rt)}, {v(W(t,ct),4)}, {v(HF+8*t+4*rt,4)}, {'0' if t == 0 else acc(ct,rt)}")
    wait_cnt(a, C_VO, 28)
    a(f"""
    s_mul_i32 s{sA}, s{sSEG}, {VO_STEP}
    s_lshl_b32 s{sB}, s43, 16
    s_add_u32 s{sA}, s{sA}, s{sB}
    s_lshl_b32 s{sB}, s{sWAVE}, 12
    s_add_u32 s{sA}, s{sA}, s{sB}
    s_add_u32 s{sA}, s{sA}, {WS_VO}
    """)
    for ct in range(4):
        if ct: a(f"s_add_u32 s{sA}, s{sA}, 16384")
        for hh in range(4): a(f"buffer_load_dwordx4 {v(VO+(hh*4+ct)*4,4)}, v{vL16}, {S_WS}, s{sA} offen offset:{hh*1024} sc1")
    wait_cnt(a, C_P, 4)
    a(f"""
    s_mul_i32 s{sA}, s{sSEG}, {PX_STEP}
    s_add_u32 s{sA}, s{sA}, {WS_PX}
    s_lshl_b32 s{sB}, s{sWAVE}, 13
    s_add_u32 s{sB}, s{sA}, s{sB}
    s_add_u32 s{sC}, s{sB}, 4096
    s_lshl_b32 s{sD}, s{sWAVE}, 11
    s_add_u32 s{sD}, s{sD}, s{sA}
    s_add_u32 s{sD}, s{sD}, 32768
    """)
    for i in range(8): a(f"buffer_load_dwordx4 {v(PXR+4*i,4)}, v{vL16}, {S_WS}, s{sB + i//4} offen offset:{(i%4)*1024} sc1")
    for i in range(2): a(f"buffer_load_dwordx4 {v(PMR+4*i,4)}, v{vL16}, {S_WS}, s{sD} offen offset:{i*1024} sc1")
    for hh in range(4):
        for rt in range(2):
            a(f"s_waitcnt vmcnt({9 - 2*hh - rt})")
            for ct in range(4): a(f"{MF16} {acc(ct,rt)}, {v(VO+(hh*4+ct)*4,4)}, {v(PXR+8*hh+4*rt,4)}, {acc(ct,rt)}")
    wait_cnt(a, C_UM, 28)
    a(f"""
    s_mul_i32 s{sA}, s{sSEG}, {UM_STEP}
    s_lshl_b32 s{sB}, s43, 14
    s_add_u32 s{sA}, s{sA}, s{sB}
    s_lshl_b32 s{sB}, s{sWAVE}, 10
    s_add_u32 s{sA}, s{sA}, s{sB}
    s_add_u32 s{sA}, s{sA}, {WS_UM}
    """)
    for ct in range(4):
        if ct: a(f"s_add_u32 s{sA}, s{sA}, 4096")
        a(f"buffer_load_dwordx4 {v(UMR+4*ct,4)}, v{vL16}, {S_WS}, s{sA} offen sc1")
    for ct in range(4):
        a(f"s_waitcnt vmcnt({3-ct})")
        for rt in range(2): a(f"{MF16} {acc(ct,rt)}, {v(UMR+4*ct,4)}, {v(PMR+4*rt,4)}, {acc(ct,rt)}")
    a("s_nop 1")
    for ct in range(4):
        for rt in range(2):
            if ct == 3 and rt == 0: a("s_nop 3")
            a(f"ds_write_b128 v{vRW_}, {acc(ct,rt)} offset:{rt*16*272 + ct*64}")
    a("s_waitcnt lgkmcnt(0)\n s_barrier")
    for w in range(4):
        for q in range(2): a(f"ds_read_b128 {v(VO+8*w+4*q,4)}, v{vRR} offset:{w*8704 + q*16}")
    a(f"s_mul_i32 s{sA}, s{sSEG}, {32*896}")
    for w in range(1, 4):
        a(f"s_waitcnt lgkmcnt({6-2*w})")
        for q in range(8): a(f"v_add_f32 v{VO+q}, v{VO+q}, v{VO+8*w+q}")
    for q in range(4): a(f"v_cvt_pk_bf16_f32 v{VO+32+q}, v{VO+2*q}, v{VO+2*q+1}")
    a(f"buffer_store_dwordx4 {v(VO+32,4)}, v{vOA}, {S_W}, s{sA} offen")
    a(f"""
    s_barrier
    s_add_u32 s{sSEG}, s{sSEG}, 8
    s_cmp_lt_u32 s{sSEG}, 64
    s_cbranch_scc1 {P}_loop
    s_branch L_next
    """)

def bc_atomic(a, L, off, val):
    a(f"""
    s_cmp_lg_u32 s{sWAVE}, 0
    s_cbranch_scc1 {L}_w
    v_mov_b32 v1, {val}
    v_mov_b32 v2, {off}
    v_mov_b32 v3, {L_BC}
    s_mov_b64 exec, 1
    buffer_atomic_add v1, v2, {S_DBG}, 0 offen sc0
    s_waitcnt vmcnt(0)
    ds_write_b32 v3, v1
    s_waitcnt lgkmcnt(0)
    s_mov_b64 exec, -1
    {L}_w:
    v_mov_b32 v3, {L_BC}
    s_barrier
    ds_read_b32 v1, v3
    s_waitcnt lgkmcnt(0)
    v_readfirstlane_b32 s{sROLE}, v1
    s_barrier
    """)

def k2(a, name, o=None):
    o = o or team.Opt(diag=False)
    kernel_head(a, name)
    a(f"""
    s_cmp_ge_u32 s2, 256
    s_cbranch_scc1 L_exit
    s_load_dwordx2 s[64:65], s[0:1], 8
    s_load_dwordx4 s[68:71], s[0:1], 72        ; w2, gate_w
    s_load_dwordx2 s[66:67], s[0:1], 64
    s_load_dwordx4 s[72:75], s[0:1], 96
    s_load_dwordx2 s[76:77], s[0:1], 88
    s_getreg_b32 s18, hwreg(HW_REG_XCC_ID)
    v_lshrrev_b32 v1, 6, v0
    s_and_b32 s18, s18, 15
    v_readfirstlane_b32 s{sWAVE}, v1
    s_mov_b32 s{sBUD}, {o.budget}
    s_waitcnt lgkmcnt(0)
    s_mov_b32 s70, s76
    s_mov_b32 s71, s77
    """)
    srd(a, 4, 74, WS_BYTES); srd(a, 12, 72, 256); srd(a, 60, 64, 7168)
    a(f"s_cmp_lg_u32 s18, {o.team_xcc}\n s_cbranch_scc1 L_next")
    bc_atomic(a, "L_t0", D_TEAM, 1)
    a(f"""
    s_and_b32 s{sROLE}, s{sROLE}, 0xffff
    s_cmp_lt_u32 s{sROLE}, 32
    s_cbranch_scc1 L_team
    s_branch L_next
    L_next_free:
    """)
    bc_atomic(a, "L_t1", D_TEAM, 0)
    a(f"s_and_b32 s{sROLE}, s{sROLE}, 0xffff\n s_cmp_ge_u32 s{sROLE}, 32\n s_cbranch_scc1 L_next")
    bc_atomic(a, "L_t2", D_TEAM, 0x10001)
    a(f"""
    s_and_b32 s{sROLE}, s{sROLE}, 0xffff
    s_cmp_lt_u32 s{sROLE}, 32
    s_cbranch_scc1 L_team
    L_next:
    """)
    bc_atomic(a, "L_t3", D_TICK, 1)
    for lab, lo, hi in (("GB", T_TB, T_TA), ("GA", T_TA, T_TH), ("GH", T_TH, T_TU), ("TU", T_TU, T_O1), ("O1", T_O1, T_O2), ("O2", T_O2, T_END)):
        a(f"s_cmp_lt_u32 s{sROLE}, {hi - lo}\n s_cbranch_scc1 {lab}_entry\n s_sub_u32 s{sROLE}, s{sROLE}, {hi - lo}")
    a("L_exit:\n L_team_done:\n s_endpgm")
    gw(a, 'B'); gw(a, 'A'); gw(a, 'H'); tu(a); o1(a); o2(a)
    a("L_team:")
    team.team_body(a, o)
```

```python
WS_A  = 0x0000000
A_RANK = 14*7*2048
WS_B  = 0x0700000
B_CT  = 16*7*2048
WS_RING = 0x0E00000
R_P, R_S = 0x2000, 0x5000
WS_FL = 0x0E80000
WS_CNT = 0x0E90000
C_VO, C_Y, C_H, C_P, C_UM = 0, 128, 256, 384, 512
WS_DONE = 0x0E88000
WS_G  = 0x0EB0000
WS_MO = 0x0F00000
WS_UM = 0x1000000
UM_STEP = 28*4096
WS_XP = 0x1800000
WS_XG = 0x1A00000
WS_PX = 0x1C00000
PX_STEP = 40*1024
WS_VO = 0x2000000
VO_STEP = 28*16384
WS_Y  = 0x4000000
WS_H  = 0x6000000
H_STEP = 56*2048
WS_DIAG = 0xF000000
WS_BYTES = 1 << 28
X_BYTES = 2048*448*2
W_BYTES = 448*4096*2
F_BYTES = 448*1792*2
NSEG = 64
```

```python
from asmlib import *
from layout import *

L_M, L_Y, L_UM, L_MISC, L_S, L_B0, L_X0, L_X1, L_B1 = 0, 8192, 12288, 16384, 16640, 18432, 0xc000, 0x10000, 0x13800
TEAM_LDS = L_B1 + 30720
SM = "v_smfmac_f32_16x16x64_bf16"
S_WS, S_X, S_DBG = "s[4:7]", "s[8:11]", "s[12:15]"
sRANK, sWAVE, sH, sJ, sSTEP, sCT = 16, 17, 18, 19, 20, 21
sFL = 22
sCUR, sNXT, sPRV = 24, 25, 26
sVO, sXO, sUMO, sMO, sXL, sBUD = 30, 31, 32, 33, 34, 35
sT0, sT1, sT2, sT3 = 36, 37, 38, 39
sLOG2E, sM1, sM2, sXT = 44, 45, 46, 47
LOG2E = 0x3fb8aa3b
OOB = 0x7ff00000

class Opt:
    def __init__(self, **kw):
        self.trace = None
        self.nsteps = 63
        self.vo = True; self.xpf = True; self.outcopy = True
        self.rot = 1; self.kf = 4; self.nf = 6; self.ns = 4; self.kb3 = -2; self.f2pos = 1
        self.stf = 'sc1'; self.stpos = 17; self.vof = 'sc1'; self.vmw = 0; self.voflag = True; self.budget = 2000000; self.team_xcc = 0; self.b1y = 7; self.b0p = 2; self.nx0 = 0; self.umcopy = False; self.xfirst = 0; self.xpos = 'w2'; self.dumvo = True; self.funr = 2; self.nb2 = 2; self.nv0 = 9
        self.d1 = 0; self.d15 = 0; self.d2 = 0
        self.diag = True; self.vostep = VO_STEP; self.xstep = 32*896
        self.__dict__.update(kw)

def nops(a, n):
    while n > 0:
        k = min(n, 16); a(f"s_nop {k-1}"); n -= k

def load_regs(a, regs, soff, vaddr="v0"):
    for i, r in enumerate(regs):
        if i and i % 4 == 0: a(f"s_add_u32 s{soff}, s{soff}, 4096")
        a(f"buffer_load_dwordx4 {v(r,4)}, {vaddr}, {S_WS}, s{soff} offen offset:{(i%4)*1024}")

TR_S, TR_V3, TR_VY = 84, 160, 60
def stamp(a, o, kind, pt):
    if o.trace and pt in o.trace.get(kind, []):
        i = o.trace[kind].index(pt)
        a(f"s_memtime s[{TR_S+2*i}:{TR_S+2*i+1}]")
def stamp_flush(a, o, kind, w=None):
    if not o.trace or kind not in o.trace or (kind == 'y' and w == 0 and False): return
    n = len(o.trace[kind]); base = TR_V3 if kind == 'w3' else TR_VY
    a(f"s_memtime s[52:53]\n s_memrealtime s[50:51]\n s_mov_b32 m0, s{sSTEP}\n s_waitcnt lgkmcnt(0)")
    if kind == 'y':
        a(f"s_lshl_b32 s50, s{sRANK}, 2\n s_add_u32 s50, s50, {w}\n s_lshl_b32 s50, s50, 12\n s_lshl_b32 s51, s{sSTEP}, 2\n s_add_u32 s50, s50, s51\n s_add_u32 s50, s50, {WS_DIAG + 65536}\n v_mov_b32 v57, 0")
        for i in range(n): a(f"v_mov_b32 v58, s{TR_S+2*i}\n buffer_store_dword v58, v57, {S_WS}, s50 offen offset:{256*i}")
        return
    for i in range(n): a(f"v_writelane_b32 v{base+i}, s{TR_S+2*i}, m0")
    if kind == 'w3': a(f"v_writelane_b32 v{base+8}, s52, m0\n v_writelane_b32 v{base+9}, s50, m0")
def stamp0(a, o):
    if not o.diag: return
    lab = a.uid("L_st")
    a(f"s_cmp_lg_u32 s{sSTEP}, 4\n s_cbranch_scc1 {lab}\n s_memtime s[76:77]\n s_memrealtime s[78:79]\n s_mov_b32 s56, 0\n s_mov_b32 s57, 0\n s_mov_b32 s58, 0\n s_waitcnt lgkmcnt(0)\n {lab}:")
def count(a, o, r):
    if o.diag: a(f"s_add_u32 s{r}, s{r}, 1")

def ring_advance(a):
    a(f"""
    s_mov_b32 s{sPRV}, s{sCUR}
    s_mov_b32 s{sCUR}, s{sNXT}
    s_add_u32 s{sNXT}, s{sNXT}, 0x10000
    s_and_b32 s{sNXT}, s{sNXT}, {WS_RING | 0x30000}
    """)

def x_dma(s_goff, s_lds, kt):
    out = []
    for q in range(7):
        l = ""
        if q % 4 == 0:
            l += f"s_add_u32 m0, s{s_lds}, {kt*7168 + q*1024}\n s_add_u32 s{sT2}, s{s_goff}, {kt*7168 + q*1024}\n"
        out.append(l + f"buffer_load_dwordx4 v0, {S_WS}, s{sT2} offen offset:{(q%4)*1024} lds")
    return out

def budget_check(a, lab_dead):
    a(f"s_sub_u32 s{sBUD}, s{sBUD}, 1\n s_cmp_eq_u32 s{sBUD}, 0\n s_cbranch_scc1 {lab_dead}")

def flag_poll(a, o, P, regs, vaddr, off, s_want, preset=True):
    n = len(regs)
    if preset:
        for r in regs[1:]: a(f"v_mov_b32 v{r}, 0")
    a("s_mov_b32 exec_hi, 0")
    def body(i, wait=True):
        a(f"buffer_load_dword v{regs[i]}, {vaddr}, {S_WS}, s{sFL} offen offset:{off} sc1")
        if wait: a(f"s_waitcnt vmcnt({n-1})")
        a(f"v_cmp_gt_u32 vcc, s{s_want}, v{regs[(i+1)%n]}")
        a(f"s_cbranch_vccz {P}_fok")
    for i in range(n-1): body(i, False)
    body(n-1)
    a(f"{P}_fpoll:")
    for _ in range(o.funr):
        for i in range(n): body(i)
    a(f"s_sub_u32 s{sBUD}, s{sBUD}, 1\n s_cmp_lg_u32 s{sBUD}, 0\n s_cbranch_scc1 {P}_fpoll\n s_branch L_team_done")
    a(f"{P}_fok:")
    a("s_mov_b32 exec_hi, -1")

def ywave(a, o, w):
    P = f"Y{w}"
    D, M, DS, T = 12, 28, 8, 56
    YW2 = 3
    Aop = lambda t, k: 256 + (t*7 + k)*8
    def Bop(hh, k):
        i = hh*7 + k
        return 256 + 224 + i*8 if i < 4 else 64 + (i-4)*8
    a(f"s_mul_i32 s{sT0}, s{sRANK}, {A_RANK}\n s_add_u32 s{sT0}, s{sT0}, {WS_A + w*4*7*2048}")
    load_regs(a, [Aop(t,k)+4*hf for t in range(4) for k in range(7) for hf in range(2)], sT0)
    a(f"s_mul_i32 s{sT0}, s{sCT}, {B_CT}\n s_add_u32 s{sT0}, s{sT0}, {WS_B + w*4*7*2048}")
    load_regs(a, [Bop(h,k)+4*hf for h in range(4) for k in range(7) for hf in range(2)][:54 if w < 2 else 56], sT0)
    if w < 2:
        for q in range(30):
            if q % 4 == 0:
                a(f"s_mul_i32 s{sT0}, s{sCT}, {B_CT}\n s_add_u32 s{sT0}, s{sT0}, {WS_B + ((12+2*w)*14 + q if q < 28 else (4*w+3)*14 + 12)*1024}\n s_mov_b32 m0, {(L_B0, L_B1)[w] + q*1024}\n s_nop 0")
            a(f"buffer_load_dwordx4 v0, {S_WS}, s{sT0} offen offset:{(q%4)*1024} lds")
    if w == 0:
        a(f"""
        v_and_b32 v4, 7, v61
        v_lshlrev_b32 v4, 5, v4
        v_lshrrev_b32 v63, 1, v62
        v_lshl_add_u32 v4, v63, 8, v4
        v_and_b32 v63, 1, v62
        v_lshl_add_u32 v4, v63, 3, v4
        s_mul_i32 s{sT0}, s{sJ}, {14*256}
        v_add_u32 v4, s{sT0}, v4
        v_add_u32 v7, 2048, v4
        """)
    else:
        a(f"v_add_u32 v4, {L_X0 + (w-1)*7168}, v0\n v_add_u32 v7, {L_B1}, v0")
    a(f"""
    v_and_b32 v63, 1, v62
    v_mul_u32_u24 v5, 320, v63
    v_lshl_add_u32 v5, v61, 2, v5
    v_add_u32 v5, {0 if w == 0 else 32 + 64*(w-1)}, v5
    v_lshrrev_b32 v63, 1, v62
    v_cmp_eq_u32 vcc, s{sJ}, v63
    v_cmp_gt_u32 s[40:41], {8 if w == 0 else 16}, v61
    v_add_u32 v2, {L_S}, v5
    s_xor_b32 s{sT0}, s{sRANK}, 1
    s_mul_i32 s{sT0}, s{sT0}, 640
    s_add_u32 s{sT0}, s{sT0}, {R_S}
    v_add_u32 v5, s{sT0}, v5
    s_and_b64 s[42:43], vcc, s[40:41]
    s_andn2_b64 s[40:41], s[40:41], vcc
    v_mov_b32 v63, {OOB}
    v_cndmask_b32 v5, v63, v5, s[40:41]
    v_mov_b32 v63, {L_S + 1024}
    v_cndmask_b32 v2, v63, v2, s[42:43]
    """)
    common_lane_consts(a, w)
    if w == 2:
        a(f"s_mul_i32 s{sXO}, s{sJ}, 14336\n s_add_u32 s{sXO}, s{sXO}, {WS_XP}\n s_mov_b32 s{sXL}, {L_X0}")
        for l in x_dma(sXO, sXL, 0) + x_dma(sXO, sXL, 1): a(l)
        a(f"s_add_u32 s{sXO}, s{sXO}, {o.xstep}\n s_mov_b32 s{sXL}, {L_X1}")
    a(f"s_lshl_b32 s{sT1}, s{sRANK}, 12\n s_add_u32 s{sXT}, s{sT1}, {WS_UM + (w-1)*2048}\n s_add_u32 s{sUMO}, s{sXT}, {64*UM_STEP}")
    team_sync(a, o, P, w)
    def steps(P, ST):
        a(f"{P}_loop:")
        if o.umcopy and w:
            a(f"ds_read_b128 v[56:59], v0 offset:{L_UM + (w-1)*2048}\n ds_read_b128 v[60:63], v0 offset:{L_UM + (w-1)*2048 + 1024}")
        a(f"s_add_u32 s{sM1}, s{sCUR}, {w*1024}")
        for r in range(16): a(f"v_mov_b32 v{D+r}, 0")
        for r in range(4): a(f"v_mov_b32 v{DS+r}, 0")
        stamp0(a, o)
        if w == 0:
            a("v_lshrrev_b32 v63, 2, v0\n v_and_b32 v63, 127, v63")
            for r in [57,58,59,61,62]: a(f"v_mov_b32 v{r}, 0")
        a("s_waitcnt lgkmcnt(0)\n s_barrier   ; B4")
        if w == 0:
            flag_poll(a, o, P, [56,57,58,59,61,62][:o.nf], "v63", 0, sSTEP, preset=False)
        a(f"s_mov_b32 m0, {L_M + w*1024}")
        a("s_barrier                           ; B0")
        stamp(a, o, 'y', 0)
        def mfetch():
            a(f"buffer_load_dwordx4 v0, {S_WS}, s{sM1} offen sc1 lds")
            a(f"buffer_load_dwordx4 v0, {S_WS}, s{sM1} offen offset:3072 sc1 lds")
        a(f"buffer_load_dwordx4 v0, {S_WS}, s{sM1} offen sc1 lds")
        a("s_barrier   ; B0'")
        a(f"buffer_load_dwordx4 v0, {S_WS}, s{sM1} offen offset:3072 sc1 lds")
        sm = lambda t, k: a(f"{SM} {v(D+4*t,4)}, {v(M+4*k,4)}, {v(Aop(t,k),8)}, v1")
        mread = lambda k: a(f"ds_read_b128 {v(M+4*k,4)}, v0 offset:{L_M + 1024*k}")
        def keyread(hh, r):
            if w == 0:
                base, off = ("v4", hh*512) if hh < 4 else ("v7", (hh-4)*512)
                a(f"ds_read2_b64 {v(r,4)}, {base} offset0:{off//8} offset1:{off//8+2}")
            else: a(f"ds_read_b128 {v(r,4)}, v4 offset:{hh*1024}")
        a("s_waitcnt vmcnt(1)")
        stamp(a, o, 'y', 11)
        a("s_barrier   ; B1")
        for k in (0, 1, 2, 6): mread(k)
        a("s_waitcnt lgkmcnt(3)")
        stamp(a, o, 'y', 12)
        sm(0,0); sm(1,0); sm(2,0)
        a("s_waitcnt vmcnt(0)\n s_barrier   ; B1'")
        sm(3,0)
        mread(3); mread(4); mread(5)
        a(f"{P}_y:")
        a("s_waitcnt lgkmcnt(5)")
        sm(0,1); sm(1,1); sm(2,1); sm(3,1)
        a("s_waitcnt lgkmcnt(4)"); sm(0,2); sm(1,2)
        a("s_waitcnt lgkmcnt(3)"); sm(0,6); sm(1,6)
        a("s_waitcnt lgkmcnt(2)"); sm(0,3); sm(1,3)
        a("s_waitcnt lgkmcnt(0)"); sm(0,4); keyread(0, 56); sm(1,4); keyread(2, 60); sm(0,5); keyread(4, M); sm(1,5)
        sm(2,4); a("s_nop 1"); sm(3,4); a("s_nop 1"); sm(2,5)
        a(f"v_add_f32 v{D}, v{D}, v{D+1}\n v_add_f32 v{D+2}, v{D+2}, v{D+3}")
        sm(3,5)
        a(f"v_add_f32 v{D+4}, v{D+4}, v{D+5}\n v_add_f32 v{D+6}, v{D+6}, v{D+7}")
        sm(2,2)
        a(f"v_cmp_u_f32 vcc, v{D}, v{D+2}")
        a(f"v_cvt_pk_bf16_f32 v{D}, v{D}, v{D+4}")
        sm(3,2)
        a(f"v_cvt_pk_bf16_f32 v{D+2}, v{D+2}, v{D+6}")
        a(f"ds_write2_b32 v3, v{D}, v{D+2} offset0:0 offset1:8")
        sm(2,3); keyread(5, M+16)
        sm(3,3); keyread(6, M+20)
        sm(2,6); keyread(1, M+8)
        sm(3,6); keyread(3, M+12)
        stamp(a, o, 'y', 15)
        a("s_waitcnt lgkmcnt(4)\n s_barrier   ; B1y")
        a(f"ds_read_b128 {v(D,4)}, v0 offset:{L_Y}")
        a(f"ds_read_b128 {v(D+4,4)}, v0 offset:{L_Y + 1024}")
        a(f"s_cbranch_vccnz {P}_fail")
        a(f"{P}_yok:")
        a(f"v_add_f32 v{D+8}, v{D+8}, v{D+9}\n v_add_f32 v{D+10}, v{D+10}, v{D+11}")
        a(f"v_add_f32 v{D+12}, v{D+12}, v{D+13}\n v_add_f32 v{D+14}, v{D+14}, v{D+15}")
        a(f"v_cvt_pk_bf16_f32 v{D+8}, v{D+8}, v{D+12}")
        a(f"ds_write_b32 v3, v{D+8} offset:2048")
        a(f"v_cvt_pk_bf16_f32 v{D+10}, v{D+10}, v{D+14}")
        a(f"ds_write_b32 v3, v{D+10} offset:2080")
        ssm = lambda y, k: a(f"{SM} {v(DS,4)}, {v(y,4)}, {v(k,8)}, v1")
        a("s_waitcnt lgkmcnt(2)"); ssm(D, 56); ssm(D+4, M)
        a("s_waitcnt lgkmcnt(0)")
        stamp(a, o, 'y', 16)
        a("s_barrier   ; B2")
        stamp(a, o, 'y', 2)
        a(f"ds_read_b128 {v(D+8,4)}, v0 offset:{L_Y + 2048}\n ds_read_b128 {v(D+12,4)}, v0 offset:{L_Y + 3072}")
        for r in range(8): a(f"v_mov_b32 v{D+r}, 0")
        a("s_waitcnt lgkmcnt(1)"); ssm(D+8, M+8)
        a("s_waitcnt lgkmcnt(0)"); ssm(D+12, M+16)
        a("s_nop 7")
        a(f"v_add_f32 v{DS}, v{DS}, v{DS+1}")
        a(f"buffer_store_dword v{DS}, v5, {S_WS}, s{sCUR} offen{ST}")
        a(f"v_add_f32 v{DS+2}, v{DS+2}, v{DS+3}")
        a(f"buffer_store_dword v{DS+2}, v5, {S_WS}, s{sCUR} offen offset:160{ST}")
        stamp(a, o, 'y', 3)
        a(f"ds_write2_b32 v2, v{DS}, v{DS+2} offset0:0 offset1:40")
        a("s_waitcnt lgkmcnt(0)\n s_barrier   ; B2b")
        for k in range(7): a(f"ds_read_b128 {v(M+4*k,4)}, v0 offset:{L_M + 1024*k}")
        for r in range(8,16): a(f"v_mov_b32 v{D+r}, 0")
        if w < 2:
            mb_wave0(a, D, M, DS, Bop, w)
        else:
            a("s_waitcnt lgkmcnt(0)")
            mb_part(a, D, M, T, Bop, range(4))
            a(f"ds_write_b64 v6, {v(T,2)}")
            a(f"ds_write_b64 v6, {v(T+2,2)} offset:512")
        a("s_waitcnt lgkmcnt(0)")
        stamp(a, o, 'y', 4)
        stamp_flush(a, o, 'y', w)
        a("s_barrier   ; B3")
        if w == 2 and o.xpf and o.xpos == 'w2':
            for l in x_dma(sXO, sXL, 0) + x_dma(sXO, sXL, 1): a(l)
            a(f"s_add_u32 s{sXO}, s{sXO}, {o.xstep}\n s_xor_b32 s{sXL}, s{sXL}, 0x1c000")
        if w: a("v_xor_b32 v4, 0x1c000, v4")
        ring_advance(a)
        a(f"s_mov_b32 s{sUMO}, s{sXT}\n s_add_u32 s{sXT}, s{sXT}, {UM_STEP}")
        a(f"s_add_u32 s{sSTEP}, s{sSTEP}, 1\n s_cmp_lt_u32 s{sSTEP}, {o.nsteps}\n s_cbranch_scc1 {P}_loop")
        a(f"s_branch L_team_done")
        a(f"{P}_fail:")
        m_exact(a, P, DS, 6)
        a("s_waitcnt vmcnt(0) lgkmcnt(0)\n s_nop 7")
        budget_check(a, "L_team_done")
        for r in range(16): a(f"v_mov_b32 v{D+r}, 0")
        count(a, o, 56)
        a(f"s_mov_b32 m0, {L_M + w*1024}\n s_barrier")
        mfetch()
        a("s_waitcnt vmcnt(0)\n s_barrier")
        for k in (0, 1, 2, 6, 3, 4, 5): mread(k)
        a("s_waitcnt lgkmcnt(6)")
        sm(0,0); sm(1,0); sm(2,0); sm(3,0)
        a(f"s_branch {P}_y")

    both_modes(a, P, steps)

def m_exact(a, P, t, zero):
    a("s_mov_b64 s[40:41], 0")
    for k in range(7):
        a(f"ds_read_b128 {v(t,4)}, v0 offset:{L_M + 1024*k}\n s_waitcnt lgkmcnt(0)")
        a(f"v_max3_u32 v{t}, v{t}, v{t+1}, v{t+2}\n v_max_u32 v{t}, v{t}, v{t+3}")
        a(f"v_cmp_eq_u32 vcc, -1, v{t}\n s_or_b64 s[40:41], s[40:41], vcc")
    if zero:
        for r in range(4): a(f"v_mov_b32 v{t+r}, 0")
    a(f"s_cmp_eq_u64 s[40:41], 0\n s_cbranch_scc1 {P}_yok")

def mb_part(a, D, M, T, Bop, heads):
    pend = []
    for hh in heads:
        for k in range(7):
            a(f"{SM} {v(D+4*hh,4)}, {v(M+4*k,4)}, {v(Bop(hh,k),8)}, v1")
            if pend and k >= 4:
                if k == 4: a("s_nop 2")
                a(pend.pop(0))
        d = D + 4*hh
        pend = [f"v_add_f32 v{d}, v{d}, v{d+1}", f"v_add_f32 v{d+2}, v{d+2}, v{d+3}", f"v_cvt_pk_bf16_f32 v{T+hh}, v{d}, v{d+2}"]
    a("s_nop 7")
    for l in pend: a(l)

def mb_wave0(a, D, M, T, Bop, w):
    SB = [56, Bop(3,6)]
    nxt = [0]; q = [("m", k) for k in range(7)]
    def fetch():
        i = nxt[0]
        if i >= 15: return
        nxt[0] += 1
        base, off = ("v0", L_B0) if w == 0 else ("v7", 0)
        a(f"ds_read_b128 {v(SB[i%2],4)}, {base} offset:{off + i*2048}")
        a(f"ds_read_b128 {v(SB[i%2]+4,4)}, {base} offset:{off + i*2048 + 1024}")
        q.extend([("f", i)]*2)
    def need(tag):
        if tag in q:
            last = len(q) - 1 - q[::-1].index(tag)
            a(f"s_waitcnt lgkmcnt({len(q)-1-last})"); del q[:last+1]
    fetch(); fetch()
    sm = lambda d, k, b: a(f"{SM} {v(d,4)}, {v(M+4*k,4)}, {v(b,8)}, v1")
    epi = lambda d, t: [f"v_add_f32 v{d}, v{d}, v{d+1}", f"v_add_f32 v{d+2}, v{d+2}, v{d+3}", f"v_cvt_pk_bf16_f32 v{t}, v{d}, v{d+2}"]
    for k in range(7):
        need(("m", k)); sm(D, k, Bop(0,k)); sm(D+4, k, Bop(1,k))
        need(("f", k)); sm(D+8, k, SB[k%2]); fetch()
    fill = ["s_nop 3"] + epi(D, T) + epi(D+4, T+1) + [f"v_mov_b32 v{D+r}, 0" for r in range(8)]
    for k in range(7):
        sm(D+12, k, Bop(2,k))
        if k >= 1:
            for _ in range(3):
                if fill: a(fill.pop(0))
    assert not fill
    a(f"ds_write_b64 v6, {v(T,2)}"); q.append("w")
    for l in epi(D+8, T+2): a(l)
    for k in range(7):
        if k < 6: sm(D, k, Bop(3,k))
        need(("f", 7+k)); sm(D+4, k, SB[(7+k)%2]); fetch()
    need(("f", 14)); sm(D, 6, SB[0])
    for l in epi(D+12, T): a(l)
    a("s_nop 4")
    for l in epi(D+4, T+3) + epi(D, T+1): a(l)
    a(f"ds_write_b64 v6, {v(T+2,2)} offset:{3072 - 1024*w + 512*w}")
    a(f"ds_write_b64 v6, {v(T,2)} offset:512")

def common_lane_consts(a, w):
    a(f"""
    v_lshrrev_b32 v63, 3, v61
    v_lshlrev_b32 v3, 8, v63
    v_lshl_add_u32 v3, v62, 6, v3
    v_bfe_u32 v63, v61, 1, 1
    v_lshl_add_u32 v3, v63, 4, v3
    v_bfe_u32 v63, v61, 2, 1
    v_lshl_add_u32 v3, v63, 3, v3
    v_and_b32 v63, 1, v61
    v_lshl_add_u32 v3, v63, 2, v3
    v_add_u32 v3, {L_Y + (w*512 if w < 3 else 3584)}, v3
    v_lshrrev_b32 v63, 1, v62
    v_lshlrev_b32 v6, 8, v63
    v_lshl_add_u32 v6, v61, 4, v6
    v_and_b32 v63, 1, v62
    v_lshl_add_u32 v6, v63, 3, v6
    v_add_u32 v6, {L_UM + w*1024}, v6
    """)

def team_sync(a, o, P, w):
    a("s_waitcnt vmcnt(0) lgkmcnt(0)\n s_barrier")
    if w == 0:
        a(f"""
        s_mov_b64 exec, 1
        v_mov_b32 v56, 1
        v_mov_b32 v57, 64
        buffer_atomic_add v56, v57, {S_DBG}, 0 offen
        {P}_tsync:
        buffer_load_dword v56, v57, {S_DBG}, 0 offen sc0 sc1
        s_waitcnt vmcnt(0)
        v_readfirstlane_b32 s{sT0}, v56
        s_cmp_ge_u32 s{sT0}, 32
        s_cbranch_scc1 {P}_tsync_ok
        s_sub_u32 s{sBUD}, s{sBUD}, 1
        s_cmp_lg_u32 s{sBUD}, 0
        s_cbranch_scc1 {P}_tsync
        s_mov_b32 s{sBUD}, 1
        {P}_tsync_ok:
        v_mov_b32 v57, 0
        buffer_load_dword v56, v57, {S_DBG}, 0 offen sc0 sc1
        v_mov_b32 v57, {L_MISC}
        s_waitcnt vmcnt(0)
        ds_write_b32 v57, v56
        s_waitcnt lgkmcnt(0)
        s_mov_b64 exec, -1
        """)
    t = 58 if w < 3 else 64
    a(f"v_mov_b32 v{t}, {L_MISC}\n s_barrier\n ds_read_b32 v{t}, v{t}\n s_waitcnt lgkmcnt(0)\n v_readfirstlane_b32 s23, v{t}\n s_lshr_b32 s23, s23, 16")
    if o.diag: a("s_memrealtime s[82:83]\n s_waitcnt lgkmcnt(0)")

def both_modes(a, P, steps):
    a(f"s_cmp_lg_u32 s23, 0\n s_cbranch_scc1 {P}_far")
    steps(P, "")
    a(f"{P}_far:")
    steps(P + "f", " sc1")

def wave3(a, o):
    P = "W3"
    D, M, DY, DP, NEG = 12, 28, 20, 56, 60
    EX, SC, OWN, SET, FR = 64, 68, 76, 80, 136
    vFA, vFS, vST, vXT, vXD, vSG, vMO, vMA, vCN, vZ = 142, 143, 144, 145, 146, 147, 157, 158, 159, 184
    PR, vPA, vVA = 96, 148, 176
    U = 256 + 112
    Aop = lambda t, k: 256 + (t*7 + k)*8
    def Bop(hh, k):
        i = hh*7 + k
        return 256 + 192 + i*8 if i < 8 else 208 + (i-8)*8
    a(f"s_mul_i32 s{sT0}, s{sRANK}, {A_RANK}\n s_add_u32 s{sT0}, s{sT0}, {WS_A + 12*7*2048}")
    load_regs(a, [Aop(t,k)+4*hf for t in range(2) for k in range(7) for hf in range(2)], sT0)
    common_lane_consts(a, 3)
    for k in range(8):
        if o.rot: a(f"s_add_u32 s{sT0}, s{sRANK}, {k}\n s_and_b32 s{sT0}, s{sT0}, 7")
        else: a(f"s_mov_b32 s{sT0}, {k}")
        a(f"s_lshl_b32 s{sT1}, s{sT0}, 11\n v_add_u32 v{vVA+k}, s{sT1}, v0")
        a(f"s_lshl_b32 s{sT1}, s{sT0}, 10\n s_add_u32 s{sT1}, s{sT1}, {R_P + 2048}\n v_add_u32 v{vPA+k}, s{sT1}, v0")
    a(f"""
    v_add_u32 v{vPA+8}, {R_P}, v0
    v_cmp_gt_u32 vcc, 10, v61
    v_mov_b32 v63, 0x7f800000
    v_mov_b32 v9, 0x42800000
    v_mul_u32_u24 v2, 160, v62
    v_cndmask_b32 v9, v63, v9, vcc
    v_cndmask_b32 v63, 0, v61, vcc
    v_lshl_add_u32 v2, v63, 4, v2
    s_mul_i32 s{sT0}, s{sRANK}, 640
    s_add_u32 s{sT0}, s{sT0}, {R_S}
    v_add_u32 v{vSG}, s{sT0}, v2
    v_add_u32 v2, {L_S}, v2
    v_mov_b32 v63, {L_S + 1536}
    v_cndmask_b32 v2, v63, v2, vcc
    v_mov_b32 v{SC}, 0xf149f2ca
    v_mov_b32 v{SC+1}, 0xf149f2ca
    v_mov_b32 v{SC+2}, 0xf149f2ca
    v_mov_b32 v{SC+3}, 0xf149f2ca
    ds_write_b128 v63, {v(SC,4)}
    v_lshrrev_b32 v59, 1, v61
    s_lshl_b32 s{sT0}, s{sH}, 2
    s_add_u32 s{sT0}, s{sT0}, 15
    v_add_u32 v59, s{sT0}, v59
    v_mov_b32 v58, s{sH}
    v_cmp_gt_u32 s[40:41], 2, v61
    s_nop 1
    v_cndmask_b32 v59, v59, v58, s[40:41]    ; u
    v_lshrrev_b32 v58, 1, v59
    v_lshlrev_b32 v4, 8, v58
    v_and_b32 v58, 1, v59
    v_lshl_add_u32 v4, v58, 4, v4
    v_and_b32 v58, 1, v61
    v_lshl_add_u32 v4, v58, 3, v4
    v_lshl_add_u32 v4, v62, 5, v4
    s_lshl_b32 s{sT0}, s{sJ}, 7
    s_add_u32 s{sT0}, s{sT0}, {R_P}
    v_add_u32 v4, s{sT0}, v4
    v_mov_b32 v58, {OOB}
    v_cndmask_b32 v4, v58, v4, vcc
    v_cndmask_b32 v10, v58, v{vSG}, vcc
    v_cmp_eq_u32 vcc, 0, v60
    s_lshl_b32 s{sT0}, s{sRANK}, 2
    v_mov_b32 v57, s{sT0}
    v_cndmask_b32 v{vFS}, v58, v57, vcc
    v_and_b32 v57, 31, v60
    v_lshlrev_b32 v{vFA}, 2, v57
    v_mov_b32 v{vST}, 0
    buffer_store_dword v{vST}, v{vFS}, {S_WS}, s{sFL} offen sc1
    buffer_store_dword v{vST}, v{vFS}, {S_WS}, s{sFL} offen offset:2048 sc1
    v_and_b32 v58, 1, v61
    v_lshl_add_u32 v59, v62, 1, v58
    v_lshlrev_b32 v5, 5, v59
    v_bfe_u32 v57, v61, 1, 1
    v_lshl_add_u32 v5, v57, 4, v5
    v_lshrrev_b32 v57, 2, v61
    v_lshl_add_u32 v5, v57, 2, v5
    s_lshl_b32 s{sT0}, s{sRANK}, 8
    v_add_u32 v5, s{sT0}, v5
    v_lshlrev_b32 v{vMA}, 4, v59
    v_bfe_u32 v57, v61, 3, 1
    v_lshl_add_u32 v{vMA}, v57, 7, v{vMA}
    v_bfe_u32 v57, v61, 1, 2
    v_lshl_add_u32 v{vMA}, v57, 2, v{vMA}
    v_add_u32 v{vMA}, s{sT0}, v{vMA}
    v_mov_b32 v{vZ}, 0
    v_cmp_eq_u32 vcc, 1, v58
    v_mov_b32 v8, 0x01000504
    v_mov_b32 v57, 0x07060302
    v_cndmask_b32 v8, v8, v57, vcc
    v_mul_u32_u24 v59, 896, v59
    v_lshrrev_b32 v57, 1, v61
    v_lshl_add_u32 v59, v57, 2, v59
    s_lshl_b32 s{sT0}, s{sCT}, 5
    v_add_u32 v59, s{sT0}, v59
    buffer_load_dword v{vMO}, v59, s[60:63], 0 offen
    v_min_u32 v{vXT}, 13, v60
    v_lshlrev_b32 v{vXT}, 6, v{vXT}
    s_mov_b32 s{sLOG2E}, {LOG2E}
    s_lshl_b32 s{sT1}, s{sCT}, 14
    s_add_u32 s{sVO}, s{sT1}, {WS_VO}
    s_mul_i32 s{sXT}, s{sRANK}, 896
    s_add_u32 s{sXT}, s{sXT}, {WS_XP + o.xstep}
    s_mul_i32 s{sXO}, s{sJ}, 14336
    s_add_u32 s{sXO}, s{sXO}, {WS_XP + o.xstep}
    s_mov_b32 s{sXL}, {L_X1}
    s_mov_b32 s{sMO}, {WS_MO}
    """)
    for r in range(16): a(f"v_mov_b32 v{D+r}, 0")
    for r in range(4): a(f"v_mov_b32 v{NEG+r}, -1\n v_mov_b32 v{DP+r}, 0")
    for r in range(6): a(f"v_mov_b32 v{FR+r}, 0")
    a(f"ds_write_b128 v0, {v(D,4)} offset:{L_Y + 1024}")
    for sl in range(4):
        a(f"s_mov_b32 s{sT0}, {WS_RING + sl*0x10000}")
        a(f"buffer_store_dwordx4 {v(NEG,4)}, v10, {S_WS}, s{sT0} offen sc1")
        a(f"buffer_store_dwordx2 {v(NEG,2)}, v4, {S_WS}, s{sT0} offen sc1")
        if sl: a(f"buffer_store_dword v{NEG}, v5, {S_WS}, s{sT0} offen sc1")
    a("s_waitcnt vmcnt(0)")
    a(f"buffer_store_dword v{vMO}, v5, {S_WS}, s{sCUR} offen sc1")
    def vo_wait(L):
        a(f"""
        {L}:
        buffer_load_dword v{vCN}, v{vZ}, {S_WS}, s{sUMO} offen sc1
        s_waitcnt vmcnt(0)
        v_cmp_gt_u32 vcc, 28, v{vCN}
        s_cbranch_vccz {L}_ok
        s_sub_u32 s{sBUD}, s{sBUD}, 1
        s_cmp_lg_u32 s{sBUD}, 0
        s_cbranch_scc1 {L}
        s_branch L_team_done
        """)
    a(f"s_mov_b32 s{sUMO}, {WS_CNT + C_VO}")
    if o.voflag:
        vo_wait("W3_vo0"); a("W3_vo0_ok:")
    a(f"s_add_u32 s{sUMO}, s{sUMO}, 1024")
    team_sync(a, o, P, 3)
    def steps(P, ST):
        a(f"s_add_u32 s{sM1}, s{sCUR}, 6144\n s_mov_b32 s{sT3}, 0")
        a("s_barrier")
        a(f"{P}_loop:")
        a(f"s_mov_b32 m0, {L_M + 6144}")
        a("s_barrier                           ; B0")
        stamp(a, o, 'w3', 0)
        a(f"buffer_load_dwordx4 v0, {S_WS}, s{sM1} offen sc1 lds")
        vq = []
        if o.outcopy:
            vq.append(f"buffer_store_dword v{vMO}, v{vMA}, {S_WS}, s{sMO} offen {o.stf}")
        if o.voflag: vq.append(f"buffer_load_dword v{vCN}, v{vZ}, {S_WS}, s{sUMO} offen sc1")
        if o.xpf:
            vq.append(f"buffer_load_dword v{vXD}, v{vXT}, {S_WS}, s{sXT} offen")
        if o.vo:
            for k in range(8):
                vq.append(f"buffer_load_dwordx4 {v(U+16+8*k,4)}, v{vVA+k}, {S_WS}, s{sVO} offen {o.vof}")
                vq.append(f"buffer_load_dwordx4 {v(U+20+8*k,4)}, v{vVA+k}, {S_WS}, s{sVO} offen offset:1024 {o.vof}")
        xq = x_dma(sXO, sXL, 0) + x_dma(sXO, sXL, 1) if o.xpf else []
        if o.xfirst: vq = vq[:2] + xq[:o.nx0] + vq[2:]
        else: vq += xq[:o.nx0]
        xq = xq[o.nx0:]
        a("s_barrier   ; B0'")
        a(f"s_add_u32 s{sXT}, s{sXT}, {o.xstep}\n s_add_u32 s{sT3}, s{sT3}, 1\n v_add_u32 v{vST}, 1, v{vST}")
        nops(a, o.b0p)
        nv = min(o.nv0, len(vq))
        for _ in range(nv): a(vq.pop(0))
        a(f"s_waitcnt vmcnt({nv})\n s_barrier   ; B1")
        korder = (0, 1, 2, 6, 3, 4, 5)
        mread = lambda k: a(f"ds_read_b128 {v(M+4*k,4)}, v0 offset:{L_M + 1024*k}")
        for k in korder[:4]: mread(k)
        a(f"s_barrier   ; B1'")
        for k in korder[4:]: mread(k)
        while vq: a(vq.pop(0))
        stamp(a, o, 'w3', 10)
        a(f"{P}_y:")
        for n, k in enumerate(korder):
            a(f"s_waitcnt lgkmcnt({6-n})")
            a(f"{SM} {v(DY,4)}, {v(M+4*k,4)}, {v(Aop(0,k),8)}, v1")
            a(f"{SM} {v(DY+4,4)}, {v(M+4*k,4)}, {v(Aop(1,k),8)}, v1")
            if n + 1 == o.b1y: a("s_barrier   ; B1y")
        sets = [SET+4*i for i in range(o.ns)]
        for r in sets[1:]: a(f"v_mov_b32 v{r}, -1")
        a(f"s_nop {7 - len(sets)}")
        a(f"v_add_f32 v{DY}, v{DY}, v{DY+1}\n v_add_f32 v{DY+2}, v{DY+2}, v{DY+3}")
        a(f"v_cmp_u_f32 vcc, v{DY}, v{DY+2}")
        a(f"v_add_f32 v{DY+4}, v{DY+4}, v{DY+5}\n v_add_f32 v{DY+6}, v{DY+6}, v{DY+7}")
        a(f"v_cvt_pk_bf16_f32 v{DY}, v{DY}, v{DY+4}\n v_cvt_pk_bf16_f32 v{DY+2}, v{DY+2}, v{DY+6}")
        a(f"s_cbranch_vccnz {P}_fail")
        a(f"{P}_yok:")
        a(f"ds_write2_b32 v3, v{DY}, v{DY+2} offset0:0 offset1:8")
        stamp(a, o, 'w3', 11)
        a("s_waitcnt lgkmcnt(0)\n s_barrier   ; B2")
        stamp(a, o, 'w3', 1)
        if o.xpos == 'b2':
            for l in xq: a(l)
        stamp(a, o, 'w3', 2)
        if o.vmw:
            a("s_waitcnt vmcnt(0)"); stamp(a, o, 'w3', 21)
        a("s_barrier   ; B2b")
        a(f"ds_read_b128 {v(OWN,4)}, v2\n s_waitcnt lgkmcnt(0)")
        nops(a, o.d15)
        a(f"{P}_spoll:")
        for i in range(o.ns):
            r = sets[(i+1) % o.ns]
            a(f"buffer_load_dwordx4 {v(sets[i],4)}, v{vSG}, {S_WS}, s{sCUR} offen sc1")
            a(f"s_waitcnt vmcnt({o.ns-1})")
            a(f"v_max3_u32 v7, v{r}, v{r+1}, v{r+2}\n v_max_u32 v7, v7, v{r+3}")
            a(f"v_cmp_eq_u32 vcc, -1, v7\n s_cbranch_vccz {P}_sok{i}")
        count(a, o, 57)
        a(f"s_sub_u32 s{sBUD}, s{sBUD}, 1\n s_cmp_lg_u32 s{sBUD}, 0\n s_cbranch_scc1 {P}_spoll\n s_branch L_team_done")
        f2 = f"buffer_store_dword v{vST}, v{vFS}, {S_WS}, s{sFL} offen offset:2048{ST}"
        for i in range(o.ns):
            r = sets[(i+1) % o.ns]
            a(f"{P}_sok{i}:")
            stamp(a, o, 'w3', 3)
            if o.f2pos == 0: a(f2)
            for q in range(4): a(f"v_add_f32 v{SC+q}, v{r+q}, v{OWN+q}")
            a(f"v_max3_f32 v7, |v{SC}|, |v{SC+1}|, |v{SC+2}|")
            a(f"v_exp_f32 v{EX}, v{SC}")
            a(f"v_max_f32_e64 v7, v7, |v{SC+3}|")
            a(f"v_exp_f32 v{EX+1}, v{SC+1}")
            a(f"v_cmp_nle_f32 vcc, v7, v9")
            a(f"v_exp_f32 v{EX+2}, v{SC+2}\n v_exp_f32 v{EX+3}, v{SC+3}")
            a(f"v_add_f32 v7, v{EX}, v{EX+1}\n v_add_f32 v11, v{EX+2}, v{EX+3}")
            if i != o.ns-1: a(f"s_cbranch_vccz {P}_sexp\n s_branch {P}_smax")
            else: a(f"s_cbranch_vccnz {P}_smax")
        a(f"{P}_sexp:")
        a("v_add_f32 v7, v7, v11")
        for n, sh in enumerate((8, 4, 2, 1)):
            if n + 1 == o.f2pos: a(f2 + "\n s_nop 0")
            else: a("s_nop 1")
            a(f"v_add_f32_dpp v7, v7, v7 row_ror:{sh} row_mask:0xf bank_mask:0xf")
        a("v_rcp_f32 v7, v7\n s_nop 0")
        a(f"v_mul_f32 v{SC}, v{EX}, v7\n v_mul_f32 v{SC+1}, v{EX+1}, v7\n v_mul_f32 v{SC+2}, v{EX+2}, v7")
        a(f"v_cvt_pk_bf16_f32 v{SC+4}, v{SC}, v{SC+1}\n v_mul_f32 v{SC+3}, v{EX+3}, v7\n v_cvt_pk_bf16_f32 v{SC+5}, v{SC+2}, v{SC+3}")
        a(f"buffer_store_dwordx2 {v(SC+4,2)}, v4, {S_WS}, s{sCUR} offen{ST}")
        stamp(a, o, 'w3', 4)
        order = list(range(2,10)) + [0, 1]
        def pround():
            for k in order:
                if k < 2: a(f"buffer_load_dwordx4 {v(PR+4*k,4)}, v{vPA+8}, {S_WS}, s{sCUR} offen offset:{k*1024} sc1")
                else: a(f"buffer_load_dwordx4 {v(PR+4*k,4)}, v{vPA+k-2}, {S_WS}, s{sCUR} offen sc1")
        flag_poll(a, o, P, list(range(FR, FR+o.nf)), f"v{vFA}", 2048, sT3, preset=False)
        nops(a, o.d2)
        stamp(a, o, 'w3', 40)
        pround()
        if o.xpos == 'pr':
            for l in xq: a(l)
        nxl = len(xq) if o.xpos == 'pr' else 0
        if o.kb3 == -2:
            a("s_waitcnt lgkmcnt(0)\n s_barrier   ; B3")
            for q in range(4): a(f"ds_read_b128 {v(U+4*q,4)}, v0 offset:{L_UM + 1024*q}")
        for r in range(8): a(f"v_mov_b32 v{DY+r}, 0")
        a(f"""
        s_add_u32 s{sVO}, s{sVO}, {o.vostep}
        s_add_u32 s{sM1}, s{sNXT}, 6144
        s_add_u32 s{sMO}, s{sMO}, 8192
        """)
        if o.voflag:
            a(f"v_cmp_gt_u32 vcc, 28, v{vCN}\n s_cbranch_vccnz {P}_vo\n {P}_vo_ok:\n s_add_u32 s{sUMO}, s{sUMO}, 1024")
        stamp0(a, o)
        if o.kb3 == -1:
            a("s_waitcnt lgkmcnt(0)\n s_barrier   ; B3")
            for q in range(4): a(f"ds_read_b128 {v(U+4*q,4)}, v0 offset:{L_UM + 1024*q}")
        def pu(first):
            for n, k in enumerate(order):
                r = PR + 4*k
                a(f"s_waitcnt vmcnt({9-n + (nxl if first else 0) + (1 if (first and n > o.kf) else 0)})" + (" lgkmcnt(0)" if n == 8 else ""))
                if first: stamp(a, o, 'w3', 50+n)
                a(f"{SM} {v(DP,4)}, {v(r,4)}, {v(U+8*k,8)}, v1")
                if first and n == o.kf: a(f"buffer_store_dword v{vST}, v{vFS}, {S_WS}, s{sFL} offen{ST}")
                if first and n == o.kb3:
                    a("s_waitcnt lgkmcnt(0)\n s_barrier   ; B3")
                    for q in range(4): a(f"ds_read_b128 {v(U+4*q,4)}, v0 offset:{L_UM + 1024*q}")
        pu(True)
        a("s_barrier   ; B4\n s_nop 6")
        a(f"{P}_pchk:")
        a(f"v_add_f32 v{DP}, v{DP}, v{DP+1}\n v_add_f32 v{DP+2}, v{DP+2}, v{DP+3}")
        a(f"v_cvt_pk_bf16_f32 v7, v{DP}, v{DP+2}")
        a(f"v_cmp_u_f32 vcc, v{DP}, v{DP+2}\n s_nop 0")
        a("v_mov_b32_dpp v11, v7 quad_perm:[1,0,3,2] row_mask:0xf bank_mask:0xf")
        a(f"v_perm_b32 v{vMO}, v7, v11, v8")
        a(f"v_cndmask_b32 v7, v{vMO}, v{NEG}, vcc")
        a(f"buffer_store_dword v7, v5, {S_WS}, s{sNXT} offen{ST}")
        a(f"s_cbranch_vccnz {P}_pfail")
        a(f"{P}_pok:")
        stamp(a, o, 'w3', 5)
        a(f"buffer_store_dword v{NEG}, v5, {S_WS}, s{sCUR} offen{ST}")
        a(f"buffer_store_dwordx2 {v(NEG,2)}, v4, {S_WS}, s{sPRV} offen{ST}")
        a(f"buffer_store_dwordx4 {v(NEG,4)}, v10, {S_WS}, s{sCUR} offen{ST}")
        if o.xpos == 'pub':
            for l in xq: a(l)
        a(f"s_add_u32 s{sXO}, s{sXO}, {o.xstep}\n s_xor_b32 s{sXL}, s{sXL}, 0x1c000")
        for r in range(4): a(f"v_mov_b32 v{DP+r}, 0")
        stamp_flush(a, o, 'w3')
        ring_advance(a)
        nops(a, o.d1)
        a(f"s_add_u32 s{sSTEP}, s{sSTEP}, 1")
        a(f"s_cmp_lt_u32 s{sSTEP}, {o.nsteps}\n s_cbranch_scc1 {P}_loop")
        if o.outcopy: a(f"buffer_store_dword v{vMO}, v{vMA}, {S_WS}, s{sMO} offen {o.stf}")
        a("s_branch L_team_done")
        if o.voflag: vo_wait(f"{P}_vo")
        a(f"{P}_fail:")
        m_exact(a, P, OWN, 0)
        a("s_waitcnt vmcnt(0) lgkmcnt(0)\n s_nop 7")
        budget_check(a, "L_team_done")
        for r in range(8): a(f"v_mov_b32 v{DY+r}, 0")
        count(a, o, 56)
        a(f"s_mov_b32 m0, {L_M + 6144}\n s_barrier")
        a(f"buffer_load_dwordx4 v0, {S_WS}, s{sM1} offen sc1 lds")
        a("s_waitcnt vmcnt(0)\n s_barrier")
        for k in korder: mread(k)
        a(f"s_branch {P}_y")
        a(f"{P}_smax:")
        a(f"v_max3_f32 v7, v{SC}, v{SC+1}, v{SC+2}\n v_max_f32 v7, v7, v{SC+3}")
        for sh in (8, 4, 2, 1):
            a("s_nop 1")
            a(f"v_max_f32_dpp v7, v7, v7 row_ror:{sh} row_mask:0xf bank_mask:0xf")
        for r in range(4): a(f"v_sub_f32 v{SC+r}, v{SC+r}, v7")
        for r in range(4): a(f"v_exp_f32 v{EX+r}, v{SC+r}")
        if o.f2pos == 0: pass
        a(f"v_add_f32 v7, v{EX}, v{EX+1}\n v_add_f32 v11, v{EX+2}, v{EX+3}\n s_branch {P}_sexp")
        a(f"{P}_pfail:")
        a("v_mov_b32 v7, 0")
        for r in range(PR, PR+40, 2): a(f"v_max3_u32 v7, v{r}, v{r+1}, v7")
        a(f"v_cmp_eq_u32 vcc, -1, v7\n s_cbranch_vccnz {P}_pagain")
        a(f"buffer_store_dword v{vMO}, v5, {S_WS}, s{sNXT} offen{ST}\n s_branch {P}_pok")
        a(f"{P}_pagain:")
        budget_check(a, "L_team_done")
        count(a, o, 58)
        a("s_nop 7")
        for r in range(4): a(f"v_mov_b32 v{DP+r}, 0")
        pround()
        pu(False)
        a("s_nop 7")
        a(f"s_branch {P}_pchk")

    both_modes(a, P, steps)

def team_body(a, o):
    a(f"""
    s_lshr_b32 s{sH}, s{sRANK}, 1
    s_and_b32 s{sJ}, s{sRANK}, 1
    s_sub_u32 s{sT0}, s{sRANK}, 28
    s_cmp_ge_u32 s{sRANK}, 28
    s_cselect_b32 s{sCT}, s{sT0}, s{sRANK}
    s_mov_b32 s{sFL}, {WS_FL}
    s_mov_b32 s{sSTEP}, 0
    s_mov_b32 s{sCUR}, {WS_RING}
    s_mov_b32 s{sNXT}, {WS_RING + 0x10000}
    s_mov_b32 s{sPRV}, {WS_RING + 0x30000}
    s_mov_b32 s56, 0
    s_mov_b32 s57, 0
    s_mov_b32 s58, 0
    v_and_b32 v60, 63, v0
    v_and_b32 v61, 15, v60
    v_lshrrev_b32 v62, 4, v60
    v_lshlrev_b32 v0, 4, v60
    v_and_b32 v63, 1, v60
    v_cmp_eq_u32 vcc, 1, v63
    v_mov_b32 v1, 0x44444444
    v_mov_b32 v63, 0xeeeeeeee
    v_cndmask_b32 v1, v1, v63, vcc
    s_cmp_eq_u32 s{sWAVE}, 3
    s_cbranch_scc1 W3_entry
    s_cmp_eq_u32 s{sWAVE}, 2
    s_cbranch_scc1 Y2_entry
    s_cmp_eq_u32 s{sWAVE}, 1
    s_cbranch_scc1 Y1_entry
    """)
    ywave(a, o, 0)
    a("Y1_entry:"); ywave(a, o, 1)
    a("Y2_entry:"); ywave(a, o, 2)
    a("W3_entry:"); wave3(a, o)
```

```python
import sys
import build as B
from team import Opt
N='gated_mix__memory_aug_recurrent_mem_tr__dense_activation_silu__prompt'
kw=eval('dict(%s)'%(sys.argv[2] if len(sys.argv)>2 else ''))
dst=sys.argv[1] if len(sys.argv)>1 and sys.argv[1]!='-' else N+'.s'
import asmlib
asmlib.DBGT['on']=kw.pop('dbgt',False)
import k2
k2.PROBE[:]=kw.pop('probe',[0,63])
head=open('header.txt').read()
open(dst,'w').write(head+B.gen(None,Opt(diag=False,**kw)))
print(dst)
```

```python
class Asm:
    def __init__(self):
        self.lines = []
        self._uid = 0
    def __call__(self, s=""):
        for l in s.split("\n"):
            l = l.strip()
            if not l:
                continue
            if l.endswith(":") or l.startswith("."):
                self.lines.append(l)
            elif l.startswith(";"):
                self.lines.append("    " + l)
            else:
                self.lines.append("    " + l)
    def raw(self, s):
        self.lines.append(s)
    def label(self, name):
        self.lines.append(name + ":")
    def uid(self, p="L"):
        self._uid += 1
        return f"{p}_{self._uid}"
    def text(self):
        return "\n".join(self.lines) + "\n"

def v(i, n=1):
    if i >= 256:
        assert i + n <= 512
        j = i - 256
        return f"a{j}" if n == 1 else f"a[{j}:{j+n-1}]"
    assert i + n <= 256, (i, n)
    return f"v{i}" if n == 1 else f"v[{i}:{i+n-1}]"

def s(i, n=1):
    return f"s{i}" if n == 1 else f"s[{i}:{i+n-1}]"

def kernel_head(a, name):
    a(f".globl {name}")
    a(".p2align 8")
    a(f".type {name},@function")
    a.label(name)

def kernel_desc(a, name, vgpr=512, sgpr=102, accum=256, kernarg=112):
    a('.section .rodata,"a"')
    a(".p2align 6")
    a(f".amdhsa_kernel {name}")
    a.raw(f"  .amdhsa_next_free_vgpr {vgpr}")
    a.raw(f"  .amdhsa_next_free_sgpr {sgpr}")
    a.raw(f"  .amdhsa_accum_offset {accum}")
    a.raw("  .amdhsa_group_segment_fixed_size 0")
    a.raw(f"  .amdhsa_kernarg_size {kernarg}")
    a.raw("  .amdhsa_user_sgpr_count 2")
    a.raw("  .amdhsa_user_sgpr_kernarg_segment_ptr 1")
    a.raw("  .amdhsa_system_sgpr_workgroup_id_x 1")
    a.raw("  .amdhsa_float_denorm_mode_32 3")
    a(".end_amdhsa_kernel")
    a(".text")

def srd(a, d, base, nbytes, off=0):
    if off:
        a(f"s_add_u32 s{d}, s{base}, {off}")
        a(f"s_addc_u32 s{d+1}, s{base+1}, 0")
    else:
        a(f"s_mov_b32 s{d}, s{base}")
        a(f"s_mov_b32 s{d+1}, s{base+1}")
    a(f"s_mov_b32 s{d+2}, {nbytes}")
    a(f"s_mov_b32 s{d+3}, 0x00020000")

DIAG = {'on': False}
def tstamp(a, slot, wave_sgpr, ws="s[4:7]", base=0xF100000, tmp=(253, 254), extra=None):
    if not DIAG['on']: return
    L = a.uid("TS")
    a(f"""
    s_cmp_lg_u32 s{wave_sgpr}, 0
    s_cbranch_scc1 {L}
    s_memrealtime s[100:101]
    s_waitcnt lgkmcnt(0)
    v_mov_b32 v{tmp[0]}, {'s100' if extra is None else extra}
    s_lshl_b32 s100, s3, 8
    s_add_u32 s100, s100, {base + slot*4}
    v_mov_b32 v{tmp[1]}, s100
    buffer_store_dword v{tmp[0]}, v{tmp[1]}, {ws}, 0 offen
    s_memtime s[100:101]
    s_waitcnt lgkmcnt(0)
    v_mov_b32 v{tmp[0]}, s100
    buffer_store_dword v{tmp[0]}, v{tmp[1]}, {ws}, 0 offen offset:128
    {L}:
    """)
```

```python
import sys
from asmlib import *
from layout import *
import k1 as K1
NAME = 'gated_mix__memory_aug_recurrent_mem_tr__dense_activation_silu__prompt'
def gen(only=None, o=None):
    import k2 as K2
    a = Asm()
    a.raw(f"; @launch grid=(256,1,1) block=(256,1,1) lds={K2.K2_LDS}")
    a('.amdgcn_target "amdgcn-amd-amdhsa--gfx950"'); a('.text')
    K2.k2(a, NAME + "_kernel", o)
    kernel_desc(a, NAME + "_kernel", vgpr=512, accum=256)
    return a.text()
if __name__ == '__main__':
    only = sys.argv[1] if len(sys.argv) > 1 else None
    open('out.s', 'w').write(gen(only))
```

```python
from asmlib import *
from layout import *
K1_LDS = 163840
MF = "v_mfma_f32_32x32x16_bf16"
S_WS, S_P, S_S, S_X, S_GW = "s[4:7]", "s[8:11]", "s[24:27]", "s[28:31]", "s[52:55]"
sMAT, sJ, sDG, sHD, sW, sBLK, sSO, sT, sLD, sU = 40, 42, 43, 44, 17, 46, 47, 48, 49, 50
sSG, sQ, sPO, sIT, sQS, sPS = 45, 34, 33, 32, 19, 20
EXP=[0]
BUF = 45056
L_XS = 3*BUF

def products(a, ptr_x, ptr_w, ptr_gw):
    RS, RB, HS = (13, 8192, 9) if not EXP[0] else (9, 512, 18)
    ACC, PV, FR = 4, 116, 132
    vT, vT2, vST, vPA, vSA, vRP, vRS = 208, 209, 212, 214, 216, 224, 228
    vHI, vC, vL = 205, 206, 207
    a(f"""
    s_and_b32 s{sMAT}, s2, 7
    s_lshl_b32 s{sMAT}, s{sMAT}, 2
    s_bfe_u32 s41, s2, 0x20003
    s_or_b32 s{sMAT}, s{sMAT}, s41
    s_lshr_b32 s41, s2, 5
    s_and_b32 s{sJ}, s41, 1
    s_lshr_b32 s{sDG}, s41, 1
    s_and_b32 s{sHD}, s{sMAT}, 15              ; head
    s_lshl_b32 s{sQ}, s{sJ}, 1
    s_add_u32 s{sQ}, s{sQ}, s{sDG}
    s_movk_i32 s{sQS}, 128
    s_cmp_ge_u32 s{sMAT}, 16
    s_cselect_b32 s8, s{ptr_w+4}, s{ptr_w}
    s_cselect_b32 s9, s{ptr_w+5}, s{ptr_w+1}
    s_cselect_b32 s24, s{ptr_w+6}, s{ptr_w+2}
    s_cselect_b32 s25, s{ptr_w+7}, s{ptr_w+3}
    s_cselect_b32 s{sQS}, {64*896}, s{sQS}
    s_mov_b32 s10, {W_BYTES}
    s_mov_b32 s11, 0x00020000
    s_mov_b32 s26, {W_BYTES}
    s_mov_b32 s27, 0x00020000
    s_lshl_b32 s{sBLK}, s{sDG}, 2
    s_add_u32 s{sBLK}, s{sBLK}, s{sW}
    v_and_b32 v{vL}, 63, v0
    v_lshrrev_b32 v{vHI}, 5, v{vL}
    v_and_b32 v{vC}, 31, v{vL}
    v_lshrrev_b32 v{vT}, 3, v{vL}
    v_lshrrev_b32 v{vT2}, 4, v{vL}
    v_xor_b32 v{vT2}, v{vT2}, v{vL}
    v_and_b32 v{vT2}, 7, v{vT2}
    v_lshlrev_b32 v{vT2}, 4, v{vT2}
    v_lshl_add_u32 v{vSA}, v{vT}, {RS}, v{vT2}
    v_and_b32 v{vPA}, 3, v{vT}
    v_lshrrev_b32 v{vT}, 2, v{vT}
    v_lshl_add_u32 v{vPA}, v{vT}, 3, v{vPA}
    v_lshl_add_u32 v{vPA}, v{vPA}, {RS}, v{vT2}
    v_xor_b32 v{vPA+1}, 64, v{vPA}
    s_min_u32 s{sT}, s{sBLK}, 13
    s_lshl_b32 s{sPO}, s{sT}, {RS+5}
    s_mul_i32 s{sT}, s{sHD}, {512 if not EXP[0] else 229376}
    s_add_u32 s{sPO}, s{sPO}, s{sT}
    s_cmp_ge_u32 s{sMAT}, 16
    s_cbranch_scc1 K1_setB
    s_and_b32 s{sLD}, s{sW}, 1
    s_lshl_b32 s{sLD}, s{sLD}, 6
    v_xor_b32 v{vSA}, s{sLD}, v{vSA}
    s_mul_i32 s{sSO}, s{sJ}, {224*RB}
    s_add_u32 s{sSO}, s{sSO}, s{sT}
    s_lshl_b32 s{sT}, s{sW}, {RS+3}
    s_add_u32 s{sSO}, s{sSO}, s{sT}
    """)
    for i in range(1, 7): a(f"v_add_u32 v{vSA+i}, {i*32*RB}, v{vSA}")
    a(f"""
    s_branch K1_set
    K1_setB:
    s_lshl_b32 s{sT}, s{sW}, 6
    v_add_u32 v{vST}, s{sT}, v{vL}
    """)
    for i in range(7):
        a(f"""
        v_add_u32 v{vT}, {256*i}, v{vST}
        v_mul_u32_u24 v{vT2}, 2341, v{vT}
        v_lshrrev_b32 v{vT2}, 16, v{vT2}           ; /28
        v_mul_u32_u24 v{vSA+i}, 448, v{vT2}
        v_lshl_add_u32 v{vSA+i}, v{vT}, 4, v{vSA+i}
        """)
    a(f"""
    s_mul_i32 s{sSO}, s{sHD}, 229376
    s_mul_i32 s{sT}, s{sJ}, 448
    s_add_u32 s{sSO}, s{sSO}, s{sT}
    K1_set:
    s_lshl_b32 s{sLD}, s{sW}, 10
    s_lshl_b32 s{sPS}, s{sW}, 12
    s_add_u32 s{sPS}, s{sPS}, 28672
    """)
    def quarter(priv):
        a(f"s_and_b32 s{sQ}, s{sQ}, 3")
        if priv:
            a(f"s_lshl_b32 s{sT}, s{sQ}, 7\n s_add_u32 s51, s{sT}, s{sPO}")
            for i in range(4):
                a(f"s_add_u32 m0, s{sPS}, {i*1024}\n s_add_u32 s{sT}, s51, {(16*(i >> 1) + 4*(i & 1))*RB}")
                a(f"buffer_load_dwordx4 v{vPA + (i & 1)}, {S_P}, s{sT} offen lds")
        a(f"s_mul_i32 s{sT}, s{sQ}, s{sQS}\n s_add_u32 s{sT}, s{sT}, s{sSO}")
        for i in range(7):
            a(f"s_add_u32 m0, s{sLD}, {i*4096}\n s_nop 0")
            a(f"buffer_load_dwordx4 v{vSA+i}, {S_S}, s{sT} offen lds")
        a(f"s_add_u32 s{sQ}, s{sQ}, 1")
    def next_buf():
        a(f"s_add_u32 s{sLD}, s{sLD}, {BUF}\n s_add_u32 s{sPS}, s{sPS}, {BUF}")
    a(f"s_cmp_ge_u32 s{sBLK}, 14\n s_cbranch_scc1 K1_side\n s_mov_b32 s{sIT}, 0\n K1_first:")
    quarter(True); next_buf()
    a(f"s_add_u32 s{sIT}, s{sIT}, 1\n s_cmp_lt_u32 s{sIT}, 2\n s_cbranch_scc1 K1_first")
    tstamp(a, 10, sW); dstamp(a, 2, sW, few=True)
    for r in range(112): a(f"v_mov_b32 v{ACC+r}, 0")
    a(f"""
    v_bfe_u32 v{vT}, v{vC}, 1, 3
    v_xor_b32 v{vT}, v{vT}, v{vHI}
    v_lshlrev_b32 v{vT}, 4, v{vT}
    v_lshl_add_u32 v{vT}, v{vC}, 7, v{vT}
    s_lshl_b32 s{sT}, s{sW}, 12
    s_add_u32 s{sT}, s{sT}, 28672
    v_add_u32 v{vRP}, s{sT}, v{vT}
    v_lshrrev_b32 v{vT}, 4, v{vC}
    v_and_b32 v{vT2}, 15, v{vC}
    v_lshlrev_b32 v{vST}, 4, v{vT2}
    v_lshl_add_u32 v{vST}, v{vHI}, 8, v{vST}
    s_lshr_b32 s{sU}, s{sBLK}, 1
    s_lshl_b32 s{sU}, s{sU}, 11
    s_and_b32 s{sT}, s{sBLK}, 1
    s_lshl_b32 s{sT}, s{sT}, 10
    s_add_u32 s{sU}, s{sU}, s{sT}              ; T*2048 + half*1024
    s_mov_b32 s{sIT}, 0
    """)
    for t in range(1, 4): a(f"v_xor_b32 v{vRP+t}, {t << 5}, v{vRP}")
    a(f"s_cmp_ge_u32 s{sMAT}, 16\n s_cbranch_scc1 K1_mainB")
    def main(kind):
        NR = 6 if kind == 'A' else 5
        nad = 4 if kind == 'A' else 1
        if kind == 'A':
            a(f"""
            v_mul_u32_u24 v{vRS}, 14336, v{vT}
            v_add_u32 v{vST}, v{vST}, v{vRS}
            v_lshl_add_u32 v{vT}, v{vT2}, 1, v{vT}
            v_bfe_u32 v{vT2}, v{vT}, 1, 3
            v_xor_b32 v{vT2}, v{vT2}, v{vHI}
            v_lshlrev_b32 v{vT2}, 4, v{vT2}
            v_lshl_add_u32 v{vRS}, v{vT}, 7, v{vT2}
            s_lshl_b32 s{sT}, s{sHD}, 1
            s_add_u32 s{sT}, s{sT}, s{sJ}
            s_mul_i32 s{sT}, s{sT}, {A_RANK}
            s_add_u32 s{sU}, s{sU}, s{sT}
            s_mov_b32 s{sSG}, {2*14336}
            """)
            for t in range(1, 4): a(f"v_xor_b32 v{vRS+t}, {t << 5}, v{vRS}")
        else:
            a(f"""
            v_mul_u32_u24 v{vRS}, {B_CT}, v{vT}
            v_add_u32 v{vST}, v{vST}, v{vRS}
            v_bfe_u32 v{vT}, v{vL}, 2, 2
            v_lshl_add_u32 v{vT}, v{vHI}, 3, v{vT}
            v_mul_u32_u24 v{vRS}, 448, v{vT}
            v_bfe_u32 v{vT}, v{vL}, 4, 1
            v_lshl_add_u32 v{vRS}, v{vT}, 5, v{vRS}
            v_and_b32 v{vT}, 3, v{vL}
            v_lshl_add_u32 v{vRS}, v{vT}, 3, v{vRS}
            s_mul_i32 s{sT}, s{sJ}, {14*B_CT}
            s_add_u32 s{sU}, s{sU}, s{sT}
            s_mul_i32 s{sT}, s{sHD}, {7*2048}
            s_add_u32 s{sU}, s{sU}, s{sT}
            s_add_u32 s{sU}, s{sU}, {WS_B}
            s_mov_b32 s{sSG}, {2*B_CT}
            """)
        a(f"K1_loop{kind}:")
        if DIAG['on']:
            for it in range(4):
                L = a.uid("TI"); a(f"s_cmp_lg_u32 s{sIT}, {it}\n s_cbranch_scc1 {L}"); tstamp(a, 11+it, sW); a(f"{L}:")
        a(f"s_cmp_eq_u32 s{sIT}, 3\n s_cbranch_scc1 K1_w0{kind}\n s_waitcnt vmcnt({13 if DIAG['on'] else 11})\n s_branch K1_w1{kind}\n K1_w0{kind}:\n s_waitcnt vmcnt(0)\n K1_w1{kind}:\n s_barrier")
        seq = [(t, p) for t in range(4) for p in range(7)]
        nper = 1 if kind == 'A' else 2
        def fetch(n):
            t, p = seq[n]; r = FR + 4*(n % NR)
            if kind == 'A': a(f"ds_read_b128 {v(r,4)}, v{vRS + t} offset:{p*4096}")
            else:
                a(f"ds_read_b64_tr_b16 {v(r,2)}, v{vRS} offset:{t*7168 + p*64}")
                a(f"ds_read_b64_tr_b16 {v(r+2,2)}, v{vRS} offset:{t*7168 + p*64 + 1792}")
        for t in range(4): a(f"ds_read_b128 {v(PV+4*t,4)}, v{vRP + t}")
        for n in range(NR-1): fetch(n)
        a(f"s_cmp_ge_u32 s{sIT}, 2\n s_cbranch_scc1 K1_nq{kind}")
        quarter(True)
        a(f"s_sub_u32 s{sLD}, s{sLD}, {2*BUF}\n s_sub_u32 s{sPS}, s{sPS}, {2*BUF}\n K1_nq{kind}:")
        for n, (t, p) in enumerate(seq):
            if n + NR - 1 < len(seq): fetch(n + NR - 1)
            a(f"s_waitcnt lgkmcnt({min(NR - 1, len(seq) - 1 - n)*nper})")
            a(f"{MF} {v(ACC+16*p,16)}, {v(PV+4*t,4)}, {v(FR+4*(n % NR),4)}, {v(ACC+16*p,16)}")
        a(f"s_mov_b32 s{sT}, {BUF}\n s_cmp_eq_u32 s{sIT}, 2\n s_cselect_b32 s{sT}, {-2*BUF & 0xffffffff}, s{sT}")
        for t in range(4): a(f"v_add_u32 v{vRP+t}, s{sT}, v{vRP+t}")
        for t in range(nad): a(f"v_add_u32 v{vRS+t}, s{sT}, v{vRS+t}")
        a(f"s_add_u32 s{sIT}, s{sIT}, 1\n s_cmp_lt_u32 s{sIT}, 4\n s_cbranch_scc1 K1_loop{kind}")
    main('A')
    a("s_branch K1_store\n K1_mainB:")
    main('B')
    a("K1_store:")
    tstamp(a, 2, sW); dstamp(a, 3, sW, few=True)
    for p in range(7):
        for be in range(2):
            r = ACC + 16*p + 8*be
            for q in range(4): a(f"v_cvt_pk_bf16_f32 v{r+q}, v{r+2*q}, v{r+2*q+1}")
            a(f"buffer_store_dwordx4 {v(r,4)}, v{vST}, {S_WS}, s{sU} offen offset:{512*be} sc1")
        if p < 6: a(f"s_add_u32 s{sU}, s{sU}, s{sSG}")
    a("s_branch K1_done")
    a("K1_side:")
    srd(a, 28, ptr_x, X_BYTES); srd(a, 52, ptr_gw, 896)
    a(f"""
    s_lshl_b32 s{sSG}, s{sMAT}, 1
    s_add_u32 s{sSG}, s{sSG}, s{sJ}
    s_mul_i32 s{sU}, s{sSG}, {32*896}
    s_sub_u32 s{sT}, s{sW}, 2
    s_mul_i32 s{sT}, s{sT}, 14336
    s_add_u32 s{sPO}, s{sU}, s{sT}
    s_add_u32 s{sPS}, s{sT}, {L_XS}
    v_lshlrev_b32 v{vST}, 4, v{vL}
    """)
    quarter(False); a(f"s_add_u32 s{sLD}, s{sLD}, {BUF}")
    for q in range(14):
        if q % 4 == 0: a(f"s_add_u32 m0, s{sPS}, {q*1024}\n s_add_u32 s{sT}, s{sPO}, {q*1024}")
        a(f"buffer_load_dwordx4 v{vST}, {S_X}, s{sT} offen offset:{(q%4)*1024} lds")
    quarter(False); a(f"s_add_u32 s{sLD}, s{sLD}, {BUF}")
    a("s_waitcnt vmcnt(21)\n s_barrier")
    quarter(False); a(f"s_sub_u32 s{sLD}, s{sLD}, {2*BUF}")
    a("s_waitcnt vmcnt(7)\n s_barrier")
    quarter(False)
    def xstore(n, swap):
        if n and n % 4 == 0: a(f"s_add_u32 s{sU}, s{sU}, 4096")
        if swap: a(f"v_swap_b32 v{4*n+1}, v{4*n+2}")
        a(f"buffer_store_dwordx4 {v(4*n,4)}, v{vST}, {S_WS}, s{sU} offen offset:{(n%4)*1024} sc1")
    a(f"""
    s_cmp_eq_u32 s{sW}, 3
    s_cbranch_scc1 K1_side3
    v_lshlrev_b32 v{vT2}, 4, v{vHI}
    v_mul_u32_u24 v{vT}, 896, v{vC}
    v_add3_u32 v{vT}, v{vT}, v{vT2}, s{sPS}
    """)
    GW = lambda t: 112 + 4*t if t < 22 else 224 + 4*(t-22)
    for t in range(28):
        if t == 14: a("s_waitcnt lgkmcnt(0)")
        a(f"ds_read_b128 {v(4*t,4)}, v{vT} offset:{32*t}")
    for t in range(28): a(f"buffer_load_dwordx4 {v(GW(t),4)}, v{vT2}, {S_GW}, 0 offen offset:{32*t}")
    a(f"s_add_u32 s{sU}, s{sU}, {WS_XG}\n v_mov_b32 v210, 0\n v_mov_b32 v211, 0")
    a("s_waitcnt vmcnt(35) lgkmcnt(0)\n s_barrier")
    for t in range(14): xstore(t, False)
    a("s_waitcnt vmcnt(42)\n s_barrier")
    for t in range(14, 28): xstore(t, False)
    a("s_waitcnt vmcnt(28)")
    for t in range(28):
        for q in range(4): a(f"v_dot2_f32_bf16 v{210 + (q&1)}, v{4*t+q}, v{GW(t)+q}, v{210 + (q&1)}")
    a(f"""
    s_nop 2
    v_add_f32 v210, v210, v211
    v_mov_b32 v211, v210
    s_nop 1
    v_permlane32_swap_b32 v210, v211
    v_add_f32 v210, v210, v211
    v_mul_f32 v210, 0xbfb8aa3b, v210
    v_exp_f32 v210, v210
    s_nop 0
    v_add_f32 v210, 1.0, v210
    v_rcp_f32 v210, v210
    v_lshlrev_b32 v{vT}, 2, v{vC}
    s_lshl_b32 s{sU}, s{sSG}, 7
    s_add_u32 s{sU}, s{sU}, {WS_G}
    buffer_store_dword v210, v{vT}, {S_WS}, s{sU} offen sc1
    s_branch K1_done
    K1_side3:
    v_and_b32 v{vT}, 15, v{vL}
    v_mul_u32_u24 v{vT}, 896, v{vT}
    v_lshrrev_b32 v{vT2}, 4, v{vL}
    v_lshl_add_u32 v{vT}, v{vT2}, 4, v{vT}
    v_add_u32 v{vT}, {L_XS}, v{vT}
    """)
    for j in range(2):
        for kt in range(2):
            for hh in range(7):
                n = (j*2 + kt)*7 + hh
                if n == 14: a("s_waitcnt lgkmcnt(0)")
                a(f"ds_read_b128 {v(4*n,4)}, v{vT} offset:{kt*16*896 + 448*j + 64*hh}")
    for r in range(4): a(f"v_mov_b32 v{120+r}, -1")
    a(f"""
    v_mov_b32 v124, 0
    v_lshlrev_b32 v{vT2}, 7, v{vL}
    v_cmp_gt_u32 vcc, 8, v{vL}
    v_mov_b32 v125, 0x7ff00000
    s_lshl_b32 s{sT}, s{sSG}, 10
    v_cndmask_b32 v{vT2}, v125, v{vT2}, vcc
    s_add_u32 s{sT}, s{sT}, {WS_CNT}
    buffer_store_dword v124, v{vT2}, {S_WS}, s{sT} offen sc1
    s_lshl_b32 s{sT}, s{sSG}, 13
    s_add_u32 s{sT}, s{sT}, {WS_MO}
    """)
    for q in range(7):
        if q == 4: a(f"s_add_u32 s{sT}, s{sT}, 4096")
        a(f"buffer_store_dwordx4 v[120:123], v{vST}, {S_WS}, s{sT} offen offset:{(q%4)*1024} sc1")
    a(f"s_add_u32 s{sU}, s{sU}, {WS_XP}")
    a("s_waitcnt vmcnt(15) lgkmcnt(0)\n s_barrier")
    for n in range(14): xstore(n, True)
    a("s_waitcnt vmcnt(22)\n s_barrier")
    for n in range(14, 28): xstore(n, True)
    a("K1_done:")
```

```python
from asmlib import *
from layout import *
import team, k1
from team import S_WS, S_DBG, SM, OOB, nops
K2_LDS = k1.K1_LDS
L_BC = 65536
MF32 = "v_mfma_f32_32x32x16_bf16"
MF16 = "v_mfma_f32_16x16x32_bf16"
S_W = "s[8:11]"
sWAVE, sROLE, sSEG, sBUD = 17, 16, 20, 35
sA, sB, sC, sD, sE, sF = 36, 37, 38, 39, 40, 41
NS_O = 6
N_TB, N_TA, N_TH, N_TU, N_O1, N_O2 = 56, 56, 14, 28, 4*NS_O, 7*NS_O
T_TB = 0; T_TA = T_TB + N_TB; T_TH = T_TA + N_TA; T_TU = T_TH + N_TH; T_O1 = T_TU + N_TU; T_O2 = T_O1 + N_O1; T_END = T_O2 + N_O2
D_TEAM, D_SYNC, D_TICK, D_RST = 0, 64, 128, 192
vL16, vCA, vCT = 250, 251, 252

SLEEP = ['']
def lane_setup(a):
    a(f"""
    v_mbcnt_lo_u32_b32 v0, -1, 0
    v_mbcnt_hi_u32_b32 v0, -1, v0
    v_lshlrev_b32 v{vL16}, 4, v0
    v_mov_b32 v{vCA}, 0
    v_lshrrev_b32 v1, 5, v0                 ; hi
    v_and_b32 v2, 31, v0                    ; c32
    v_and_b32 v3, 15, v0                    ; c
    v_lshrrev_b32 v4, 4, v0                 ; g
    """)

def wait_cnt(a, kind, n):
    L = a.uid("W")
    a(f"""
    s_cmp_lg_u32 s{sWAVE}, 0
    s_cbranch_scc1 {L}_ok
    s_lshl_b32 s{sF}, s{sSEG}, 10
    s_add_u32 s{sF}, s{sF}, {WS_CNT + kind}
    {L}:
    buffer_load_dword v{vCT}, v{vCA}, {S_WS}, s{sF} offen sc1
    s_waitcnt vmcnt(0)
    v_cmp_gt_u32 vcc, {n}, v{vCT}
    s_cbranch_vccz {L}_ok
    {SLEEP[0]}
    s_sub_u32 s{sBUD}, s{sBUD}, 1
    s_cmp_lg_u32 s{sBUD}, 0
    s_cbranch_scc1 {L}
    s_endpgm
    {L}_ok:
    s_waitcnt vmcnt(0)
    s_barrier
    """)

def wait_done(a, what):
    L = a.uid("WW")
    a(f"s_cmp_lg_u32 s{sWAVE}, 0\n s_cbranch_scc1 {L}")
    team.wait_done(a, what, vCT, vCT+1, "L_exit", SLEEP[0])
    a(f"{L}:\n s_barrier")

def wait_team(a):
    if not GATE[0]: return
    wait_done(a, 'S')
    L = a.uid("WT")
    a(f"""
    s_cmp_lg_u32 s{sWAVE}, 0
    s_cbranch_scc1 {L}_ok
    s_mov_b32 s{sF}, {WS_MO}
    {L}:
    buffer_load_dword v{vCT}, v{vCA}, {S_WS}, s{sF} offen sc1
    s_waitcnt vmcnt(0)
    v_cmp_eq_u32 vcc, -1, v{vCT}
    s_cbranch_vccz {L}_ok
    s_sleep 32
    s_sub_u32 s{sBUD}, s{sBUD}, 1
    s_cmp_lg_u32 s{sBUD}, 0
    s_cbranch_scc1 {L}
    s_endpgm
    {L}_ok:
    s_barrier
    """)
GATE = [True]

def arrive(a, kind, s_seg):
    L = a.uid("AR")
    a(f"""
    s_cmp_lg_u32 s{sWAVE}, 0
    s_cbranch_scc1 {L}
    s_lshl_b32 s{sF}, s{s_seg}, 10
    s_add_u32 s{sF}, s{sF}, {WS_CNT + kind}
    v_mov_b32 v{vCT}, 1
    s_mov_b64 exec, 1
    buffer_atomic_add v{vCT}, v{vCA}, {S_WS}, s{sF} offen
    s_mov_b64 exec, -1
    {L}:
    """)

def perm_rho(a, dst, tmp):
    a(f"""
    v_and_b32 v{dst}, 0x13, v2
    v_bfe_u32 v{tmp}, v2, 2, 1
    v_lshl_add_u32 v{dst}, v{tmp}, 3, v{dst}
    v_bfe_u32 v{tmp}, v2, 3, 1
    v_lshl_add_u32 v{dst}, v{tmp}, 2, v{dst}
    """)

def fetch_m(a, P, t0, lds):
    a(f"""
    s_lshl_b32 s{sA}, s{sSEG}, 13
    s_add_u32 s{sA}, s{sA}, {WS_MO}
    s_lshl_b32 s{sB}, s{sWAVE}, 10
    s_add_u32 s{sA}, s{sA}, s{sB}
    s_add_u32 s{sC}, s{sWAVE}, 4
    s_min_u32 s{sC}, s{sC}, 6
    s_sub_u32 s{sC}, s{sC}, s{sWAVE}
    s_lshl_b32 s{sC}, s{sC}, 10
    s_add_u32 s{sD}, s{sA}, s{sC}
    v_add_u32 v{t0+8}, s{sB}, v{vL16}
    v_add_u32 v{t0+9}, s{sC}, v{t0+8}
    s_cmp_lg_u32 s{sWAVE}, 0
    s_cbranch_scc1 {P}_m0
    {P}_mw:
    buffer_load_dword v{vCT}, v{vCA}, {S_WS}, s{sA} offen sc1
    s_waitcnt vmcnt(0)
    v_cmp_eq_u32 vcc, -1, v{vCT}
    s_cbranch_vccz {P}_m0
    {SLEEP[0]}
    s_sub_u32 s{sBUD}, s{sBUD}, 1
    s_cmp_lg_u32 s{sBUD}, 0
    s_cbranch_scc1 {P}_mw
    s_endpgm
    {P}_m0:
    s_barrier
    {P}_m1:
    buffer_load_dwordx4 {v(t0,4)}, v{vL16}, {S_WS}, s{sA} offen sc1
    buffer_load_dwordx4 {v(t0+4,4)}, v{vL16}, {S_WS}, s{sD} offen sc1
    s_waitcnt vmcnt(0)
    v_max3_u32 v{vCT}, v{t0}, v{t0+1}, v{t0+2}
    v_max3_u32 v{vCT}, v{vCT}, v{t0+3}, v{t0+4}
    v_max3_u32 v{vCT}, v{vCT}, v{t0+5}, v{t0+6}
    v_max_u32 v{vCT}, v{vCT}, v{t0+7}
    v_cmp_eq_u32 vcc, -1, v{vCT}
    s_cbranch_vccz {P}_mok
    s_sub_u32 s{sBUD}, s{sBUD}, 1
    s_cmp_lg_u32 s{sBUD}, 0
    s_cbranch_scc1 {P}_m1
    s_endpgm
    {P}_mok:
    ds_write_b128 v{t0+8}, {v(t0,4)} offset:{lds}
    ds_write_b128 v{t0+9}, {v(t0+4,4)} offset:{lds}
    s_waitcnt lgkmcnt(0)
    s_barrier
    """)

def gw(a, kind):
    P = "G" + kind
    W = lambda u, t: 256 + (u*28 + t)*4
    ACC, FR, TM, vOUT, vG = 16, 48, 72, 8, 9
    NR = 6
    step = 2
    cnt = {'B': C_VO, 'A': C_Y, 'H': C_H}[kind]
    a(f"{P}_entry:")
    lane_setup(a)
    if kind != 'B': wait_team(a)
    if kind == 'B':
        a(f"""
        s_and_b32 s{sSEG}, s{sROLE}, 1
        s_lshr_b32 s{sROLE}, s{sROLE}, 1
        s_lshr_b32 s{sA}, s{sROLE}, 1
        s_and_b32 s{sB}, s{sROLE}, 1
        s_lshl_b32 s{sB}, s{sB}, 3
        s_lshl_b32 s{sC}, s{sWAVE}, 1
        s_add_u32 s{sB}, s{sB}, s{sC}
        v_lshlrev_b32 v5, 4, v3
        v_lshl_add_u32 v5, v1, 8, v5
        v_bfe_u32 v6, v0, 4, 1
        v_lshl_add_u32 v{vOUT}, v6, 14, v5
        v_mul_u32_u24 v6, {B_CT}, v6
        v_add_u32 v5, v5, v6
        s_mul_i32 s{sD}, s{sA}, {2*B_CT}
        s_mul_i32 s{sE}, s{sB}, 14336
        s_add_u32 s{sD}, s{sD}, s{sE}
        s_add_u32 s{sD}, s{sD}, {WS_B}
        s_lshl_b32 s42, s{sA}, 15
        s_lshl_b32 s{sE}, s{sB}, 10
        s_add_u32 s42, s42, s{sE}
        s_add_u32 s42, s42, {WS_VO}
        s_mul_i32 s{sE}, s{sSEG}, {VO_STEP}
        s_add_u32 s42, s42, s{sE}
        """)
        ustride, ostep = 14336, VO_STEP
    elif kind == 'A':
        perm_rho(a, 5, 6)
        a(f"""
        v_and_b32 v6, 1, v5
        v_mul_u32_u24 v6, 14336, v6
        v_lshrrev_b32 v5, 1, v5
        v_lshl_add_u32 v5, v5, 4, v6
        v_lshl_add_u32 v5, v1, 8, v5
        v_mov_b32 v{vOUT}, v{vL16}
        s_and_b32 s{sSEG}, s{sROLE}, 1
        s_lshr_b32 s{sROLE}, s{sROLE}, 1
        s_lshl_b32 s{sA}, s{sROLE}, 3
        s_lshl_b32 s{sC}, s{sWAVE}, 1
        s_add_u32 s{sA}, s{sA}, s{sC}
        s_mul_i32 s{sD}, s{sA}, 28672
        s_lshl_b32 s42, s{sA}, 11
        s_add_u32 s42, s42, {WS_Y}
        s_mul_i32 s{sE}, s{sSEG}, {VO_STEP}
        s_add_u32 s42, s42, s{sE}
        """)
        ustride, ostep = 28672, VO_STEP
    if kind in 'BA':
        wait_done(a, kind)
        for u in range(2):
            for t in range(28):
                if t and t % 8 == 0: a(f"s_add_u32 s{sD}, s{sD}, 4096")
                a(f"buffer_load_dwordx4 {v(W(u,t),4)}, v5, {S_WS}, s{sD} offen offset:{(t%8)*512} sc1")
            if u == 0: a(f"s_add_u32 s{sD}, s{sD}, {ustride - 3*4096}")
    else:
        srd(a, 8, 66, F_BYTES)
        a(f"""
        s_and_b32 s{sSEG}, s{sROLE}, 1
        s_lshr_b32 s{sA}, s{sROLE}, 1
        s_lshl_b32 s{sA}, s{sA}, 2
        s_add_u32 s{sA}, s{sA}, s{sWAVE}
        s_lshl_b32 s{sD}, s{sA}, 7
        s_lshl_b32 s42, s{sA}, 12
        s_mul_i32 s{sE}, s{sSEG}, {H_STEP}
        s_add_u32 s42, s42, s{sE}
        s_add_u32 s42, s42, {WS_H}
        v_lshrrev_b32 v5, 3, v0
        v_mul_u32_u24 v5, 3584, v5
        v_and_b32 v6, 7, v0
        v_lshl_add_u32 v5, v6, 4, v5
        v_bfe_u32 v6, v0, 2, 2
        v_lshl_add_u32 v6, v1, 3, v6
        v_lshlrev_b32 v6, 7, v6
        v_bfe_u32 v7, v0, 4, 1
        v_lshl_add_u32 v6, v7, 5, v6
        v_lshl_add_u32 v{vOUT}, v7, 10, 0
        v_and_b32 v7, 1, v0
        v_lshl_add_u32 v6, v7, 4, v6
        v_bfe_u32 v7, v0, 1, 1
        v_lshl_add_u32 v6, v7, 3, v6
        s_mul_i32 s{sE}, s{sWAVE}, 14336
        v_add_u32 v6, s{sE}, v6
        v_lshl_add_u32 v{vOUT}, v1, 8, v{vOUT}
        v_lshl_add_u32 v{vOUT}, v3, 4, v{vOUT}
        v_lshlrev_b32 v10, 2, v2
        """)
        for rnd in range(4):
            for q in range(14):
                a(f"s_add_u32 m0, s{sE}, {q*1024}\n s_nop 0")
                a(f"buffer_load_dwordx4 v5, {S_W}, s{sD} offen lds")
                a(f"s_add_u32 s{sD}, s{sD}, {8*3584}")
            a("s_waitcnt vmcnt(0)")
            for u in range(2):
                for tt in range(7):
                    for z in range(2):
                        a(f"ds_read_b64_tr_b16 {v(W(u, rnd*7+tt) + 2*z, 2)}, v6 offset:{tt*2048 + z*512 + u*64}")
            a("s_waitcnt lgkmcnt(0)")
        a("s_barrier")
        ostep = H_STEP
    nst = 4
    def xdma():
        for q in range(7):
            if q % 4 == 0: a(f"s_add_u32 m0, s43, {q*1024}\n s_add_u32 s{sE}, s44, {q*1024}")
            a(f"buffer_load_dwordx4 v{vL16}, {S_WS}, s{sE} offen offset:{(q%4)*1024} sc1 lds")
        a(f"s_xor_b32 s43, s43, 0x8000\n s_add_u32 s44, s44, {step*28672}")
    a(f"""
    s_mul_i32 s43, s{sWAVE}, 7168
    s_mul_i32 s44, s{sSEG}, 28672
    s_add_u32 s44, s44, s43
    s_add_u32 s44, s44, {WS_XG}
    v_mov_b32 v11, v{vL16}
    s_mov_b32 s45, 0
    """)
    wait_done(a, 'S')
    xdma()
    a("s_waitcnt vmcnt(0)")
    tstamp(a, 6, sWAVE)
    a(f"{P}_loop:")
    a(f"s_waitcnt vmcnt({nst})\n s_barrier")
    if kind == 'H':
        a(f"s_lshl_b32 s{sE}, s{sSEG}, 7\n s_add_u32 s{sE}, s{sE}, {WS_G}")
        a(f"buffer_load_dword v{vG}, v10, {S_WS}, s{sE} offen sc1")
    xdma()
    fetch = lambda t: a(f"ds_read_b128 {v(FR+4*(t % NR),4)}, v11 offset:{t*1024}")
    for t in range(NR-1): fetch(t)
    for t in range(28):
        if t + NR - 1 < 28: fetch(t + NR - 1)
        a(f"s_waitcnt lgkmcnt({min(NR-1, 27-t)})")
        x = v(FR+4*(t % NR), 4)
        if t == 14:
            a(f"s_waitcnt vmcnt({8 if kind == 'H' else 7})\n s_barrier")
            a(f"s_cmp_eq_u32 s45, 0\n s_cbranch_scc1 {P}_noar\n s_sub_u32 s46, s{sSEG}, {step}")
            arrive(a, cnt, 46)
            a(f"{P}_noar:")
        for u in range(2):
            c = "0" if t == 0 else v(ACC+16*u, 16)
            if kind == 'B': a(f"{MF32} {v(ACC+16*u,16)}, {x}, {v(W(u,t),4)}, {c}")
            else:           a(f"{MF32} {v(ACC+16*u,16)}, {v(W(u,t),4)}, {x}, {c}")
    a("v_xor_b32 v11, 0x8000, v11")
    if kind == 'H': a(f"s_waitcnt vmcnt(7)\n v_sub_f32 v{vG}, 1.0, v{vG}")
    a("s_nop 9")
    for u in range(2):
        if kind == 'H':
            for h0 in range(0, 16, 8):
                r = ACC + 16*u + h0
                for q in range(8): a(f"v_mul_f32 v{TM+16+q}, 0xbfb8aa3b, v{r+q}")
                for q in range(8): a(f"v_exp_f32 v{TM+16+q}, v{TM+16+q}")
                for q in range(8): a(f"v_add_f32 v{TM+16+q}, 1.0, v{TM+16+q}\n v_mul_f32 v{r+q}, v{vG}, v{r+q}")
                for q in range(8): a(f"v_rcp_f32 v{TM+16+q}, v{TM+16+q}")
                a("s_nop 0")
                for q in range(8): a(f"v_mul_f32 v{r+q}, v{TM+16+q}, v{r+q}")
        for be in range(2):
            r = ACC + 16*u + 8*be; t = TM + 8*u + 4*be
            order = (0, 4, 2, 6) if kind == 'B' else (0, 2, 4, 6)
            for q in range(4): a(f"v_cvt_pk_bf16_f32 v{t+q}, v{r+order[q]}, v{r+order[q]+1}")
            off = {'B': u*1024 + be*512, 'A': u*2048 + be*1024, 'H': u*2048 + be*512}[kind]
            a(f"buffer_store_dwordx4 {v(t,4)}, v{vOUT}, {S_WS}, s42 offen offset:{off} sc1")
    a(f"""
    s_add_u32 s42, s42, {step*ostep}
    s_add_u32 s45, s45, 1
    s_add_u32 s{sSEG}, s{sSEG}, {step}
    s_cmp_lt_u32 s{sSEG}, 64
    s_cbranch_scc1 {P}_loop
    s_waitcnt vmcnt(0)
    s_barrier
    """)
    a(f"s_sub_u32 s46, s{sSEG}, {step}")
    arrive(a, cnt, 46)
    a("s_branch L_next_free")

def tu(a):
    P = "TU"
    W = lambda hh, k: 256 + (hh*7 + k)*8
    M, D, T, AD, t0 = 16, 48, 64, 72, 80
    a(f"{P}_entry:")
    lane_setup(a)
    wait_team(a)
    a(f"""
    s_mul_i32 s{sD}, s{sROLE}, {B_CT}
    s_mul_i32 s{sE}, s{sWAVE}, {4*14336}
    s_add_u32 s{sD}, s{sD}, s{sE}
    s_add_u32 s{sD}, s{sD}, {WS_B}
    """)
    wait_done(a, 'B')
    for i in range(56):
        if i and i % 4 == 0: a(f"s_add_u32 s{sD}, s{sD}, 4096")
        a(f"buffer_load_dwordx4 {v(256+4*i,4)}, v{vL16}, {S_WS}, s{sD} offen offset:{(i%4)*1024} sc1")
    a(f"""
    v_and_b32 v5, 1, v0
    v_cmp_eq_u32 vcc, 1, v5
    v_mov_b32 v8, 0x44444444
    v_mov_b32 v6, 0xeeeeeeee
    v_cndmask_b32 v8, v8, v6, vcc
    v_lshlrev_b32 v6, 8, v4
    v_lshl_add_u32 v6, v5, 2, v6
    v_bfe_u32 v5, v0, 1, 3
    v_lshl_add_u32 v6, v5, 4, v6
    s_lshl_b32 s42, s{sROLE}, 12
    s_lshl_b32 s{sE}, s{sWAVE}, 10
    s_add_u32 s42, s42, s{sE}
    s_add_u32 s42, s42, {WS_UM}
    s_mov_b32 s{sSEG}, 0
    """)
    for k in range(7): a(f"v_add_u32 v{AD+k}, {k*1024}, v6")
    wait_done(a, 'S')
    a(f"{P}_loop:")
    for r in range(16): a(f"v_mov_b32 v{D+r}, 0")
    fetch_m(a, P, t0, 0)
    for k in range(7):
        a(f"ds_read2_b32 {v(M+4*k,2)}, v{AD+k} offset0:0 offset1:2")
        a(f"ds_read2_b32 {v(M+4*k+2,2)}, v{AD+k} offset0:32 offset1:34")
    for k in range(7):
        a(f"s_waitcnt lgkmcnt({12-2*k})")
        for hh in range(4): a(f"{SM} {v(D+4*hh,4)}, {v(M+4*k,4)}, {v(W(hh,k),8)}, v8")
    a("s_nop 4")
    for hh in range(4):
        d = D + 4*hh
        a(f"v_add_f32 v{d}, v{d}, v{d+1}\n v_add_f32 v{d+2}, v{d+2}, v{d+3}\n v_cvt_pk_bf16_f32 v{T+hh}, v{d}, v{d+2}")
    a(f"buffer_store_dwordx4 {v(T,4)}, v{vL16}, {S_WS}, s42 offen sc1")
    a("s_waitcnt vmcnt(0)\n s_barrier")
    arrive(a, C_UM, sSEG)
    a(f"""
    s_add_u32 s42, s42, {UM_STEP}
    s_add_u32 s{sSEG}, s{sSEG}, 1
    s_cmp_lt_u32 s{sSEG}, 64
    s_cbranch_scc1 {P}_loop
    s_branch L_next
    """)

def o1(a):
    P = "O1"
    Y = lambda t: 256 + 4*t
    SX, SMM, FR, T, t0 = 16, 32, 48, 72, 88
    vG, vPX, vPM, vRW, vKM, vMX = 8, 9, 10, 11, 12, 13
    NR = 6; L_MM = 28672
    a(f"{P}_entry:")
    lane_setup(a)
    a(f"""
    s_lshr_b32 s{sSEG}, s{sROLE}, 2
    s_and_b32 s43, s{sROLE}, 3
    s_lshl_b32 s44, s43, 2
    s_add_u32 s44, s44, s{sWAVE}               ; head
    v_bfe_u32 v5, v0, 4, 1
    v_lshlrev_b32 v5, 10, v5
    v_lshl_add_u32 v5, v3, 4, v5               ; rt*1024 + c*16
    v_lshl_add_u32 v{vPX}, v1, 8, v5
    s_lshl_b32 s{sA}, s44, 11
    v_add_u32 v{vPX}, s{sA}, v{vPX}
    v_lshl_add_u32 v{vPM}, v1, 9, v5
    s_lshl_b32 s{sA}, s43, 11
    s_lshl_b32 s{sB}, s{sWAVE}, 2
    s_add_u32 s{sA}, s{sA}, s{sB}
    s_add_u32 s{sA}, s{sA}, 32768
    v_add_u32 v{vPM}, s{sA}, v{vPM}
    v_lshlrev_b32 v5, 2, v1
    v_sub_u32 v{vRW}, v2, v5
    v_and_b32 v5, 7, v0
    v_lshlrev_b32 v5, 4, v5
    v_lshl_add_u32 v{vKM}, v1, 7, v5
    v_lshlrev_b32 v14, 2, v2
    s_mul_i32 s45, s{sWAVE}, 7168
    """)
    wait_done(a, 'S')
    a(f"{P}_loop:")
    a(f"""
    s_mul_i32 s{sA}, s{sSEG}, 28672
    s_add_u32 s{sA}, s{sA}, s45
    s_add_u32 s{sA}, s{sA}, {WS_XG}
    """)
    for q in range(7):
        if q % 4 == 0: a(f"s_add_u32 m0, s45, {q*1024}\n s_add_u32 s{sE}, s{sA}, {q*1024}")
        a(f"buffer_load_dwordx4 v{vL16}, {S_WS}, s{sE} offen offset:{(q%4)*1024} sc1 lds")
    a(f"s_lshl_b32 s{sE}, s{sSEG}, 7\n s_add_u32 s{sE}, s{sE}, {WS_G}")
    a(f"buffer_load_dword v{vG}, v14, {S_WS}, s{sE} offen sc1")
    wait_cnt(a, C_Y, 28)
    a(f"""
    s_mul_i32 s{sA}, s{sSEG}, {VO_STEP}
    s_mul_i32 s{sB}, s44, 28672
    s_add_u32 s{sA}, s{sA}, s{sB}
    s_add_u32 s{sA}, s{sA}, {WS_Y}
    """)
    for t in range(28):
        if t and t % 4 == 0: a(f"s_add_u32 s{sA}, s{sA}, 4096")
        a(f"buffer_load_dwordx4 {v(Y(t),4)}, v{vL16}, {S_WS}, s{sA} offen offset:{(t%4)*1024} sc1")
    a("s_barrier")
    def scores(acc, base, stride, off0, vm):
        fetch = lambda t: a(f"ds_read_b128 {v(FR+4*(t % NR),4)}, v{base} offset:{off0 + t*stride}")
        for t in range(NR-1): fetch(t)
        for t in range(28):
            if t + NR - 1 < 28: fetch(t + NR - 1)
            a(f"s_waitcnt lgkmcnt({min(NR-1, 27-t)})" + (f" vmcnt({27-t})" if vm else ""))
            a(f"{MF32} {v(acc,16)}, {v(FR+4*(t % NR),4)}, {v(Y(t),4)}, {'0' if t == 0 else v(acc,16)}")
    scores(SX, vL16, 1024, 0, True)
    a(f"v_mov_b32 v{T}, 0xff800000\n s_nop 10")
    for b in range(4):
        for r in range(4):
            a(f"v_cmp_le_i32 vcc, {8*b+r}, v{vRW}\n s_nop 1\n v_cndmask_b32 v{SX+4*b+r}, v{T}, v{SX+4*b+r}, vcc")
    a(f"v_max3_f32 v{vMX}, v{SX}, v{SX+1}, v{SX+2}")
    for r in range(3, 15, 2): a(f"v_max3_f32 v{vMX}, v{vMX}, v{SX+r}, v{SX+r+1}")
    a(f"v_max_f32 v{vMX}, v{vMX}, v{SX+15}")
    fetch_m(a, P, t0, L_MM)
    scores(SMM, vKM, 256, L_MM, False)
    a("s_nop 11")
    a(f"v_max3_f32 v{vMX}, v{vMX}, v{SMM}, v{SMM+1}\n v_max3_f32 v{vMX}, v{vMX}, v{SMM+2}, v{SMM+3}")
    a(f"v_mov_b32 v{T}, v{vMX}\n s_nop 1\n v_permlane32_swap_b32 v{T}, v{vMX}\n v_max_f32 v{vMX}, v{vMX}, v{T}")
    vals = [SX+r for r in range(16)] + [SMM+r for r in range(4)]
    a(f"s_mov_b32 s{sB}, {team.SCALE}\n v_mul_f32 v{vMX}, s{sB}, v{vMX}")
    for r in vals: a(f"v_fma_f32 v{r}, v{r}, s{sB}, -v{vMX}")
    for r in vals: a(f"v_exp_f32 v{r}, v{r}")
    a(f"v_add_f32 v{T}, v{vals[0]}, v{vals[1]}\n v_add_f32 v{T+1}, v{vals[2]}, v{vals[3]}")
    for i in range(4, 20, 2): a(f"v_add_f32 v{T}, v{T}, v{vals[i]}\n v_add_f32 v{T+1}, v{T+1}, v{vals[i+1]}")
    a(f"v_add_f32 v{T}, v{T}, v{T+1}\n v_mov_b32 v{T+1}, v{T}\n s_nop 1\n v_permlane32_swap_b32 v{T}, v{T+1}\n v_add_f32 v{T}, v{T}, v{T+1}")
    a(f"v_rcp_f32 v{T}, v{T}\n s_nop 0\n v_mul_f32 v{T}, v{T}, v{vG}")
    for r in vals: a(f"v_mul_f32 v{r}, v{r}, v{T}")
    a(f"s_mul_i32 s{sA}, s{sSEG}, {PX_STEP}\n s_add_u32 s{sA}, s{sA}, {WS_PX}")
    for be in range(2):
        for q, o in enumerate((0, 4, 2, 6)): a(f"v_cvt_pk_bf16_f32 v{T+4+4*be+q}, v{SX+8*be+o}, v{SX+8*be+o+1}")
        a(f"buffer_store_dwordx4 {v(T+4+4*be,4)}, v{vPX}, {S_WS}, s{sA} offen offset:{512*be} sc1")
    for q in range(2):
        a(f"v_cvt_pk_bf16_f32 v{T+12+q}, v{SMM+2*q}, v{SMM+2*q+1}")
        a(f"buffer_store_dword v{T+12+q}, v{vPM}, {S_WS}, s{sA} offen offset:{256*q} sc1")
    a("s_waitcnt vmcnt(0)\n s_barrier")
    arrive(a, C_P, sSEG)
    a(f"""
    s_add_u32 s{sSEG}, s{sSEG}, {NS_O}
    s_cmp_lt_u32 s{sSEG}, 64
    s_cbranch_scc1 {P}_loop
    s_branch L_next
    """)

def o2(a):
    P = "O2"
    W = lambda t, ct: 256 + (t*4 + ct)*4
    ACC, HF, VO = 16, 48, 160
    PXR, PMR, UMR = HF, HF + 32, HF + 40
    vRW_, vRR, vOA = 8, 9, 10
    a(f"{P}_entry:")
    lane_setup(a)
    wait_team(a)
    srd(a, 8, 68, F_BYTES)
    a(f"""
    s_mul_i32 s{sSEG}, s{sROLE}, 9363
    s_lshr_b32 s{sSEG}, s{sSEG}, 16            ; role / 7
    s_mul_i32 s{sA}, s{sSEG}, 7
    s_sub_u32 s43, s{sROLE}, s{sA}
    s_mul_i32 s{sD}, s{sWAVE}, {448*896}
    s_lshl_b32 s{sA}, s43, 7
    s_add_u32 s{sD}, s{sD}, s{sA}
    v_lshrrev_b32 v5, 3, v0
    v_mul_u32_u24 v5, 896, v5
    v_and_b32 v6, 7, v0
    v_lshl_add_u32 v5, v6, 4, v5
    v_bfe_u32 v6, v0, 2, 2
    v_lshl_add_u32 v6, v4, 3, v6
    v_lshlrev_b32 v6, 7, v6
    v_and_b32 v7, 3, v0
    v_lshl_add_u32 v6, v7, 3, v6
    s_lshl_b32 s{sE}, s{sWAVE}, 14
    v_add_u32 v6, s{sE}, v6
    """)
    for rnd, nt in enumerate((4, 4, 4, 2)):
        for q in range(4*nt):
            a(f"s_add_u32 m0, s{sE}, {q*1024}\n s_nop 0")
            a(f"buffer_load_dwordx4 v5, {S_W}, s{sD} offen lds")
            a(f"s_add_u32 s{sD}, s{sD}, {8*896}")
        a("s_waitcnt vmcnt(0)")
        for tt in range(nt):
            for ct in range(4):
                for z in range(2):
                    a(f"ds_read_b64_tr_b16 {v(W(rnd*4+tt, ct) + 2*z, 2)}, v6 offset:{tt*4096 + z*512 + ct*32}")
        a("s_waitcnt lgkmcnt(0)")
    srd(a, 8, 70, X_BYTES)
    a(f"""
    s_barrier
    v_mul_u32_u24 v{vRW_}, 272, v3
    v_lshl_add_u32 v{vRW_}, v4, 4, v{vRW_}
    s_mul_i32 s{sA}, s{sWAVE}, 8704
    v_add_u32 v{vRW_}, s{sA}, v{vRW_}
    v_lshrrev_b32 v5, 3, v0
    s_lshl_b32 s{sA}, s{sWAVE}, 3
    v_add_u32 v5, s{sA}, v5
    v_and_b32 v6, 7, v0
    v_mul_u32_u24 v{vRR}, 272, v5
    v_lshl_add_u32 v{vRR}, v6, 5, v{vRR}
    v_mul_u32_u24 v{vOA}, 896, v5
    v_lshl_add_u32 v{vOA}, v6, 4, v{vOA}
    s_lshl_b32 s{sA}, s43, 7
    v_add_u32 v{vOA}, s{sA}, v{vOA}
    """)
    wait_done(a, 'S')
    a(f"{P}_loop:")
    wait_cnt(a, C_H, 7)
    a(f"""
    s_mul_i32 s{sA}, s{sSEG}, {H_STEP}
    s_mul_i32 s{sB}, s{sWAVE}, {14*2048}
    s_add_u32 s{sA}, s{sA}, s{sB}
    s_add_u32 s{sA}, s{sA}, {WS_H}
    """)
    for i in range(28):
        if i and i % 4 == 0: a(f"s_add_u32 s{sA}, s{sA}, 4096")
        a(f"buffer_load_dwordx4 {v(HF+4*i,4)}, v{vL16}, {S_WS}, s{sA} offen offset:{(i%4)*1024} sc1")
    acc = lambda ct, rt: v(ACC + (ct*2 + rt)*4, 4)
    for t in range(14):
        for rt in range(2):
            a(f"s_waitcnt vmcnt({27 - 2*t - rt})")
            for ct in range(4): a(f"{MF16} {acc(ct,rt)}, {v(W(t,ct),4)}, {v(HF+8*t+4*rt,4)}, {'0' if t == 0 else acc(ct,rt)}")
    wait_cnt(a, C_VO, 28)
    a(f"""
    s_mul_i32 s{sA}, s{sSEG}, {VO_STEP}
    s_lshl_b32 s{sB}, s43, 16
    s_add_u32 s{sA}, s{sA}, s{sB}
    s_lshl_b32 s{sB}, s{sWAVE}, 12
    s_add_u32 s{sA}, s{sA}, s{sB}
    s_add_u32 s{sA}, s{sA}, {WS_VO}
    """)
    for ct in range(4):
        if ct: a(f"s_add_u32 s{sA}, s{sA}, 16384")
        for hh in range(4): a(f"buffer_load_dwordx4 {v(VO+(hh*4+ct)*4,4)}, v{vL16}, {S_WS}, s{sA} offen offset:{hh*1024} sc1")
    wait_cnt(a, C_P, 4)
    a(f"""
    s_mul_i32 s{sA}, s{sSEG}, {PX_STEP}
    s_add_u32 s{sA}, s{sA}, {WS_PX}
    s_lshl_b32 s{sB}, s{sWAVE}, 13
    s_add_u32 s{sB}, s{sA}, s{sB}
    s_add_u32 s{sC}, s{sB}, 4096
    s_lshl_b32 s{sD}, s{sWAVE}, 11
    s_add_u32 s{sD}, s{sD}, s{sA}
    s_add_u32 s{sD}, s{sD}, 32768
    """)
    for i in range(8): a(f"buffer_load_dwordx4 {v(PXR+4*i,4)}, v{vL16}, {S_WS}, s{sB + i//4} offen offset:{(i%4)*1024} sc1")
    for i in range(2): a(f"buffer_load_dwordx4 {v(PMR+4*i,4)}, v{vL16}, {S_WS}, s{sD} offen offset:{i*1024} sc1")
    for hh in range(4):
        for rt in range(2):
            a(f"s_waitcnt vmcnt({9 - 2*hh - rt})")
            for ct in range(4): a(f"{MF16} {acc(ct,rt)}, {v(VO+(hh*4+ct)*4,4)}, {v(PXR+8*hh+4*rt,4)}, {acc(ct,rt)}")
    wait_cnt(a, C_UM, 28)
    a(f"""
    s_mul_i32 s{sA}, s{sSEG}, {UM_STEP}
    s_lshl_b32 s{sB}, s43, 14
    s_add_u32 s{sA}, s{sA}, s{sB}
    s_lshl_b32 s{sB}, s{sWAVE}, 10
    s_add_u32 s{sA}, s{sA}, s{sB}
    s_add_u32 s{sA}, s{sA}, {WS_UM}
    """)
    for ct in range(4):
        if ct: a(f"s_add_u32 s{sA}, s{sA}, 4096")
        a(f"buffer_load_dwordx4 {v(UMR+4*ct,4)}, v{vL16}, {S_WS}, s{sA} offen sc1")
    for ct in range(4):
        a(f"s_waitcnt vmcnt({3-ct})")
        for rt in range(2): a(f"{MF16} {acc(ct,rt)}, {v(UMR+4*ct,4)}, {v(PMR+4*rt,4)}, {acc(ct,rt)}")
    a("s_nop 1")
    for ct in range(4):
        for rt in range(2):
            if ct == 3 and rt == 0: a("s_nop 3")
            a(f"ds_write_b128 v{vRW_}, {acc(ct,rt)} offset:{rt*16*272 + ct*64}")
    a("s_waitcnt lgkmcnt(0)\n s_barrier")
    for w in range(4):
        for q in range(2): a(f"ds_read_b128 {v(VO+8*w+4*q,4)}, v{vRR} offset:{w*8704 + q*16}")
    a(f"s_mul_i32 s{sA}, s{sSEG}, {32*896}")
    for w in range(1, 4):
        a(f"s_waitcnt lgkmcnt({6-2*w})")
        for q in range(8): a(f"v_add_f32 v{VO+q}, v{VO+q}, v{VO+8*w+q}")
    for q in range(4): a(f"v_cvt_pk_bf16_f32 v{VO+32+q}, v{VO+2*q}, v{VO+2*q+1}")
    a(f"buffer_store_dwordx4 {v(VO+32,4)}, v{vOA}, {S_W}, s{sA} offen")
    a(f"""
    s_barrier
    s_add_u32 s{sSEG}, s{sSEG}, {NS_O}
    s_cmp_lt_u32 s{sSEG}, 64
    s_cbranch_scc1 {P}_loop
    s_branch L_next
    """)

def bc_atomic(a, L, off, val):
    a(f"""
    s_cmp_lg_u32 s{sWAVE}, 0
    s_cbranch_scc1 {L}_w
    v_mov_b32 v1, {val}
    v_mov_b32 v2, {off}
    v_mov_b32 v3, {L_BC}
    s_mov_b64 exec, 1
    buffer_atomic_add v1, v2, {S_DBG}, 0 offen sc0
    s_waitcnt vmcnt(0)
    ds_write_b32 v3, v1
    s_waitcnt lgkmcnt(0)
    s_mov_b64 exec, -1
    {L}_w:
    v_mov_b32 v3, {L_BC}
    s_barrier
    ds_read_b32 v1, v3
    s_waitcnt lgkmcnt(0)
    v_readfirstlane_b32 s{sROLE}, v1
    s_barrier
    """)

def k2(a, name, o=None):
    o = o or team.Opt(diag=False)
    GATE[0] = o.gate
    SLEEP[0] = f"s_sleep {o.sleep}" if o.sleep else ""
    kernel_head(a, name)
    a(f"""
    s_cmp_ge_u32 s2, 256
    s_cbranch_scc1 L_exit
    s_load_dwordx4 s[76:79], s[0:1], 0         ; x, mem0
    s_load_dwordx8 s[80:87], s[0:1], 16
    s_load_dwordx8 s[64:71], s[0:1], 56        ; B_x w1 w2 gate_w
    s_load_dwordx2 s[88:89], s[0:1], 88
    s_load_dwordx4 s[72:75], s[0:1], 96
    s_getreg_b32 s18, hwreg(HW_REG_XCC_ID)
    v_lshrrev_b32 v1, 6, v0
    s_and_b32 s18, s18, 15
    v_readfirstlane_b32 s{sWAVE}, v1
    s_mov_b32 s{sBUD}, {o.budget}
    s_waitcnt lgkmcnt(0)
    """)
    srd(a, 4, 74, WS_BYTES); srd(a, 12, 72, 256); srd(a, 60, 78, 7168)
    if DIAG['on']: a("s_mov_b32 s3, s2")
    tstamp(a, 0, sWAVE)
    a(f"""
    s_getpc_b64 s[36:37]
    s_and_b32 s36, s36, 0xffffff00
    v_lshlrev_b32 v203, 7, v0
    global_load_dword v204, v203, s[36:37]
    v_add_u32 v203, 0x8000, v203
    v_min_u32 v203, L_code_end - L_code_ref, v203
    global_load_dword v204, v203, s[36:37]
    """.replace("s_getpc_b64 s[36:37]", "s_getpc_b64 s[36:37]\n L_code_ref:"))
    a(f"""
    s_cmp_lg_u32 s{sWAVE}, 1
    s_cbranch_scc1 L_p1
    v_mov_b32 v199, 1
    s_cmp_lg_u32 s2, 0
    s_cbranch_scc1 L_p0
    v_and_b32 v200, 31, v0
    v_lshlrev_b32 v200, 7, v200
    v_mov_b32 v201, 0
    s_mov_b32 s36, {WS_DONE}
    buffer_store_dword v201, v200, {S_WS}, s36 offen sc1
    v_mov_b32 v200, {D_RST}
    s_waitcnt vmcnt(0)
    s_mov_b64 exec, 1
    buffer_atomic_add v199, v200, {S_DBG}, 0 offen
    L_p0:
    s_cmp_eq_u32 s18, {o.team_xcc}
    s_cselect_b32 s36, {D_TEAM}, {D_TICK}
    v_mov_b32 v200, s36
    s_mov_b64 exec, 1
    v_mov_b32 v202, 1
    buffer_atomic_add v202, v200, {S_DBG}, 0 offen sc0
    s_mov_b64 exec, -1
    L_p1:
    """)
    k1.products(a, 76, 80, 70)
    a(f"""
    v_mbcnt_lo_u32_b32 v0, -1, 0
    v_mbcnt_hi_u32_b32 v0, -1, v0
    s_mov_b32 s70, s88
    s_mov_b32 s71, s89
    s_mov_b64 exec, 1
    """)
    team.dbg_wait(a, "L_rst", D_RST, 1, 2)
    a(f"""
    s_lshr_b32 s38, s{k1.sMAT}, 2
    s_and_b32 s39, s{k1.sMAT}, 1
    s_add_u32 s39, s39, 8
    s_cmp_ge_u32 s{k1.sBLK}, 14
    s_cselect_b32 s38, s39, s38
    s_lshl_b32 s38, s38, 7
    s_add_u32 s38, s38, {WS_DONE}
    v_mov_b32 v1, 1
    v_mov_b32 v2, 0
    s_cmp_eq_u32 s{k1.sDG}, 3
    s_cbranch_scc1 L_p2
    s_barrier
    v_mov_b32 v1, 2
    s_cmp_lg_u32 s{sWAVE}, 0
    s_cbranch_scc1 L_p3
    L_p2:
    buffer_atomic_add v1, v2, {S_WS}, s38 offen
    L_p3:
    v_mov_b32 v3, {L_BC}
    s_barrier
    s_cmp_lg_u32 s{sWAVE}, 1
    s_cbranch_scc1 L_p4
    ds_write_b32 v3, v202
    s_waitcnt lgkmcnt(0)
    L_p4:
    s_barrier
    ds_read_b32 v1, v3
    s_waitcnt lgkmcnt(0)
    v_readfirstlane_b32 s{sROLE}, v1
    s_mov_b64 exec, -1
    s_barrier
    """)
    tstamp(a, 3, sWAVE)
    a(f"""
    s_cmp_lg_u32 s18, {o.team_xcc}
    s_cbranch_scc1 L_have
    s_and_b32 s{sROLE}, s{sROLE}, 0xffff
    s_cmp_lt_u32 s{sROLE}, 32
    s_cbranch_scc1 L_team
    s_branch L_next
    L_next_free:
    """)
    bc_atomic(a, "L_t1", D_TEAM, 0)
    a(f"s_and_b32 s{sROLE}, s{sROLE}, 0xffff\n s_cmp_ge_u32 s{sROLE}, 32\n s_cbranch_scc1 L_next")
    bc_atomic(a, "L_t2", D_TEAM, 0x10001)
    a(f"""
    s_and_b32 s{sROLE}, s{sROLE}, 0xffff
    s_cmp_lt_u32 s{sROLE}, 32
    s_cbranch_scc1 L_team
    L_next:
    """)
    tstamp(a, 7, sWAVE)
    bc_atomic(a, "L_t3", D_TICK, 1)
    a("L_have:")
    if DIAG['on']: a(f"s_cmp_ge_u32 s{sROLE}, {T_END}\n s_cbranch_scc1 L_exit")
    tstamp(a, 5, sWAVE); tstamp(a, 8, sWAVE, extra=f"s{sROLE}")
    for lab, lo, hi in (("GB", T_TB, T_TA), ("GA", T_TA, T_TH), ("GH", T_TH, T_TU), ("TU", T_TU, T_O1), ("O1", T_O1, T_O2), ("O2", T_O2, T_END)):
        a(f"s_cmp_lt_u32 s{sROLE}, {hi - lo}\n s_cbranch_scc1 {lab}_entry\n s_sub_u32 s{sROLE}, s{sROLE}, {hi - lo}")
    a("L_exit:\n s_endpgm\n L_team_done:")
    if DIAG['on']:
        tstamp(a, 7, sWAVE, tmp=(56, 57))
        a(f"""
        s_cmp_lg_u32 s17, 3
        s_cbranch_scc1 L_exit
        s_lshl_b32 s36, s16, 14
        s_add_u32 s36, s36, {WS_DIAG + 65536 + 3*4096}
        v_lshrrev_b32 v28, 2, v0
        """)
        for i in range(10): a(f"buffer_store_dword v{160+i}, v28, s[4:7], s36 offen offset:{256*i}")
        a("v_mov_b32 v28, s56\n v_mov_b32 v29, s57\n v_mov_b32 v30, s58\n v_mov_b32 v31, 0")
        a("v_mov_b32 v32, 0\n buffer_store_dwordx4 v[28:31], v32, s[4:7], s36 offen offset:2560")
    a("s_endpgm")
    gw(a, 'B'); gw(a, 'A'); gw(a, 'H'); tu(a); o1(a); o2(a)
    a("L_team:")
    tstamp(a, 5, sWAVE); tstamp(a, 8, sWAVE, extra="1000")
    team.team_body(a, o)
    a("L_code_end:")
```

```python
from asmlib import *
from layout import *

L_M, L_Y, L_UM, L_MISC, L_S, L_B0, L_X, L_B1 = 0, 8192, 12288, 16384, 16640, 18432, 49152, 63488
TEAM_LDS = L_B1 + 30720
SM = "v_smfmac_f32_16x16x64_bf16"
S_WS, S_X, S_DBG = "s[4:7]", "s[8:11]", "s[12:15]"
sRANK, sWAVE, sH, sJ, sSTEP, sCT = 16, 17, 18, 19, 20, 21
sFL, sMODE = 22, 23
sCUR, sNXT, sPRV = 24, 25, 26
sVO, sXO, sCN, sMO, sBUD = 30, 31, 32, 33, 35
sT0, sT1, sT2, sT3 = 36, 37, 38, 39
sM1, sXT = 45, 47
OOB = 0x7ff00000
SCALE = 0x3db8aa3b
sSC = 44
XSTEP = 32*896

class Opt:
    def __init__(self, **kw):
        self.trace = None; self.diag = True
        self.nsteps = 63
        self.kf = 4; self.nf = 6; self.ns = 5; self.f2pos = 0; self.kgo = 3; self.nxa = 14; self.funr = 2; self.nv0 = 10; self.b0p = 2
        self.sleep = 4; self.gate = False; self.budget = 2000000; self.team_xcc = 0
        self.__dict__.update(kw)

def nops(a, n):
    while n > 0:
        k = min(n, 16); a(f"s_nop {k-1}"); n -= k

def load_regs(a, regs, soff, vaddr="v0", fl=" sc1"):
    for i, r in enumerate(regs):
        if i and i % 4 == 0: a(f"s_add_u32 s{soff}, s{soff}, 4096")
        a(f"buffer_load_dwordx4 {v(r,4)}, {vaddr}, {S_WS}, s{soff} offen offset:{(i%4)*1024}{fl}")

TR_S, TR_V3 = 84, 160
def stamp(a, o, kind, pt):
    if o.trace and pt in o.trace.get(kind, []):
        i = o.trace[kind].index(pt)
        a(f"s_memtime s[{TR_S+2*i}:{TR_S+2*i+1}]")
def stamp_flush(a, o, kind, w=None):
    if not o.trace or kind not in o.trace: return
    n = len(o.trace[kind])
    a(f"s_memtime s[52:53]\n s_memrealtime s[50:51]\n s_mov_b32 m0, s{sSTEP}\n s_waitcnt lgkmcnt(0)")
    if kind == 'y':
        a(f"s_lshl_b32 s50, s{sRANK}, 2\n s_add_u32 s50, s50, {w}\n s_lshl_b32 s50, s50, 12\n s_lshl_b32 s51, s{sSTEP}, 2\n s_add_u32 s50, s50, s51\n s_add_u32 s50, s50, {WS_DIAG + 65536}\n v_mov_b32 v62, 0")
        for i in range(n): a(f"v_mov_b32 v63, s{TR_S+2*i}\n buffer_store_dword v63, v62, {S_WS}, s50 offen offset:{256*i}")
        return
    for i in range(n): a(f"v_writelane_b32 v{TR_V3+i}, s{TR_S+2*i}, m0")
    a(f"v_writelane_b32 v{TR_V3+8}, s52, m0\n v_writelane_b32 v{TR_V3+9}, s50, m0")
def count(a, o, r):
    if o.diag: a(f"s_add_u32 s{r}, s{r}, 1")

def ring_advance(a):
    a(f"""
    s_mov_b32 s{sPRV}, s{sCUR}
    s_mov_b32 s{sCUR}, s{sNXT}
    s_add_u32 s{sNXT}, s{sNXT}, 0x10000
    s_and_b32 s{sNXT}, s{sNXT}, {WS_RING | 0x30000}
    """)

def x_dma(a, lo=0, hi=14):
    for q in range(lo, hi):
        if (q - lo) % 4 == 0: a(f"s_mov_b32 m0, {L_X + q*1024}\n s_add_u32 s{sT2}, s{sXO}, {q*1024}")
        a(f"buffer_load_dwordx4 v0, {S_WS}, s{sT2} offen offset:{((q-lo)%4)*1024} sc1 lds")
    a(f"s_add_u32 s{sXO}, s{sXO}, {XSTEP}")

def budget_check(a):
    a(f"s_sub_u32 s{sBUD}, s{sBUD}, 1\n s_cmp_eq_u32 s{sBUD}, 0\n s_cbranch_scc1 L_team_done")

def flag_poll(a, o, P, regs, vaddr, off, s_want):
    n = len(regs)
    a("s_mov_b32 exec_hi, 0")
    def body(i, wait=True):
        a(f"buffer_load_dword v{regs[i]}, {vaddr}, {S_WS}, s{sFL} offen offset:{off} sc1")
        if wait: a(f"s_waitcnt vmcnt({n-1})")
        a(f"v_cmp_gt_u32 vcc, s{s_want}, v{regs[(i+1)%n]}")
        a(f"s_cbranch_vccz {P}_fok")
    for i in range(n-1): body(i, False)
    body(n-1)
    a(f"{P}_fpoll:")
    for _ in range(o.funr):
        for i in range(n): body(i)
    a(f"s_sub_u32 s{sBUD}, s{sBUD}, 1\n s_cmp_lg_u32 s{sBUD}, 0\n s_cbranch_scc1 {P}_fpoll\n s_branch L_team_done")
    a(f"{P}_fok:")
    a("s_mov_b32 exec_hi, -1")

KORD = (0, 1, 2, 6, 3, 4, 5)

def ywave(a, o, w):
    P = f"Y{w}"
    D, M, T = 12, 28, 8
    Aop = lambda t, k: 256 + (t*7 + k)*8
    def Bop(hh, k):
        i = hh*7 + k
        return 256 + 224 + i*8 if i < 4 else 64 + (i-4)*8
    def lds_wait(L, level):
        a(f"""
        v_mov_b32 v57, {L_MISC + 128}
        {L}:
        ds_read_b32 v56, v57
        s_waitcnt lgkmcnt(0)
        v_cmp_gt_u32 vcc, {level}, v56
        s_cbranch_vccz {L}_ok
        s_sleep 1
        s_sub_u32 s{sBUD}, s{sBUD}, 1
        s_cmp_lg_u32 s{sBUD}, 0
        s_cbranch_scc1 {L}
        s_branch L_team_done
        {L}_ok:
        """)
    lds_wait(f"{P}_wa", 1)
    if w == 0: tstamp(a, 4, sWAVE, tmp=(56, 57))
    a(f"s_mul_i32 s{sT0}, s{sRANK}, {A_RANK}\n s_add_u32 s{sT0}, s{sT0}, {WS_A + w*4*7*2048}")
    load_regs(a, [Aop(t,k)+4*hf for t in range(4) for k in range(7) for hf in range(2)], sT0)
    lds_wait(f"{P}_wb", 2)
    a(f"s_mul_i32 s{sT0}, s{sCT}, {B_CT}\n s_add_u32 s{sT0}, s{sT0}, {WS_B + w*4*7*2048}")
    load_regs(a, [Bop(h,k)+4*hf for h in range(4) for k in range(7) for hf in range(2)][:54 if w < 2 else 56], sT0)
    if w < 2:
        for q in range(30):
            if q % 4 == 0:
                a(f"s_mul_i32 s{sT0}, s{sCT}, {B_CT}\n s_add_u32 s{sT0}, s{sT0}, {WS_B + ((12+2*w)*14 + q if q < 28 else (4*w+3)*14 + 12)*1024}\n s_mov_b32 m0, {(L_B0, L_B1)[w] + q*1024}\n s_nop 0")
            a(f"buffer_load_dwordx4 v0, {S_WS}, s{sT0} offen offset:{(q%4)*1024} sc1 lds")
    y_addr(a, w)
    a(f"""
    v_lshrrev_b32 v63, 1, v62
    v_lshlrev_b32 v6, 8, v63
    v_lshl_add_u32 v6, v61, 4, v6
    v_and_b32 v63, 1, v62
    v_lshl_add_u32 v6, v63, 3, v6
    v_add_u32 v6, {L_UM + w*1024}, v6
    v_add_u32 v7, {(L_B0, L_B1, 0)[w]}, v0
    v_mov_b32 v4, {L_MISC + 64}
    v_and_b32 v2, 31, v60
    v_lshlrev_b32 v2, 2, v2
    """)
    if w == 2:
        lds_wait(f"{P}_ws", 3)
        a(f"s_mul_i32 s{sXO}, s{sJ}, 14336\n s_add_u32 s{sXO}, s{sXO}, {WS_XP}")
        x_dma(a)
    team_sync(a, o, P, w)
    FRG = [56, 57, 58, 59, 60, 61][:o.nf]
    def steps(P, ST):
        a(f"{P}_loop:")
        a(f"s_add_u32 s{sM1}, s{sCUR}, {w*1024}")
        for r in range(16): a(f"v_mov_b32 v{D+r}, 0")
        if w == 0:
            for r in FRG[1:]: a(f"v_mov_b32 v{r}, 0")
        if w == 2: a("s_waitcnt vmcnt(0)")
        if w == 0:
            a(f"""
            {P}_go:
            ds_read_b32 v56, v4
            s_waitcnt lgkmcnt(0)
            v_cmp_gt_u32 vcc, s{sSTEP}, v56
            s_cbranch_vccz {P}_go_ok
            s_sub_u32 s{sBUD}, s{sBUD}, 1
            s_cmp_lg_u32 s{sBUD}, 0
            s_cbranch_scc1 {P}_go
            s_branch L_team_done
            {P}_go_ok:
            """)
            flag_poll(a, o, P, FRG, "v2", 0, sSTEP)
        a(f"s_mov_b32 m0, {L_M + w*1024}")
        a("s_barrier   ; B0")
        stamp(a, o, 'y', 0)
        a(f"buffer_load_dwordx4 v0, {S_WS}, s{sM1} offen sc1 lds")
        a("s_barrier   ; B0'")
        a(f"buffer_load_dwordx4 v0, {S_WS}, s{sM1} offen offset:3072 sc1 lds")
        sm = lambda t, k: a(f"{SM} {v(D+4*t,4)}, {v(M+4*k,4)}, {v(Aop(t,k),8)}, v1")
        mread = lambda k: a(f"ds_read_b128 {v(M+4*k,4)}, v0 offset:{L_M + 1024*k}")
        a("s_waitcnt vmcnt(1)")
        stamp(a, o, 'y', 11)
        a("s_barrier   ; B1")
        for k in KORD[:4]: mread(k)
        a("s_waitcnt lgkmcnt(3)")
        stamp(a, o, 'y', 12)
        sm(0,0); sm(1,0); sm(2,0)
        a("s_waitcnt vmcnt(0)\n s_barrier   ; B1'")
        sm(3,0)
        for k in KORD[4:]: mread(k)
        a(f"{P}_y:")
        a("s_waitcnt lgkmcnt(5)")
        sm(0,1); sm(1,1); sm(2,1); sm(3,1)
        for n, k in enumerate(KORD[2:]):
            a(f"s_waitcnt lgkmcnt({4-n})"); sm(0,k); sm(1,k)
        sm(2,2); a("s_nop 1"); sm(3,2); a("s_nop 1"); sm(2,6)
        a(f"v_add_f32 v{D}, v{D}, v{D+1}\n v_add_f32 v{D+2}, v{D+2}, v{D+3}")
        sm(3,6)
        a(f"v_add_f32 v{D+4}, v{D+4}, v{D+5}\n v_add_f32 v{D+6}, v{D+6}, v{D+7}")
        sm(2,3)
        a(f"v_cmp_u_f32 vcc, v{D}, v{D+2}")
        a(f"v_cvt_pk_bf16_f32 v{T}, v{D}, v{D+4}")
        sm(3,3)
        a(f"v_cvt_pk_bf16_f32 v{T+1}, v{D+2}, v{D+6}")
        a(f"ds_write2_b32 v3, v{T}, v{T+1} offset0:0 offset1:8")
        z = [f"v_mov_b32 v{D+r}, 0" for r in range(8)]
        sm(2,4); a(z[0]); a(z[1]); sm(3,4); a(z[2]); a(z[3]); sm(2,5); a(z[4]); a(z[5]); sm(3,5)
        stamp(a, o, 'y', 15)
        a(z[6]); a("s_waitcnt lgkmcnt(0)\n s_barrier   ; B1y"); a(z[7])
        a("s_nop 1")
        a(f"v_add_f32 v{D+8}, v{D+8}, v{D+9}\n v_add_f32 v{D+10}, v{D+10}, v{D+11}")
        a(f"v_add_f32 v{D+12}, v{D+12}, v{D+13}\n v_add_f32 v{D+14}, v{D+14}, v{D+15}")
        a(f"v_cvt_pk_bf16_f32 v{T+2}, v{D+8}, v{D+12}")
        a(f"v_cvt_pk_bf16_f32 v{T+3}, v{D+10}, v{D+14}")
        a(f"ds_write2_b32 v5, v{T+2}, v{T+3} offset0:0 offset1:8")
        a(f"s_cbranch_vccnz {P}_fail")
        a(f"{P}_yok:")
        for r in range(8, 16): a(f"v_mov_b32 v{D+r}, 0")
        a("s_waitcnt lgkmcnt(0)")
        stamp(a, o, 'y', 16)
        a("s_barrier   ; B2")
        if w < 2: mb_six(a, D, M, T, Bop, w)
        else: mb_four(a, D, M, T, Bop)
        a("s_waitcnt lgkmcnt(0)")
        stamp(a, o, 'y', 4)
        a("s_barrier   ; B3")
        if w == 2: x_dma(a, 0, o.nxa)
        stamp_flush(a, o, 'y', w)
        ring_advance(a)
        a(f"s_add_u32 s{sSTEP}, s{sSTEP}, 1\n s_cmp_lt_u32 s{sSTEP}, {o.nsteps}\n s_cbranch_scc1 {P}_loop")
        a(f"s_branch L_team_done")
        a(f"{P}_fail:")
        m_exact(a, P, M)
        a("s_waitcnt vmcnt(0) lgkmcnt(0)")
        budget_check(a)
        for r in range(16): a(f"v_mov_b32 v{D+r}, 0")
        count(a, o, 56)
        a(f"s_mov_b32 m0, {L_M + w*1024}\n s_barrier")
        a(f"buffer_load_dwordx4 v0, {S_WS}, s{sM1} offen sc1 lds")
        a(f"buffer_load_dwordx4 v0, {S_WS}, s{sM1} offen offset:3072 sc1 lds")
        a("s_waitcnt vmcnt(0)\n s_barrier")
        for k in KORD: mread(k)
        a("s_waitcnt lgkmcnt(6)")
        sm(0,0); sm(1,0); sm(2,0); sm(3,0)
        a(f"s_branch {P}_y")
    both_modes(a, P, steps)

def m_exact(a, P, M):
    a("s_mov_b64 s[40:41], 0")
    for r in range(M, M+28): a(f"v_cmp_eq_u32 vcc, -1, v{r}\n s_or_b64 s[40:41], s[40:41], vcc")
    a(f"s_cmp_eq_u64 s[40:41], 0\n s_cbranch_scc1 {P}_yok")

epi = lambda d, t: [f"v_add_f32 v{d}, v{d}, v{d+1}", f"v_add_f32 v{d+2}, v{d+2}, v{d+3}", f"v_cvt_pk_bf16_f32 v{t}, v{d}, v{d+2}"]

def mb_four(a, D, M, T, Bop):
    pend = []
    for hh in range(4):
        for k in range(7):
            a(f"{SM} {v(D+4*hh,4)}, {v(M+4*k,4)}, {v(Bop(hh,k),8)}, v1")
            if pend and k >= 4:
                if k == 4: a("s_nop 2")
                a(pend.pop(0))
        pend = epi(D + 4*hh, T + hh)
    a("s_nop 7")
    for l in pend: a(l)
    a(f"ds_write_b64 v6, {v(T,2)}")
    a(f"ds_write_b64 v6, {v(T+2,2)} offset:512")

def mb_six(a, D, M, T, Bop, w):
    SB = [56, Bop(3,6)]
    nxt = [0]; q = []
    def fetch():
        i = nxt[0]
        if i >= 15: return
        nxt[0] += 1
        a(f"ds_read_b128 {v(SB[i%2],4)}, v7 offset:{i*2048}")
        a(f"ds_read_b128 {v(SB[i%2]+4,4)}, v7 offset:{i*2048 + 1024}")
        q.extend([("f", i)]*2)
    def need(tag):
        if tag in q:
            last = len(q) - 1 - q[::-1].index(tag)
            a(f"s_waitcnt lgkmcnt({len(q)-1-last})"); del q[:last+1]
    sm = lambda d, k, b: a(f"{SM} {v(d,4)}, {v(M+4*k,4)}, {v(b,8)}, v1")
    for k in range(7):
        sm(D+12, k, Bop(2,k))
        if k in (4, 5): fetch()
    for k in range(7):
        sm(D, k, Bop(0,k)); sm(D+4, k, Bop(1,k))
        need(("f", k)); sm(D+8, k, SB[k%2]); fetch()
        if k == 2:
            for l in epi(D+12, T+2): a(l)
            for r in range(4): a(f"v_mov_b32 v{D+12+r}, 0")
    fill = ["s_nop 3"] + epi(D, T) + epi(D+4, T+1) + [f"v_mov_b32 v{D+r}, 0" for r in range(4)] + [f"ds_write_b64 v6, {v(T,2)}"] + epi(D+8, T)
    for k in range(6):
        sm(D+12, k, Bop(3,k))
        for _ in range(3):
            if fill:
                l = fill.pop(0); a(l)
                if l.startswith("ds_"): q.append("w")
    assert not fill
    for k in range(7):
        need(("f", 7+k)); sm(D, k, SB[(7+k)%2]); fetch()
    need(("f", 14)); sm(D+12, 6, SB[0])
    a("s_nop 6")
    for l in epi(D, T+1) + epi(D+12, T+3): a(l)
    a(f"ds_write_b64 v6, {v(T,2)} offset:{3072 - 512*w}")
    a(f"ds_write_b64 v6, {v(T+2,2)} offset:512")

def y_addr(a, w):
    a(f"""
    v_lshrrev_b32 v63, 3, v61
    v_lshlrev_b32 v3, 8, v63
    v_lshl_add_u32 v3, v62, 6, v3
    v_bfe_u32 v63, v61, 1, 1
    v_lshl_add_u32 v3, v63, 4, v3
    v_bfe_u32 v63, v61, 2, 1
    v_lshl_add_u32 v3, v63, 3, v3
    v_and_b32 v63, 1, v61
    v_lshl_add_u32 v3, v63, 2, v3
    v_add_u32 v3, {L_Y + (w*512 if w < 3 else 3584)}, v3
    """)
    if w < 3: a("v_add_u32 v5, 2048, v3")

def dbg_wait(a, L, off, need, t):
    a(f"""
    v_mov_b32 v{t+1}, {off}
    {L}:
    buffer_load_dword v{t}, v{t+1}, {S_DBG}, 0 offen sc0 sc1
    s_waitcnt vmcnt(0)
    v_readfirstlane_b32 s{sT0}, v{t}
    s_and_b32 s{sT1}, s{sT0}, 0xffff
    s_cmp_ge_u32 s{sT1}, {need}
    s_cbranch_scc1 {L}_ok
    s_sub_u32 s{sBUD}, s{sBUD}, 1
    s_cmp_lg_u32 s{sBUD}, 0
    s_cbranch_scc1 {L}
    s_branch L_team_done
    {L}_ok:
    """)

def wait_done(a, what, t0, t1, dead, sleep=""):
    L = a.uid("WD"); first, n = {'A': (0, 4), 'B': (4, 4), 'S': (8, 2)}[what]
    a(f"""
    v_mbcnt_lo_u32_b32 v{t1}, -1, 0
    v_and_b32 v{t1}, {n-1}, v{t1}
    v_lshlrev_b32 v{t1}, 7, v{t1}
    s_mov_b32 s41, {WS_DONE + first*128}
    s_mov_b64 exec, {(1 << n) - 1}
    {L}:
    buffer_load_dword v{t0}, v{t1}, {S_WS}, s41 offen sc1
    s_waitcnt vmcnt(0)
    v_cmp_gt_u32 vcc, 64, v{t0}
    s_cbranch_vccz {L}_ok
    {sleep}
    s_sub_u32 s{sBUD}, s{sBUD}, 1
    s_cmp_lg_u32 s{sBUD}, 0
    s_cbranch_scc1 {L}
    s_branch {dead}
    {L}_ok:
    s_mov_b64 exec, -1
    """)

def team_sync(a, o, P, w):
    a("s_waitcnt vmcnt(0) lgkmcnt(0)")
    if w == 0: tstamp(a, 9, sWAVE, tmp=(56, 57))
    a("s_barrier")
    if w < 3: a(f"v_mov_b32 v58, {L_MISC}\n ds_read_b32 v58, v58\n s_waitcnt lgkmcnt(0)\n v_readfirstlane_b32 s{sMODE}, v58")
    if w == 0: tstamp(a, 6, sWAVE, tmp=(56, 57))

def both_modes(a, P, steps):
    a(f"s_cmp_lg_u32 s{sMODE}, 0\n s_cbranch_scc1 {P}_far")
    steps(P, "")
    a(f"{P}_far:")
    steps(P + "f", " sc1")

def wave3(a, o):
    P = "W3"
    DY, DS, M, NEG = 12, 20, 32, 60
    EX, SC, OWN, PR, FR = 64, 68, 76, 96, 136
    vFA, vFS, vST, vXT, vXD, vSG, vPA, vMO, vMA, vCN = 142, 143, 144, 145, 146, 147, 148, 157, 158, 159
    vSX, vS0, vL0, vK0, vK1, vVA, vZ, DP, YO, KM, SET = 170, 171, 172, 173, 174, 176, 184, 188, 192, 208, 236
    vGO = 185
    U, KX = 256 + 112, 256 + 192
    Aop = lambda t, k: 256 + (t*7 + k)*8
    a("s_mov_b64 exec, 1")
    dbg_wait(a, "W3_seats", 0, 32, 56)
    a(f"s_mov_b64 exec, -1\n s_lshr_b32 s{sMODE}, s{sT0}, 16\n v_mov_b32 v56, s{sMODE}\n v_mov_b32 v57, {L_MISC}\n ds_write_b32 v57, v56")
    y_addr(a, 3)
    for k in range(8):
        a(f"s_add_u32 s{sT0}, s{sRANK}, {k}\n s_and_b32 s{sT0}, s{sT0}, 7")
        a(f"s_lshl_b32 s{sT1}, s{sT0}, 11\n v_add_u32 v{vVA+k}, s{sT1}, v0")
        a(f"s_lshl_b32 s{sT1}, s{sT0}, 10\n s_add_u32 s{sT1}, s{sT1}, {R_P + 2048}\n v_add_u32 v{vPA+k}, s{sT1}, v0")
    a(f"""
    v_add_u32 v{vPA+8}, {R_P}, v0
    v_and_b32 v{vK0}, 7, v61
    v_lshlrev_b32 v{vK0}, 5, v{vK0}
    v_lshrrev_b32 v63, 1, v62
    v_lshl_add_u32 v{vK0}, v63, 8, v{vK0}
    v_and_b32 v63, 1, v62
    v_lshl_add_u32 v{vK0}, v63, 3, v{vK0}
    s_mul_i32 s{sT0}, s{sJ}, {14*256}
    v_add_u32 v{vK0}, s{sT0}, v{vK0}
    v_add_u32 v{vK1}, 2048, v{vK0}
    v_mul_u32_u24 v6, 320, v63
    v_lshl_add_u32 v6, v61, 2, v6
    v_lshrrev_b32 v63, 1, v62
    v_cmp_eq_u32 vcc, s{sJ}, v63
    v_cmp_gt_u32 s[40:41], 8, v61
    s_xor_b32 s{sT0}, s{sRANK}, 1
    s_mul_i32 s{sT0}, s{sT0}, 640
    s_add_u32 s{sT0}, s{sT0}, {R_S}
    v_add_u32 v59, s{sT0}, v6
    v_add_u32 v6, {L_S}, v6
    v_mov_b32 v58, {OOB}
    v_mov_b32 v57, {L_S + 1024}
    v_cndmask_b32 v{vSX}, v59, v58, vcc
    v_cndmask_b32 v6, v57, v6, vcc
    v_cndmask_b32 v{vS0}, v58, v{vSX}, s[40:41]
    v_cndmask_b32 v{vL0}, v57, v6, s[40:41]
    v_cmp_gt_u32 vcc, 10, v61
    v_mov_b32 v63, 0x7f800000
    v_mov_b32 v9, 0x42800000
    v_mul_u32_u24 v2, 160, v62
    v_cndmask_b32 v9, v63, v9, vcc
    v_cndmask_b32 v63, 0, v61, vcc
    v_lshl_add_u32 v2, v63, 4, v2
    s_mul_i32 s{sT0}, s{sRANK}, 640
    s_add_u32 s{sT0}, s{sT0}, {R_S}
    v_add_u32 v{vSG}, s{sT0}, v2
    v_add_u32 v2, {L_S}, v2
    v_mov_b32 v63, {L_S + 1536}
    v_cndmask_b32 v2, v63, v2, vcc
    v_mov_b32 v{SC}, 0xf149f2ca
    v_mov_b32 v{SC+1}, 0xf149f2ca
    v_mov_b32 v{SC+2}, 0xf149f2ca
    v_mov_b32 v{SC+3}, 0xf149f2ca
    ds_write_b128 v63, {v(SC,4)}
    v_cndmask_b32 v10, v58, v{vSG}, vcc
    v_lshrrev_b32 v59, 1, v61
    s_lshl_b32 s{sT0}, s{sH}, 2
    s_add_u32 s{sT0}, s{sT0}, 15
    v_add_u32 v59, s{sT0}, v59
    v_mov_b32 v57, s{sH}
    v_cmp_gt_u32 s[40:41], 2, v61
    s_nop 1
    v_cndmask_b32 v59, v59, v57, s[40:41]    ; u
    v_lshrrev_b32 v57, 1, v59
    v_lshlrev_b32 v4, 8, v57
    v_and_b32 v57, 1, v59
    v_lshl_add_u32 v4, v57, 4, v4
    v_and_b32 v57, 1, v61
    v_lshl_add_u32 v4, v57, 3, v4
    v_lshl_add_u32 v4, v62, 5, v4
    s_lshl_b32 s{sT0}, s{sJ}, 7
    s_add_u32 s{sT0}, s{sT0}, {R_P}
    v_add_u32 v4, s{sT0}, v4
    v_cndmask_b32 v4, v58, v4, vcc
    v_cmp_eq_u32 vcc, 0, v60
    s_lshl_b32 s{sT0}, s{sRANK}, 2
    v_mov_b32 v57, s{sT0}
    v_cndmask_b32 v{vFS}, v58, v57, vcc
    v_and_b32 v57, 31, v60
    v_lshlrev_b32 v{vFA}, 2, v57
    v_mov_b32 v{vST}, 0
    v_mov_b32 v{vGO}, {L_MISC + 64}
    ds_write_b32 v{vGO}, v{vST}
    v_and_b32 v58, 1, v61
    v_lshl_add_u32 v59, v62, 1, v58
    v_lshlrev_b32 v5, 5, v59
    v_bfe_u32 v57, v61, 1, 1
    v_lshl_add_u32 v5, v57, 4, v5
    v_lshrrev_b32 v57, 2, v61
    v_lshl_add_u32 v5, v57, 2, v5
    s_lshl_b32 s{sT0}, s{sRANK}, 8
    v_add_u32 v5, s{sT0}, v5
    v_lshlrev_b32 v{vMA}, 4, v59
    v_bfe_u32 v57, v61, 3, 1
    v_lshl_add_u32 v{vMA}, v57, 7, v{vMA}
    v_bfe_u32 v57, v61, 1, 2
    v_lshl_add_u32 v{vMA}, v57, 2, v{vMA}
    v_add_u32 v{vMA}, s{sT0}, v{vMA}
    v_mov_b32 v{vZ}, 0
    v_cmp_eq_u32 vcc, 1, v58
    v_mov_b32 v8, 0x01000504
    v_mov_b32 v57, 0x07060302
    v_cndmask_b32 v8, v8, v57, vcc
    v_mul_u32_u24 v59, 896, v59
    v_lshrrev_b32 v57, 1, v61
    v_lshl_add_u32 v59, v57, 2, v59
    s_lshl_b32 s{sT0}, s{sCT}, 5
    v_add_u32 v59, s{sT0}, v59
    buffer_load_dword v{vMO}, v59, s[60:63], 0 offen
    v_min_u32 v{vXT}, 13, v60
    v_lshlrev_b32 v{vXT}, 6, v{vXT}
    s_lshl_b32 s{sT1}, s{sCT}, 14
    s_add_u32 s{sVO}, s{sT1}, {WS_VO}
    s_mul_i32 s{sXT}, s{sRANK}, 896
    s_add_u32 s{sXT}, s{sXT}, {WS_XP}
    s_mul_i32 s{sXO}, s{sJ}, 14336
    s_add_u32 s{sXO}, s{sXO}, {WS_XP + XSTEP}
    s_mov_b32 s{sMO}, {WS_MO}
    s_mov_b32 s{sSC}, {SCALE}
    s_mov_b32 s{sCN}, {WS_CNT + C_VO}
    """)
    for r in range(20): a(f"v_mov_b32 v{DY+r}, 0")
    for r in range(4): a(f"v_mov_b32 v{NEG+r}, -1\n v_mov_b32 v{DP+r}, 0")
    for r in range(6): a(f"v_mov_b32 v{FR+r}, 0")
    a(f"ds_write_b128 v0, {v(DY,4)} offset:{L_Y + 1024}")
    a("s_waitcnt vmcnt(0)")
    def init(P, ST):
        a(f"buffer_store_dword v{vST}, v{vFS}, {S_WS}, s{sFL} offen{ST}")
        a(f"buffer_store_dword v{vST}, v{vFS}, {S_WS}, s{sFL} offen offset:2048{ST}")
        for sl in range(4):
            a(f"s_mov_b32 s{sT0}, {WS_RING + sl*0x10000}")
            a(f"buffer_store_dwordx4 {v(NEG,4)}, v10, {S_WS}, s{sT0} offen{ST}")
            a(f"buffer_store_dwordx2 {v(NEG,2)}, v4, {S_WS}, s{sT0} offen{ST}")
            a(f"buffer_store_dword v{NEG if sl else vMO}, v5, {S_WS}, s{sT0} offen{ST}")
        if not ST: a("s_branch W3_inited")
    both_modes(a, "W3i", init)
    a("W3_inited:")
    a(f"s_waitcnt vmcnt(0)\n s_mov_b64 exec, 1\n v_mov_b32 v56, 1\n v_mov_b32 v57, 64\n buffer_atomic_add v56, v57, {S_DBG}, 0 offen")
    a("s_mov_b64 exec, -1")
    for level, what in enumerate("ABS"):
        wait_done(a, what, 56, 57, "L_team_done")
        a(f"v_mov_b32 v56, {level+1}\n v_mov_b32 v57, {L_MISC + 128}\n ds_write_b32 v57, v56")
    a(f"s_mul_i32 s{sT0}, s{sRANK}, {A_RANK}\n s_add_u32 s{sT0}, s{sT0}, {WS_A + 12*7*2048}")
    load_regs(a, [Aop(t,k)+4*hf for t in range(2) for k in range(7) for hf in range(2)], sT0)
    def vo_wait(L):
        a(f"""
        {L}:
        buffer_load_dword v{vCN}, v{vZ}, {S_WS}, s{sCN} offen sc1
        s_waitcnt vmcnt(0)
        v_cmp_gt_u32 vcc, 28, v{vCN}
        s_cbranch_vccz {L}_ok
        s_sub_u32 s{sBUD}, s{sBUD}, 1
        s_cmp_lg_u32 s{sBUD}, 0
        s_cbranch_scc1 {L}
        s_branch L_team_done
        """)
    a("s_mov_b64 exec, 1")
    dbg_wait(a, "W3_tsync", 64, 32, 56)
    a("s_mov_b64 exec, -1")
    vo_wait("W3_vo0"); a("W3_vo0_ok:")
    a(f"s_add_u32 s{sCN}, s{sCN}, 1024")
    team_sync(a, o, P, 3)
    HORD = (0, 2, 4, 1, 3, 5, 6)
    KT = (KM, KX, KX + 28); KOF = (0, 8, 12, 20)
    def steps(P, ST):
        a(f"s_add_u32 s{sM1}, s{sCUR}, 6144\n s_mov_b32 s{sT3}, 0")
        a(f"{P}_loop:")
        a(f"s_mov_b32 m0, {L_M + 6144}")
        a("s_barrier   ; B0")
        stamp(a, o, 'w3', 0)
        a(f"buffer_load_dwordx4 v0, {S_WS}, s{sM1} offen sc1 lds")
        vq = [f"buffer_store_dword v{vMO}, v{vMA}, {S_WS}, s{sMO} offen sc1",
              f"buffer_load_dword v{vCN}, v{vZ}, {S_WS}, s{sCN} offen sc1",
              f"buffer_load_dword v{vXD}, v{vXT}, {S_WS}, s{sXT} offen sc1"]
        for k in range(8):
            vq.append(f"buffer_load_dwordx4 {v(U+16+8*k,4)}, v{vVA+k}, {S_WS}, s{sVO} offen sc1")
            vq.append(f"buffer_load_dwordx4 {v(U+20+8*k,4)}, v{vVA+k}, {S_WS}, s{sVO} offen offset:1024 sc1")
        a("s_barrier   ; B0'")
        a(f"s_add_u32 s{sXT}, s{sXT}, {XSTEP}\n s_add_u32 s{sT3}, s{sT3}, 1\n v_add_u32 v{vST}, 1, v{vST}")
        nops(a, o.b0p)
        nv = min(o.nv0, len(vq))
        for _ in range(nv): a(vq.pop(0))
        a(f"s_waitcnt vmcnt({nv+1})")
        for kt in range(2):
            for n, hh in enumerate(HORD): a(f"ds_read_b128 {v(KX+28*kt+4*n,4)}, v0 offset:{L_X + kt*7168 + hh*1024}")
        a(f"s_waitcnt vmcnt({nv})\n s_barrier   ; B1")
        mread = lambda k: a(f"ds_read_b128 {v(M+4*k,4)}, v0 offset:{L_M + 1024*k}")
        for k in KORD[:4]: mread(k)
        a(f"s_barrier   ; B1'")
        for k in KORD[4:]: mread(k)
        while vq: a(vq.pop(0))
        stamp(a, o, 'w3', 10)
        a(f"{P}_y:")
        for n, k in enumerate(KORD):
            a(f"s_waitcnt lgkmcnt({6-n})" if n < 4 else f"s_waitcnt lgkmcnt(0)" if n == 4 else "")
            a(f"{SM} {v(DY,4)}, {v(M+4*k,4)}, {v(Aop(0,k),8)}, v1")
            a(f"{SM} {v(DY+4,4)}, {v(M+4*k,4)}, {v(Aop(1,k),8)}, v1")
            if n >= 4:
                for hn in range(7)[(n-4)*2 : (n-4)*2 + (2 if n < 6 else 3)]:
                    hh = HORD[hn]; base, off = (vK0, hh*512) if hh < 4 else (vK1, (hh-4)*512)
                    a(f"ds_read2_b64 {v(KM+4*hn,4)}, v{base} offset0:{off//8} offset1:{off//8+2}")
        sets = [SET+4*i for i in range(o.ns)]
        for r in sets[1:]: a(f"v_mov_b32 v{r}, -1")
        nops(a, 5 - o.ns)
        a(f"v_add_f32 v{DY}, v{DY}, v{DY+1}\n v_add_f32 v{DY+2}, v{DY+2}, v{DY+3}")
        a(f"v_cmp_u_f32 vcc, v{DY}, v{DY+2}")
        a(f"v_add_f32 v{DY+4}, v{DY+4}, v{DY+5}\n v_add_f32 v{DY+6}, v{DY+6}, v{DY+7}")
        a(f"v_cvt_pk_bf16_f32 v{DY}, v{DY}, v{DY+4}\n v_cvt_pk_bf16_f32 v{DY+2}, v{DY+2}, v{DY+6}")
        a(f"ds_write2_b32 v3, v{DY}, v{DY+2} offset0:0 offset1:8")
        stamp(a, o, 'w3', 11)
        a("s_barrier   ; B1y")
        a(f"ds_read_b128 {v(YO,4)}, v0 offset:{L_Y}\n ds_read_b128 {v(YO+4,4)}, v0 offset:{L_Y + 1024}")
        a(f"s_cbranch_vccnz {P}_fail")
        a(f"{P}_yok:")
        ssm = lambda kt, st: a(f"{SM} {v(DS+4*kt,4)}, {v(YO+4*st,4)}, {v(KT[kt]+KOF[st],8)}, v1")
        a("s_waitcnt lgkmcnt(1)")
        for kt in range(3): ssm(kt, 0)
        a("s_barrier   ; B2")
        stamp(a, o, 'w3', 1)
        a(f"ds_read_b128 {v(YO+8,4)}, v0 offset:{L_Y + 2048}\n ds_read_b128 {v(YO+12,4)}, v0 offset:{L_Y + 3072}")
        for st in range(1, 4):
            a(f"s_waitcnt lgkmcnt({3-st})")
            for kt in range(3): ssm(kt, st)
        a("s_nop 5")
        for kt in range(3):
            for aa in range(2):
                r = DS + 4*kt + 2*aa
                a(f"v_add_f32 v{r}, v{r}, v{r+1}")
                a(f"buffer_store_dword v{r}, v{vSX if kt else vS0}, {S_WS}, s{sCUR} offen offset:{(0, 32, 96)[kt] + 160*aa}{ST}")
        stamp(a, o, 'w3', 2)
        for kt in range(3):
            o0 = (0, 8, 24)[kt]
            a(f"ds_write2_b32 v{6 if kt else vL0}, v{DS+4*kt}, v{DS+4*kt+2} offset0:{o0} offset1:{o0+40}")
        a(f"ds_read_b128 {v(OWN,4)}, v2")
        for r in range(20): a(f"v_mov_b32 v{DY+r}, 0")
        a("s_waitcnt lgkmcnt(0)")
        for q in range(4): a(f"v_mul_f32 v{OWN+q}, s{sSC}, v{OWN+q}")
        n = o.ns
        def sbody(i, wait):
            a(f"buffer_load_dwordx4 {v(sets[i],4)}, v{vSG}, {S_WS}, s{sCUR} offen sc1")
            if wait: a(f"s_waitcnt vmcnt({n-1})")
            a(f"v_cmp_eq_u32 vcc, -1, v{sets[(i+1) % n]}\n s_cbranch_vccz {P}_sok{i}")
        for i in range(n-1): sbody(i, False)
        sbody(n-1, True)
        a(f"{P}_spoll:")
        for i in range(n): sbody(i, True)
        count(a, o, 57)
        a(f"s_sub_u32 s{sBUD}, s{sBUD}, 1\n s_cmp_lg_u32 s{sBUD}, 0\n s_cbranch_scc1 {P}_spoll\n s_branch L_team_done")
        f2 = f"buffer_store_dword v{vST}, v{vFS}, {S_WS}, s{sFL} offen offset:2048{ST}"
        for i in range(n):
            r = sets[(i+1) % n]
            a(f"{P}_sok{i}:")
            stamp(a, o, 'w3', 3)
            if o.f2pos == 0: a(f2)
            for q in range(4): a(f"v_fma_f32 v{SC+q}, v{r+q}, s{sSC}, v{OWN+q}")
            a(f"v_maximum3_f32 v7, |v{SC}|, |v{SC+1}|, |v{SC+2}|")
            a(f"v_exp_f32 v{EX}, v{SC}")
            a(f"v_maximum3_f32 v7, v7, |v{SC+3}|, |v{SC+3}|")
            a(f"v_exp_f32 v{EX+1}, v{SC+1}")
            a(f"v_cmp_nle_f32 vcc, v7, v9")
            a(f"v_exp_f32 v{EX+2}, v{SC+2}\n v_exp_f32 v{EX+3}, v{SC+3}")
            a(f"v_add_f32 v7, v{EX}, v{EX+1}\n v_add_f32 v11, v{EX+2}, v{EX+3}")
            if i != n-1: a(f"s_cbranch_vccz {P}_sexp\n s_branch {P}_smax")
            else: a(f"s_cbranch_vccnz {P}_smax")
        a(f"{P}_sexp:")
        a("v_add_f32 v7, v7, v11")
        for k, sh in enumerate((8, 4, 2, 1)):
            if k + 1 == o.f2pos: a(f2 + "\n s_nop 0")
            else: a("s_nop 1")
            a(f"v_add_f32_dpp v7, v7, v7 row_ror:{sh} row_mask:0xf bank_mask:0xf")
        a("v_rcp_f32 v7, v7\n s_nop 0")
        a(f"v_mul_f32 v{SC}, v{EX}, v7\n v_mul_f32 v{SC+1}, v{EX+1}, v7\n v_mul_f32 v{SC+2}, v{EX+2}, v7")
        a(f"v_cvt_pk_bf16_f32 v{SC+4}, v{SC}, v{SC+1}\n v_mul_f32 v{SC+3}, v{EX+3}, v7\n v_cvt_pk_bf16_f32 v{SC+5}, v{SC+2}, v{SC+3}")
        a(f"buffer_store_dwordx2 {v(SC+4,2)}, v4, {S_WS}, s{sCUR} offen{ST}")
        stamp(a, o, 'w3', 4)
        order = list(range(2,10)) + [0, 1]
        def pround():
            for k in order:
                if k < 2: a(f"buffer_load_dwordx4 {v(PR+4*k,4)}, v{vPA+8}, {S_WS}, s{sCUR} offen offset:{k*1024} sc1")
                else: a(f"buffer_load_dwordx4 {v(PR+4*k,4)}, v{vPA+k-2}, {S_WS}, s{sCUR} offen sc1")
        flag_poll(a, o, P, list(range(FR, FR+o.nf)), f"v{vFA}", 2048, sT3)
        stamp(a, o, 'w3', 40)
        pround()
        a("s_barrier   ; B3")
        for q in range(4): a(f"ds_read_b128 {v(U+4*q,4)}, v0 offset:{L_UM + 1024*q}")
        a(f"s_add_u32 s{sVO}, s{sVO}, {VO_STEP}\n s_add_u32 s{sM1}, s{sNXT}, 6144\n s_add_u32 s{sMO}, s{sMO}, 8192")
        a(f"v_cmp_gt_u32 vcc, 28, v{vCN}\n s_cbranch_vccnz {P}_vo\n {P}_vo_ok:\n s_add_u32 s{sCN}, s{sCN}, 1024")
        def pu(first):
            for n, k in enumerate(order):
                a(f"s_waitcnt vmcnt({9-n + (1 if (first and n > o.kf) else 0)})" + (" lgkmcnt(0)" if n == 8 else ""))
                if first: stamp(a, o, 'w3', 50+n)
                a(f"{SM} {v(DP,4)}, {v(PR+4*k,4)}, {v(U+8*k,8)}, v1")
                if first and n == o.kf: a(f"buffer_store_dword v{vST}, v{vFS}, {S_WS}, s{sFL} offen{ST}")
                if first and n == o.kgo: a(f"ds_write_b32 v{vGO}, v{vST}")
        pu(True)
        a("s_nop 7")
        a(f"{P}_pchk:")
        a(f"v_add_f32 v{DP}, v{DP}, v{DP+1}\n v_add_f32 v{DP+2}, v{DP+2}, v{DP+3}")
        a(f"v_cvt_pk_bf16_f32 v7, v{DP}, v{DP+2}")
        a(f"v_cmp_u_f32 vcc, v{DP}, v{DP+2}\n s_nop 0")
        a("v_mov_b32_dpp v11, v7 quad_perm:[1,0,3,2] row_mask:0xf bank_mask:0xf")
        a(f"v_perm_b32 v{vMO}, v7, v11, v8")
        a(f"v_cndmask_b32 v7, v{vMO}, v{NEG}, vcc")
        a(f"buffer_store_dword v7, v5, {S_WS}, s{sNXT} offen{ST}")
        stamp(a, o, 'w3', 5)
        a(f"s_cbranch_vccnz {P}_pfail")
        a(f"{P}_pok:")
        a(f"buffer_store_dword v{NEG}, v5, {S_WS}, s{sCUR} offen{ST}")
        a(f"buffer_store_dwordx2 {v(NEG,2)}, v4, {S_WS}, s{sPRV} offen{ST}")
        a(f"buffer_store_dwordx4 {v(NEG,4)}, v10, {S_WS}, s{sCUR} offen{ST}")
        x_dma(a, o.nxa, 14)
        for r in range(4): a(f"v_mov_b32 v{DP+r}, 0")
        stamp_flush(a, o, 'w3')
        ring_advance(a)
        a(f"s_add_u32 s{sSTEP}, s{sSTEP}, 1")
        a(f"s_cmp_lt_u32 s{sSTEP}, {o.nsteps}\n s_cbranch_scc1 {P}_loop")
        a(f"buffer_store_dword v{vMO}, v{vMA}, {S_WS}, s{sMO} offen sc1")
        a("s_branch L_team_done")
        vo_wait(f"{P}_vo")
        a(f"{P}_fail:")
        m_exact(a, P, M)
        a("s_waitcnt vmcnt(0) lgkmcnt(0)")
        budget_check(a)
        for r in range(8): a(f"v_mov_b32 v{DY+r}, 0")
        count(a, o, 56)
        a(f"s_mov_b32 m0, {L_M + 6144}\n s_barrier")
        a(f"buffer_load_dwordx4 v0, {S_WS}, s{sM1} offen sc1 lds")
        a("s_waitcnt vmcnt(0)\n s_barrier")
        for k in KORD: mread(k)
        a(f"s_branch {P}_y")
        a(f"{P}_smax:")
        r = sets[0]
        a(f"s_waitcnt vmcnt(0)\n buffer_load_dwordx4 {v(r,4)}, v{vSG}, {S_WS}, s{sCUR} offen sc1\n s_waitcnt vmcnt(0)")
        a(f"v_max3_u32 v7, v{r}, v{r+1}, v{r+2}\n v_max_u32 v7, v7, v{r+3}\n v_cmp_eq_u32 vcc, -1, v7\n s_cbranch_vccz {P}_smax2")
        budget_check(a)
        a(f"s_branch {P}_smax\n {P}_smax2:")
        for q in range(4): a(f"v_fma_f32 v{SC+q}, v{r+q}, s{sSC}, v{OWN+q}")
        a(f"v_max3_f32 v7, v{SC}, v{SC+1}, v{SC+2}\n v_max_f32 v7, v7, v{SC+3}")
        for sh in (8, 4, 2, 1):
            a("s_nop 1")
            a(f"v_max_f32_dpp v7, v7, v7 row_ror:{sh} row_mask:0xf bank_mask:0xf")
        for q in range(4): a(f"v_sub_f32 v{SC+q}, v{SC+q}, v7")
        for q in range(4): a(f"v_exp_f32 v{EX+q}, v{SC+q}")
        a(f"v_add_f32 v7, v{EX}, v{EX+1}\n v_add_f32 v11, v{EX+2}, v{EX+3}\n s_branch {P}_sexp")
        a(f"{P}_pfail:")
        a("v_mov_b32 v7, 0")
        for r in range(PR, PR+40, 2): a(f"v_max3_u32 v7, v{r}, v{r+1}, v7")
        a(f"v_cmp_eq_u32 vcc, -1, v7\n s_cbranch_vccnz {P}_pagain")
        a(f"buffer_store_dword v{vMO}, v5, {S_WS}, s{sNXT} offen{ST}\n s_branch {P}_pok")
        a(f"{P}_pagain:")
        budget_check(a)
        count(a, o, 58)
        for r in range(4): a(f"v_mov_b32 v{DP+r}, 0")
        pround()
        pu(False)
        a("s_nop 7")
        a(f"s_branch {P}_pchk")
    both_modes(a, P, steps)

def team_body(a, o):
    a(f"""
    s_lshr_b32 s{sH}, s{sRANK}, 1
    s_and_b32 s{sJ}, s{sRANK}, 1
    s_sub_u32 s{sT0}, s{sRANK}, 28
    s_cmp_ge_u32 s{sRANK}, 28
    s_cselect_b32 s{sCT}, s{sT0}, s{sRANK}
    s_mov_b32 s{sFL}, {WS_FL}
    s_mov_b32 s{sSTEP}, 0
    s_mov_b32 s{sCUR}, {WS_RING}
    s_mov_b32 s{sNXT}, {WS_RING + 0x10000}
    s_mov_b32 s{sPRV}, {WS_RING + 0x30000}
    v_and_b32 v60, 63, v0
    v_and_b32 v61, 15, v60
    v_lshrrev_b32 v62, 4, v60
    v_lshlrev_b32 v0, 4, v60
    v_and_b32 v63, 1, v60
    v_cmp_eq_u32 vcc, 1, v63
    v_mov_b32 v1, 0x44444444
    v_mov_b32 v63, 0xeeeeeeee
    v_cndmask_b32 v1, v1, v63, vcc
    """)
    a(f"v_mov_b32 v56, 0\n v_mov_b32 v57, {L_MISC + 128}\n ds_write_b32 v57, v56\n s_waitcnt lgkmcnt(0)\n s_barrier")
    if o.diag: a("s_mov_b32 s56, 0\n s_mov_b32 s57, 0\n s_mov_b32 s58, 0")
    a(f"""
    s_cmp_eq_u32 s{sWAVE}, 3
    s_cbranch_scc1 W3_entry
    s_cmp_eq_u32 s{sWAVE}, 2
    s_cbranch_scc1 Y2_entry
    s_cmp_eq_u32 s{sWAVE}, 1
    s_cbranch_scc1 Y1_entry
    """)
    ywave(a, o, 0)
    a("Y1_entry:"); ywave(a, o, 1)
    a("Y2_entry:"); ywave(a, o, 2)
    a("W3_entry:"); wave3(a, o)
```

```python
class Asm:
    def __init__(self):
        self.lines = []
        self._uid = 0
    def __call__(self, s=""):
        for l in s.split("\n"):
            l = l.strip()
            if not l:
                continue
            if l.endswith(":") or l.startswith("."):
                self.lines.append(l)
            elif l.startswith(";"):
                self.lines.append("    " + l)
            else:
                self.lines.append("    " + l)
    def raw(self, s):
        self.lines.append(s)
    def label(self, name):
        self.lines.append(name + ":")
    def uid(self, p="L"):
        self._uid += 1
        return f"{p}_{self._uid}"
    def text(self):
        return "\n".join(self.lines) + "\n"

def v(i, n=1):
    if i >= 256:
        assert i + n <= 512
        j = i - 256
        return f"a{j}" if n == 1 else f"a[{j}:{j+n-1}]"
    assert i + n <= 256, (i, n)
    return f"v{i}" if n == 1 else f"v[{i}:{i+n-1}]"

def s(i, n=1):
    return f"s{i}" if n == 1 else f"s[{i}:{i+n-1}]"

def kernel_head(a, name):
    a(f".globl {name}")
    a(".p2align 8")
    a(f".type {name},@function")
    a.label(name)

def kernel_desc(a, name, vgpr=512, sgpr=102, accum=256, kernarg=112):
    a('.section .rodata,"a"')
    a(".p2align 6")
    a(f".amdhsa_kernel {name}")
    a.raw(f"  .amdhsa_next_free_vgpr {vgpr}")
    a.raw(f"  .amdhsa_next_free_sgpr {sgpr}")
    a.raw(f"  .amdhsa_accum_offset {accum}")
    a.raw("  .amdhsa_group_segment_fixed_size 0")
    a.raw(f"  .amdhsa_kernarg_size {kernarg}")
    a.raw("  .amdhsa_user_sgpr_count 2")
    a.raw("  .amdhsa_user_sgpr_kernarg_segment_ptr 1")
    a.raw("  .amdhsa_system_sgpr_workgroup_id_x 1")
    a.raw("  .amdhsa_float_denorm_mode_32 3")
    a(".end_amdhsa_kernel")
    a(".text")

def srd(a, d, base, nbytes, off=0):
    if off:
        a(f"s_add_u32 s{d}, s{base}, {off}")
        a(f"s_addc_u32 s{d+1}, s{base+1}, 0")
    else:
        a(f"s_mov_b32 s{d}, s{base}")
        a(f"s_mov_b32 s{d+1}, s{base+1}")
    a(f"s_mov_b32 s{d+2}, {nbytes}")
    a(f"s_mov_b32 s{d+3}, 0x00020000")

DIAG = {'on': False}
def tstamp(a, slot, wave_sgpr, ws="s[4:7]", base=0xF100000, tmp=(253, 254), extra=None):
    if not DIAG['on']: return
    L = a.uid("TS")
    a(f"""
    s_cmp_lg_u32 s{wave_sgpr}, 0
    s_cbranch_scc1 {L}
    s_memrealtime s[100:101]
    s_waitcnt lgkmcnt(0)
    v_mov_b32 v{tmp[0]}, {'s100' if extra is None else extra}
    s_lshl_b32 s100, s3, 8
    s_add_u32 s100, s100, {base + slot*4}
    v_mov_b32 v{tmp[1]}, s100
    buffer_store_dword v{tmp[0]}, v{tmp[1]}, {ws}, 0 offen
    s_memtime s[100:101]
    s_waitcnt lgkmcnt(0)
    v_mov_b32 v{tmp[0]}, s100
    buffer_store_dword v{tmp[0]}, v{tmp[1]}, {ws}, 0 offen offset:128
    {L}:
    """)

DBGT = {'on': False}
def dstamp(a, word, wave_sgpr, op="umax", tmp=(253, 254), inv=False, wave=0, few=False):
    if not DBGT['on']: return
    L = a.uid("DS")
    a(f"""
    s_cmp_lg_u32 s{wave_sgpr}, {wave}
    s_cbranch_scc1 {L}
    {'s_and_b32 s100, s2, 0x78' if few else ''}
    {'s_cbranch_scc1 ' + L if few else ''}
    s_memrealtime s[100:101]
    s_waitcnt lgkmcnt(0)
    s_and_b32 s100, s100, 0xffffff
    {'s_sub_u32 s100, 0x1000000, s100' if inv else ''}
    s_mov_b64 s[98:99], exec
    s_mov_b64 exec, 1
    v_mov_b32 v{tmp[0]}, s100
    v_mov_b32 v{tmp[1]}, {word*4}
    buffer_atomic_umax v{tmp[0]}, v{tmp[1]}, s[12:15], 0 offen
    s_mov_b64 exec, s[98:99]
    {L}:
    """)
```

```python
from asmlib import *
from layout import *
import team, k1
from team import S_WS, S_DBG, SM, OOB, nops
K2_LDS = k1.K1_LDS
L_BC = 65536
MF32 = "v_mfma_f32_32x32x16_bf16"
MF16 = "v_mfma_f32_16x16x32_bf16"
S_W = "s[8:11]"
sWAVE, sROLE, sSEG, sBUD = 17, 16, 20, 35
sA, sB, sC, sD, sE, sF = 36, 37, 38, 39, 40, 41
NS_O = 6
N_TB, N_TA, N_TH, N_TU, N_O1, N_O2 = 56, 56, 14, 28, 4*NS_O, 7*NS_O
T_TB = 0; T_TA = T_TB + N_TB; T_TH = T_TA + N_TA; T_TU = T_TH + N_TH; T_O1 = T_TU + N_TU; T_O2 = T_O1 + N_O1; T_END = T_O2 + N_O2
D_TEAM, D_SYNC, D_TICK, D_RST = 0, 64, 128, 192
vL16, vCA, vCT = 250, 251, 252

SLEEP = ['']
def lane_setup(a):
    a(f"""
    v_mbcnt_lo_u32_b32 v0, -1, 0
    v_mbcnt_hi_u32_b32 v0, -1, v0
    v_lshlrev_b32 v{vL16}, 4, v0
    v_mov_b32 v{vCA}, 0
    v_lshrrev_b32 v1, 5, v0                 ; hi
    v_and_b32 v2, 31, v0                    ; c32
    v_and_b32 v3, 15, v0                    ; c
    v_lshrrev_b32 v4, 4, v0                 ; g
    """)

def wait_cnt(a, kind, n):
    L = a.uid("W")
    a(f"""
    s_cmp_lg_u32 s{sWAVE}, 0
    s_cbranch_scc1 {L}_ok
    s_lshl_b32 s{sF}, s{sSEG}, 10
    s_add_u32 s{sF}, s{sF}, {WS_CNT + kind}
    {L}:
    buffer_load_dword v{vCT}, v{vCA}, {S_WS}, s{sF} offen sc1
    s_waitcnt vmcnt(0)
    v_cmp_gt_u32 vcc, {n}, v{vCT}
    s_cbranch_vccz {L}_ok
    {SLEEP[0]}
    s_sub_u32 s{sBUD}, s{sBUD}, 1
    s_cmp_lg_u32 s{sBUD}, 0
    s_cbranch_scc1 {L}
    s_endpgm
    {L}_ok:
    s_waitcnt vmcnt(0)
    s_barrier
    """)

def wait_done(a, what):
    L = a.uid("WW")
    a(f"s_cmp_lg_u32 s{sWAVE}, 0\n s_cbranch_scc1 {L}")
    team.wait_done(a, what, vCT, vCT+1, "L_exit", SLEEP[0])
    a(f"{L}:\n s_barrier")

def wait_team(a):
    if not GATE[0]: return
    wait_done(a, 'S')
    L = a.uid("WT")
    a(f"""
    s_cmp_lg_u32 s{sWAVE}, 0
    s_cbranch_scc1 {L}_ok
    s_mov_b32 s{sF}, {WS_MO}
    {L}:
    buffer_load_dword v{vCT}, v{vCA}, {S_WS}, s{sF} offen sc1
    s_waitcnt vmcnt(0)
    v_cmp_eq_u32 vcc, -1, v{vCT}
    s_cbranch_vccz {L}_ok
    s_sleep 32
    s_sub_u32 s{sBUD}, s{sBUD}, 1
    s_cmp_lg_u32 s{sBUD}, 0
    s_cbranch_scc1 {L}
    s_endpgm
    {L}_ok:
    s_barrier
    """)
GATE = [True]

def arrive(a, kind, s_seg):
    L = a.uid("AR")
    a(f"""
    s_cmp_lg_u32 s{sWAVE}, 0
    s_cbranch_scc1 {L}
    s_lshl_b32 s{sF}, s{s_seg}, 10
    s_add_u32 s{sF}, s{sF}, {WS_CNT + kind}
    v_mov_b32 v{vCT}, 1
    s_mov_b64 exec, 1
    buffer_atomic_add v{vCT}, v{vCA}, {S_WS}, s{sF} offen
    s_mov_b64 exec, -1
    {L}:
    """)

def perm_rho(a, dst, tmp):
    a(f"""
    v_and_b32 v{dst}, 0x13, v2
    v_bfe_u32 v{tmp}, v2, 2, 1
    v_lshl_add_u32 v{dst}, v{tmp}, 3, v{dst}
    v_bfe_u32 v{tmp}, v2, 3, 1
    v_lshl_add_u32 v{dst}, v{tmp}, 2, v{dst}
    """)

def fetch_m(a, P, t0, lds):
    a(f"""
    s_lshl_b32 s{sA}, s{sSEG}, 13
    s_add_u32 s{sA}, s{sA}, {WS_MO}
    s_lshl_b32 s{sB}, s{sWAVE}, 10
    s_add_u32 s{sA}, s{sA}, s{sB}
    s_add_u32 s{sC}, s{sWAVE}, 4
    s_min_u32 s{sC}, s{sC}, 6
    s_sub_u32 s{sC}, s{sC}, s{sWAVE}
    s_lshl_b32 s{sC}, s{sC}, 10
    s_add_u32 s{sD}, s{sA}, s{sC}
    v_add_u32 v{t0+8}, s{sB}, v{vL16}
    v_add_u32 v{t0+9}, s{sC}, v{t0+8}
    s_cmp_lg_u32 s{sWAVE}, 0
    s_cbranch_scc1 {P}_m0
    {P}_mw:
    buffer_load_dword v{vCT}, v{vCA}, {S_WS}, s{sA} offen sc1
    s_waitcnt vmcnt(0)
    v_cmp_eq_u32 vcc, -1, v{vCT}
    s_cbranch_vccz {P}_m0
    {SLEEP[0]}
    s_sub_u32 s{sBUD}, s{sBUD}, 1
    s_cmp_lg_u32 s{sBUD}, 0
    s_cbranch_scc1 {P}_mw
    s_endpgm
    {P}_m0:
    s_barrier
    {P}_m1:
    buffer_load_dwordx4 {v(t0,4)}, v{vL16}, {S_WS}, s{sA} offen sc1
    buffer_load_dwordx4 {v(t0+4,4)}, v{vL16}, {S_WS}, s{sD} offen sc1
    s_waitcnt vmcnt(0)
    v_max3_u32 v{vCT}, v{t0}, v{t0+1}, v{t0+2}
    v_max3_u32 v{vCT}, v{vCT}, v{t0+3}, v{t0+4}
    v_max3_u32 v{vCT}, v{vCT}, v{t0+5}, v{t0+6}
    v_max_u32 v{vCT}, v{vCT}, v{t0+7}
    v_cmp_eq_u32 vcc, -1, v{vCT}
    s_cbranch_vccz {P}_mok
    s_sub_u32 s{sBUD}, s{sBUD}, 1
    s_cmp_lg_u32 s{sBUD}, 0
    s_cbranch_scc1 {P}_m1
    s_endpgm
    {P}_mok:
    ds_write_b128 v{t0+8}, {v(t0,4)} offset:{lds}
    ds_write_b128 v{t0+9}, {v(t0+4,4)} offset:{lds}
    s_waitcnt lgkmcnt(0)
    s_barrier
    """)

def gw(a, kind):
    P = "G" + kind
    W = lambda u, t: 256 + (u*28 + t)*4
    ACC, FR, TM, vOUT, vG = 16, 48, 72, 8, 9
    NR = 6
    step = 2
    cnt = {'B': C_VO, 'A': C_Y, 'H': C_H}[kind]
    a(f"{P}_entry:")
    lane_setup(a)
    if kind != 'B': wait_team(a)
    if kind == 'B':
        a(f"""
        s_and_b32 s{sSEG}, s{sROLE}, 1
        s_lshr_b32 s{sROLE}, s{sROLE}, 1
        s_lshr_b32 s{sA}, s{sROLE}, 1
        s_and_b32 s{sB}, s{sROLE}, 1
        s_lshl_b32 s{sB}, s{sB}, 3
        s_lshl_b32 s{sC}, s{sWAVE}, 1
        s_add_u32 s{sB}, s{sB}, s{sC}
        v_lshlrev_b32 v5, 4, v3
        v_lshl_add_u32 v5, v1, 8, v5
        v_bfe_u32 v6, v0, 4, 1
        v_lshl_add_u32 v{vOUT}, v6, 14, v5
        v_mul_u32_u24 v6, {B_CT}, v6
        v_add_u32 v5, v5, v6
        s_mul_i32 s{sD}, s{sA}, {2*B_CT}
        s_mul_i32 s{sE}, s{sB}, 14336
        s_add_u32 s{sD}, s{sD}, s{sE}
        s_add_u32 s{sD}, s{sD}, {WS_B}
        s_lshl_b32 s42, s{sA}, 15
        s_lshl_b32 s{sE}, s{sB}, 10
        s_add_u32 s42, s42, s{sE}
        s_add_u32 s42, s42, {WS_VO}
        s_mul_i32 s{sE}, s{sSEG}, {VO_STEP}
        s_add_u32 s42, s42, s{sE}
        """)
        ustride, ostep = 14336, VO_STEP
    elif kind == 'A':
        perm_rho(a, 5, 6)
        a(f"""
        v_and_b32 v6, 1, v5
        v_mul_u32_u24 v6, 14336, v6
        v_lshrrev_b32 v5, 1, v5
        v_lshl_add_u32 v5, v5, 4, v6
        v_lshl_add_u32 v5, v1, 8, v5
        v_mov_b32 v{vOUT}, v{vL16}
        s_and_b32 s{sSEG}, s{sROLE}, 1
        s_lshr_b32 s{sROLE}, s{sROLE}, 1
        s_lshl_b32 s{sA}, s{sROLE}, 3
        s_lshl_b32 s{sC}, s{sWAVE}, 1
        s_add_u32 s{sA}, s{sA}, s{sC}
        s_mul_i32 s{sD}, s{sA}, 28672
        s_lshl_b32 s42, s{sA}, 11
        s_add_u32 s42, s42, {WS_Y}
        s_mul_i32 s{sE}, s{sSEG}, {VO_STEP}
        s_add_u32 s42, s42, s{sE}
        """)
        ustride, ostep = 28672, VO_STEP
    if kind in 'BA':
        wait_done(a, kind)
        for u in range(2):
            for t in range(28):
                if t and t % 8 == 0: a(f"s_add_u32 s{sD}, s{sD}, 4096")
                a(f"buffer_load_dwordx4 {v(W(u,t),4)}, v5, {S_WS}, s{sD} offen offset:{(t%8)*512} sc1")
            if u == 0: a(f"s_add_u32 s{sD}, s{sD}, {ustride - 3*4096}")
    else:
        srd(a, 8, 66, F_BYTES)
        a(f"""
        s_and_b32 s{sSEG}, s{sROLE}, 1
        s_lshr_b32 s{sA}, s{sROLE}, 1
        s_lshl_b32 s{sA}, s{sA}, 2
        s_add_u32 s{sA}, s{sA}, s{sWAVE}
        s_lshl_b32 s{sD}, s{sA}, 7
        s_lshl_b32 s42, s{sA}, 12
        s_mul_i32 s{sE}, s{sSEG}, {H_STEP}
        s_add_u32 s42, s42, s{sE}
        s_add_u32 s42, s42, {WS_H}
        v_lshrrev_b32 v5, 3, v0
        v_mul_u32_u24 v5, 3584, v5
        v_and_b32 v6, 7, v0
        v_lshl_add_u32 v5, v6, 4, v5
        v_bfe_u32 v6, v0, 2, 2
        v_lshl_add_u32 v6, v1, 3, v6
        v_lshlrev_b32 v6, 7, v6
        v_bfe_u32 v7, v0, 4, 1
        v_lshl_add_u32 v6, v7, 5, v6
        v_lshl_add_u32 v{vOUT}, v7, 10, 0
        v_and_b32 v7, 1, v0
        v_lshl_add_u32 v6, v7, 4, v6
        v_bfe_u32 v7, v0, 1, 1
        v_lshl_add_u32 v6, v7, 3, v6
        s_mul_i32 s{sE}, s{sWAVE}, 14336
        v_add_u32 v6, s{sE}, v6
        v_lshl_add_u32 v{vOUT}, v1, 8, v{vOUT}
        v_lshl_add_u32 v{vOUT}, v3, 4, v{vOUT}
        v_lshlrev_b32 v10, 2, v2
        """)
        for rnd in range(4):
            for q in range(14):
                a(f"s_add_u32 m0, s{sE}, {q*1024}\n s_nop 0")
                a(f"buffer_load_dwordx4 v5, {S_W}, s{sD} offen lds")
                a(f"s_add_u32 s{sD}, s{sD}, {8*3584}")
            a("s_waitcnt vmcnt(0)")
            for u in range(2):
                for tt in range(7):
                    for z in range(2):
                        a(f"ds_read_b64_tr_b16 {v(W(u, rnd*7+tt) + 2*z, 2)}, v6 offset:{tt*2048 + z*512 + u*64}")
            a("s_waitcnt lgkmcnt(0)")
        a("s_barrier")
        ostep = H_STEP
    nst = 4
    def xdma():
        for q in range(7):
            if q % 4 == 0: a(f"s_add_u32 m0, s43, {q*1024}\n s_add_u32 s{sE}, s44, {q*1024}")
            a(f"buffer_load_dwordx4 v{vL16}, {S_WS}, s{sE} offen offset:{(q%4)*1024} sc1 lds")
        a(f"s_xor_b32 s43, s43, 0x8000\n s_add_u32 s44, s44, {step*28672}")
    a(f"""
    s_mul_i32 s43, s{sWAVE}, 7168
    s_mul_i32 s44, s{sSEG}, 28672
    s_add_u32 s44, s44, s43
    s_add_u32 s44, s44, {WS_XG}
    v_mov_b32 v11, v{vL16}
    s_mov_b32 s45, 0
    """)
    wait_done(a, 'S')
    xdma()
    a("s_waitcnt vmcnt(0)")
    tstamp(a, 6, sWAVE)
    a(f"{P}_loop:")
    a(f"s_waitcnt vmcnt({nst})\n s_barrier")
    if kind == 'H':
        a(f"s_lshl_b32 s{sE}, s{sSEG}, 7\n s_add_u32 s{sE}, s{sE}, {WS_G}")
        a(f"buffer_load_dword v{vG}, v10, {S_WS}, s{sE} offen sc1")
    xdma()
    fetch = lambda t: a(f"ds_read_b128 {v(FR+4*(t % NR),4)}, v11 offset:{t*1024}")
    for t in range(NR-1): fetch(t)
    for t in range(28):
        if t + NR - 1 < 28: fetch(t + NR - 1)
        a(f"s_waitcnt lgkmcnt({min(NR-1, 27-t)})")
        x = v(FR+4*(t % NR), 4)
        if t == 14:
            a(f"s_waitcnt vmcnt({8 if kind == 'H' else 7})\n s_barrier")
            a(f"s_cmp_eq_u32 s45, 0\n s_cbranch_scc1 {P}_noar\n s_sub_u32 s46, s{sSEG}, {step}")
            arrive(a, cnt, 46)
            a(f"{P}_noar:")
        for u in range(2):
            c = "0" if t == 0 else v(ACC+16*u, 16)
            if kind == 'B': a(f"{MF32} {v(ACC+16*u,16)}, {x}, {v(W(u,t),4)}, {c}")
            else:           a(f"{MF32} {v(ACC+16*u,16)}, {v(W(u,t),4)}, {x}, {c}")
    a("v_xor_b32 v11, 0x8000, v11")
    if kind == 'H': a(f"s_waitcnt vmcnt(7)\n v_sub_f32 v{vG}, 1.0, v{vG}")
    a("s_nop 9")
    for u in range(2):
        if kind == 'H':
            for h0 in range(0, 16, 8):
                r = ACC + 16*u + h0
                for q in range(8): a(f"v_mul_f32 v{TM+16+q}, 0xbfb8aa3b, v{r+q}")
                for q in range(8): a(f"v_exp_f32 v{TM+16+q}, v{TM+16+q}")
                for q in range(8): a(f"v_add_f32 v{TM+16+q}, 1.0, v{TM+16+q}\n v_mul_f32 v{r+q}, v{vG}, v{r+q}")
                for q in range(8): a(f"v_rcp_f32 v{TM+16+q}, v{TM+16+q}")
                a("s_nop 0")
                for q in range(8): a(f"v_mul_f32 v{r+q}, v{TM+16+q}, v{r+q}")
        for be in range(2):
            r = ACC + 16*u + 8*be; t = TM + 8*u + 4*be
            order = (0, 4, 2, 6) if kind == 'B' else (0, 2, 4, 6)
            for q in range(4): a(f"v_cvt_pk_bf16_f32 v{t+q}, v{r+order[q]}, v{r+order[q]+1}")
            off = {'B': u*1024 + be*512, 'A': u*2048 + be*1024, 'H': u*2048 + be*512}[kind]
            a(f"buffer_store_dwordx4 {v(t,4)}, v{vOUT}, {S_WS}, s42 offen offset:{off} sc1")
    a(f"""
    s_add_u32 s42, s42, {step*ostep}
    s_add_u32 s45, s45, 1
    s_add_u32 s{sSEG}, s{sSEG}, {step}
    s_cmp_lt_u32 s{sSEG}, 64
    s_cbranch_scc1 {P}_loop
    s_waitcnt vmcnt(0)
    s_barrier
    """)
    a(f"s_sub_u32 s46, s{sSEG}, {step}")
    arrive(a, cnt, 46)
    a("s_branch L_next_free")

def tu(a):
    P = "TU"
    W = lambda hh, k: 256 + (hh*7 + k)*8
    M, D, T, AD, t0 = 16, 48, 64, 72, 80
    a(f"{P}_entry:")
    lane_setup(a)
    wait_team(a)
    a(f"""
    s_mul_i32 s{sD}, s{sROLE}, {B_CT}
    s_mul_i32 s{sE}, s{sWAVE}, {4*14336}
    s_add_u32 s{sD}, s{sD}, s{sE}
    s_add_u32 s{sD}, s{sD}, {WS_B}
    """)
    wait_done(a, 'B')
    for i in range(56):
        if i and i % 4 == 0: a(f"s_add_u32 s{sD}, s{sD}, 4096")
        a(f"buffer_load_dwordx4 {v(256+4*i,4)}, v{vL16}, {S_WS}, s{sD} offen offset:{(i%4)*1024} sc1")
    a(f"""
    v_and_b32 v5, 1, v0
    v_cmp_eq_u32 vcc, 1, v5
    v_mov_b32 v8, 0x44444444
    v_mov_b32 v6, 0xeeeeeeee
    v_cndmask_b32 v8, v8, v6, vcc
    v_lshlrev_b32 v6, 8, v4
    v_lshl_add_u32 v6, v5, 2, v6
    v_bfe_u32 v5, v0, 1, 3
    v_lshl_add_u32 v6, v5, 4, v6
    s_lshl_b32 s42, s{sROLE}, 12
    s_lshl_b32 s{sE}, s{sWAVE}, 10
    s_add_u32 s42, s42, s{sE}
    s_add_u32 s42, s42, {WS_UM}
    s_mov_b32 s{sSEG}, 0
    """)
    for k in range(7): a(f"v_add_u32 v{AD+k}, {k*1024}, v6")
    wait_done(a, 'S')
    a(f"{P}_loop:")
    for r in range(16): a(f"v_mov_b32 v{D+r}, 0")
    fetch_m(a, P, t0, 0)
    for k in range(7):
        a(f"ds_read2_b32 {v(M+4*k,2)}, v{AD+k} offset0:0 offset1:2")
        a(f"ds_read2_b32 {v(M+4*k+2,2)}, v{AD+k} offset0:32 offset1:34")
    for k in range(7):
        a(f"s_waitcnt lgkmcnt({12-2*k})")
        for hh in range(4): a(f"{SM} {v(D+4*hh,4)}, {v(M+4*k,4)}, {v(W(hh,k),8)}, v8")
    a("s_nop 4")
    for hh in range(4):
        d = D + 4*hh
        a(f"v_add_f32 v{d}, v{d}, v{d+1}\n v_add_f32 v{d+2}, v{d+2}, v{d+3}\n v_cvt_pk_bf16_f32 v{T+hh}, v{d}, v{d+2}")
    a(f"buffer_store_dwordx4 {v(T,4)}, v{vL16}, {S_WS}, s42 offen sc1")
    a("s_waitcnt vmcnt(0)\n s_barrier")
    arrive(a, C_UM, sSEG)
    a(f"""
    s_add_u32 s42, s42, {UM_STEP}
    s_add_u32 s{sSEG}, s{sSEG}, 1
    s_cmp_lt_u32 s{sSEG}, 64
    s_cbranch_scc1 {P}_loop
    s_branch L_next
    """)

def o1(a):
    P = "O1"
    Y = lambda t: 256 + 4*t
    SX, SMM, FR, T, t0 = 16, 32, 48, 72, 88
    vG, vPX, vPM, vRW, vKM, vMX = 8, 9, 10, 11, 12, 13
    NR = 6; L_MM = 28672
    a(f"{P}_entry:")
    lane_setup(a)
    a(f"""
    s_lshr_b32 s{sSEG}, s{sROLE}, 2
    s_and_b32 s43, s{sROLE}, 3
    s_lshl_b32 s44, s43, 2
    s_add_u32 s44, s44, s{sWAVE}               ; head
    v_bfe_u32 v5, v0, 4, 1
    v_lshlrev_b32 v5, 10, v5
    v_lshl_add_u32 v5, v3, 4, v5               ; rt*1024 + c*16
    v_lshl_add_u32 v{vPX}, v1, 8, v5
    s_lshl_b32 s{sA}, s44, 11
    v_add_u32 v{vPX}, s{sA}, v{vPX}
    v_lshl_add_u32 v{vPM}, v1, 9, v5
    s_lshl_b32 s{sA}, s43, 11
    s_lshl_b32 s{sB}, s{sWAVE}, 2
    s_add_u32 s{sA}, s{sA}, s{sB}
    s_add_u32 s{sA}, s{sA}, 32768
    v_add_u32 v{vPM}, s{sA}, v{vPM}
    v_lshlrev_b32 v5, 2, v1
    v_sub_u32 v{vRW}, v2, v5
    v_and_b32 v5, 7, v0
    v_lshlrev_b32 v5, 4, v5
    v_lshl_add_u32 v{vKM}, v1, 7, v5
    v_lshlrev_b32 v14, 2, v2
    s_mul_i32 s45, s{sWAVE}, 7168
    """)
    wait_done(a, 'S')
    a(f"{P}_loop:")
    a(f"""
    s_mul_i32 s{sA}, s{sSEG}, 28672
    s_add_u32 s{sA}, s{sA}, s45
    s_add_u32 s{sA}, s{sA}, {WS_XG}
    """)
    for q in range(7):
        if q % 4 == 0: a(f"s_add_u32 m0, s45, {q*1024}\n s_add_u32 s{sE}, s{sA}, {q*1024}")
        a(f"buffer_load_dwordx4 v{vL16}, {S_WS}, s{sE} offen offset:{(q%4)*1024} sc1 lds")
    a(f"s_lshl_b32 s{sE}, s{sSEG}, 7\n s_add_u32 s{sE}, s{sE}, {WS_G}")
    a(f"buffer_load_dword v{vG}, v14, {S_WS}, s{sE} offen sc1")
    wait_cnt(a, C_Y, 28)
    a(f"""
    s_mul_i32 s{sA}, s{sSEG}, {VO_STEP}
    s_mul_i32 s{sB}, s44, 28672
    s_add_u32 s{sA}, s{sA}, s{sB}
    s_add_u32 s{sA}, s{sA}, {WS_Y}
    """)
    for t in range(28):
        if t and t % 4 == 0: a(f"s_add_u32 s{sA}, s{sA}, 4096")
        a(f"buffer_load_dwordx4 {v(Y(t),4)}, v{vL16}, {S_WS}, s{sA} offen offset:{(t%4)*1024} sc1")
    a("s_barrier")
    def scores(acc, base, stride, off0, vm):
        fetch = lambda t: a(f"ds_read_b128 {v(FR+4*(t % NR),4)}, v{base} offset:{off0 + t*stride}")
        for t in range(NR-1): fetch(t)
        for t in range(28):
            if t + NR - 1 < 28: fetch(t + NR - 1)
            a(f"s_waitcnt lgkmcnt({min(NR-1, 27-t)})" + (f" vmcnt({27-t})" if vm else ""))
            a(f"{MF32} {v(acc,16)}, {v(FR+4*(t % NR),4)}, {v(Y(t),4)}, {'0' if t == 0 else v(acc,16)}")
    scores(SX, vL16, 1024, 0, True)
    a(f"v_mov_b32 v{T}, 0xff800000\n s_nop 10")
    for b in range(4):
        for r in range(4):
            a(f"v_cmp_le_i32 vcc, {8*b+r}, v{vRW}\n s_nop 1\n v_cndmask_b32 v{SX+4*b+r}, v{T}, v{SX+4*b+r}, vcc")
    a(f"v_max3_f32 v{vMX}, v{SX}, v{SX+1}, v{SX+2}")
    for r in range(3, 15, 2): a(f"v_max3_f32 v{vMX}, v{vMX}, v{SX+r}, v{SX+r+1}")
    a(f"v_max_f32 v{vMX}, v{vMX}, v{SX+15}")
    fetch_m(a, P, t0, L_MM)
    scores(SMM, vKM, 256, L_MM, False)
    a("s_nop 11")
    a(f"v_max3_f32 v{vMX}, v{vMX}, v{SMM}, v{SMM+1}\n v_max3_f32 v{vMX}, v{vMX}, v{SMM+2}, v{SMM+3}")
    a(f"v_mov_b32 v{T}, v{vMX}\n s_nop 1\n v_permlane32_swap_b32 v{T}, v{vMX}\n v_max_f32 v{vMX}, v{vMX}, v{T}")
    vals = [SX+r for r in range(16)] + [SMM+r for r in range(4)]
    a(f"s_mov_b32 s{sB}, {team.SCALE}\n v_mul_f32 v{vMX}, s{sB}, v{vMX}")
    for r in vals: a(f"v_fma_f32 v{r}, v{r}, s{sB}, -v{vMX}")
    for r in vals: a(f"v_exp_f32 v{r}, v{r}")
    a(f"v_add_f32 v{T}, v{vals[0]}, v{vals[1]}\n v_add_f32 v{T+1}, v{vals[2]}, v{vals[3]}")
    for i in range(4, 20, 2): a(f"v_add_f32 v{T}, v{T}, v{vals[i]}\n v_add_f32 v{T+1}, v{T+1}, v{vals[i+1]}")
    a(f"v_add_f32 v{T}, v{T}, v{T+1}\n v_mov_b32 v{T+1}, v{T}\n s_nop 1\n v_permlane32_swap_b32 v{T}, v{T+1}\n v_add_f32 v{T}, v{T}, v{T+1}")
    a(f"v_rcp_f32 v{T}, v{T}\n s_nop 0\n v_mul_f32 v{T}, v{T}, v{vG}")
    for r in vals: a(f"v_mul_f32 v{r}, v{r}, v{T}")
    a(f"s_mul_i32 s{sA}, s{sSEG}, {PX_STEP}\n s_add_u32 s{sA}, s{sA}, {WS_PX}")
    for be in range(2):
        for q, o in enumerate((0, 4, 2, 6)): a(f"v_cvt_pk_bf16_f32 v{T+4+4*be+q}, v{SX+8*be+o}, v{SX+8*be+o+1}")
        a(f"buffer_store_dwordx4 {v(T+4+4*be,4)}, v{vPX}, {S_WS}, s{sA} offen offset:{512*be} sc1")
    for q in range(2):
        a(f"v_cvt_pk_bf16_f32 v{T+12+q}, v{SMM+2*q}, v{SMM+2*q+1}")
        a(f"buffer_store_dword v{T+12+q}, v{vPM}, {S_WS}, s{sA} offen offset:{256*q} sc1")
    a("s_waitcnt vmcnt(0)\n s_barrier")
    arrive(a, C_P, sSEG)
    a(f"""
    s_add_u32 s{sSEG}, s{sSEG}, {NS_O}
    s_cmp_lt_u32 s{sSEG}, 64
    s_cbranch_scc1 {P}_loop
    s_branch L_next
    """)

def o2(a):
    P = "O2"
    W = lambda t, ct: 256 + (t*4 + ct)*4
    ACC, HF, VO = 16, 48, 160
    PXR, PMR, UMR = HF, HF + 32, HF + 40
    vRW_, vRR, vOA = 8, 9, 10
    a(f"{P}_entry:")
    lane_setup(a)
    wait_team(a)
    srd(a, 8, 68, F_BYTES)
    a(f"""
    s_mul_i32 s{sSEG}, s{sROLE}, 9363
    s_lshr_b32 s{sSEG}, s{sSEG}, 16            ; role / 7
    s_mul_i32 s{sA}, s{sSEG}, 7
    s_sub_u32 s43, s{sROLE}, s{sA}
    s_mul_i32 s{sD}, s{sWAVE}, {448*896}
    s_lshl_b32 s{sA}, s43, 7
    s_add_u32 s{sD}, s{sD}, s{sA}
    v_lshrrev_b32 v5, 3, v0
    v_mul_u32_u24 v5, 896, v5
    v_and_b32 v6, 7, v0
    v_lshl_add_u32 v5, v6, 4, v5
    v_bfe_u32 v6, v0, 2, 2
    v_lshl_add_u32 v6, v4, 3, v6
    v_lshlrev_b32 v6, 7, v6
    v_and_b32 v7, 3, v0
    v_lshl_add_u32 v6, v7, 3, v6
    s_lshl_b32 s{sE}, s{sWAVE}, 14
    v_add_u32 v6, s{sE}, v6
    """)
    for rnd, nt in enumerate((4, 4, 4, 2)):
        for q in range(4*nt):
            a(f"s_add_u32 m0, s{sE}, {q*1024}\n s_nop 0")
            a(f"buffer_load_dwordx4 v5, {S_W}, s{sD} offen lds")
            a(f"s_add_u32 s{sD}, s{sD}, {8*896}")
        a("s_waitcnt vmcnt(0)")
        for tt in range(nt):
            for ct in range(4):
                for z in range(2):
                    a(f"ds_read_b64_tr_b16 {v(W(rnd*4+tt, ct) + 2*z, 2)}, v6 offset:{tt*4096 + z*512 + ct*32}")
        a("s_waitcnt lgkmcnt(0)")
    srd(a, 8, 70, X_BYTES)
    a(f"""
    s_barrier
    v_mul_u32_u24 v{vRW_}, 272, v3
    v_lshl_add_u32 v{vRW_}, v4, 4, v{vRW_}
    s_mul_i32 s{sA}, s{sWAVE}, 8704
    v_add_u32 v{vRW_}, s{sA}, v{vRW_}
    v_lshrrev_b32 v5, 3, v0
    s_lshl_b32 s{sA}, s{sWAVE}, 3
    v_add_u32 v5, s{sA}, v5
    v_and_b32 v6, 7, v0
    v_mul_u32_u24 v{vRR}, 272, v5
    v_lshl_add_u32 v{vRR}, v6, 5, v{vRR}
    v_mul_u32_u24 v{vOA}, 896, v5
    v_lshl_add_u32 v{vOA}, v6, 4, v{vOA}
    s_lshl_b32 s{sA}, s43, 7
    v_add_u32 v{vOA}, s{sA}, v{vOA}
    """)
    wait_done(a, 'S')
    a(f"{P}_loop:")
    wait_cnt(a, C_H, 7)
    a(f"""
    s_mul_i32 s{sA}, s{sSEG}, {H_STEP}
    s_mul_i32 s{sB}, s{sWAVE}, {14*2048}
    s_add_u32 s{sA}, s{sA}, s{sB}
    s_add_u32 s{sA}, s{sA}, {WS_H}
    """)
    for i in range(28):
        if i and i % 4 == 0: a(f"s_add_u32 s{sA}, s{sA}, 4096")
        a(f"buffer_load_dwordx4 {v(HF+4*i,4)}, v{vL16}, {S_WS}, s{sA} offen offset:{(i%4)*1024} sc1")
    acc = lambda ct, rt: v(ACC + (ct*2 + rt)*4, 4)
    for t in range(14):
        for rt in range(2):
            a(f"s_waitcnt vmcnt({27 - 2*t - rt})")
            for ct in range(4): a(f"{MF16} {acc(ct,rt)}, {v(W(t,ct),4)}, {v(HF+8*t+4*rt,4)}, {'0' if t == 0 else acc(ct,rt)}")
    wait_cnt(a, C_VO, 28)
    a(f"""
    s_mul_i32 s{sA}, s{sSEG}, {VO_STEP}
    s_lshl_b32 s{sB}, s43, 16
    s_add_u32 s{sA}, s{sA}, s{sB}
    s_lshl_b32 s{sB}, s{sWAVE}, 12
    s_add_u32 s{sA}, s{sA}, s{sB}
    s_add_u32 s{sA}, s{sA}, {WS_VO}
    """)
    for ct in range(4):
        if ct: a(f"s_add_u32 s{sA}, s{sA}, 16384")
        for hh in range(4): a(f"buffer_load_dwordx4 {v(VO+(hh*4+ct)*4,4)}, v{vL16}, {S_WS}, s{sA} offen offset:{hh*1024} sc1")
    wait_cnt(a, C_P, 4)
    a(f"""
    s_mul_i32 s{sA}, s{sSEG}, {PX_STEP}
    s_add_u32 s{sA}, s{sA}, {WS_PX}
    s_lshl_b32 s{sB}, s{sWAVE}, 13
    s_add_u32 s{sB}, s{sA}, s{sB}
    s_add_u32 s{sC}, s{sB}, 4096
    s_lshl_b32 s{sD}, s{sWAVE}, 11
    s_add_u32 s{sD}, s{sD}, s{sA}
    s_add_u32 s{sD}, s{sD}, 32768
    """)
    for i in range(8): a(f"buffer_load_dwordx4 {v(PXR+4*i,4)}, v{vL16}, {S_WS}, s{sB + i//4} offen offset:{(i%4)*1024} sc1")
    for i in range(2): a(f"buffer_load_dwordx4 {v(PMR+4*i,4)}, v{vL16}, {S_WS}, s{sD} offen offset:{i*1024} sc1")
    for hh in range(4):
        for rt in range(2):
            a(f"s_waitcnt vmcnt({9 - 2*hh - rt})")
            for ct in range(4): a(f"{MF16} {acc(ct,rt)}, {v(VO+(hh*4+ct)*4,4)}, {v(PXR+8*hh+4*rt,4)}, {acc(ct,rt)}")
    wait_cnt(a, C_UM, 28)
    a(f"""
    s_mul_i32 s{sA}, s{sSEG}, {UM_STEP}
    s_lshl_b32 s{sB}, s43, 14
    s_add_u32 s{sA}, s{sA}, s{sB}
    s_lshl_b32 s{sB}, s{sWAVE}, 10
    s_add_u32 s{sA}, s{sA}, s{sB}
    s_add_u32 s{sA}, s{sA}, {WS_UM}
    """)
    for ct in range(4):
        if ct: a(f"s_add_u32 s{sA}, s{sA}, 4096")
        a(f"buffer_load_dwordx4 {v(UMR+4*ct,4)}, v{vL16}, {S_WS}, s{sA} offen sc1")
    for ct in range(4):
        a(f"s_waitcnt vmcnt({3-ct})")
        for rt in range(2): a(f"{MF16} {acc(ct,rt)}, {v(UMR+4*ct,4)}, {v(PMR+4*rt,4)}, {acc(ct,rt)}")
    a("s_nop 1")
    for ct in range(4):
        for rt in range(2):
            if ct == 3 and rt == 0: a("s_nop 3")
            a(f"ds_write_b128 v{vRW_}, {acc(ct,rt)} offset:{rt*16*272 + ct*64}")
    a("s_waitcnt lgkmcnt(0)\n s_barrier")
    for w in range(4):
        for q in range(2): a(f"ds_read_b128 {v(VO+8*w+4*q,4)}, v{vRR} offset:{w*8704 + q*16}")
    a(f"s_mul_i32 s{sA}, s{sSEG}, {32*896}")
    for w in range(1, 4):
        a(f"s_waitcnt lgkmcnt({6-2*w})")
        for q in range(8): a(f"v_add_f32 v{VO+q}, v{VO+q}, v{VO+8*w+q}")
    for q in range(4): a(f"v_cvt_pk_bf16_f32 v{VO+32+q}, v{VO+2*q}, v{VO+2*q+1}")
    a(f"buffer_store_dwordx4 {v(VO+32,4)}, v{vOA}, {S_W}, s{sA} offen")
    a(f"""
    s_barrier
    s_add_u32 s{sSEG}, s{sSEG}, {NS_O}
    s_cmp_lt_u32 s{sSEG}, 64
    s_cbranch_scc1 {P}_loop
    s_branch L_next
    """)

def bc_atomic(a, L, off, val):
    a(f"""
    s_cmp_lg_u32 s{sWAVE}, 0
    s_cbranch_scc1 {L}_w
    v_mov_b32 v1, {val}
    v_mov_b32 v2, {off}
    v_mov_b32 v3, {L_BC}
    s_mov_b64 exec, 1
    buffer_atomic_add v1, v2, {S_DBG}, 0 offen sc0
    s_waitcnt vmcnt(0)
    ds_write_b32 v3, v1
    s_waitcnt lgkmcnt(0)
    s_mov_b64 exec, -1
    {L}_w:
    v_mov_b32 v3, {L_BC}
    s_barrier
    ds_read_b32 v1, v3
    s_waitcnt lgkmcnt(0)
    v_readfirstlane_b32 s{sROLE}, v1
    s_barrier
    """)

def k2(a, name, o=None):
    o = o or team.Opt(diag=False)
    GATE[0] = o.gate
    SLEEP[0] = f"s_sleep {o.sleep}" if o.sleep else ""
    kernel_head(a, name)
    a(f"""
    s_cmp_ge_u32 s2, 256
    s_cbranch_scc1 L_exit
    s_load_dwordx4 s[76:79], s[0:1], 0         ; x, mem0
    s_load_dwordx8 s[80:87], s[0:1], 16
    s_load_dwordx8 s[64:71], s[0:1], 56        ; B_x w1 w2 gate_w
    s_load_dwordx2 s[88:89], s[0:1], 88
    s_load_dwordx4 s[72:75], s[0:1], 96
    s_getreg_b32 s18, hwreg(HW_REG_XCC_ID)
    v_lshrrev_b32 v1, 6, v0
    s_and_b32 s18, s18, 15
    v_readfirstlane_b32 s{sWAVE}, v1
    s_mov_b32 s{sBUD}, {o.budget}
    s_waitcnt lgkmcnt(0)
    """)
    srd(a, 4, 74, WS_BYTES); srd(a, 12, 72, 256); srd(a, 60, 78, 7168)
    if DIAG['on']: a("s_mov_b32 s3, s2")
    tstamp(a, 0, sWAVE); dstamp(a, 1, sWAVE, inv=True, few=True)
    a(f"""
    s_getpc_b64 s[36:37]
    s_and_b32 s36, s36, 0xffffff00
    v_lshlrev_b32 v203, 7, v0
    global_load_dword v204, v203, s[36:37]
    v_add_u32 v203, 0x8000, v203
    v_min_u32 v203, L_code_end - L_code_ref, v203
    global_load_dword v204, v203, s[36:37]
    """.replace("s_getpc_b64 s[36:37]", "s_getpc_b64 s[36:37]\n L_code_ref:"))
    a(f"""
    s_cmp_lg_u32 s{sWAVE}, 1
    s_cbranch_scc1 L_p1
    v_mov_b32 v199, 1
    s_cmp_lg_u32 s2, 0
    s_cbranch_scc1 L_p0
    v_and_b32 v200, 31, v0
    v_lshlrev_b32 v200, 7, v200
    v_mov_b32 v201, 0
    s_mov_b32 s36, {WS_DONE}
    buffer_store_dword v201, v200, {S_WS}, s36 offen sc1
    v_mov_b32 v200, {D_RST}
    s_waitcnt vmcnt(0)
    s_mov_b64 exec, 1
    buffer_atomic_add v199, v200, {S_DBG}, 0 offen
    L_p0:
    s_cmp_eq_u32 s18, {o.team_xcc}
    s_cselect_b32 s36, {D_TEAM}, {D_TICK}
    v_mov_b32 v200, s36
    s_mov_b64 exec, 1
    v_mov_b32 v202, 1
    buffer_atomic_add v202, v200, {S_DBG}, 0 offen sc0
    s_mov_b64 exec, -1
    L_p1:
    """)
    k1.products(a, 76, 80, 70)
    a(f"""
    v_mbcnt_lo_u32_b32 v0, -1, 0
    v_mbcnt_hi_u32_b32 v0, -1, v0
    s_mov_b32 s70, s88
    s_mov_b32 s71, s89
    s_mov_b64 exec, 1
    """)
    team.dbg_wait(a, "L_rst", D_RST, 1, 2)
    a(f"""
    s_lshr_b32 s38, s{k1.sMAT}, 2
    s_and_b32 s39, s{k1.sMAT}, 1
    s_add_u32 s39, s39, 8
    s_cmp_ge_u32 s{k1.sBLK}, 14
    s_cselect_b32 s38, s39, s38
    s_lshl_b32 s38, s38, 7
    s_add_u32 s38, s38, {WS_DONE}
    v_mov_b32 v1, 1
    v_mov_b32 v2, 0
    s_cmp_eq_u32 s{k1.sDG}, 3
    s_cbranch_scc1 L_p2
    s_barrier
    v_mov_b32 v1, 2
    s_cmp_lg_u32 s{sWAVE}, 0
    s_cbranch_scc1 L_p3
    L_p2:
    buffer_atomic_add v1, v2, {S_WS}, s38 offen
    L_p3:
    v_mov_b32 v3, {L_BC}
    s_barrier
    s_cmp_lg_u32 s{sWAVE}, 1
    s_cbranch_scc1 L_p4
    ds_write_b32 v3, v202
    s_waitcnt lgkmcnt(0)
    L_p4:
    s_barrier
    ds_read_b32 v1, v3
    s_waitcnt lgkmcnt(0)
    v_readfirstlane_b32 s{sROLE}, v1
    s_mov_b64 exec, -1
    s_barrier
    """)
    tstamp(a, 3, sWAVE); dstamp(a, 4, sWAVE, few=True)
    a(f"""
    s_cmp_lg_u32 s18, {o.team_xcc}
    s_cbranch_scc1 L_have
    s_and_b32 s{sROLE}, s{sROLE}, 0xffff
    s_cmp_lt_u32 s{sROLE}, 32
    s_cbranch_scc1 L_team
    s_branch L_next
    L_next_free:
    """)
    bc_atomic(a, "L_t1", D_TEAM, 0)
    a(f"s_and_b32 s{sROLE}, s{sROLE}, 0xffff\n s_cmp_ge_u32 s{sROLE}, 32\n s_cbranch_scc1 L_next")
    bc_atomic(a, "L_t2", D_TEAM, 0x10001)
    a(f"""
    s_and_b32 s{sROLE}, s{sROLE}, 0xffff
    s_cmp_lt_u32 s{sROLE}, 32
    s_cbranch_scc1 L_team
    L_next:
    """)
    tstamp(a, 7, sWAVE); dstamp(a, 10, sWAVE)
    bc_atomic(a, "L_t3", D_TICK, 1)
    a("L_have:")
    if DIAG['on']: a(f"s_cmp_ge_u32 s{sROLE}, {T_END}\n s_cbranch_scc1 L_exit")
    tstamp(a, 5, sWAVE); tstamp(a, 8, sWAVE, extra=f"s{sROLE}")
    for lab, lo, hi in (("GB", T_TB, T_TA), ("GA", T_TA, T_TH), ("GH", T_TH, T_TU), ("TU", T_TU, T_O1), ("O1", T_O1, T_O2), ("O2", T_O2, T_END)):
        a(f"s_cmp_lt_u32 s{sROLE}, {hi - lo}\n s_cbranch_scc1 {lab}_entry\n s_sub_u32 s{sROLE}, s{sROLE}, {hi - lo}")
    a("L_exit:\n s_endpgm\n L_team_done:")
    dstamp(a, 9, sWAVE, tmp=(56, 57))
    if DIAG['on']:
        tstamp(a, 7, sWAVE, tmp=(56, 57))
        a(f"""
        s_cmp_lg_u32 s17, 3
        s_cbranch_scc1 L_exit
        s_lshl_b32 s36, s16, 14
        s_add_u32 s36, s36, {WS_DIAG + 65536 + 3*4096}
        v_lshrrev_b32 v28, 2, v0
        """)
        for i in range(10): a(f"buffer_store_dword v{160+i}, v28, s[4:7], s36 offen offset:{256*i}")
        a("v_mov_b32 v28, s56\n v_mov_b32 v29, s57\n v_mov_b32 v30, s58\n v_mov_b32 v31, 0")
        a("v_mov_b32 v32, 0\n buffer_store_dwordx4 v[28:31], v32, s[4:7], s36 offen offset:2560")
    a("s_endpgm")
    gw(a, 'B'); gw(a, 'A'); gw(a, 'H'); tu(a); o1(a); o2(a)
    a("L_team:")
    tstamp(a, 5, sWAVE); tstamp(a, 8, sWAVE, extra="1000")
    team.team_body(a, o)
    a("L_code_end:")
```

```python
from asmlib import *
from layout import *

L_M, L_Y, L_UM, L_MISC, L_S, L_B0, L_X, L_B1 = 0, 8192, 12288, 16384, 16640, 18432, 49152, 63488
TEAM_LDS = L_B1 + 30720
SM = "v_smfmac_f32_16x16x64_bf16"
S_WS, S_X, S_DBG = "s[4:7]", "s[8:11]", "s[12:15]"
sRANK, sWAVE, sH, sJ, sSTEP, sCT = 16, 17, 18, 19, 20, 21
sFL, sMODE = 22, 23
sCUR, sNXT, sPRV = 24, 25, 26
sVO, sXO, sCN, sMO, sBUD = 30, 31, 32, 33, 35
sT0, sT1, sT2, sT3 = 36, 37, 38, 39
sM1, sXT = 45, 47
OOB = 0x7ff00000
SCALE = 0x3db8aa3b
sSC = 44
XSTEP = 32*896

class Opt:
    def __init__(self, **kw):
        self.trace = None; self.diag = True
        self.nsteps = 63
        self.kf = 4; self.nf = 6; self.ns = 5; self.f2pos = 0; self.kgo = 3; self.nxa = 14; self.funr = 2; self.nv0 = 10; self.b0p = 2
        self.sleep = 4; self.gate = False; self.budget = 2000000; self.team_xcc = 0
        self.__dict__.update(kw)

def nops(a, n):
    while n > 0:
        k = min(n, 16); a(f"s_nop {k-1}"); n -= k

def load_regs(a, regs, soff, vaddr="v0", fl=" sc1"):
    for i, r in enumerate(regs):
        if i and i % 4 == 0: a(f"s_add_u32 s{soff}, s{soff}, 4096")
        a(f"buffer_load_dwordx4 {v(r,4)}, {vaddr}, {S_WS}, s{soff} offen offset:{(i%4)*1024}{fl}")

TR_S, TR_V3 = 84, 160
def stamp(a, o, kind, pt):
    if o.trace and pt in o.trace.get(kind, []):
        i = o.trace[kind].index(pt)
        a(f"s_memtime s[{TR_S+2*i}:{TR_S+2*i+1}]")
def stamp_flush(a, o, kind, w=None):
    if not o.trace or kind not in o.trace: return
    n = len(o.trace[kind])
    a(f"s_memtime s[52:53]\n s_memrealtime s[50:51]\n s_mov_b32 m0, s{sSTEP}\n s_waitcnt lgkmcnt(0)")
    if kind == 'y':
        a(f"s_lshl_b32 s50, s{sRANK}, 2\n s_add_u32 s50, s50, {w}\n s_lshl_b32 s50, s50, 12\n s_lshl_b32 s51, s{sSTEP}, 2\n s_add_u32 s50, s50, s51\n s_add_u32 s50, s50, {WS_DIAG + 65536}\n v_mov_b32 v62, 0")
        for i in range(n): a(f"v_mov_b32 v63, s{TR_S+2*i}\n buffer_store_dword v63, v62, {S_WS}, s50 offen offset:{256*i}")
        return
    for i in range(n): a(f"v_writelane_b32 v{TR_V3+i}, s{TR_S+2*i}, m0")
    a(f"v_writelane_b32 v{TR_V3+8}, s52, m0\n v_writelane_b32 v{TR_V3+9}, s50, m0")
def count(a, o, r):
    if o.diag: a(f"s_add_u32 s{r}, s{r}, 1")

def ring_advance(a):
    a(f"""
    s_mov_b32 s{sPRV}, s{sCUR}
    s_mov_b32 s{sCUR}, s{sNXT}
    s_add_u32 s{sNXT}, s{sNXT}, 0x10000
    s_and_b32 s{sNXT}, s{sNXT}, {WS_RING | 0x30000}
    """)

def x_dma(a, lo=0, hi=14):
    for q in range(lo, hi):
        if (q - lo) % 4 == 0: a(f"s_mov_b32 m0, {L_X + q*1024}\n s_add_u32 s{sT2}, s{sXO}, {q*1024}")
        a(f"buffer_load_dwordx4 v0, {S_WS}, s{sT2} offen offset:{((q-lo)%4)*1024} sc1 lds")
    a(f"s_add_u32 s{sXO}, s{sXO}, {XSTEP}")

def budget_check(a):
    a(f"s_sub_u32 s{sBUD}, s{sBUD}, 1\n s_cmp_eq_u32 s{sBUD}, 0\n s_cbranch_scc1 L_team_done")

def flag_poll(a, o, P, regs, vaddr, off, s_want):
    n = len(regs)
    a("s_mov_b32 exec_hi, 0")
    def body(i, wait=True):
        a(f"buffer_load_dword v{regs[i]}, {vaddr}, {S_WS}, s{sFL} offen offset:{off} sc1")
        if wait: a(f"s_waitcnt vmcnt({n-1})")
        a(f"v_cmp_gt_u32 vcc, s{s_want}, v{regs[(i+1)%n]}")
        a(f"s_cbranch_vccz {P}_fok")
    for i in range(n-1): body(i, False)
    body(n-1)
    a(f"{P}_fpoll:")
    for _ in range(o.funr):
        for i in range(n): body(i)
    a(f"s_sub_u32 s{sBUD}, s{sBUD}, 1\n s_cmp_lg_u32 s{sBUD}, 0\n s_cbranch_scc1 {P}_fpoll\n s_branch L_team_done")
    a(f"{P}_fok:")
    a("s_mov_b32 exec_hi, -1")

KORD = (0, 1, 2, 6, 3, 4, 5)

def ywave(a, o, w):
    P = f"Y{w}"
    D, M, T = 12, 28, 8
    Aop = lambda t, k: 256 + (t*7 + k)*8
    def Bop(hh, k):
        i = hh*7 + k
        return 256 + 224 + i*8 if i < 4 else 64 + (i-4)*8
    def lds_wait(L, level):
        a(f"""
        v_mov_b32 v57, {L_MISC + 128}
        {L}:
        ds_read_b32 v56, v57
        s_waitcnt lgkmcnt(0)
        v_cmp_gt_u32 vcc, {level}, v56
        s_cbranch_vccz {L}_ok
        s_sleep 1
        s_sub_u32 s{sBUD}, s{sBUD}, 1
        s_cmp_lg_u32 s{sBUD}, 0
        s_cbranch_scc1 {L}
        s_branch L_team_done
        {L}_ok:
        """)
    lds_wait(f"{P}_wa", 1)
    if w == 0: tstamp(a, 4, sWAVE, tmp=(56, 57)); dstamp(a, 5, sWAVE, tmp=(56, 57))
    a(f"s_mul_i32 s{sT0}, s{sRANK}, {A_RANK}\n s_add_u32 s{sT0}, s{sT0}, {WS_A + w*4*7*2048}")
    load_regs(a, [Aop(t,k)+4*hf for t in range(4) for k in range(7) for hf in range(2)], sT0)
    lds_wait(f"{P}_wb", 2)
    if w == 0: dstamp(a, 11, sWAVE, tmp=(56, 57))
    a(f"s_mul_i32 s{sT0}, s{sCT}, {B_CT}\n s_add_u32 s{sT0}, s{sT0}, {WS_B + w*4*7*2048}")
    load_regs(a, [Bop(h,k)+4*hf for h in range(4) for k in range(7) for hf in range(2)][:54 if w < 2 else 56], sT0)
    if w < 2:
        for q in range(30):
            if q % 4 == 0:
                a(f"s_mul_i32 s{sT0}, s{sCT}, {B_CT}\n s_add_u32 s{sT0}, s{sT0}, {WS_B + ((12+2*w)*14 + q if q < 28 else (4*w+3)*14 + 12)*1024}\n s_mov_b32 m0, {(L_B0, L_B1)[w] + q*1024}\n s_nop 0")
            a(f"buffer_load_dwordx4 v0, {S_WS}, s{sT0} offen offset:{(q%4)*1024} sc1 lds")
    y_addr(a, w)
    a(f"""
    v_lshrrev_b32 v63, 1, v62
    v_lshlrev_b32 v6, 8, v63
    v_lshl_add_u32 v6, v61, 4, v6
    v_and_b32 v63, 1, v62
    v_lshl_add_u32 v6, v63, 3, v6
    v_add_u32 v6, {L_UM + w*1024}, v6
    v_add_u32 v7, {(L_B0, L_B1, 0)[w]}, v0
    v_mov_b32 v4, {L_MISC + 64}
    v_and_b32 v2, 31, v60
    v_lshlrev_b32 v2, 2, v2
    """)
    if w == 2:
        lds_wait(f"{P}_ws", 3)
        a(f"s_mul_i32 s{sXO}, s{sJ}, 14336\n s_add_u32 s{sXO}, s{sXO}, {WS_XP}")
        x_dma(a)
    team_sync(a, o, P, w)
    FRG = [56, 57, 58, 59, 60, 61][:o.nf]
    def steps(P, ST):
        a(f"{P}_loop:")
        a(f"s_add_u32 s{sM1}, s{sCUR}, {w*1024}")
        for r in range(16): a(f"v_mov_b32 v{D+r}, 0")
        if w == 0:
            for r in FRG[1:]: a(f"v_mov_b32 v{r}, 0")
        if w == 1 and DBGT['on']:
            for st, word in ((4, 7), (32, 8)):
                L = a.uid("DT"); a(f"s_cmp_lg_u32 s{sSTEP}, {st}\n s_cbranch_scc1 {L}"); dstamp(a, word, sWAVE, tmp=(56, 57), wave=1); a(f"{L}:")
        if w == 2: a("s_waitcnt vmcnt(0)")
        if w == 0:
            a(f"""
            {P}_go:
            ds_read_b32 v56, v4
            s_waitcnt lgkmcnt(0)
            v_cmp_gt_u32 vcc, s{sSTEP}, v56
            s_cbranch_vccz {P}_go_ok
            s_sub_u32 s{sBUD}, s{sBUD}, 1
            s_cmp_lg_u32 s{sBUD}, 0
            s_cbranch_scc1 {P}_go
            s_branch L_team_done
            {P}_go_ok:
            """)
            flag_poll(a, o, P, FRG, "v2", 0, sSTEP)
        a(f"s_mov_b32 m0, {L_M + w*1024}")
        a("s_barrier   ; B0")
        stamp(a, o, 'y', 0)
        a(f"buffer_load_dwordx4 v0, {S_WS}, s{sM1} offen sc1 lds")
        a("s_barrier   ; B0'")
        a(f"buffer_load_dwordx4 v0, {S_WS}, s{sM1} offen offset:3072 sc1 lds")
        sm = lambda t, k: a(f"{SM} {v(D+4*t,4)}, {v(M+4*k,4)}, {v(Aop(t,k),8)}, v1")
        mread = lambda k: a(f"ds_read_b128 {v(M+4*k,4)}, v0 offset:{L_M + 1024*k}")
        a("s_waitcnt vmcnt(1)")
        stamp(a, o, 'y', 11)
        a("s_barrier   ; B1")
        for k in KORD[:4]: mread(k)
        a("s_waitcnt lgkmcnt(3)")
        stamp(a, o, 'y', 12)
        sm(0,0); sm(1,0); sm(2,0)
        a("s_waitcnt vmcnt(0)\n s_barrier   ; B1'")
        sm(3,0)
        for k in KORD[4:]: mread(k)
        a(f"{P}_y:")
        a("s_waitcnt lgkmcnt(5)")
        sm(0,1); sm(1,1); sm(2,1); sm(3,1)
        for n, k in enumerate(KORD[2:]):
            a(f"s_waitcnt lgkmcnt({4-n})"); sm(0,k); sm(1,k)
        sm(2,2); a("s_nop 1"); sm(3,2); a("s_nop 1"); sm(2,6)
        a(f"v_add_f32 v{D}, v{D}, v{D+1}\n v_add_f32 v{D+2}, v{D+2}, v{D+3}")
        sm(3,6)
        a(f"v_add_f32 v{D+4}, v{D+4}, v{D+5}\n v_add_f32 v{D+6}, v{D+6}, v{D+7}")
        sm(2,3)
        a(f"v_cmp_u_f32 vcc, v{D}, v{D+2}")
        a(f"v_cvt_pk_bf16_f32 v{T}, v{D}, v{D+4}")
        sm(3,3)
        a(f"v_cvt_pk_bf16_f32 v{T+1}, v{D+2}, v{D+6}")
        a(f"ds_write2_b32 v3, v{T}, v{T+1} offset0:0 offset1:8")
        z = [f"v_mov_b32 v{D+r}, 0" for r in range(8)]
        sm(2,4); a(z[0]); a(z[1]); sm(3,4); a(z[2]); a(z[3]); sm(2,5); a(z[4]); a(z[5]); sm(3,5)
        stamp(a, o, 'y', 15)
        a(z[6]); a("s_waitcnt lgkmcnt(0)\n s_barrier   ; B1y"); a(z[7])
        a("s_nop 1")
        a(f"v_add_f32 v{D+8}, v{D+8}, v{D+9}\n v_add_f32 v{D+10}, v{D+10}, v{D+11}")
        a(f"v_add_f32 v{D+12}, v{D+12}, v{D+13}\n v_add_f32 v{D+14}, v{D+14}, v{D+15}")
        a(f"v_cvt_pk_bf16_f32 v{T+2}, v{D+8}, v{D+12}")
        a(f"v_cvt_pk_bf16_f32 v{T+3}, v{D+10}, v{D+14}")
        a(f"ds_write2_b32 v5, v{T+2}, v{T+3} offset0:0 offset1:8")
        a(f"s_cbranch_vccnz {P}_fail")
        a(f"{P}_yok:")
        for r in range(8, 16): a(f"v_mov_b32 v{D+r}, 0")
        a("s_waitcnt lgkmcnt(0)")
        stamp(a, o, 'y', 16)
        a("s_barrier   ; B2")
        if w < 2: mb_six(a, D, M, T, Bop, w)
        else: mb_four(a, D, M, T, Bop)
        a("s_waitcnt lgkmcnt(0)")
        stamp(a, o, 'y', 4)
        a("s_barrier   ; B3")
        if w == 2: x_dma(a, 0, o.nxa)
        stamp_flush(a, o, 'y', w)
        ring_advance(a)
        a(f"s_add_u32 s{sSTEP}, s{sSTEP}, 1\n s_cmp_lt_u32 s{sSTEP}, {o.nsteps}\n s_cbranch_scc1 {P}_loop")
        a(f"s_branch L_team_done")
        a(f"{P}_fail:")
        m_exact(a, P, M)
        a("s_waitcnt vmcnt(0) lgkmcnt(0)")
        budget_check(a)
        for r in range(16): a(f"v_mov_b32 v{D+r}, 0")
        count(a, o, 56)
        a(f"s_mov_b32 m0, {L_M + w*1024}\n s_barrier")
        a(f"buffer_load_dwordx4 v0, {S_WS}, s{sM1} offen sc1 lds")
        a(f"buffer_load_dwordx4 v0, {S_WS}, s{sM1} offen offset:3072 sc1 lds")
        a("s_waitcnt vmcnt(0)\n s_barrier")
        for k in KORD: mread(k)
        a("s_waitcnt lgkmcnt(6)")
        sm(0,0); sm(1,0); sm(2,0); sm(3,0)
        a(f"s_branch {P}_y")
    both_modes(a, P, steps)

def m_exact(a, P, M):
    a("s_mov_b64 s[40:41], 0")
    for r in range(M, M+28): a(f"v_cmp_eq_u32 vcc, -1, v{r}\n s_or_b64 s[40:41], s[40:41], vcc")
    a(f"s_cmp_eq_u64 s[40:41], 0\n s_cbranch_scc1 {P}_yok")

epi = lambda d, t: [f"v_add_f32 v{d}, v{d}, v{d+1}", f"v_add_f32 v{d+2}, v{d+2}, v{d+3}", f"v_cvt_pk_bf16_f32 v{t}, v{d}, v{d+2}"]

def mb_four(a, D, M, T, Bop):
    pend = []
    for hh in range(4):
        for k in range(7):
            a(f"{SM} {v(D+4*hh,4)}, {v(M+4*k,4)}, {v(Bop(hh,k),8)}, v1")
            if pend and k >= 4:
                if k == 4: a("s_nop 2")
                a(pend.pop(0))
        pend = epi(D + 4*hh, T + hh)
    a("s_nop 7")
    for l in pend: a(l)
    a(f"ds_write_b64 v6, {v(T,2)}")
    a(f"ds_write_b64 v6, {v(T+2,2)} offset:512")

def mb_six(a, D, M, T, Bop, w):
    SB = [56, Bop(3,6)]
    nxt = [0]; q = []
    def fetch():
        i = nxt[0]
        if i >= 15: return
        nxt[0] += 1
        a(f"ds_read_b128 {v(SB[i%2],4)}, v7 offset:{i*2048}")
        a(f"ds_read_b128 {v(SB[i%2]+4,4)}, v7 offset:{i*2048 + 1024}")
        q.extend([("f", i)]*2)
    def need(tag):
        if tag in q:
            last = len(q) - 1 - q[::-1].index(tag)
            a(f"s_waitcnt lgkmcnt({len(q)-1-last})"); del q[:last+1]
    sm = lambda d, k, b: a(f"{SM} {v(d,4)}, {v(M+4*k,4)}, {v(b,8)}, v1")
    for k in range(7):
        sm(D+12, k, Bop(2,k))
        if k in (4, 5): fetch()
    for k in range(7):
        sm(D, k, Bop(0,k)); sm(D+4, k, Bop(1,k))
        need(("f", k)); sm(D+8, k, SB[k%2]); fetch()
        if k == 2:
            for l in epi(D+12, T+2): a(l)
            for r in range(4): a(f"v_mov_b32 v{D+12+r}, 0")
    fill = ["s_nop 3"] + epi(D, T) + epi(D+4, T+1) + [f"v_mov_b32 v{D+r}, 0" for r in range(4)] + [f"ds_write_b64 v6, {v(T,2)}"] + epi(D+8, T)
    for k in range(6):
        sm(D+12, k, Bop(3,k))
        for _ in range(3):
            if fill:
                l = fill.pop(0); a(l)
                if l.startswith("ds_"): q.append("w")
    assert not fill
    for k in range(7):
        need(("f", 7+k)); sm(D, k, SB[(7+k)%2]); fetch()
    need(("f", 14)); sm(D+12, 6, SB[0])
    a("s_nop 6")
    for l in epi(D, T+1) + epi(D+12, T+3): a(l)
    a(f"ds_write_b64 v6, {v(T,2)} offset:{3072 - 512*w}")
    a(f"ds_write_b64 v6, {v(T+2,2)} offset:512")

def y_addr(a, w):
    a(f"""
    v_lshrrev_b32 v63, 3, v61
    v_lshlrev_b32 v3, 8, v63
    v_lshl_add_u32 v3, v62, 6, v3
    v_bfe_u32 v63, v61, 1, 1
    v_lshl_add_u32 v3, v63, 4, v3
    v_bfe_u32 v63, v61, 2, 1
    v_lshl_add_u32 v3, v63, 3, v3
    v_and_b32 v63, 1, v61
    v_lshl_add_u32 v3, v63, 2, v3
    v_add_u32 v3, {L_Y + (w*512 if w < 3 else 3584)}, v3
    """)
    if w < 3: a("v_add_u32 v5, 2048, v3")

def dbg_wait(a, L, off, need, t):
    a(f"""
    v_mov_b32 v{t+1}, {off}
    {L}:
    buffer_load_dword v{t}, v{t+1}, {S_DBG}, 0 offen sc0 sc1
    s_waitcnt vmcnt(0)
    v_readfirstlane_b32 s{sT0}, v{t}
    s_and_b32 s{sT1}, s{sT0}, 0xffff
    s_cmp_ge_u32 s{sT1}, {need}
    s_cbranch_scc1 {L}_ok
    s_sub_u32 s{sBUD}, s{sBUD}, 1
    s_cmp_lg_u32 s{sBUD}, 0
    s_cbranch_scc1 {L}
    s_branch L_team_done
    {L}_ok:
    """)

def wait_done(a, what, t0, t1, dead, sleep=""):
    L = a.uid("WD"); first, n = {'A': (0, 4), 'B': (4, 4), 'S': (8, 2)}[what]
    a(f"""
    v_mbcnt_lo_u32_b32 v{t1}, -1, 0
    v_and_b32 v{t1}, {n-1}, v{t1}
    v_lshlrev_b32 v{t1}, 7, v{t1}
    s_mov_b32 s41, {WS_DONE + first*128}
    s_mov_b64 exec, {(1 << n) - 1}
    {L}:
    buffer_load_dword v{t0}, v{t1}, {S_WS}, s41 offen sc1
    s_waitcnt vmcnt(0)
    v_cmp_gt_u32 vcc, 64, v{t0}
    s_cbranch_vccz {L}_ok
    {sleep}
    s_sub_u32 s{sBUD}, s{sBUD}, 1
    s_cmp_lg_u32 s{sBUD}, 0
    s_cbranch_scc1 {L}
    s_branch {dead}
    {L}_ok:
    s_mov_b64 exec, -1
    """)

def team_sync(a, o, P, w):
    a("s_waitcnt vmcnt(0) lgkmcnt(0)")
    if w == 0: tstamp(a, 9, sWAVE, tmp=(56, 57))
    a("s_barrier")
    if w < 3: a(f"v_mov_b32 v58, {L_MISC}\n ds_read_b32 v58, v58\n s_waitcnt lgkmcnt(0)\n v_readfirstlane_b32 s{sMODE}, v58")
    if w == 0: tstamp(a, 6, sWAVE, tmp=(56, 57)); dstamp(a, 6, sWAVE, tmp=(56, 57))

def both_modes(a, P, steps):
    a(f"s_cmp_lg_u32 s{sMODE}, 0\n s_cbranch_scc1 {P}_far")
    steps(P, "")
    a(f"{P}_far:")
    steps(P + "f", " sc1")

def wave3(a, o):
    P = "W3"
    DY, DS, M, NEG = 12, 20, 32, 60
    EX, SC, OWN, PR, FR = 64, 68, 76, 96, 136
    vFA, vFS, vST, vXT, vXD, vSG, vPA, vMO, vMA, vCN = 142, 143, 144, 145, 146, 147, 148, 157, 158, 159
    vSX, vS0, vL0, vK0, vK1, vVA, vZ, DP, YO, KM, SET = 170, 171, 172, 173, 174, 176, 184, 188, 192, 208, 236
    vGO = 185
    U, KX = 256 + 112, 256 + 192
    Aop = lambda t, k: 256 + (t*7 + k)*8
    a("s_mov_b64 exec, 1")
    dbg_wait(a, "W3_seats", 0, 32, 56)
    a(f"s_mov_b64 exec, -1\n s_lshr_b32 s{sMODE}, s{sT0}, 16\n v_mov_b32 v56, s{sMODE}\n v_mov_b32 v57, {L_MISC}\n ds_write_b32 v57, v56")
    y_addr(a, 3)
    for k in range(8):
        a(f"s_add_u32 s{sT0}, s{sRANK}, {k}\n s_and_b32 s{sT0}, s{sT0}, 7")
        a(f"s_lshl_b32 s{sT1}, s{sT0}, 11\n v_add_u32 v{vVA+k}, s{sT1}, v0")
        a(f"s_lshl_b32 s{sT1}, s{sT0}, 10\n s_add_u32 s{sT1}, s{sT1}, {R_P + 2048}\n v_add_u32 v{vPA+k}, s{sT1}, v0")
    a(f"""
    v_add_u32 v{vPA+8}, {R_P}, v0
    v_and_b32 v{vK0}, 7, v61
    v_lshlrev_b32 v{vK0}, 5, v{vK0}
    v_lshrrev_b32 v63, 1, v62
    v_lshl_add_u32 v{vK0}, v63, 8, v{vK0}
    v_and_b32 v63, 1, v62
    v_lshl_add_u32 v{vK0}, v63, 3, v{vK0}
    s_mul_i32 s{sT0}, s{sJ}, {14*256}
    v_add_u32 v{vK0}, s{sT0}, v{vK0}
    v_add_u32 v{vK1}, 2048, v{vK0}
    v_mul_u32_u24 v6, 320, v63
    v_lshl_add_u32 v6, v61, 2, v6
    v_lshrrev_b32 v63, 1, v62
    v_cmp_eq_u32 vcc, s{sJ}, v63
    v_cmp_gt_u32 s[40:41], 8, v61
    s_xor_b32 s{sT0}, s{sRANK}, 1
    s_mul_i32 s{sT0}, s{sT0}, 640
    s_add_u32 s{sT0}, s{sT0}, {R_S}
    v_add_u32 v59, s{sT0}, v6
    v_add_u32 v6, {L_S}, v6
    v_mov_b32 v58, {OOB}
    v_mov_b32 v57, {L_S + 1024}
    v_cndmask_b32 v{vSX}, v59, v58, vcc
    v_cndmask_b32 v6, v57, v6, vcc
    v_cndmask_b32 v{vS0}, v58, v{vSX}, s[40:41]
    v_cndmask_b32 v{vL0}, v57, v6, s[40:41]
    v_cmp_gt_u32 vcc, 10, v61
    v_mov_b32 v63, 0x7f800000
    v_mov_b32 v9, 0x42800000
    v_mul_u32_u24 v2, 160, v62
    v_cndmask_b32 v9, v63, v9, vcc
    v_cndmask_b32 v63, 0, v61, vcc
    v_lshl_add_u32 v2, v63, 4, v2
    s_mul_i32 s{sT0}, s{sRANK}, 640
    s_add_u32 s{sT0}, s{sT0}, {R_S}
    v_add_u32 v{vSG}, s{sT0}, v2
    v_add_u32 v2, {L_S}, v2
    v_mov_b32 v63, {L_S + 1536}
    v_cndmask_b32 v2, v63, v2, vcc
    v_mov_b32 v{SC}, 0xf149f2ca
    v_mov_b32 v{SC+1}, 0xf149f2ca
    v_mov_b32 v{SC+2}, 0xf149f2ca
    v_mov_b32 v{SC+3}, 0xf149f2ca
    ds_write_b128 v63, {v(SC,4)}
    v_cndmask_b32 v10, v58, v{vSG}, vcc
    v_lshrrev_b32 v59, 1, v61
    s_lshl_b32 s{sT0}, s{sH}, 2
    s_add_u32 s{sT0}, s{sT0}, 15
    v_add_u32 v59, s{sT0}, v59
    v_mov_b32 v57, s{sH}
    v_cmp_gt_u32 s[40:41], 2, v61
    s_nop 1
    v_cndmask_b32 v59, v59, v57, s[40:41]    ; u
    v_lshrrev_b32 v57, 1, v59
    v_lshlrev_b32 v4, 8, v57
    v_and_b32 v57, 1, v59
    v_lshl_add_u32 v4, v57, 4, v4
    v_and_b32 v57, 1, v61
    v_lshl_add_u32 v4, v57, 3, v4
    v_lshl_add_u32 v4, v62, 5, v4
    s_lshl_b32 s{sT0}, s{sJ}, 7
    s_add_u32 s{sT0}, s{sT0}, {R_P}
    v_add_u32 v4, s{sT0}, v4
    v_cndmask_b32 v4, v58, v4, vcc
    v_cmp_eq_u32 vcc, 0, v60
    s_lshl_b32 s{sT0}, s{sRANK}, 2
    v_mov_b32 v57, s{sT0}
    v_cndmask_b32 v{vFS}, v58, v57, vcc
    v_and_b32 v57, 31, v60
    v_lshlrev_b32 v{vFA}, 2, v57
    v_mov_b32 v{vST}, 0
    v_mov_b32 v{vGO}, {L_MISC + 64}
    ds_write_b32 v{vGO}, v{vST}
    v_and_b32 v58, 1, v61
    v_lshl_add_u32 v59, v62, 1, v58
    v_lshlrev_b32 v5, 5, v59
    v_bfe_u32 v57, v61, 1, 1
    v_lshl_add_u32 v5, v57, 4, v5
    v_lshrrev_b32 v57, 2, v61
    v_lshl_add_u32 v5, v57, 2, v5
    s_lshl_b32 s{sT0}, s{sRANK}, 8
    v_add_u32 v5, s{sT0}, v5
    v_lshlrev_b32 v{vMA}, 4, v59
    v_bfe_u32 v57, v61, 3, 1
    v_lshl_add_u32 v{vMA}, v57, 7, v{vMA}
    v_bfe_u32 v57, v61, 1, 2
    v_lshl_add_u32 v{vMA}, v57, 2, v{vMA}
    v_add_u32 v{vMA}, s{sT0}, v{vMA}
    v_mov_b32 v{vZ}, 0
    v_cmp_eq_u32 vcc, 1, v58
    v_mov_b32 v8, 0x01000504
    v_mov_b32 v57, 0x07060302
    v_cndmask_b32 v8, v8, v57, vcc
    v_mul_u32_u24 v59, 896, v59
    v_lshrrev_b32 v57, 1, v61
    v_lshl_add_u32 v59, v57, 2, v59
    s_lshl_b32 s{sT0}, s{sCT}, 5
    v_add_u32 v59, s{sT0}, v59
    buffer_load_dword v{vMO}, v59, s[60:63], 0 offen
    v_min_u32 v{vXT}, 13, v60
    v_lshlrev_b32 v{vXT}, 6, v{vXT}
    s_lshl_b32 s{sT1}, s{sCT}, 14
    s_add_u32 s{sVO}, s{sT1}, {WS_VO}
    s_mul_i32 s{sXT}, s{sRANK}, 896
    s_add_u32 s{sXT}, s{sXT}, {WS_XP}
    s_mul_i32 s{sXO}, s{sJ}, 14336
    s_add_u32 s{sXO}, s{sXO}, {WS_XP + XSTEP}
    s_mov_b32 s{sMO}, {WS_MO}
    s_mov_b32 s{sSC}, {SCALE}
    s_mov_b32 s{sCN}, {WS_CNT + C_VO}
    """)
    for r in range(20): a(f"v_mov_b32 v{DY+r}, 0")
    for r in range(4): a(f"v_mov_b32 v{NEG+r}, -1\n v_mov_b32 v{DP+r}, 0")
    for r in range(6): a(f"v_mov_b32 v{FR+r}, 0")
    a(f"ds_write_b128 v0, {v(DY,4)} offset:{L_Y + 1024}")
    a("s_waitcnt vmcnt(0)")
    def init(P, ST):
        a(f"buffer_store_dword v{vST}, v{vFS}, {S_WS}, s{sFL} offen{ST}")
        a(f"buffer_store_dword v{vST}, v{vFS}, {S_WS}, s{sFL} offen offset:2048{ST}")
        for sl in range(4):
            a(f"s_mov_b32 s{sT0}, {WS_RING + sl*0x10000}")
            a(f"buffer_store_dwordx4 {v(NEG,4)}, v10, {S_WS}, s{sT0} offen{ST}")
            a(f"buffer_store_dwordx2 {v(NEG,2)}, v4, {S_WS}, s{sT0} offen{ST}")
            a(f"buffer_store_dword v{NEG if sl else vMO}, v5, {S_WS}, s{sT0} offen{ST}")
        if not ST: a("s_branch W3_inited")
    both_modes(a, "W3i", init)
    a("W3_inited:")
    a(f"s_waitcnt vmcnt(0)\n s_mov_b64 exec, 1\n v_mov_b32 v56, 1\n v_mov_b32 v57, 64\n buffer_atomic_add v56, v57, {S_DBG}, 0 offen")
    a("s_mov_b64 exec, -1")
    for level, what in enumerate("ABS"):
        wait_done(a, what, 56, 57, "L_team_done")
        a(f"v_mov_b32 v56, {level+1}\n v_mov_b32 v57, {L_MISC + 128}\n ds_write_b32 v57, v56")
    a(f"s_mul_i32 s{sT0}, s{sRANK}, {A_RANK}\n s_add_u32 s{sT0}, s{sT0}, {WS_A + 12*7*2048}")
    load_regs(a, [Aop(t,k)+4*hf for t in range(2) for k in range(7) for hf in range(2)], sT0)
    def vo_wait(L):
        a(f"""
        {L}:
        buffer_load_dword v{vCN}, v{vZ}, {S_WS}, s{sCN} offen sc1
        s_waitcnt vmcnt(0)
        v_cmp_gt_u32 vcc, 28, v{vCN}
        s_cbranch_vccz {L}_ok
        s_sub_u32 s{sBUD}, s{sBUD}, 1
        s_cmp_lg_u32 s{sBUD}, 0
        s_cbranch_scc1 {L}
        s_branch L_team_done
        """)
    a("s_mov_b64 exec, 1")
    dbg_wait(a, "W3_tsync", 64, 32, 56)
    a("s_mov_b64 exec, -1")
    vo_wait("W3_vo0"); a("W3_vo0_ok:")
    a(f"s_add_u32 s{sCN}, s{sCN}, 1024")
    team_sync(a, o, P, 3)
    HORD = (0, 2, 4, 1, 3, 5, 6)
    KT = (KM, KX, KX + 28); KOF = (0, 8, 12, 20)
    def steps(P, ST):
        a(f"s_add_u32 s{sM1}, s{sCUR}, 6144\n s_mov_b32 s{sT3}, 0")
        a(f"{P}_loop:")
        a(f"s_mov_b32 m0, {L_M + 6144}")
        a("s_barrier   ; B0")
        stamp(a, o, 'w3', 0)
        a(f"buffer_load_dwordx4 v0, {S_WS}, s{sM1} offen sc1 lds")
        vq = [f"buffer_store_dword v{vMO}, v{vMA}, {S_WS}, s{sMO} offen sc1",
              f"buffer_load_dword v{vCN}, v{vZ}, {S_WS}, s{sCN} offen sc1",
              f"buffer_load_dword v{vXD}, v{vXT}, {S_WS}, s{sXT} offen sc1"]
        for k in range(8):
            vq.append(f"buffer_load_dwordx4 {v(U+16+8*k,4)}, v{vVA+k}, {S_WS}, s{sVO} offen sc1")
            vq.append(f"buffer_load_dwordx4 {v(U+20+8*k,4)}, v{vVA+k}, {S_WS}, s{sVO} offen offset:1024 sc1")
        a("s_barrier   ; B0'")
        a(f"s_add_u32 s{sXT}, s{sXT}, {XSTEP}\n s_add_u32 s{sT3}, s{sT3}, 1\n v_add_u32 v{vST}, 1, v{vST}")
        nops(a, o.b0p)
        nv = min(o.nv0, len(vq))
        for _ in range(nv): a(vq.pop(0))
        a(f"s_waitcnt vmcnt({nv+1})")
        for kt in range(2):
            for n, hh in enumerate(HORD): a(f"ds_read_b128 {v(KX+28*kt+4*n,4)}, v0 offset:{L_X + kt*7168 + hh*1024}")
        a(f"s_waitcnt vmcnt({nv})\n s_barrier   ; B1")
        mread = lambda k: a(f"ds_read_b128 {v(M+4*k,4)}, v0 offset:{L_M + 1024*k}")
        for k in KORD[:4]: mread(k)
        a(f"s_barrier   ; B1'")
        for k in KORD[4:]: mread(k)
        while vq: a(vq.pop(0))
        stamp(a, o, 'w3', 10)
        a(f"{P}_y:")
        for n, k in enumerate(KORD):
            a(f"s_waitcnt lgkmcnt({6-n})" if n < 4 else f"s_waitcnt lgkmcnt(0)" if n == 4 else "")
            a(f"{SM} {v(DY,4)}, {v(M+4*k,4)}, {v(Aop(0,k),8)}, v1")
            a(f"{SM} {v(DY+4,4)}, {v(M+4*k,4)}, {v(Aop(1,k),8)}, v1")
            if n >= 4:
                for hn in range(7)[(n-4)*2 : (n-4)*2 + (2 if n < 6 else 3)]:
                    hh = HORD[hn]; base, off = (vK0, hh*512) if hh < 4 else (vK1, (hh-4)*512)
                    a(f"ds_read2_b64 {v(KM+4*hn,4)}, v{base} offset0:{off//8} offset1:{off//8+2}")
        sets = [SET+4*i for i in range(o.ns)]
        for r in sets[1:]: a(f"v_mov_b32 v{r}, -1")
        nops(a, 5 - o.ns)
        a(f"v_add_f32 v{DY}, v{DY}, v{DY+1}\n v_add_f32 v{DY+2}, v{DY+2}, v{DY+3}")
        a(f"v_cmp_u_f32 vcc, v{DY}, v{DY+2}")
        a(f"v_add_f32 v{DY+4}, v{DY+4}, v{DY+5}\n v_add_f32 v{DY+6}, v{DY+6}, v{DY+7}")
        a(f"v_cvt_pk_bf16_f32 v{DY}, v{DY}, v{DY+4}\n v_cvt_pk_bf16_f32 v{DY+2}, v{DY+2}, v{DY+6}")
        a(f"ds_write2_b32 v3, v{DY}, v{DY+2} offset0:0 offset1:8")
        stamp(a, o, 'w3', 11)
        a("s_barrier   ; B1y")
        a(f"ds_read_b128 {v(YO,4)}, v0 offset:{L_Y}\n ds_read_b128 {v(YO+4,4)}, v0 offset:{L_Y + 1024}")
        a(f"s_cbranch_vccnz {P}_fail")
        a(f"{P}_yok:")
        ssm = lambda kt, st: a(f"{SM} {v(DS+4*kt,4)}, {v(YO+4*st,4)}, {v(KT[kt]+KOF[st],8)}, v1")
        a("s_waitcnt lgkmcnt(1)")
        for kt in range(3): ssm(kt, 0)
        a("s_barrier   ; B2")
        stamp(a, o, 'w3', 1)
        a(f"ds_read_b128 {v(YO+8,4)}, v0 offset:{L_Y + 2048}\n ds_read_b128 {v(YO+12,4)}, v0 offset:{L_Y + 3072}")
        for st in range(1, 4):
            a(f"s_waitcnt lgkmcnt({3-st})")
            for kt in range(3): ssm(kt, st)
        a("s_nop 5")
        for kt in range(3):
            for aa in range(2):
                r = DS + 4*kt + 2*aa
                a(f"v_add_f32 v{r}, v{r}, v{r+1}")
                a(f"buffer_store_dword v{r}, v{vSX if kt else vS0}, {S_WS}, s{sCUR} offen offset:{(0, 32, 96)[kt] + 160*aa}{ST}")
        stamp(a, o, 'w3', 2)
        for kt in range(3):
            o0 = (0, 8, 24)[kt]
            a(f"ds_write2_b32 v{6 if kt else vL0}, v{DS+4*kt}, v{DS+4*kt+2} offset0:{o0} offset1:{o0+40}")
        a(f"ds_read_b128 {v(OWN,4)}, v2")
        for r in range(20): a(f"v_mov_b32 v{DY+r}, 0")
        a("s_waitcnt lgkmcnt(0)")
        for q in range(4): a(f"v_mul_f32 v{OWN+q}, s{sSC}, v{OWN+q}")
        n = o.ns
        def sbody(i, wait):
            a(f"buffer_load_dwordx4 {v(sets[i],4)}, v{vSG}, {S_WS}, s{sCUR} offen sc1")
            if wait: a(f"s_waitcnt vmcnt({n-1})")
            a(f"v_cmp_eq_u32 vcc, -1, v{sets[(i+1) % n]}\n s_cbranch_vccz {P}_sok{i}")
        for i in range(n-1): sbody(i, False)
        sbody(n-1, True)
        a(f"{P}_spoll:")
        for i in range(n): sbody(i, True)
        count(a, o, 57)
        a(f"s_sub_u32 s{sBUD}, s{sBUD}, 1\n s_cmp_lg_u32 s{sBUD}, 0\n s_cbranch_scc1 {P}_spoll\n s_branch L_team_done")
        f2 = f"buffer_store_dword v{vST}, v{vFS}, {S_WS}, s{sFL} offen offset:2048{ST}"
        for i in range(n):
            r = sets[(i+1) % n]
            a(f"{P}_sok{i}:")
            stamp(a, o, 'w3', 3)
            if o.f2pos == 0: a(f2)
            for q in range(4): a(f"v_fma_f32 v{SC+q}, v{r+q}, s{sSC}, v{OWN+q}")
            a(f"v_maximum3_f32 v7, |v{SC}|, |v{SC+1}|, |v{SC+2}|")
            a(f"v_exp_f32 v{EX}, v{SC}")
            a(f"v_maximum3_f32 v7, v7, |v{SC+3}|, |v{SC+3}|")
            a(f"v_exp_f32 v{EX+1}, v{SC+1}")
            a(f"v_cmp_nle_f32 vcc, v7, v9")
            a(f"v_exp_f32 v{EX+2}, v{SC+2}\n v_exp_f32 v{EX+3}, v{SC+3}")
            a(f"v_add_f32 v7, v{EX}, v{EX+1}\n v_add_f32 v11, v{EX+2}, v{EX+3}")
            if i != n-1: a(f"s_cbranch_vccz {P}_sexp\n s_branch {P}_smax")
            else: a(f"s_cbranch_vccnz {P}_smax")
        a(f"{P}_sexp:")
        a("v_add_f32 v7, v7, v11")
        for k, sh in enumerate((8, 4, 2, 1)):
            if k + 1 == o.f2pos: a(f2 + "\n s_nop 0")
            else: a("s_nop 1")
            a(f"v_add_f32_dpp v7, v7, v7 row_ror:{sh} row_mask:0xf bank_mask:0xf")
        a("v_rcp_f32 v7, v7\n s_nop 0")
        a(f"v_mul_f32 v{SC}, v{EX}, v7\n v_mul_f32 v{SC+1}, v{EX+1}, v7\n v_mul_f32 v{SC+2}, v{EX+2}, v7")
        a(f"v_cvt_pk_bf16_f32 v{SC+4}, v{SC}, v{SC+1}\n v_mul_f32 v{SC+3}, v{EX+3}, v7\n v_cvt_pk_bf16_f32 v{SC+5}, v{SC+2}, v{SC+3}")
        a(f"buffer_store_dwordx2 {v(SC+4,2)}, v4, {S_WS}, s{sCUR} offen{ST}")
        stamp(a, o, 'w3', 4)
        order = list(range(2,10)) + [0, 1]
        def pround():
            for k in order:
                if k < 2: a(f"buffer_load_dwordx4 {v(PR+4*k,4)}, v{vPA+8}, {S_WS}, s{sCUR} offen offset:{k*1024} sc1")
                else: a(f"buffer_load_dwordx4 {v(PR+4*k,4)}, v{vPA+k-2}, {S_WS}, s{sCUR} offen sc1")
        flag_poll(a, o, P, list(range(FR, FR+o.nf)), f"v{vFA}", 2048, sT3)
        stamp(a, o, 'w3', 40)
        pround()
        a("s_barrier   ; B3")
        for q in range(4): a(f"ds_read_b128 {v(U+4*q,4)}, v0 offset:{L_UM + 1024*q}")
        a(f"s_add_u32 s{sVO}, s{sVO}, {VO_STEP}\n s_add_u32 s{sM1}, s{sNXT}, 6144\n s_add_u32 s{sMO}, s{sMO}, 8192")
        a(f"v_cmp_gt_u32 vcc, 28, v{vCN}\n s_cbranch_vccnz {P}_vo\n {P}_vo_ok:\n s_add_u32 s{sCN}, s{sCN}, 1024")
        def pu(first):
            for n, k in enumerate(order):
                a(f"s_waitcnt vmcnt({9-n + (1 if (first and n > o.kf) else 0)})" + (" lgkmcnt(0)" if n == 8 else ""))
                if first: stamp(a, o, 'w3', 50+n)
                a(f"{SM} {v(DP,4)}, {v(PR+4*k,4)}, {v(U+8*k,8)}, v1")
                if first and n == o.kf: a(f"buffer_store_dword v{vST}, v{vFS}, {S_WS}, s{sFL} offen{ST}")
                if first and n == o.kgo: a(f"ds_write_b32 v{vGO}, v{vST}")
        pu(True)
        a("s_nop 7")
        a(f"{P}_pchk:")
        a(f"v_add_f32 v{DP}, v{DP}, v{DP+1}\n v_add_f32 v{DP+2}, v{DP+2}, v{DP+3}")
        a(f"v_cvt_pk_bf16_f32 v7, v{DP}, v{DP+2}")
        a(f"v_cmp_u_f32 vcc, v{DP}, v{DP+2}\n s_nop 0")
        a("v_mov_b32_dpp v11, v7 quad_perm:[1,0,3,2] row_mask:0xf bank_mask:0xf")
        a(f"v_perm_b32 v{vMO}, v7, v11, v8")
        a(f"v_cndmask_b32 v7, v{vMO}, v{NEG}, vcc")
        a(f"buffer_store_dword v7, v5, {S_WS}, s{sNXT} offen{ST}")
        stamp(a, o, 'w3', 5)
        a(f"s_cbranch_vccnz {P}_pfail")
        a(f"{P}_pok:")
        a(f"buffer_store_dword v{NEG}, v5, {S_WS}, s{sCUR} offen{ST}")
        a(f"buffer_store_dwordx2 {v(NEG,2)}, v4, {S_WS}, s{sPRV} offen{ST}")
        a(f"buffer_store_dwordx4 {v(NEG,4)}, v10, {S_WS}, s{sCUR} offen{ST}")
        x_dma(a, o.nxa, 14)
        for r in range(4): a(f"v_mov_b32 v{DP+r}, 0")
        stamp_flush(a, o, 'w3')
        ring_advance(a)
        a(f"s_add_u32 s{sSTEP}, s{sSTEP}, 1")
        a(f"s_cmp_lt_u32 s{sSTEP}, {o.nsteps}\n s_cbranch_scc1 {P}_loop")
        a(f"buffer_store_dword v{vMO}, v{vMA}, {S_WS}, s{sMO} offen sc1")
        a("s_branch L_team_done")
        vo_wait(f"{P}_vo")
        a(f"{P}_fail:")
        m_exact(a, P, M)
        a("s_waitcnt vmcnt(0) lgkmcnt(0)")
        budget_check(a)
        for r in range(8): a(f"v_mov_b32 v{DY+r}, 0")
        count(a, o, 56)
        a(f"s_mov_b32 m0, {L_M + 6144}\n s_barrier")
        a(f"buffer_load_dwordx4 v0, {S_WS}, s{sM1} offen sc1 lds")
        a("s_waitcnt vmcnt(0)\n s_barrier")
        for k in KORD: mread(k)
        a(f"s_branch {P}_y")
        a(f"{P}_smax:")
        r = sets[0]
        a(f"s_waitcnt vmcnt(0)\n buffer_load_dwordx4 {v(r,4)}, v{vSG}, {S_WS}, s{sCUR} offen sc1\n s_waitcnt vmcnt(0)")
        a(f"v_max3_u32 v7, v{r}, v{r+1}, v{r+2}\n v_max_u32 v7, v7, v{r+3}\n v_cmp_eq_u32 vcc, -1, v7\n s_cbranch_vccz {P}_smax2")
        budget_check(a)
        a(f"s_branch {P}_smax\n {P}_smax2:")
        for q in range(4): a(f"v_fma_f32 v{SC+q}, v{r+q}, s{sSC}, v{OWN+q}")
        a(f"v_max3_f32 v7, v{SC}, v{SC+1}, v{SC+2}\n v_max_f32 v7, v7, v{SC+3}")
        for sh in (8, 4, 2, 1):
            a("s_nop 1")
            a(f"v_max_f32_dpp v7, v7, v7 row_ror:{sh} row_mask:0xf bank_mask:0xf")
        for q in range(4): a(f"v_sub_f32 v{SC+q}, v{SC+q}, v7")
        for q in range(4): a(f"v_exp_f32 v{EX+q}, v{SC+q}")
        a(f"v_add_f32 v7, v{EX}, v{EX+1}\n v_add_f32 v11, v{EX+2}, v{EX+3}\n s_branch {P}_sexp")
        a(f"{P}_pfail:")
        a("v_mov_b32 v7, 0")
        for r in range(PR, PR+40, 2): a(f"v_max3_u32 v7, v{r}, v{r+1}, v7")
        a(f"v_cmp_eq_u32 vcc, -1, v7\n s_cbranch_vccnz {P}_pagain")
        a(f"buffer_store_dword v{vMO}, v5, {S_WS}, s{sNXT} offen{ST}\n s_branch {P}_pok")
        a(f"{P}_pagain:")
        budget_check(a)
        count(a, o, 58)
        for r in range(4): a(f"v_mov_b32 v{DP+r}, 0")
        pround()
        pu(False)
        a("s_nop 7")
        a(f"s_branch {P}_pchk")
    both_modes(a, P, steps)

def team_body(a, o):
    a(f"""
    s_lshr_b32 s{sH}, s{sRANK}, 1
    s_and_b32 s{sJ}, s{sRANK}, 1
    s_sub_u32 s{sT0}, s{sRANK}, 28
    s_cmp_ge_u32 s{sRANK}, 28
    s_cselect_b32 s{sCT}, s{sT0}, s{sRANK}
    s_mov_b32 s{sFL}, {WS_FL}
    s_mov_b32 s{sSTEP}, 0
    s_mov_b32 s{sCUR}, {WS_RING}
    s_mov_b32 s{sNXT}, {WS_RING + 0x10000}
    s_mov_b32 s{sPRV}, {WS_RING + 0x30000}
    v_and_b32 v60, 63, v0
    v_and_b32 v61, 15, v60
    v_lshrrev_b32 v62, 4, v60
    v_lshlrev_b32 v0, 4, v60
    v_and_b32 v63, 1, v60
    v_cmp_eq_u32 vcc, 1, v63
    v_mov_b32 v1, 0x44444444
    v_mov_b32 v63, 0xeeeeeeee
    v_cndmask_b32 v1, v1, v63, vcc
    """)
    a(f"v_mov_b32 v56, 0\n v_mov_b32 v57, {L_MISC + 128}\n ds_write_b32 v57, v56\n s_waitcnt lgkmcnt(0)\n s_barrier")
    if o.diag: a("s_mov_b32 s56, 0\n s_mov_b32 s57, 0\n s_mov_b32 s58, 0")
    a(f"""
    s_cmp_eq_u32 s{sWAVE}, 3
    s_cbranch_scc1 W3_entry
    s_cmp_eq_u32 s{sWAVE}, 2
    s_cbranch_scc1 Y2_entry
    s_cmp_eq_u32 s{sWAVE}, 1
    s_cbranch_scc1 Y1_entry
    """)
    ywave(a, o, 0)
    a("Y1_entry:"); ywave(a, o, 1)
    a("Y2_entry:"); ywave(a, o, 2)
    a("W3_entry:"); wave3(a, o)
```

```python
from asmlib import *
from layout import *
import team, k1
from team import S_WS, S_DBG, SM, OOB, nops
K2_LDS = k1.K1_LDS
L_BC = 65536
MF32 = "v_mfma_f32_32x32x16_bf16"
MF16 = "v_mfma_f32_16x16x32_bf16"
S_W = "s[8:11]"
sWAVE, sROLE, sSEG, sBUD = 17, 16, 20, 35
sA, sB, sC, sD, sE, sF = 36, 37, 38, 39, 40, 41
NS_O = 6
N_TB, N_TA, N_TH, N_TU, N_O1, N_O2 = 56, 56, 14, 28, 4*NS_O, 7*NS_O
T_TB = 0; T_TA = T_TB + N_TB; T_TH = T_TA + N_TA; T_TU = T_TH + N_TH; T_O1 = T_TU + N_TU; T_O2 = T_O1 + N_O1; T_END = T_O2 + N_O2
D_TEAM, D_SYNC, D_TICK, D_RST = 0, 64, 128, 192
vL16, vCA, vCT = 250, 251, 252

SLEEP = ['']
def lane_setup(a):
    a(f"""
    v_mbcnt_lo_u32_b32 v0, -1, 0
    v_mbcnt_hi_u32_b32 v0, -1, v0
    v_lshlrev_b32 v{vL16}, 4, v0
    v_mov_b32 v{vCA}, 0
    v_lshrrev_b32 v1, 5, v0                 ; hi
    v_and_b32 v2, 31, v0                    ; c32
    v_and_b32 v3, 15, v0                    ; c
    v_lshrrev_b32 v4, 4, v0                 ; g
    """)

def wait_cnt(a, kind, n):
    L = a.uid("W")
    a(f"""
    s_cmp_lg_u32 s{sWAVE}, 0
    s_cbranch_scc1 {L}_ok
    s_lshl_b32 s{sF}, s{sSEG}, 10
    s_add_u32 s{sF}, s{sF}, {WS_CNT + kind}
    {L}:
    buffer_load_dword v{vCT}, v{vCA}, {S_WS}, s{sF} offen sc1
    s_waitcnt vmcnt(0)
    v_cmp_gt_u32 vcc, {n}, v{vCT}
    s_cbranch_vccz {L}_ok
    {SLEEP[0]}
    s_sub_u32 s{sBUD}, s{sBUD}, 1
    s_cmp_lg_u32 s{sBUD}, 0
    s_cbranch_scc1 {L}
    s_endpgm
    {L}_ok:
    s_waitcnt vmcnt(0)
    s_barrier
    """)

def wait_done(a, what):
    L = a.uid("WW")
    a(f"s_cmp_lg_u32 s{sWAVE}, 0\n s_cbranch_scc1 {L}")
    team.wait_done(a, what, vCT, vCT+1, "L_exit", SLEEP[0])
    a(f"{L}:\n s_barrier")

def wait_team(a):
    if not GATE[0]: return
    wait_done(a, 'S')
    L = a.uid("WT")
    a(f"""
    s_cmp_lg_u32 s{sWAVE}, 0
    s_cbranch_scc1 {L}_ok
    s_mov_b32 s{sF}, {WS_MO}
    {L}:
    buffer_load_dword v{vCT}, v{vCA}, {S_WS}, s{sF} offen sc1
    s_waitcnt vmcnt(0)
    v_cmp_eq_u32 vcc, -1, v{vCT}
    s_cbranch_vccz {L}_ok
    s_sleep 32
    s_sub_u32 s{sBUD}, s{sBUD}, 1
    s_cmp_lg_u32 s{sBUD}, 0
    s_cbranch_scc1 {L}
    s_endpgm
    {L}_ok:
    s_barrier
    """)
GATE = [True]

def arrive(a, kind, s_seg):
    L = a.uid("AR")
    a(f"""
    s_cmp_lg_u32 s{sWAVE}, 0
    s_cbranch_scc1 {L}
    s_lshl_b32 s{sF}, s{s_seg}, 10
    s_add_u32 s{sF}, s{sF}, {WS_CNT + kind}
    v_mov_b32 v{vCT}, 1
    s_mov_b64 exec, 1
    buffer_atomic_add v{vCT}, v{vCA}, {S_WS}, s{sF} offen
    s_mov_b64 exec, -1
    {L}:
    """)

def perm_rho(a, dst, tmp):
    a(f"""
    v_and_b32 v{dst}, 0x13, v2
    v_bfe_u32 v{tmp}, v2, 2, 1
    v_lshl_add_u32 v{dst}, v{tmp}, 3, v{dst}
    v_bfe_u32 v{tmp}, v2, 3, 1
    v_lshl_add_u32 v{dst}, v{tmp}, 2, v{dst}
    """)

def fetch_m_issue(a, t0):
    a(f"""
    s_lshl_b32 s{sA}, s{sSEG}, 13
    s_add_u32 s{sA}, s{sA}, {WS_MO}
    s_lshl_b32 s{sB}, s{sWAVE}, 10
    s_add_u32 s{sA}, s{sA}, s{sB}
    s_add_u32 s{sC}, s{sWAVE}, 4
    s_min_u32 s{sC}, s{sC}, 6
    s_sub_u32 s{sC}, s{sC}, s{sWAVE}
    s_lshl_b32 s{sC}, s{sC}, 10
    s_add_u32 s{sD}, s{sA}, s{sC}
    v_add_u32 v{t0+8}, s{sB}, v{vL16}
    v_add_u32 v{t0+9}, s{sC}, v{t0+8}
    buffer_load_dwordx4 {v(t0,4)}, v{vL16}, {S_WS}, s{sA} offen sc1
    buffer_load_dwordx4 {v(t0+4,4)}, v{vL16}, {S_WS}, s{sD} offen sc1
    """)

def fetch_m_finish(a, P, t0, lds):
    a(f"""
    {P}_m1:
    s_waitcnt vmcnt(0)
    v_max3_u32 v{vCT}, v{t0}, v{t0+1}, v{t0+2}
    v_max3_u32 v{vCT}, v{vCT}, v{t0+3}, v{t0+4}
    v_max3_u32 v{vCT}, v{vCT}, v{t0+5}, v{t0+6}
    v_max_u32 v{vCT}, v{vCT}, v{t0+7}
    v_cmp_eq_u32 vcc, -1, v{vCT}
    s_cbranch_vccz {P}_mok
    {P}_mw:
    s_sub_u32 s{sBUD}, s{sBUD}, 1
    s_cmp_eq_u32 s{sBUD}, 0
    s_cbranch_scc1 L_exit
    {SLEEP[0]}
    buffer_load_dword v{vCT}, v{vCA}, {S_WS}, s{sD} offen sc1
    s_waitcnt vmcnt(0)
    v_cmp_eq_u32 vcc, -1, v{vCT}
    s_cbranch_vccnz {P}_mw
    buffer_load_dwordx4 {v(t0,4)}, v{vL16}, {S_WS}, s{sA} offen sc1
    buffer_load_dwordx4 {v(t0+4,4)}, v{vL16}, {S_WS}, s{sD} offen sc1
    s_branch {P}_m1
    {P}_mok:
    ds_write_b128 v{t0+8}, {v(t0,4)} offset:{lds}
    ds_write_b128 v{t0+9}, {v(t0+4,4)} offset:{lds}
    s_waitcnt lgkmcnt(0)
    s_barrier
    """)

def gw(a, kind):
    P = "G" + kind
    W = lambda u, t: 256 + (u*28 + t)*4
    ACC, FR, TM, vOUT, vG = 16, 48, 72, 8, 9
    NR = 6
    step = 2
    cnt = {'B': C_VO, 'A': C_Y, 'H': C_H}[kind]
    a(f"{P}_entry:")
    lane_setup(a)
    if kind != 'B': wait_team(a)
    if kind == 'B':
        a(f"""
        s_and_b32 s{sSEG}, s{sROLE}, 1
        s_lshr_b32 s{sROLE}, s{sROLE}, 1
        s_lshr_b32 s{sA}, s{sROLE}, 1
        s_and_b32 s{sB}, s{sROLE}, 1
        s_lshl_b32 s{sB}, s{sB}, 3
        s_lshl_b32 s{sC}, s{sWAVE}, 1
        s_add_u32 s{sB}, s{sB}, s{sC}
        v_lshlrev_b32 v5, 4, v3
        v_lshl_add_u32 v5, v1, 8, v5
        v_bfe_u32 v6, v0, 4, 1
        v_lshl_add_u32 v{vOUT}, v6, 14, v5
        v_mul_u32_u24 v6, {B_CT}, v6
        v_add_u32 v5, v5, v6
        s_mul_i32 s{sD}, s{sA}, {2*B_CT}
        s_mul_i32 s{sE}, s{sB}, 14336
        s_add_u32 s{sD}, s{sD}, s{sE}
        s_add_u32 s{sD}, s{sD}, {WS_B}
        s_lshl_b32 s42, s{sA}, 15
        s_lshl_b32 s{sE}, s{sB}, 10
        s_add_u32 s42, s42, s{sE}
        s_add_u32 s42, s42, {WS_VO}
        s_mul_i32 s{sE}, s{sSEG}, {VO_STEP}
        s_add_u32 s42, s42, s{sE}
        """)
        ustride, ostep = 14336, VO_STEP
    elif kind == 'A':
        perm_rho(a, 5, 6)
        a(f"""
        v_and_b32 v6, 1, v5
        v_mul_u32_u24 v6, 14336, v6
        v_lshrrev_b32 v5, 1, v5
        v_lshl_add_u32 v5, v5, 4, v6
        v_lshl_add_u32 v5, v1, 8, v5
        v_mov_b32 v{vOUT}, v{vL16}
        s_and_b32 s{sSEG}, s{sROLE}, 1
        s_lshr_b32 s{sROLE}, s{sROLE}, 1
        s_lshl_b32 s{sA}, s{sROLE}, 3
        s_lshl_b32 s{sC}, s{sWAVE}, 1
        s_add_u32 s{sA}, s{sA}, s{sC}
        s_mul_i32 s{sD}, s{sA}, 28672
        s_lshl_b32 s42, s{sA}, 11
        s_add_u32 s42, s42, {WS_Y}
        s_mul_i32 s{sE}, s{sSEG}, {VO_STEP}
        s_add_u32 s42, s42, s{sE}
        """)
        ustride, ostep = 28672, VO_STEP
    if kind in 'BA':
        wait_done(a, kind)
        for u in range(2):
            for t in range(28):
                if t and t % 8 == 0: a(f"s_add_u32 s{sD}, s{sD}, 4096")
                a(f"buffer_load_dwordx4 {v(W(u,t),4)}, v5, {S_WS}, s{sD} offen offset:{(t%8)*512} sc1")
            if u == 0: a(f"s_add_u32 s{sD}, s{sD}, {ustride - 3*4096}")
    else:
        srd(a, 8, 66, F_BYTES)
        a(f"""
        s_and_b32 s{sSEG}, s{sROLE}, 1
        s_lshr_b32 s{sA}, s{sROLE}, 1
        s_lshl_b32 s{sA}, s{sA}, 2
        s_add_u32 s{sA}, s{sA}, s{sWAVE}
        s_lshl_b32 s{sD}, s{sA}, 7
        s_lshl_b32 s42, s{sA}, 12
        s_mul_i32 s{sE}, s{sSEG}, {H_STEP}
        s_add_u32 s42, s42, s{sE}
        s_add_u32 s42, s42, {WS_H}
        v_lshrrev_b32 v5, 3, v0
        v_mul_u32_u24 v5, 3584, v5
        v_and_b32 v6, 7, v0
        v_lshl_add_u32 v5, v6, 4, v5
        v_bfe_u32 v6, v0, 2, 2
        v_lshl_add_u32 v6, v1, 3, v6
        v_lshlrev_b32 v6, 7, v6
        v_bfe_u32 v7, v0, 4, 1
        v_lshl_add_u32 v6, v7, 5, v6
        v_lshl_add_u32 v{vOUT}, v7, 10, 0
        v_and_b32 v7, 1, v0
        v_lshl_add_u32 v6, v7, 4, v6
        v_bfe_u32 v7, v0, 1, 1
        v_lshl_add_u32 v6, v7, 3, v6
        s_mul_i32 s{sE}, s{sWAVE}, 14336
        v_add_u32 v6, s{sE}, v6
        v_lshl_add_u32 v{vOUT}, v1, 8, v{vOUT}
        v_lshl_add_u32 v{vOUT}, v3, 4, v{vOUT}
        v_lshlrev_b32 v10, 2, v2
        """)
        for rnd in range(4):
            for q in range(14):
                a(f"s_add_u32 m0, s{sE}, {q*1024}\n s_nop 0")
                a(f"buffer_load_dwordx4 v5, {S_W}, s{sD} offen lds")
                a(f"s_add_u32 s{sD}, s{sD}, {8*3584}")
            a("s_waitcnt vmcnt(0)")
            for u in range(2):
                for tt in range(7):
                    for z in range(2):
                        a(f"ds_read_b64_tr_b16 {v(W(u, rnd*7+tt) + 2*z, 2)}, v6 offset:{tt*2048 + z*512 + u*64}")
            a("s_waitcnt lgkmcnt(0)")
        a("s_barrier")
        ostep = H_STEP
    nst = 4
    def xdma():
        for q in range(7):
            if q % 4 == 0: a(f"s_add_u32 m0, s43, {q*1024}\n s_add_u32 s{sE}, s44, {q*1024}")
            a(f"buffer_load_dwordx4 v{vL16}, {S_WS}, s{sE} offen offset:{(q%4)*1024} sc1 lds")
        a(f"s_xor_b32 s43, s43, 0x8000\n s_add_u32 s44, s44, {step*28672}")
    a(f"""
    s_mul_i32 s43, s{sWAVE}, 7168
    s_mul_i32 s44, s{sSEG}, 28672
    s_add_u32 s44, s44, s43
    s_add_u32 s44, s44, {WS_XG}
    v_mov_b32 v11, v{vL16}
    s_mov_b32 s45, 0
    """)
    wait_done(a, 'S')
    xdma()
    a("s_waitcnt vmcnt(0)")
    tstamp(a, 6, sWAVE)
    a(f"{P}_loop:")
    a(f"s_waitcnt vmcnt({nst})\n s_barrier")
    if kind == 'H':
        a(f"s_lshl_b32 s{sE}, s{sSEG}, 7\n s_add_u32 s{sE}, s{sE}, {WS_G}")
        a(f"buffer_load_dword v{vG}, v10, {S_WS}, s{sE} offen sc1")
    xdma()
    fetch = lambda t: a(f"ds_read_b128 {v(FR+4*(t % NR),4)}, v11 offset:{t*1024}")
    for t in range(NR-1): fetch(t)
    for t in range(28):
        if t + NR - 1 < 28: fetch(t + NR - 1)
        a(f"s_waitcnt lgkmcnt({min(NR-1, 27-t)})")
        x = v(FR+4*(t % NR), 4)
        if t == 14:
            a(f"s_waitcnt vmcnt({8 if kind == 'H' else 7})\n s_barrier")
            a(f"s_cmp_eq_u32 s45, 0\n s_cbranch_scc1 {P}_noar\n s_sub_u32 s46, s{sSEG}, {step}")
            arrive(a, cnt, 46)
            a(f"{P}_noar:")
        for u in range(2):
            c = "0" if t == 0 else v(ACC+16*u, 16)
            if kind == 'B': a(f"{MF32} {v(ACC+16*u,16)}, {x}, {v(W(u,t),4)}, {c}")
            else:           a(f"{MF32} {v(ACC+16*u,16)}, {v(W(u,t),4)}, {x}, {c}")
    a("v_xor_b32 v11, 0x8000, v11")
    if kind == 'H': a(f"s_waitcnt vmcnt(7)\n v_sub_f32 v{vG}, 1.0, v{vG}")
    a("s_nop 9")
    for u in range(2):
        if kind == 'H':
            for h0 in range(0, 16, 8):
                r = ACC + 16*u + h0
                for q in range(8): a(f"v_mul_f32 v{TM+16+q}, 0xbfb8aa3b, v{r+q}")
                for q in range(8): a(f"v_exp_f32 v{TM+16+q}, v{TM+16+q}")
                for q in range(8): a(f"v_add_f32 v{TM+16+q}, 1.0, v{TM+16+q}\n v_mul_f32 v{r+q}, v{vG}, v{r+q}")
                for q in range(8): a(f"v_rcp_f32 v{TM+16+q}, v{TM+16+q}")
                a("s_nop 0")
                for q in range(8): a(f"v_mul_f32 v{r+q}, v{TM+16+q}, v{r+q}")
        for be in range(2):
            r = ACC + 16*u + 8*be; t = TM + 8*u + 4*be
            order = (0, 4, 2, 6) if kind == 'B' else (0, 2, 4, 6)
            for q in range(4): a(f"v_cvt_pk_bf16_f32 v{t+q}, v{r+order[q]}, v{r+order[q]+1}")
            off = {'B': u*1024 + be*512, 'A': u*2048 + be*1024, 'H': u*2048 + be*512}[kind]
            a(f"buffer_store_dwordx4 {v(t,4)}, v{vOUT}, {S_WS}, s42 offen offset:{off} sc1")
    a(f"""
    s_add_u32 s42, s42, {step*ostep}
    s_add_u32 s45, s45, 1
    s_add_u32 s{sSEG}, s{sSEG}, {step}
    s_cmp_lt_u32 s{sSEG}, 64
    s_cbranch_scc1 {P}_loop
    s_waitcnt vmcnt(0)
    s_barrier
    """)
    a(f"s_sub_u32 s46, s{sSEG}, {step}")
    arrive(a, cnt, 46)
    a("s_branch L_next_free")

def tu(a):
    P = "TU"
    W = lambda hh, k: 256 + (hh*7 + k)*8
    M, D, T, AD, t0 = 16, 48, 64, 72, 80
    a(f"{P}_entry:")
    lane_setup(a)
    wait_team(a)
    a(f"""
    s_mul_i32 s{sD}, s{sROLE}, {B_CT}
    s_mul_i32 s{sE}, s{sWAVE}, {4*14336}
    s_add_u32 s{sD}, s{sD}, s{sE}
    s_add_u32 s{sD}, s{sD}, {WS_B}
    """)
    wait_done(a, 'B')
    for i in range(56):
        if i and i % 4 == 0: a(f"s_add_u32 s{sD}, s{sD}, 4096")
        a(f"buffer_load_dwordx4 {v(256+4*i,4)}, v{vL16}, {S_WS}, s{sD} offen offset:{(i%4)*1024} sc1")
    a(f"""
    v_and_b32 v5, 1, v0
    v_cmp_eq_u32 vcc, 1, v5
    v_mov_b32 v8, 0x44444444
    v_mov_b32 v6, 0xeeeeeeee
    v_cndmask_b32 v8, v8, v6, vcc
    v_lshlrev_b32 v6, 8, v4
    v_lshl_add_u32 v6, v5, 2, v6
    v_bfe_u32 v5, v0, 1, 3
    v_lshl_add_u32 v6, v5, 4, v6
    s_lshl_b32 s42, s{sROLE}, 12
    s_lshl_b32 s{sE}, s{sWAVE}, 10
    s_add_u32 s42, s42, s{sE}
    s_add_u32 s42, s42, {WS_UM}
    s_mov_b32 s{sSEG}, 0
    """)
    for k in range(7): a(f"v_add_u32 v{AD+k}, {k*1024}, v6")
    wait_done(a, 'S')
    fetch_m_issue(a, t0)
    a(f"{P}_loop:")
    for r in range(16): a(f"v_mov_b32 v{D+r}, 0")
    fetch_m_finish(a, P, t0, 0)
    for k in range(7):
        a(f"ds_read2_b32 {v(M+4*k,2)}, v{AD+k} offset0:0 offset1:2")
        a(f"ds_read2_b32 {v(M+4*k+2,2)}, v{AD+k} offset0:32 offset1:34")
    for k in range(7):
        a(f"s_waitcnt lgkmcnt({12-2*k})")
        for hh in range(4): a(f"{SM} {v(D+4*hh,4)}, {v(M+4*k,4)}, {v(W(hh,k),8)}, v8")
    a("s_nop 4")
    for hh in range(4):
        d = D + 4*hh
        a(f"v_add_f32 v{d}, v{d}, v{d+1}\n v_add_f32 v{d+2}, v{d+2}, v{d+3}\n v_cvt_pk_bf16_f32 v{T+hh}, v{d}, v{d+2}")
    a(f"buffer_store_dwordx4 {v(T,4)}, v{vL16}, {S_WS}, s42 offen sc1")
    a(f"s_mov_b32 s46, s{sSEG}\n s_add_u32 s{sSEG}, s{sSEG}, 1")
    fetch_m_issue(a, t0)
    a("s_waitcnt vmcnt(2)\n s_barrier")
    arrive(a, C_UM, 46)
    a(f"""
    s_add_u32 s42, s42, {UM_STEP}
    s_cmp_lt_u32 s{sSEG}, 64
    s_cbranch_scc1 {P}_loop
    s_branch L_next
    """)

def o1(a):
    P = "O1"
    Y = lambda t: 256 + 4*t
    SX, SMM, FR, T, t0 = 16, 32, 48, 72, 88
    vG, vPX, vPM, vRW, vKM, vMX = 8, 9, 10, 11, 12, 13
    NR = 6; L_MM = 28672
    a(f"{P}_entry:")
    lane_setup(a)
    a(f"""
    s_lshr_b32 s{sSEG}, s{sROLE}, 2
    s_and_b32 s43, s{sROLE}, 3
    s_lshl_b32 s44, s43, 2
    s_add_u32 s44, s44, s{sWAVE}               ; head
    v_bfe_u32 v5, v0, 4, 1
    v_lshlrev_b32 v5, 10, v5
    v_lshl_add_u32 v5, v3, 4, v5               ; rt*1024 + c*16
    v_lshl_add_u32 v{vPX}, v1, 8, v5
    s_lshl_b32 s{sA}, s44, 11
    v_add_u32 v{vPX}, s{sA}, v{vPX}
    v_lshl_add_u32 v{vPM}, v1, 9, v5
    s_lshl_b32 s{sA}, s43, 11
    s_lshl_b32 s{sB}, s{sWAVE}, 2
    s_add_u32 s{sA}, s{sA}, s{sB}
    s_add_u32 s{sA}, s{sA}, 32768
    v_add_u32 v{vPM}, s{sA}, v{vPM}
    v_lshlrev_b32 v5, 2, v1
    v_sub_u32 v{vRW}, v2, v5
    v_and_b32 v5, 7, v0
    v_lshlrev_b32 v5, 4, v5
    v_lshl_add_u32 v{vKM}, v1, 7, v5
    v_lshlrev_b32 v14, 2, v2
    s_mul_i32 s45, s{sWAVE}, 7168
    """)
    wait_done(a, 'S')
    a(f"{P}_loop:")
    a(f"""
    s_mul_i32 s{sA}, s{sSEG}, 28672
    s_add_u32 s{sA}, s{sA}, s45
    s_add_u32 s{sA}, s{sA}, {WS_XG}
    """)
    for q in range(7):
        if q % 4 == 0: a(f"s_add_u32 m0, s45, {q*1024}\n s_add_u32 s{sE}, s{sA}, {q*1024}")
        a(f"buffer_load_dwordx4 v{vL16}, {S_WS}, s{sE} offen offset:{(q%4)*1024} sc1 lds")
    a(f"s_lshl_b32 s{sE}, s{sSEG}, 7\n s_add_u32 s{sE}, s{sE}, {WS_G}")
    a(f"buffer_load_dword v{vG}, v14, {S_WS}, s{sE} offen sc1")
    wait_cnt(a, C_Y, 28)
    a(f"""
    s_mul_i32 s{sA}, s{sSEG}, {VO_STEP}
    s_mul_i32 s{sB}, s44, 28672
    s_add_u32 s{sA}, s{sA}, s{sB}
    s_add_u32 s{sA}, s{sA}, {WS_Y}
    """)
    for t in range(28):
        if t and t % 4 == 0: a(f"s_add_u32 s{sA}, s{sA}, 4096")
        a(f"buffer_load_dwordx4 {v(Y(t),4)}, v{vL16}, {S_WS}, s{sA} offen offset:{(t%4)*1024} sc1")
    a("s_barrier")
    def scores(acc, base, stride, off0, vm):
        fetch = lambda t: a(f"ds_read_b128 {v(FR+4*(t % NR),4)}, v{base} offset:{off0 + t*stride}")
        for t in range(NR-1): fetch(t)
        for t in range(28):
            if t + NR - 1 < 28: fetch(t + NR - 1)
            a(f"s_waitcnt lgkmcnt({min(NR-1, 27-t)})" + (f" vmcnt({27-t})" if vm else ""))
            a(f"{MF32} {v(acc,16)}, {v(FR+4*(t % NR),4)}, {v(Y(t),4)}, {'0' if t == 0 else v(acc,16)}")
    scores(SX, vL16, 1024, 0, True)
    a(f"v_mov_b32 v{T}, 0xff800000\n s_nop 10")
    for b in range(4):
        for r in range(4):
            a(f"v_cmp_le_i32 vcc, {8*b+r}, v{vRW}\n s_nop 1\n v_cndmask_b32 v{SX+4*b+r}, v{T}, v{SX+4*b+r}, vcc")
    a(f"v_max3_f32 v{vMX}, v{SX}, v{SX+1}, v{SX+2}")
    for r in range(3, 15, 2): a(f"v_max3_f32 v{vMX}, v{vMX}, v{SX+r}, v{SX+r+1}")
    a(f"v_max_f32 v{vMX}, v{vMX}, v{SX+15}")
    fetch_m_issue(a, t0); fetch_m_finish(a, P, t0, L_MM)
    scores(SMM, vKM, 256, L_MM, False)
    a("s_nop 11")
    a(f"v_max3_f32 v{vMX}, v{vMX}, v{SMM}, v{SMM+1}\n v_max3_f32 v{vMX}, v{vMX}, v{SMM+2}, v{SMM+3}")
    a(f"v_mov_b32 v{T}, v{vMX}\n s_nop 1\n v_permlane32_swap_b32 v{T}, v{vMX}\n v_max_f32 v{vMX}, v{vMX}, v{T}")
    vals = [SX+r for r in range(16)] + [SMM+r for r in range(4)]
    a(f"s_mov_b32 s{sB}, {team.SCALE}\n v_mul_f32 v{vMX}, s{sB}, v{vMX}")
    for r in vals: a(f"v_fma_f32 v{r}, v{r}, s{sB}, -v{vMX}")
    for r in vals: a(f"v_exp_f32 v{r}, v{r}")
    a(f"v_add_f32 v{T}, v{vals[0]}, v{vals[1]}\n v_add_f32 v{T+1}, v{vals[2]}, v{vals[3]}")
    for i in range(4, 20, 2): a(f"v_add_f32 v{T}, v{T}, v{vals[i]}\n v_add_f32 v{T+1}, v{T+1}, v{vals[i+1]}")
    a(f"v_add_f32 v{T}, v{T}, v{T+1}\n v_mov_b32 v{T+1}, v{T}\n s_nop 1\n v_permlane32_swap_b32 v{T}, v{T+1}\n v_add_f32 v{T}, v{T}, v{T+1}")
    a(f"v_rcp_f32 v{T}, v{T}\n s_nop 0\n v_mul_f32 v{T}, v{T}, v{vG}")
    for r in vals: a(f"v_mul_f32 v{r}, v{r}, v{T}")
    a(f"s_mul_i32 s{sA}, s{sSEG}, {PX_STEP}\n s_add_u32 s{sA}, s{sA}, {WS_PX}")
    for be in range(2):
        for q, o in enumerate((0, 4, 2, 6)): a(f"v_cvt_pk_bf16_f32 v{T+4+4*be+q}, v{SX+8*be+o}, v{SX+8*be+o+1}")
        a(f"buffer_store_dwordx4 {v(T+4+4*be,4)}, v{vPX}, {S_WS}, s{sA} offen offset:{512*be} sc1")
    for q in range(2):
        a(f"v_cvt_pk_bf16_f32 v{T+12+q}, v{SMM+2*q}, v{SMM+2*q+1}")
        a(f"buffer_store_dword v{T+12+q}, v{vPM}, {S_WS}, s{sA} offen offset:{256*q} sc1")
    a("s_waitcnt vmcnt(0)\n s_barrier")
    arrive(a, C_P, sSEG)
    a(f"""
    s_add_u32 s{sSEG}, s{sSEG}, {NS_O}
    s_cmp_lt_u32 s{sSEG}, 64
    s_cbranch_scc1 {P}_loop
    s_branch L_next
    """)

def o2(a):
    P = "O2"
    W = lambda t, ct: 256 + (t*4 + ct)*4
    ACC, HF, VO = 16, 48, 160
    PXR, PMR, UMR = HF, HF + 32, HF + 40
    vRW_, vRR, vOA = 8, 9, 10
    a(f"{P}_entry:")
    lane_setup(a)
    wait_team(a)
    srd(a, 8, 68, F_BYTES)
    a(f"""
    s_mul_i32 s{sSEG}, s{sROLE}, 9363
    s_lshr_b32 s{sSEG}, s{sSEG}, 16            ; role / 7
    s_mul_i32 s{sA}, s{sSEG}, 7
    s_sub_u32 s43, s{sROLE}, s{sA}
    s_mul_i32 s{sD}, s{sWAVE}, {448*896}
    s_lshl_b32 s{sA}, s43, 7
    s_add_u32 s{sD}, s{sD}, s{sA}
    v_lshrrev_b32 v5, 3, v0
    v_mul_u32_u24 v5, 896, v5
    v_and_b32 v6, 7, v0
    v_lshl_add_u32 v5, v6, 4, v5
    v_bfe_u32 v6, v0, 2, 2
    v_lshl_add_u32 v6, v4, 3, v6
    v_lshlrev_b32 v6, 7, v6
    v_and_b32 v7, 3, v0
    v_lshl_add_u32 v6, v7, 3, v6
    s_lshl_b32 s{sE}, s{sWAVE}, 14
    v_add_u32 v6, s{sE}, v6
    """)
    for rnd, nt in enumerate((4, 4, 4, 2)):
        for q in range(4*nt):
            a(f"s_add_u32 m0, s{sE}, {q*1024}\n s_nop 0")
            a(f"buffer_load_dwordx4 v5, {S_W}, s{sD} offen lds")
            a(f"s_add_u32 s{sD}, s{sD}, {8*896}")
        a("s_waitcnt vmcnt(0)")
        for tt in range(nt):
            for ct in range(4):
                for z in range(2):
                    a(f"ds_read_b64_tr_b16 {v(W(rnd*4+tt, ct) + 2*z, 2)}, v6 offset:{tt*4096 + z*512 + ct*32}")
        a("s_waitcnt lgkmcnt(0)")
    srd(a, 8, 70, X_BYTES)
    a(f"""
    s_barrier
    v_mul_u32_u24 v{vRW_}, 272, v3
    v_lshl_add_u32 v{vRW_}, v4, 4, v{vRW_}
    s_mul_i32 s{sA}, s{sWAVE}, 8704
    v_add_u32 v{vRW_}, s{sA}, v{vRW_}
    v_lshrrev_b32 v5, 3, v0
    s_lshl_b32 s{sA}, s{sWAVE}, 3
    v_add_u32 v5, s{sA}, v5
    v_and_b32 v6, 7, v0
    v_mul_u32_u24 v{vRR}, 272, v5
    v_lshl_add_u32 v{vRR}, v6, 5, v{vRR}
    v_mul_u32_u24 v{vOA}, 896, v5
    v_lshl_add_u32 v{vOA}, v6, 4, v{vOA}
    s_lshl_b32 s{sA}, s43, 7
    v_add_u32 v{vOA}, s{sA}, v{vOA}
    """)
    wait_done(a, 'S')
    a(f"{P}_loop:")
    wait_cnt(a, C_H, 7)
    a(f"""
    s_mul_i32 s{sA}, s{sSEG}, {H_STEP}
    s_mul_i32 s{sB}, s{sWAVE}, {14*2048}
    s_add_u32 s{sA}, s{sA}, s{sB}
    s_add_u32 s{sA}, s{sA}, {WS_H}
    """)
    for i in range(28):
        if i and i % 4 == 0: a(f"s_add_u32 s{sA}, s{sA}, 4096")
        a(f"buffer_load_dwordx4 {v(HF+4*i,4)}, v{vL16}, {S_WS}, s{sA} offen offset:{(i%4)*1024} sc1")
    acc = lambda ct, rt: v(ACC + (ct*2 + rt)*4, 4)
    for t in range(14):
        for rt in range(2):
            a(f"s_waitcnt vmcnt({27 - 2*t - rt})")
            for ct in range(4): a(f"{MF16} {acc(ct,rt)}, {v(W(t,ct),4)}, {v(HF+8*t+4*rt,4)}, {'0' if t == 0 else acc(ct,rt)}")
    wait_cnt(a, C_VO, 28)
    a(f"""
    s_mul_i32 s{sA}, s{sSEG}, {VO_STEP}
    s_lshl_b32 s{sB}, s43, 16
    s_add_u32 s{sA}, s{sA}, s{sB}
    s_lshl_b32 s{sB}, s{sWAVE}, 12
    s_add_u32 s{sA}, s{sA}, s{sB}
    s_add_u32 s{sA}, s{sA}, {WS_VO}
    """)
    for ct in range(4):
        if ct: a(f"s_add_u32 s{sA}, s{sA}, 16384")
        for hh in range(4): a(f"buffer_load_dwordx4 {v(VO+(hh*4+ct)*4,4)}, v{vL16}, {S_WS}, s{sA} offen offset:{hh*1024} sc1")
    wait_cnt(a, C_UM, 28)
    a(f"""
    s_mul_i32 s{sA}, s{sSEG}, {UM_STEP}
    s_lshl_b32 s{sB}, s43, 14
    s_add_u32 s{sA}, s{sA}, s{sB}
    s_lshl_b32 s{sB}, s{sWAVE}, 10
    s_add_u32 s{sA}, s{sA}, s{sB}
    s_add_u32 s{sA}, s{sA}, {WS_UM}
    """)
    for ct in range(4):
        if ct: a(f"s_add_u32 s{sA}, s{sA}, 4096")
        a(f"buffer_load_dwordx4 {v(UMR+4*ct,4)}, v{vL16}, {S_WS}, s{sA} offen sc1")
    wait_cnt(a, C_P, 4)
    a(f"""
    s_mul_i32 s{sA}, s{sSEG}, {PX_STEP}
    s_add_u32 s{sA}, s{sA}, {WS_PX}
    s_lshl_b32 s{sB}, s{sWAVE}, 13
    s_add_u32 s{sB}, s{sA}, s{sB}
    s_add_u32 s{sC}, s{sB}, 4096
    s_lshl_b32 s{sD}, s{sWAVE}, 11
    s_add_u32 s{sD}, s{sD}, s{sA}
    s_add_u32 s{sD}, s{sD}, 32768
    """)
    for i in range(8): a(f"buffer_load_dwordx4 {v(PXR+4*i,4)}, v{vL16}, {S_WS}, s{sB + i//4} offen offset:{(i%4)*1024} sc1")
    for i in range(2): a(f"buffer_load_dwordx4 {v(PMR+4*i,4)}, v{vL16}, {S_WS}, s{sD} offen offset:{i*1024} sc1")
    for hh in range(4):
        for rt in range(2):
            a(f"s_waitcnt vmcnt({9 - 2*hh - rt})")
            for ct in range(4): a(f"{MF16} {acc(ct,rt)}, {v(VO+(hh*4+ct)*4,4)}, {v(PXR+8*hh+4*rt,4)}, {acc(ct,rt)}")
    a("s_waitcnt vmcnt(0)")
    for ct in range(4):
        a("s_nop 0")
        for rt in range(2): a(f"{MF16} {acc(ct,rt)}, {v(UMR+4*ct,4)}, {v(PMR+4*rt,4)}, {acc(ct,rt)}")
    a("s_nop 1")
    for ct in range(4):
        for rt in range(2):
            if ct == 3 and rt == 0: a("s_nop 3")
            a(f"ds_write_b128 v{vRW_}, {acc(ct,rt)} offset:{rt*16*272 + ct*64}")
    a("s_waitcnt lgkmcnt(0)\n s_barrier")
    for w in range(4):
        for q in range(2): a(f"ds_read_b128 {v(VO+8*w+4*q,4)}, v{vRR} offset:{w*8704 + q*16}")
    a(f"s_mul_i32 s{sA}, s{sSEG}, {32*896}")
    for w in range(1, 4):
        a(f"s_waitcnt lgkmcnt({6-2*w})")
        for q in range(8): a(f"v_add_f32 v{VO+q}, v{VO+q}, v{VO+8*w+q}")
    for q in range(4): a(f"v_cvt_pk_bf16_f32 v{VO+32+q}, v{VO+2*q}, v{VO+2*q+1}")
    a(f"buffer_store_dwordx4 {v(VO+32,4)}, v{vOA}, {S_W}, s{sA} offen")
    a(f"""
    s_barrier
    s_add_u32 s{sSEG}, s{sSEG}, {NS_O}
    s_cmp_lt_u32 s{sSEG}, 64
    s_cbranch_scc1 {P}_loop
    s_branch L_next
    """)

def bc_atomic(a, L, off, val):
    a(f"""
    s_cmp_lg_u32 s{sWAVE}, 0
    s_cbranch_scc1 {L}_w
    v_mov_b32 v1, {val}
    v_mov_b32 v2, {off}
    v_mov_b32 v3, {L_BC}
    s_mov_b64 exec, 1
    buffer_atomic_add v1, v2, {S_DBG}, 0 offen sc0
    s_waitcnt vmcnt(0)
    ds_write_b32 v3, v1
    s_waitcnt lgkmcnt(0)
    s_mov_b64 exec, -1
    {L}_w:
    v_mov_b32 v3, {L_BC}
    s_barrier
    ds_read_b32 v1, v3
    s_waitcnt lgkmcnt(0)
    v_readfirstlane_b32 s{sROLE}, v1
    s_barrier
    """)

def k2(a, name, o=None):
    o = o or team.Opt(diag=False)
    GATE[0] = o.gate
    SLEEP[0] = f"s_sleep {o.sleep}" if o.sleep else ""
    kernel_head(a, name)
    a(f"""
    s_cmp_ge_u32 s2, 256
    s_cbranch_scc1 L_exit
    s_load_dwordx4 s[76:79], s[0:1], 0         ; x, mem0
    s_load_dwordx8 s[80:87], s[0:1], 16
    s_load_dwordx8 s[64:71], s[0:1], 56        ; B_x w1 w2 gate_w
    s_load_dwordx2 s[88:89], s[0:1], 88
    s_load_dwordx4 s[72:75], s[0:1], 96
    s_getreg_b32 s18, hwreg(HW_REG_XCC_ID)
    v_lshrrev_b32 v1, 6, v0
    s_and_b32 s18, s18, 15
    v_readfirstlane_b32 s{sWAVE}, v1
    s_mov_b32 s{sBUD}, {o.budget}
    s_waitcnt lgkmcnt(0)
    """)
    srd(a, 4, 74, WS_BYTES); srd(a, 12, 72, 256); srd(a, 60, 78, 7168)
    if DIAG['on']: a("s_mov_b32 s3, s2")
    tstamp(a, 0, sWAVE); dstamp(a, 1, sWAVE, inv=True, few=True)
    a(f"""
    s_getpc_b64 s[36:37]
    s_and_b32 s36, s36, 0xffffff00
    v_lshlrev_b32 v203, 7, v0
    global_load_dword v204, v203, s[36:37]
    v_add_u32 v203, 0x8000, v203
    v_min_u32 v203, L_code_end - L_code_ref, v203
    global_load_dword v204, v203, s[36:37]
    """.replace("s_getpc_b64 s[36:37]", "s_getpc_b64 s[36:37]\n L_code_ref:"))
    a(f"""
    s_cmp_lg_u32 s{sWAVE}, 1
    s_cbranch_scc1 L_p1
    v_mov_b32 v199, 1
    s_cmp_lg_u32 s2, 0
    s_cbranch_scc1 L_p0
    v_and_b32 v200, 31, v0
    v_lshlrev_b32 v200, 7, v200
    v_mov_b32 v201, 0
    s_mov_b32 s36, {WS_DONE}
    buffer_store_dword v201, v200, {S_WS}, s36 offen sc1
    v_mov_b32 v200, {D_RST}
    s_waitcnt vmcnt(0)
    s_mov_b64 exec, 1
    buffer_atomic_add v199, v200, {S_DBG}, 0 offen
    L_p0:
    s_cmp_eq_u32 s18, {o.team_xcc}
    s_cselect_b32 s36, {D_TEAM}, {D_TICK}
    v_mov_b32 v200, s36
    s_mov_b64 exec, 1
    v_mov_b32 v202, 1
    buffer_atomic_add v202, v200, {S_DBG}, 0 offen sc0
    s_mov_b64 exec, -1
    L_p1:
    """)
    k1.products(a, 76, 80, 70)
    a(f"""
    v_mbcnt_lo_u32_b32 v0, -1, 0
    v_mbcnt_hi_u32_b32 v0, -1, v0
    s_mov_b32 s70, s88
    s_mov_b32 s71, s89
    s_mov_b64 exec, 1
    """)
    team.dbg_wait(a, "L_rst", D_RST, 1, 2)
    a(f"""
    s_lshr_b32 s38, s{k1.sMAT}, 2
    s_and_b32 s39, s{k1.sMAT}, 1
    s_add_u32 s39, s39, 8
    s_cmp_ge_u32 s{k1.sBLK}, 14
    s_cselect_b32 s38, s39, s38
    s_lshl_b32 s38, s38, 7
    s_add_u32 s38, s38, {WS_DONE}
    v_mov_b32 v1, 1
    v_mov_b32 v2, 0
    s_cmp_eq_u32 s{k1.sDG}, 3
    s_cbranch_scc1 L_p2
    s_barrier
    v_mov_b32 v1, 2
    s_cmp_lg_u32 s{sWAVE}, 0
    s_cbranch_scc1 L_p3
    L_p2:
    buffer_atomic_add v1, v2, {S_WS}, s38 offen
    L_p3:
    v_mov_b32 v3, {L_BC}
    s_barrier
    s_cmp_lg_u32 s{sWAVE}, 1
    s_cbranch_scc1 L_p4
    ds_write_b32 v3, v202
    s_waitcnt lgkmcnt(0)
    L_p4:
    s_barrier
    ds_read_b32 v1, v3
    s_waitcnt lgkmcnt(0)
    v_readfirstlane_b32 s{sROLE}, v1
    s_mov_b64 exec, -1
    s_barrier
    """)
    tstamp(a, 3, sWAVE); dstamp(a, 4, sWAVE, few=True)
    a(f"""
    s_cmp_lg_u32 s18, {o.team_xcc}
    s_cbranch_scc1 L_have
    s_and_b32 s{sROLE}, s{sROLE}, 0xffff
    s_cmp_lt_u32 s{sROLE}, 32
    s_cbranch_scc1 L_team
    s_branch L_next
    L_next_free:
    """)
    bc_atomic(a, "L_t1", D_TEAM, 0)
    a(f"s_and_b32 s{sROLE}, s{sROLE}, 0xffff\n s_cmp_ge_u32 s{sROLE}, 32\n s_cbranch_scc1 L_next")
    bc_atomic(a, "L_t2", D_TEAM, 0x10001)
    a(f"""
    s_and_b32 s{sROLE}, s{sROLE}, 0xffff
    s_cmp_lt_u32 s{sROLE}, 32
    s_cbranch_scc1 L_team
    L_next:
    """)
    tstamp(a, 7, sWAVE); dstamp(a, 10, sWAVE)
    bc_atomic(a, "L_t3", D_TICK, 1)
    a("L_have:")
    if DIAG['on']: a(f"s_cmp_ge_u32 s{sROLE}, {T_END}\n s_cbranch_scc1 L_exit")
    tstamp(a, 5, sWAVE); tstamp(a, 8, sWAVE, extra=f"s{sROLE}")
    for lab, lo, hi in (("GB", T_TB, T_TA), ("GA", T_TA, T_TH), ("GH", T_TH, T_TU), ("TU", T_TU, T_O1), ("O1", T_O1, T_O2), ("O2", T_O2, T_END)):
        a(f"s_cmp_lt_u32 s{sROLE}, {hi - lo}\n s_cbranch_scc1 {lab}_entry\n s_sub_u32 s{sROLE}, s{sROLE}, {hi - lo}")
    a("L_exit:\n s_endpgm\n L_team_done:")
    dstamp(a, 9, sWAVE, tmp=(56, 57))
    if DIAG['on']:
        tstamp(a, 7, sWAVE, tmp=(56, 57))
        a(f"""
        s_cmp_lg_u32 s17, 3
        s_cbranch_scc1 L_exit
        s_lshl_b32 s36, s16, 14
        s_add_u32 s36, s36, {WS_DIAG + 65536 + 3*4096}
        v_lshrrev_b32 v28, 2, v0
        """)
        for i in range(10): a(f"buffer_store_dword v{160+i}, v28, s[4:7], s36 offen offset:{256*i}")
        a("v_mov_b32 v28, s56\n v_mov_b32 v29, s57\n v_mov_b32 v30, s58\n v_mov_b32 v31, 0")
        a("v_mov_b32 v32, 0\n buffer_store_dwordx4 v[28:31], v32, s[4:7], s36 offen offset:2560")
    a("s_endpgm")
    gw(a, 'B'); gw(a, 'A'); gw(a, 'H'); tu(a); o1(a); o2(a)
    a("L_team:")
    tstamp(a, 5, sWAVE); tstamp(a, 8, sWAVE, extra="1000")
    team.team_body(a, o)
    a("L_code_end:")
```

```python
from asmlib import *
from layout import *

L_M, L_Y, L_UM, L_MISC, L_S, L_B0, L_X, L_X2, L_B1 = 0, 8192, 12288, 16384, 16640, 18432, 0xc000, 0x10000, 0x13800
TEAM_LDS = L_B1 + 30720
SM = "v_smfmac_f32_16x16x64_bf16"
S_WS, S_X, S_DBG = "s[4:7]", "s[8:11]", "s[12:15]"
sRANK, sWAVE, sH, sJ, sSTEP, sCT = 16, 17, 18, 19, 20, 21
sFL, sMODE = 22, 23
sCUR, sNXT, sPRV = 24, 25, 26
sVO, sXO, sCN, sMO, sBUD = 30, 31, 32, 33, 35
sT0, sT1, sT2, sT3 = 36, 37, 38, 39
sM1, sXT, sXL = 45, 47, 46
OOB = 0x7ff00000
SCALE = 0x3db8aa3b
sSC = 44
XSTEP = 32*896

class Opt:
    def __init__(self, **kw):
        self.trace = None; self.diag = True
        self.nsteps = 63
        self.kf = 3; self.nf1 = 6; self.nf = 6; self.ns = 5; self.f2pos = 0; self.kgo = 3; self.nx1 = 0; self.kfirst = 0; self.xb = 0; self.funr = 2; self.nv0 = 10; self.b0p = 2
        self.sleep = 4; self.gate = False; self.budget = 2000000; self.team_xcc = 0
        self.__dict__.update(kw)

def nops(a, n):
    while n > 0:
        k = min(n, 16); a(f"s_nop {k-1}"); n -= k

def load_regs(a, regs, soff, vaddr="v0", fl=" sc1"):
    for i, r in enumerate(regs):
        if i and i % 4 == 0: a(f"s_add_u32 s{soff}, s{soff}, 4096")
        a(f"buffer_load_dwordx4 {v(r,4)}, {vaddr}, {S_WS}, s{soff} offen offset:{(i%4)*1024}{fl}")

TR_S, TR_V3 = 84, 160
def stamp(a, o, kind, pt):
    if o.trace and pt in o.trace.get(kind, []):
        i = o.trace[kind].index(pt)
        a(f"s_memtime s[{TR_S+2*i}:{TR_S+2*i+1}]")
def stamp_flush(a, o, kind, w=None):
    if not o.trace or kind not in o.trace: return
    n = len(o.trace[kind])
    a(f"s_memtime s[52:53]\n s_memrealtime s[50:51]\n s_mov_b32 m0, s{sSTEP}\n s_waitcnt lgkmcnt(0)")
    if kind == 'y':
        a(f"s_lshl_b32 s50, s{sRANK}, 2\n s_add_u32 s50, s50, {w}\n s_lshl_b32 s50, s50, 12\n s_lshl_b32 s51, s{sSTEP}, 2\n s_add_u32 s50, s50, s51\n s_add_u32 s50, s50, {WS_DIAG + 65536}\n v_mov_b32 v62, 0")
        for i in range(n): a(f"v_mov_b32 v63, s{TR_S+2*i}\n buffer_store_dword v63, v62, {S_WS}, s50 offen offset:{256*i}")
        return
    for i in range(n): a(f"v_writelane_b32 v{TR_V3+i}, s{TR_S+2*i}, m0")
    a(f"v_writelane_b32 v{TR_V3+8}, s52, m0\n v_writelane_b32 v{TR_V3+9}, s50, m0")
def count(a, o, r):
    if o.diag: a(f"s_add_u32 s{r}, s{r}, 1")

def ring_advance(a):
    a(f"""
    s_mov_b32 s{sPRV}, s{sCUR}
    s_mov_b32 s{sCUR}, s{sNXT}
    s_add_u32 s{sNXT}, s{sNXT}, 0x10000
    s_and_b32 s{sNXT}, s{sNXT}, {WS_RING | 0x30000}
    """)

def x_dma(a, lo=0, hi=14):
    for q in range(lo, hi):
        if (q - lo) % 4 == 0: a(f"s_add_u32 m0, s{sXL}, {q*1024}\n s_add_u32 s{sT2}, s{sXO}, {q*1024}")
        a(f"buffer_load_dwordx4 v0, {S_WS}, s{sT2} offen offset:{((q-lo)%4)*1024} sc1 lds")
    a(f"s_add_u32 s{sXO}, s{sXO}, {XSTEP}\n s_xor_b32 s{sXL}, s{sXL}, 0x1c000")

def budget_check(a):
    a(f"s_sub_u32 s{sBUD}, s{sBUD}, 1\n s_cmp_eq_u32 s{sBUD}, 0\n s_cbranch_scc1 L_team_done")

def flag_poll(a, o, P, regs, vaddr, off, s_want):
    n = len(regs)
    a("s_mov_b64 exec, 0xff")
    def body(i, wait=True):
        a(f"buffer_load_dword v{regs[i]}, {vaddr}, {S_WS}, s{sFL} offen offset:{off} sc1")
        if wait: a(f"s_waitcnt vmcnt({n-1})")
        a(f"v_cmp_ne_u32 vcc, s{s_want}, v{regs[(i+1)%n]}")
        a(f"s_cbranch_vccz {P}_fok")
    for i in range(n-1): body(i, False)
    body(n-1)
    a(f"{P}_fpoll:")
    for _ in range(o.funr):
        for i in range(n): body(i)
    a(f"s_sub_u32 s{sBUD}, s{sBUD}, 1\n s_cmp_lg_u32 s{sBUD}, 0\n s_cbranch_scc1 {P}_fpoll\n s_branch L_team_done")
    a(f"{P}_fok:")
    a("s_mov_b64 exec, -1")

KORD = (0, 1, 2, 6, 3, 4, 5)

def ywave(a, o, w):
    P = f"Y{w}"
    D, M, T = 12, 28, 8
    Aop = lambda t, k: 256 + (t*7 + k)*8
    def Bop(hh, k):
        i = hh*7 + k
        return 256 + 224 + i*8 if i < 4 else 64 + (i-4)*8
    def lds_wait(L, level):
        a(f"""
        v_mov_b32 v57, {L_MISC + 128}
        {L}:
        ds_read_b32 v56, v57
        s_waitcnt lgkmcnt(0)
        v_cmp_gt_u32 vcc, {level}, v56
        s_cbranch_vccz {L}_ok
        s_sleep 1
        s_sub_u32 s{sBUD}, s{sBUD}, 1
        s_cmp_lg_u32 s{sBUD}, 0
        s_cbranch_scc1 {L}
        s_branch L_team_done
        {L}_ok:
        """)
    lds_wait(f"{P}_wa", 1)
    if w == 0: tstamp(a, 4, sWAVE, tmp=(56, 57)); dstamp(a, 5, sWAVE, tmp=(56, 57))
    a(f"s_mul_i32 s{sT0}, s{sRANK}, {A_RANK}\n s_add_u32 s{sT0}, s{sT0}, {WS_A + w*4*7*2048}")
    load_regs(a, [Aop(t,k)+4*hf for t in range(4) for k in range(7) for hf in range(2)], sT0)
    lds_wait(f"{P}_wb", 2)
    if w == 0: dstamp(a, 11, sWAVE, tmp=(56, 57))
    a(f"s_mul_i32 s{sT0}, s{sCT}, {B_CT}\n s_add_u32 s{sT0}, s{sT0}, {WS_B + w*4*7*2048}")
    load_regs(a, [Bop(h,k)+4*hf for h in range(4) for k in range(7) for hf in range(2)][:54 if w < 2 else 56], sT0)
    if w < 2:
        for q in range(30):
            if q % 4 == 0:
                a(f"s_mul_i32 s{sT0}, s{sCT}, {B_CT}\n s_add_u32 s{sT0}, s{sT0}, {WS_B + ((12+2*w)*14 + q if q < 28 else (4*w+3)*14 + 12)*1024}\n s_mov_b32 m0, {(L_B0, L_B1)[w] + q*1024}\n s_nop 0")
            a(f"buffer_load_dwordx4 v0, {S_WS}, s{sT0} offen offset:{(q%4)*1024} sc1 lds")
    y_addr(a, w)
    a(f"""
    v_lshrrev_b32 v63, 1, v62
    v_lshlrev_b32 v6, 8, v63
    v_lshl_add_u32 v6, v61, 4, v6
    v_and_b32 v63, 1, v62
    v_lshl_add_u32 v6, v63, 3, v6
    v_add_u32 v6, {L_UM + w*1024}, v6
    v_add_u32 v7, {(L_B0, L_B1, 0)[w]}, v0
    v_mov_b32 v4, {L_MISC + 64}
    v_and_b32 v2, 31, v60
    v_lshlrev_b32 v2, 2, v2
    """)
    a(f"s_mul_i32 s{sXO}, s{sJ}, 14336\n s_add_u32 s{sXO}, s{sXO}, {WS_XP + (0 if w == 2 else XSTEP)}\n s_mov_b32 s{sXL}, {L_X if w == 2 else L_X2}")
    if w == 2:
        lds_wait(f"{P}_ws", 3)
        x_dma(a)
        a(f"v_lshlrev_b32 v56, 16, v62\n v_lshl_add_u32 v56, v61, 4, v56\n s_mul_i32 s{sT0}, s{sRANK}, 1280\n s_add_u32 s{sT0}, s{sT0}, {WS_RING}")
        for k in range(5): a(f"buffer_load_dwordx4 v[12:15], v56, {S_WS}, s{sT0} offen offset:{256*k} sc1")
    team_sync(a, o, P, w)
    FRG = [56, 57, 58, 59, 60, 61, 62, 63, 8, 9, 10, 11][:o.nf1]
    def steps(P, ST):
        a(f"{P}_loop:")
        a(f"s_add_u32 s{sM1}, s{sCUR}, {w*1024}")
        for r in range(16): a(f"v_mov_b32 v{D+r}, 0")
        if w == 0:
            a(f"s_mul_i32 s{sT3}, s{sSTEP}, 0x01010101")
            for r in FRG[1:]: a(f"v_mov_b32 v{r}, -1")
        if w == 1 and DBGT['on']:
            for st, word in ((4, 7), (32, 8)):
                L = a.uid("DT"); a(f"s_cmp_lg_u32 s{sSTEP}, {st}\n s_cbranch_scc1 {L}"); dstamp(a, word, sWAVE, tmp=(56, 57), wave=1); a(f"{L}:")
        a("s_waitcnt vmcnt(0)")
        if w == 0:
            a(f"""
            {P}_go:
            ds_read_b32 v56, v4
            s_waitcnt lgkmcnt(0)
            v_cmp_gt_u32 vcc, s{sSTEP}, v56
            s_cbranch_vccz {P}_go_ok
            s_sub_u32 s{sBUD}, s{sBUD}, 1
            s_cmp_lg_u32 s{sBUD}, 0
            s_cbranch_scc1 {P}_go
            s_branch L_team_done
            {P}_go_ok:
            """)
            flag_poll(a, o, P, FRG, "v2", 0, sT3)
        a(f"s_mov_b32 m0, {L_M + w*1024}")
        a("s_barrier   ; B0")
        stamp(a, o, 'y', 0)
        a(f"buffer_load_dwordx4 v0, {S_WS}, s{sM1} offen sc1 lds")
        a("s_barrier   ; B0'")
        a(f"buffer_load_dwordx4 v0, {S_WS}, s{sM1} offen offset:3072 sc1 lds")
        n1 = o.nx1; lo = (0, (n1+2)//3, (n1+2)//3 + (n1+1)//3, n1); nx = lo[w+1] - lo[w]
        if o.xb: a("s_barrier   ; B0''")
        if w < 2 or n1 == 14: x_dma(a, lo[w], lo[w+1])
        elif nx:
            t = Asm(); x_dma(t, lo[w], lo[w+1])
            for l in t.lines[:-2]: a(l)
        sm = lambda t, k: a(f"{SM} {v(D+4*t,4)}, {v(M+4*k,4)}, {v(Aop(t,k),8)}, v1")
        mread = lambda k: a(f"ds_read_b128 {v(M+4*k,4)}, v0 offset:{L_M + 1024*k}")
        a(f"s_waitcnt vmcnt({1+nx})")
        stamp(a, o, 'y', 11)
        a("s_barrier   ; B1")
        for k in KORD[:4]: mread(k)
        a("s_waitcnt lgkmcnt(3)")
        stamp(a, o, 'y', 12)
        sm(0,0); sm(1,0); sm(2,0)
        a(f"s_waitcnt vmcnt({nx})\n s_barrier   ; B1'")
        sm(3,0)
        for k in KORD[4:]: mread(k)
        a(f"{P}_y:")
        a("s_waitcnt lgkmcnt(5)")
        sm(0,1); sm(1,1); sm(2,1); sm(3,1)
        for n, k in enumerate(KORD[2:]):
            a(f"s_waitcnt lgkmcnt({4-n})"); sm(0,k); sm(1,k)
        sm(2,2); a("s_nop 1"); sm(3,2); a("s_nop 1"); sm(2,6)
        a(f"v_add_f32 v{D}, v{D}, v{D+1}\n v_add_f32 v{D+2}, v{D+2}, v{D+3}")
        sm(3,6)
        a(f"v_add_f32 v{D+4}, v{D+4}, v{D+5}\n v_add_f32 v{D+6}, v{D+6}, v{D+7}")
        sm(2,3)
        a(f"v_cmp_u_f32 vcc, v{D}, v{D+2}")
        a(f"v_cvt_pk_bf16_f32 v{T}, v{D}, v{D+4}")
        sm(3,3)
        a(f"v_cvt_pk_bf16_f32 v{T+1}, v{D+2}, v{D+6}")
        a(f"ds_write2_b32 v3, v{T}, v{T+1} offset0:0 offset1:8")
        z = [f"v_mov_b32 v{D+r}, 0" for r in range(8)]
        sm(2,4); a(z[0]); a(z[1]); sm(3,4); a(z[2]); a(z[3]); sm(2,5); a(z[4]); a(z[5]); sm(3,5)
        stamp(a, o, 'y', 15)
        a(z[6]); a("s_waitcnt lgkmcnt(0)\n s_barrier   ; B1y"); a(z[7])
        a("s_nop 1")
        a(f"v_add_f32 v{D+8}, v{D+8}, v{D+9}\n v_add_f32 v{D+10}, v{D+10}, v{D+11}")
        a(f"v_add_f32 v{D+12}, v{D+12}, v{D+13}\n v_add_f32 v{D+14}, v{D+14}, v{D+15}")
        a(f"v_cvt_pk_bf16_f32 v{T+2}, v{D+8}, v{D+12}")
        a(f"v_cvt_pk_bf16_f32 v{T+3}, v{D+10}, v{D+14}")
        a(f"ds_write2_b32 v5, v{T+2}, v{T+3} offset0:0 offset1:8")
        a(f"s_cbranch_vccnz {P}_fail")
        a(f"{P}_yok:")
        for r in range(8, 16): a(f"v_mov_b32 v{D+r}, 0")
        a("s_waitcnt lgkmcnt(0)")
        stamp(a, o, 'y', 16)
        a("s_barrier   ; B2")
        if w < 2: mb_six(a, D, M, T, Bop, w)
        else: mb_four(a, D, M, T, Bop)
        a("s_waitcnt lgkmcnt(0)")
        stamp(a, o, 'y', 4)
        a("s_barrier   ; B3")
        if w == 2 and o.nx1 < 14: x_dma(a, o.nx1, 14)
        stamp_flush(a, o, 'y', w)
        ring_advance(a)
        a(f"s_add_u32 s{sSTEP}, s{sSTEP}, 1\n s_cmp_lt_u32 s{sSTEP}, {o.nsteps}\n s_cbranch_scc1 {P}_loop")
        a(f"s_branch L_team_done")
        a(f"{P}_fail:")
        m_exact(a, P, M)
        a("s_waitcnt vmcnt(0) lgkmcnt(0)")
        budget_check(a)
        for r in range(16): a(f"v_mov_b32 v{D+r}, 0")
        count(a, o, 56)
        a(f"s_mov_b32 m0, {L_M + w*1024}\n s_barrier")
        a(f"buffer_load_dwordx4 v0, {S_WS}, s{sM1} offen sc1 lds")
        a(f"buffer_load_dwordx4 v0, {S_WS}, s{sM1} offen offset:3072 sc1 lds")
        a("s_waitcnt vmcnt(0)\n s_barrier")
        for k in KORD: mread(k)
        a("s_waitcnt lgkmcnt(6)")
        sm(0,0); sm(1,0); sm(2,0); sm(3,0)
        a(f"s_branch {P}_y")
    both_modes(a, P, steps)

def m_exact(a, P, M):
    a("s_mov_b64 s[40:41], 0")
    for r in range(M, M+28): a(f"v_cmp_eq_u32 vcc, -1, v{r}\n s_or_b64 s[40:41], s[40:41], vcc")
    a(f"s_cmp_eq_u64 s[40:41], 0\n s_cbranch_scc1 {P}_yok")

epi = lambda d, t: [f"v_add_f32 v{d}, v{d}, v{d+1}", f"v_add_f32 v{d+2}, v{d+2}, v{d+3}", f"v_cvt_pk_bf16_f32 v{t}, v{d}, v{d+2}"]

def mb_four(a, D, M, T, Bop):
    pend = []
    for hh in range(4):
        for k in range(7):
            a(f"{SM} {v(D+4*hh,4)}, {v(M+4*k,4)}, {v(Bop(hh,k),8)}, v1")
            if pend and k >= 4:
                if k == 4: a("s_nop 2")
                a(pend.pop(0))
        pend = epi(D + 4*hh, T + hh)
    a("s_nop 7")
    for l in pend: a(l)
    a(f"ds_write_b64 v6, {v(T,2)}")
    a(f"ds_write_b64 v6, {v(T+2,2)} offset:512")

def mb_six(a, D, M, T, Bop, w):
    SB = [56, Bop(3,6)]
    nxt = [0]; q = []
    def fetch():
        i = nxt[0]
        if i >= 15: return
        nxt[0] += 1
        a(f"ds_read_b128 {v(SB[i%2],4)}, v7 offset:{i*2048}")
        a(f"ds_read_b128 {v(SB[i%2]+4,4)}, v7 offset:{i*2048 + 1024}")
        q.extend([("f", i)]*2)
    def need(tag):
        if tag in q:
            last = len(q) - 1 - q[::-1].index(tag)
            a(f"s_waitcnt lgkmcnt({len(q)-1-last})"); del q[:last+1]
    sm = lambda d, k, b: a(f"{SM} {v(d,4)}, {v(M+4*k,4)}, {v(b,8)}, v1")
    for k in range(7):
        sm(D+12, k, Bop(2,k))
        if k in (4, 5): fetch()
    for k in range(7):
        sm(D, k, Bop(0,k)); sm(D+4, k, Bop(1,k))
        need(("f", k)); sm(D+8, k, SB[k%2]); fetch()
        if k == 2:
            for l in epi(D+12, T+2): a(l)
            for r in range(4): a(f"v_mov_b32 v{D+12+r}, 0")
    fill = ["s_nop 3"] + epi(D, T) + epi(D+4, T+1) + [f"v_mov_b32 v{D+r}, 0" for r in range(4)] + [f"ds_write_b64 v6, {v(T,2)}"] + epi(D+8, T)
    for k in range(6):
        sm(D+12, k, Bop(3,k))
        for _ in range(3):
            if fill:
                l = fill.pop(0); a(l)
                if l.startswith("ds_"): q.append("w")
    assert not fill
    for k in range(7):
        need(("f", 7+k)); sm(D, k, SB[(7+k)%2]); fetch()
    need(("f", 14)); sm(D+12, 6, SB[0])
    a("s_nop 6")
    for l in epi(D, T+1) + epi(D+12, T+3): a(l)
    a(f"ds_write_b64 v6, {v(T,2)} offset:{3072 - 512*w}")
    a(f"ds_write_b64 v6, {v(T+2,2)} offset:512")

def y_addr(a, w):
    a(f"""
    v_lshrrev_b32 v63, 3, v61
    v_lshlrev_b32 v3, 8, v63
    v_lshl_add_u32 v3, v62, 6, v3
    v_bfe_u32 v63, v61, 1, 1
    v_lshl_add_u32 v3, v63, 4, v3
    v_bfe_u32 v63, v61, 2, 1
    v_lshl_add_u32 v3, v63, 3, v3
    v_and_b32 v63, 1, v61
    v_lshl_add_u32 v3, v63, 2, v3
    v_add_u32 v3, {L_Y + (w*512 if w < 3 else 3584)}, v3
    """)
    if w < 3: a("v_add_u32 v5, 2048, v3")

def dbg_wait(a, L, off, need, t):
    a(f"""
    v_mov_b32 v{t+1}, {off}
    {L}:
    buffer_load_dword v{t}, v{t+1}, {S_DBG}, 0 offen sc0 sc1
    s_waitcnt vmcnt(0)
    v_readfirstlane_b32 s{sT0}, v{t}
    s_and_b32 s{sT1}, s{sT0}, 0xffff
    s_cmp_ge_u32 s{sT1}, {need}
    s_cbranch_scc1 {L}_ok
    s_sub_u32 s{sBUD}, s{sBUD}, 1
    s_cmp_lg_u32 s{sBUD}, 0
    s_cbranch_scc1 {L}
    s_branch L_team_done
    {L}_ok:
    """)

def wait_done(a, what, t0, t1, dead, sleep=""):
    L = a.uid("WD"); first, n = {'A': (0, 4), 'B': (4, 4), 'S': (8, 2), 'a': (0, 1)}[what]
    a(f"""
    v_mbcnt_lo_u32_b32 v{t1}, -1, 0
    v_and_b32 v{t1}, {n-1}, v{t1}
    v_lshlrev_b32 v{t1}, 7, v{t1}
    s_mov_b32 s41, {WS_DONE + first*128}
    {f's_lshr_b32 s40, s{sH}, 2' if what == 'a' else ''}
    {f's_lshl_b32 s40, s40, 7' if what == 'a' else ''}
    {f's_add_u32 s41, s41, s40' if what == 'a' else ''}
    s_mov_b64 exec, {(1 << n) - 1}
    {L}:
    buffer_load_dword v{t0}, v{t1}, {S_WS}, s41 offen sc1
    s_waitcnt vmcnt(0)
    v_cmp_gt_u32 vcc, 64, v{t0}
    s_cbranch_vccz {L}_ok
    {sleep}
    s_sub_u32 s{sBUD}, s{sBUD}, 1
    s_cmp_lg_u32 s{sBUD}, 0
    s_cbranch_scc1 {L}
    s_branch {dead}
    {L}_ok:
    s_mov_b64 exec, -1
    """)

def team_sync(a, o, P, w):
    a("s_waitcnt vmcnt(0) lgkmcnt(0)")
    if w == 0: tstamp(a, 9, sWAVE, tmp=(56, 57))
    a("s_barrier")
    if w < 3: a(f"v_mov_b32 v58, {L_MISC}\n ds_read_b32 v58, v58\n s_waitcnt lgkmcnt(0)\n v_readfirstlane_b32 s{sMODE}, v58")
    if w == 0: tstamp(a, 6, sWAVE, tmp=(56, 57)); dstamp(a, 6, sWAVE, tmp=(56, 57))

def both_modes(a, P, steps):
    a(f"s_cmp_lg_u32 s{sMODE}, 0\n s_cbranch_scc1 {P}_far")
    steps(P, "")
    a(f"{P}_far:")
    steps(P + "f", " sc1")

def wave3(a, o):
    P = "W3"
    DY, DS, M, NEG = 12, 20, 32, 60
    EX, SC, OWN, PR, FR = 64, 68, 76, 96, 136
    vFA, vFS, vST, vXT, vXD, vSG, vPA, vMO, vMA, vCN = 142, 143, 144, 145, 146, 147, 148, 157, 158, 159
    vSX, vS0, vL0, vK0, vK1, vVA, vZ, DP, YO, KM, SET = 170, 171, 172, 173, 174, 176, 184, 188, 192, 208, 236
    vGO, vKX = 185, 186
    U, KX = 256 + 112, 256 + 192
    Aop = lambda t, k: 256 + (t*7 + k)*8
    a("s_mov_b64 exec, 1")
    dbg_wait(a, "W3_seats", 0, 32, 56)
    a(f"s_mov_b64 exec, -1\n s_lshr_b32 s{sMODE}, s{sT0}, 16\n v_mov_b32 v56, s{sMODE}\n v_mov_b32 v57, {L_MISC}\n ds_write_b32 v57, v56")
    y_addr(a, 3)
    for k in range(8):
        a(f"s_add_u32 s{sT0}, s{sRANK}, {k}\n s_and_b32 s{sT0}, s{sT0}, 7")
        a(f"s_lshl_b32 s{sT1}, s{sT0}, 11\n v_add_u32 v{vVA+k}, s{sT1}, v0")
        a(f"s_lshl_b32 s{sT1}, s{sT0}, 10\n s_add_u32 s{sT1}, s{sT1}, {R_P + 2048}\n v_add_u32 v{vPA+k}, s{sT1}, v0")
    a(f"""
    v_add_u32 v{vPA+8}, {R_P}, v0
    v_add_u32 v{vKX}, {L_X}, v0
    v_and_b32 v{vK0}, 7, v61
    v_lshlrev_b32 v{vK0}, 5, v{vK0}
    v_lshrrev_b32 v63, 1, v62
    v_lshl_add_u32 v{vK0}, v63, 8, v{vK0}
    v_and_b32 v63, 1, v62
    v_lshl_add_u32 v{vK0}, v63, 3, v{vK0}
    s_mul_i32 s{sT0}, s{sJ}, {14*256}
    v_add_u32 v{vK0}, s{sT0}, v{vK0}
    v_add_u32 v{vK1}, 2048, v{vK0}
    v_mul_u32_u24 v6, 320, v63
    v_lshl_add_u32 v6, v61, 2, v6
    v_lshrrev_b32 v63, 1, v62
    v_cmp_eq_u32 vcc, s{sJ}, v63
    v_cmp_gt_u32 s[40:41], 8, v61
    s_xor_b32 s{sT0}, s{sRANK}, 1
    s_mul_i32 s{sT0}, s{sT0}, 640
    s_add_u32 s{sT0}, s{sT0}, {R_S}
    v_add_u32 v59, s{sT0}, v6
    v_add_u32 v6, {L_S}, v6
    v_mov_b32 v58, {OOB}
    v_mov_b32 v57, {L_S + 1024}
    v_cndmask_b32 v{vSX}, v59, v58, vcc
    v_cndmask_b32 v6, v57, v6, vcc
    v_cndmask_b32 v{vS0}, v58, v{vSX}, s[40:41]
    v_cndmask_b32 v{vL0}, v57, v6, s[40:41]
    v_cmp_gt_u32 vcc, 10, v61
    v_mov_b32 v63, 0x7f800000
    v_mov_b32 v9, 0x42800000
    v_mul_u32_u24 v2, 160, v62
    v_cndmask_b32 v9, v63, v9, vcc
    v_cndmask_b32 v63, 0, v61, vcc
    v_lshl_add_u32 v2, v63, 4, v2
    s_mul_i32 s{sT0}, s{sRANK}, 640
    s_add_u32 s{sT0}, s{sT0}, {R_S}
    v_add_u32 v{vSG}, s{sT0}, v2
    v_add_u32 v2, {L_S}, v2
    v_mov_b32 v63, {L_S + 1536}
    v_cndmask_b32 v2, v63, v2, vcc
    v_mov_b32 v{SC}, 0xf149f2ca
    v_mov_b32 v{SC+1}, 0xf149f2ca
    v_mov_b32 v{SC+2}, 0xf149f2ca
    v_mov_b32 v{SC+3}, 0xf149f2ca
    ds_write_b128 v63, {v(SC,4)}
    v_cndmask_b32 v10, v58, v{vSG}, vcc
    v_lshrrev_b32 v59, 1, v61
    s_lshl_b32 s{sT0}, s{sH}, 2
    s_add_u32 s{sT0}, s{sT0}, 15
    v_add_u32 v59, s{sT0}, v59
    v_mov_b32 v57, s{sH}
    v_cmp_gt_u32 s[40:41], 2, v61
    s_nop 1
    v_cndmask_b32 v59, v59, v57, s[40:41]    ; u
    v_lshrrev_b32 v57, 1, v59
    v_lshlrev_b32 v4, 8, v57
    v_and_b32 v57, 1, v59
    v_lshl_add_u32 v4, v57, 4, v4
    v_and_b32 v57, 1, v61
    v_lshl_add_u32 v4, v57, 3, v4
    v_lshl_add_u32 v4, v62, 5, v4
    s_lshl_b32 s{sT0}, s{sJ}, 7
    s_add_u32 s{sT0}, s{sT0}, {R_P}
    v_add_u32 v4, s{sT0}, v4
    v_cndmask_b32 v4, v58, v4, vcc
    v_cmp_eq_u32 vcc, 0, v60
    s_nop 0
    v_mov_b32 v57, s{sRANK}
    v_cndmask_b32 v{vFS}, v58, v57, vcc
    v_and_b32 v57, 31, v60
    v_lshlrev_b32 v{vFA}, 2, v57
    v_mov_b32 v{vST}, 0
    v_mov_b32 v{vGO}, {L_MISC + 64}
    ds_write_b32 v{vGO}, v{vST}
    v_and_b32 v58, 1, v61
    v_lshl_add_u32 v59, v62, 1, v58
    v_lshlrev_b32 v5, 5, v59
    v_bfe_u32 v57, v61, 1, 1
    v_lshl_add_u32 v5, v57, 4, v5
    v_lshrrev_b32 v57, 2, v61
    v_lshl_add_u32 v5, v57, 2, v5
    s_lshl_b32 s{sT0}, s{sRANK}, 8
    v_add_u32 v5, s{sT0}, v5
    v_lshlrev_b32 v{vMA}, 4, v59
    v_bfe_u32 v57, v61, 3, 1
    v_lshl_add_u32 v{vMA}, v57, 7, v{vMA}
    v_bfe_u32 v57, v61, 1, 2
    v_lshl_add_u32 v{vMA}, v57, 2, v{vMA}
    v_add_u32 v{vMA}, s{sT0}, v{vMA}
    v_mov_b32 v{vZ}, 0
    v_cmp_eq_u32 vcc, 1, v58
    v_mov_b32 v8, 0x01000504
    v_mov_b32 v57, 0x07060302
    v_cndmask_b32 v8, v8, v57, vcc
    v_mul_u32_u24 v59, 896, v59
    v_lshrrev_b32 v57, 1, v61
    v_lshl_add_u32 v59, v57, 2, v59
    s_lshl_b32 s{sT0}, s{sCT}, 5
    v_add_u32 v59, s{sT0}, v59
    buffer_load_dword v{vMO}, v59, s[60:63], 0 offen
    v_min_u32 v{vXT}, 13, v60
    v_lshlrev_b32 v{vXT}, 6, v{vXT}
    s_lshl_b32 s{sT1}, s{sCT}, 14
    s_add_u32 s{sVO}, s{sT1}, {WS_VO}
    s_mul_i32 s{sXT}, s{sRANK}, 896
    s_add_u32 s{sXT}, s{sXT}, {WS_XP + XSTEP}
    s_mov_b32 s{sMO}, {WS_MO}
    s_mov_b32 s{sSC}, {SCALE}
    s_mov_b32 s{sCN}, {WS_CNT + C_VO}
    """)
    for r in range(20): a(f"v_mov_b32 v{DY+r}, 0")
    for r in range(4): a(f"v_mov_b32 v{NEG+r}, -1\n v_mov_b32 v{DP+r}, 0")
    for r in range(6): a(f"v_mov_b32 v{FR+r}, 0")
    a(f"ds_write_b128 v0, {v(DY,4)} offset:{L_Y + 1024}")
    a("s_waitcnt vmcnt(0)")
    def init(P, ST):
        a(f"buffer_store_byte v{vST}, v{vFS}, {S_WS}, s{sFL} offen{ST}")
        a(f"buffer_store_byte v{vST}, v{vFS}, {S_WS}, s{sFL} offen offset:2048{ST}")
        for sl in range(4):
            a(f"s_mov_b32 s{sT0}, {WS_RING + sl*0x10000}")
            a(f"buffer_store_dwordx4 {v(NEG,4)}, v10, {S_WS}, s{sT0} offen{ST}")
            a(f"buffer_store_dwordx2 {v(NEG,2)}, v4, {S_WS}, s{sT0} offen{ST}")
            a(f"buffer_store_dword v{NEG if sl else vMO}, v5, {S_WS}, s{sT0} offen{ST}")
        if not ST: a("s_branch W3_inited")
    both_modes(a, "W3i", init)
    a("W3_inited:")
    a(f"s_waitcnt vmcnt(0)\n s_mov_b64 exec, 1\n v_mov_b32 v56, 1\n v_mov_b32 v57, 64\n buffer_atomic_add v56, v57, {S_DBG}, 0 offen")
    a("s_mov_b64 exec, -1")
    for level, what in enumerate("aBS"):
        wait_done(a, what, 56, 57, "L_team_done")
        a(f"v_mov_b32 v56, {level+1}\n v_mov_b32 v57, {L_MISC + 128}\n ds_write_b32 v57, v56")
    a(f"s_mul_i32 s{sT0}, s{sRANK}, {A_RANK}\n s_add_u32 s{sT0}, s{sT0}, {WS_A + 12*7*2048}")
    load_regs(a, [Aop(t,k)+4*hf for t in range(2) for k in range(7) for hf in range(2)], sT0)
    def vo_wait(L):
        a(f"""
        {L}:
        buffer_load_dword v{vCN}, v{vZ}, {S_WS}, s{sCN} offen sc1
        s_waitcnt vmcnt(0)
        v_cmp_gt_u32 vcc, 28, v{vCN}
        s_cbranch_vccz {L}_ok
        s_sub_u32 s{sBUD}, s{sBUD}, 1
        s_cmp_lg_u32 s{sBUD}, 0
        s_cbranch_scc1 {L}
        s_branch L_team_done
        """)
    a("s_mov_b64 exec, 1")
    dbg_wait(a, "W3_tsync", 64, 32, 56)
    a("s_mov_b64 exec, -1")
    vo_wait("W3_vo0"); a("W3_vo0_ok:")
    a(f"s_add_u32 s{sCN}, s{sCN}, 1024")
    team_sync(a, o, P, 3)
    HORD = (0, 2, 4, 1, 3, 5, 6)
    KT = (KM, KX, KX + 28); KOF = (0, 8, 12, 20)
    def steps(P, ST):
        a(f"s_add_u32 s{sM1}, s{sCUR}, 6144\n s_mov_b32 s{sT3}, 0")
        a(f"{P}_loop:")
        a(f"s_mov_b32 m0, {L_M + 6144}")
        a("s_barrier   ; B0")
        stamp(a, o, 'w3', 0)
        a(f"buffer_load_dwordx4 v0, {S_WS}, s{sM1} offen sc1 lds")
        vq = [f"buffer_store_dword v{vMO}, v{vMA}, {S_WS}, s{sMO} offen sc1",
              f"buffer_load_dword v{vCN}, v{vZ}, {S_WS}, s{sCN} offen sc1",
              f"buffer_load_dword v{vXD}, v{vXT}, {S_WS}, s{sXT} offen sc1"]
        for k in range(8):
            vq.append(f"buffer_load_dwordx4 {v(U+16+8*k,4)}, v{vVA+k}, {S_WS}, s{sVO} offen sc1")
            vq.append(f"buffer_load_dwordx4 {v(U+20+8*k,4)}, v{vVA+k}, {S_WS}, s{sVO} offen offset:1024 sc1")
        a("s_barrier   ; B0'")
        a(f"s_add_u32 s{sXT}, s{sXT}, {XSTEP}\n s_add_u32 s{sT3}, s{sT3}, 0x01010101\n v_add_u32 v{vST}, 1, v{vST}")
        if o.xb: a("s_barrier   ; B0''")
        def keys():
            for kt in range(2):
                for n, hh in enumerate(HORD): a(f"ds_read_b128 {v(KX+28*kt+4*n,4)}, v{vKX} offset:{kt*7168 + hh*1024}")
        if o.kfirst: keys()
        else: nops(a, o.b0p)
        nv = min(o.nv0, len(vq))
        for _ in range(nv): a(vq.pop(0))
        if not o.kfirst: keys()
        a(f"s_waitcnt vmcnt({nv})\n s_barrier   ; B1")
        mread = lambda k: a(f"ds_read_b128 {v(M+4*k,4)}, v0 offset:{L_M + 1024*k}")
        for k in KORD[:4]: mread(k)
        a(f"s_barrier   ; B1'")
        for k in KORD[4:]: mread(k)
        while vq: a(vq.pop(0))
        stamp(a, o, 'w3', 10)
        a(f"{P}_y:")
        for n, k in enumerate(KORD):
            a(f"s_waitcnt lgkmcnt({6-n})" if n < 4 else f"s_waitcnt lgkmcnt(0)" if n == 4 else "")
            a(f"{SM} {v(DY,4)}, {v(M+4*k,4)}, {v(Aop(0,k),8)}, v1")
            a(f"{SM} {v(DY+4,4)}, {v(M+4*k,4)}, {v(Aop(1,k),8)}, v1")
            if n >= 4:
                for hn in range(7)[(n-4)*2 : (n-4)*2 + (2 if n < 6 else 3)]:
                    hh = HORD[hn]; base, off = (vK0, hh*512) if hh < 4 else (vK1, (hh-4)*512)
                    a(f"ds_read2_b64 {v(KM+4*hn,4)}, v{base} offset0:{off//8} offset1:{off//8+2}")
        sets = [SET+4*i for i in range(o.ns)]
        for r in sets[1:]: a(f"v_mov_b32 v{r}, -1")
        nops(a, 5 - o.ns)
        a(f"v_add_f32 v{DY}, v{DY}, v{DY+1}\n v_add_f32 v{DY+2}, v{DY+2}, v{DY+3}")
        a(f"v_cmp_u_f32 vcc, v{DY}, v{DY+2}")
        a(f"v_add_f32 v{DY+4}, v{DY+4}, v{DY+5}\n v_add_f32 v{DY+6}, v{DY+6}, v{DY+7}")
        a(f"v_cvt_pk_bf16_f32 v{DY}, v{DY}, v{DY+4}\n v_cvt_pk_bf16_f32 v{DY+2}, v{DY+2}, v{DY+6}")
        a(f"ds_write2_b32 v3, v{DY}, v{DY+2} offset0:0 offset1:8")
        stamp(a, o, 'w3', 11)
        a("s_barrier   ; B1y")
        a(f"ds_read_b128 {v(YO,4)}, v0 offset:{L_Y}\n ds_read_b128 {v(YO+4,4)}, v0 offset:{L_Y + 1024}")
        a(f"s_cbranch_vccnz {P}_fail")
        a(f"{P}_yok:")
        ssm = lambda kt, st: a(f"{SM} {v(DS+4*kt,4)}, {v(YO+4*st,4)}, {v(KT[kt]+KOF[st],8)}, v1")
        a("s_waitcnt lgkmcnt(1)")
        for kt in range(3): ssm(kt, 0)
        a("s_barrier   ; B2")
        stamp(a, o, 'w3', 1)
        a(f"ds_read_b128 {v(YO+8,4)}, v0 offset:{L_Y + 2048}\n ds_read_b128 {v(YO+12,4)}, v0 offset:{L_Y + 3072}")
        for st in range(1, 4):
            a(f"s_waitcnt lgkmcnt({3-st})")
            for kt in range(3): ssm(kt, st)
        a("s_nop 5")
        for kt in range(3):
            for aa in range(2):
                r = DS + 4*kt + 2*aa
                a(f"v_add_f32 v{r}, v{r}, v{r+1}")
                a(f"buffer_store_dword v{r}, v{vSX if kt else vS0}, {S_WS}, s{sCUR} offen offset:{(0, 32, 96)[kt] + 160*aa}{ST}")
        stamp(a, o, 'w3', 2)
        for kt in range(3):
            o0 = (0, 8, 24)[kt]
            a(f"ds_write2_b32 v{6 if kt else vL0}, v{DS+4*kt}, v{DS+4*kt+2} offset0:{o0} offset1:{o0+40}")
        a(f"ds_read_b128 {v(OWN,4)}, v2")
        for r in range(20): a(f"v_mov_b32 v{DY+r}, 0")
        a("s_waitcnt lgkmcnt(0)")
        for q in range(4): a(f"v_mul_f32 v{OWN+q}, s{sSC}, v{OWN+q}")
        n = o.ns
        def sbody(i, wait):
            a(f"buffer_load_dwordx4 {v(sets[i],4)}, v{vSG}, {S_WS}, s{sCUR} offen sc1")
            if wait: a(f"s_waitcnt vmcnt({n-1})")
            a(f"v_cmp_eq_u32 vcc, -1, v{sets[(i+1) % n]}\n s_cbranch_vccz {P}_sok{i}")
        for i in range(n-1): sbody(i, False)
        sbody(n-1, True)
        a(f"{P}_spoll:")
        for i in range(n): sbody(i, True)
        count(a, o, 57)
        a(f"s_sub_u32 s{sBUD}, s{sBUD}, 1\n s_cmp_lg_u32 s{sBUD}, 0\n s_cbranch_scc1 {P}_spoll\n s_branch L_team_done")
        f2 = f"buffer_store_byte v{vST}, v{vFS}, {S_WS}, s{sFL} offen offset:2048{ST}"
        for i in range(n):
            r = sets[(i+1) % n]
            a(f"{P}_sok{i}:")
            stamp(a, o, 'w3', 3)
            if o.f2pos == 0: a(f2)
            for q in range(4): a(f"v_fma_f32 v{SC+q}, v{r+q}, s{sSC}, v{OWN+q}")
            a(f"v_maximum3_f32 v7, |v{SC}|, |v{SC+1}|, |v{SC+2}|")
            a(f"v_exp_f32 v{EX}, v{SC}")
            a(f"v_maximum3_f32 v7, v7, |v{SC+3}|, |v{SC+3}|")
            a(f"v_exp_f32 v{EX+1}, v{SC+1}")
            a(f"v_cmp_nle_f32 vcc, v7, v9")
            a(f"v_exp_f32 v{EX+2}, v{SC+2}\n v_exp_f32 v{EX+3}, v{SC+3}")
            a(f"v_add_f32 v7, v{EX}, v{EX+1}\n v_add_f32 v11, v{EX+2}, v{EX+3}")
            if i != n-1: a(f"s_cbranch_vccz {P}_sexp\n s_branch {P}_smax")
            else: a(f"s_cbranch_vccnz {P}_smax")
        a(f"{P}_sexp:")
        a("v_add_f32 v7, v7, v11")
        for k, sh in enumerate((8, 4, 2, 1)):
            if k + 1 == o.f2pos: a(f2 + "\n s_nop 0")
            else: a("s_nop 1")
            a(f"v_add_f32_dpp v7, v7, v7 row_ror:{sh} row_mask:0xf bank_mask:0xf")
        a("v_rcp_f32 v7, v7\n s_nop 0")
        a(f"v_mul_f32 v{SC}, v{EX}, v7\n v_mul_f32 v{SC+1}, v{EX+1}, v7\n v_mul_f32 v{SC+2}, v{EX+2}, v7")
        a(f"v_cvt_pk_bf16_f32 v{SC+4}, v{SC}, v{SC+1}\n v_mul_f32 v{SC+3}, v{EX+3}, v7\n v_cvt_pk_bf16_f32 v{SC+5}, v{SC+2}, v{SC+3}")
        a(f"buffer_store_dwordx2 {v(SC+4,2)}, v4, {S_WS}, s{sCUR} offen{ST}")
        stamp(a, o, 'w3', 4)
        order = list(range(2,10)) + [0, 1]
        def pround():
            for k in order:
                if k < 2: a(f"buffer_load_dwordx4 {v(PR+4*k,4)}, v{vPA+8}, {S_WS}, s{sCUR} offen offset:{k*1024} sc1")
                else: a(f"buffer_load_dwordx4 {v(PR+4*k,4)}, v{vPA+k-2}, {S_WS}, s{sCUR} offen sc1")
        flag_poll(a, o, P, list(range(FR, FR+o.nf)), f"v{vFA}", 2048, sT3)
        stamp(a, o, 'w3', 40)
        pround()
        if o.kf < 0: a(f"buffer_store_byte v{vST}, v{vFS}, {S_WS}, s{sFL} offen{ST}")
        a("s_barrier   ; B3")
        for q in range(4): a(f"ds_read_b128 {v(U+4*q,4)}, v0 offset:{L_UM + 1024*q}")
        a(f"s_add_u32 s{sVO}, s{sVO}, {VO_STEP}\n s_add_u32 s{sM1}, s{sNXT}, 6144\n s_add_u32 s{sMO}, s{sMO}, 8192")
        a(f"v_cmp_gt_u32 vcc, 28, v{vCN}\n s_cbranch_vccnz {P}_vo\n {P}_vo_ok:\n s_add_u32 s{sCN}, s{sCN}, 1024")
        def pu(first):
            for n, k in enumerate(order):
                a(f"s_waitcnt vmcnt({9-n + (1 if (first and n > o.kf) else 0)})" + (" lgkmcnt(0)" if n == 8 else ""))
                if first: stamp(a, o, 'w3', 50+n)
                a(f"{SM} {v(DP,4)}, {v(PR+4*k,4)}, {v(U+8*k,8)}, v1")
                if first and n == o.kf: a(f"buffer_store_byte v{vST}, v{vFS}, {S_WS}, s{sFL} offen{ST}")
                if first and n == o.kgo: a(f"ds_write_b32 v{vGO}, v{vST}")
        pu(True)
        a("s_nop 7")
        a(f"{P}_pchk:")
        a(f"v_add_f32 v{DP}, v{DP}, v{DP+1}\n v_add_f32 v{DP+2}, v{DP+2}, v{DP+3}")
        a(f"v_cvt_pk_bf16_f32 v7, v{DP}, v{DP+2}")
        a(f"v_cmp_u_f32 vcc, v{DP}, v{DP+2}\n s_nop 0")
        a("v_mov_b32_dpp v11, v7 quad_perm:[1,0,3,2] row_mask:0xf bank_mask:0xf")
        a(f"v_perm_b32 v{vMO}, v7, v11, v8")
        a(f"v_cndmask_b32 v7, v{vMO}, v{NEG}, vcc")
        a(f"buffer_store_dword v7, v5, {S_WS}, s{sNXT} offen{ST}")
        stamp(a, o, 'w3', 5)
        a(f"s_cbranch_vccnz {P}_pfail")
        a(f"{P}_pok:")
        a(f"buffer_store_dword v{NEG}, v5, {S_WS}, s{sCUR} offen{ST}")
        a(f"buffer_store_dwordx2 {v(NEG,2)}, v4, {S_WS}, s{sPRV} offen{ST}")
        a(f"buffer_store_dwordx4 {v(NEG,4)}, v10, {S_WS}, s{sCUR} offen{ST}")
        a(f"v_xor_b32 v{vKX}, 0x1c000, v{vKX}")
        for r in range(4): a(f"v_mov_b32 v{DP+r}, 0")
        stamp_flush(a, o, 'w3')
        ring_advance(a)
        a(f"s_add_u32 s{sSTEP}, s{sSTEP}, 1")
        a(f"s_cmp_lt_u32 s{sSTEP}, {o.nsteps}\n s_cbranch_scc1 {P}_loop")
        a(f"buffer_store_dword v{vMO}, v{vMA}, {S_WS}, s{sMO} offen sc1")
        a("s_branch L_team_done")
        vo_wait(f"{P}_vo")
        a(f"{P}_fail:")
        m_exact(a, P, M)
        a("s_waitcnt vmcnt(0) lgkmcnt(0)")
        budget_check(a)
        for r in range(8): a(f"v_mov_b32 v{DY+r}, 0")
        count(a, o, 56)
        a(f"s_mov_b32 m0, {L_M + 6144}\n s_barrier")
        a(f"buffer_load_dwordx4 v0, {S_WS}, s{sM1} offen sc1 lds")
        a("s_waitcnt vmcnt(0)\n s_barrier")
        for k in KORD: mread(k)
        a(f"s_branch {P}_y")
        a(f"{P}_smax:")
        r = sets[0]
        a(f"s_waitcnt vmcnt(0)\n buffer_load_dwordx4 {v(r,4)}, v{vSG}, {S_WS}, s{sCUR} offen sc1\n s_waitcnt vmcnt(0)")
        a(f"v_max3_u32 v7, v{r}, v{r+1}, v{r+2}\n v_max_u32 v7, v7, v{r+3}\n v_cmp_eq_u32 vcc, -1, v7\n s_cbranch_vccz {P}_smax2")
        budget_check(a)
        a(f"s_branch {P}_smax\n {P}_smax2:")
        for q in range(4): a(f"v_fma_f32 v{SC+q}, v{r+q}, s{sSC}, v{OWN+q}")
        a(f"v_max3_f32 v7, v{SC}, v{SC+1}, v{SC+2}\n v_max_f32 v7, v7, v{SC+3}")
        for sh in (8, 4, 2, 1):
            a("s_nop 1")
            a(f"v_max_f32_dpp v7, v7, v7 row_ror:{sh} row_mask:0xf bank_mask:0xf")
        for q in range(4): a(f"v_sub_f32 v{SC+q}, v{SC+q}, v7")
        for q in range(4): a(f"v_exp_f32 v{EX+q}, v{SC+q}")
        a(f"v_add_f32 v7, v{EX}, v{EX+1}\n v_add_f32 v11, v{EX+2}, v{EX+3}\n s_branch {P}_sexp")
        a(f"{P}_pfail:")
        a("v_mov_b32 v7, 0")
        for r in range(PR, PR+40, 2): a(f"v_max3_u32 v7, v{r}, v{r+1}, v7")
        a(f"v_cmp_eq_u32 vcc, -1, v7\n s_cbranch_vccnz {P}_pagain")
        a(f"buffer_store_dword v{vMO}, v5, {S_WS}, s{sNXT} offen{ST}\n s_branch {P}_pok")
        a(f"{P}_pagain:")
        budget_check(a)
        count(a, o, 58)
        for r in range(4): a(f"v_mov_b32 v{DP+r}, 0")
        pround()
        pu(False)
        a("s_nop 7")
        a(f"s_branch {P}_pchk")
    both_modes(a, P, steps)

def team_body(a, o):
    a(f"""
    s_lshr_b32 s{sH}, s{sRANK}, 1
    s_and_b32 s{sJ}, s{sRANK}, 1
    s_sub_u32 s{sT0}, s{sRANK}, 28
    s_cmp_ge_u32 s{sRANK}, 28
    s_cselect_b32 s{sCT}, s{sT0}, s{sRANK}
    s_mov_b32 s{sFL}, {WS_FL}
    s_mov_b32 s{sSTEP}, 0
    s_mov_b32 s{sCUR}, {WS_RING}
    s_mov_b32 s{sNXT}, {WS_RING + 0x10000}
    s_mov_b32 s{sPRV}, {WS_RING + 0x30000}
    v_and_b32 v60, 63, v0
    v_and_b32 v61, 15, v60
    v_lshrrev_b32 v62, 4, v60
    v_lshlrev_b32 v0, 4, v60
    v_and_b32 v63, 1, v60
    v_cmp_eq_u32 vcc, 1, v63
    v_mov_b32 v1, 0x44444444
    v_mov_b32 v63, 0xeeeeeeee
    v_cndmask_b32 v1, v1, v63, vcc
    """)
    a(f"v_mov_b32 v56, 0\n v_mov_b32 v57, {L_MISC + 128}\n ds_write_b32 v57, v56\n s_waitcnt lgkmcnt(0)\n s_barrier")
    if o.diag: a("s_mov_b32 s56, 0\n s_mov_b32 s57, 0\n s_mov_b32 s58, 0")
    a(f"""
    s_cmp_eq_u32 s{sWAVE}, 3
    s_cbranch_scc1 W3_entry
    s_cmp_eq_u32 s{sWAVE}, 2
    s_cbranch_scc1 Y2_entry
    s_cmp_eq_u32 s{sWAVE}, 1
    s_cbranch_scc1 Y1_entry
    """)
    ywave(a, o, 0)
    a("Y1_entry:"); ywave(a, o, 1)
    a("Y2_entry:"); ywave(a, o, 2)
    a("W3_entry:"); wave3(a, o)
```

```python
class Asm:
    def __init__(self):
        self.lines = []
        self._uid = 0
    def __call__(self, s=""):
        for l in s.split("\n"):
            l = l.strip()
            if not l:
                continue
            if l.endswith(":") or l.startswith("."):
                self.lines.append(l)
            elif l.startswith(";"):
                self.lines.append("    " + l)
            else:
                self.lines.append("    " + l)
    def raw(self, s):
        self.lines.append(s)
    def label(self, name):
        self.lines.append(name + ":")
    def uid(self, p="L"):
        self._uid += 1
        return f"{p}_{self._uid}"
    def text(self):
        return "\n".join(self.lines) + "\n"

def v(i, n=1):
    if i >= 256:
        assert i + n <= 512
        j = i - 256
        return f"a{j}" if n == 1 else f"a[{j}:{j+n-1}]"
    assert i + n <= 256, (i, n)
    return f"v{i}" if n == 1 else f"v[{i}:{i+n-1}]"

def s(i, n=1):
    return f"s{i}" if n == 1 else f"s[{i}:{i+n-1}]"

def kernel_head(a, name):
    a(f".globl {name}")
    a(".p2align 8")
    a(f".type {name},@function")
    a.label(name)

def kernel_desc(a, name, vgpr=512, sgpr=102, accum=256, kernarg=112):
    a('.section .rodata,"a"')
    a(".p2align 6")
    a(f".amdhsa_kernel {name}")
    a.raw(f"  .amdhsa_next_free_vgpr {vgpr}")
    a.raw(f"  .amdhsa_next_free_sgpr {sgpr}")
    a.raw(f"  .amdhsa_accum_offset {accum}")
    a.raw("  .amdhsa_group_segment_fixed_size 0")
    a.raw(f"  .amdhsa_kernarg_size {kernarg}")
    a.raw("  .amdhsa_user_sgpr_count 2")
    a.raw("  .amdhsa_user_sgpr_kernarg_segment_ptr 1")
    a.raw("  .amdhsa_system_sgpr_workgroup_id_x 1")
    a.raw("  .amdhsa_float_denorm_mode_32 3")
    a(".end_amdhsa_kernel")
    a(".text")

def srd(a, d, base, nbytes, off=0):
    if off:
        a(f"s_add_u32 s{d}, s{base}, {off}")
        a(f"s_addc_u32 s{d+1}, s{base+1}, 0")
    else:
        a(f"s_mov_b32 s{d}, s{base}")
        a(f"s_mov_b32 s{d+1}, s{base+1}")
    a(f"s_mov_b32 s{d+2}, {nbytes}")
    a(f"s_mov_b32 s{d+3}, 0x00020000")

DIAG = {'on': False}
def tstamp(a, slot, wave_sgpr, ws="s[4:7]", base=0xF100000, tmp=(253, 254), extra=None):
    if not DIAG['on']: return
    L = a.uid("TS")
    a(f"""
    s_cmp_lg_u32 s{wave_sgpr}, 0
    s_cbranch_scc1 {L}
    s_memrealtime s[100:101]
    s_waitcnt lgkmcnt(0)
    v_mov_b32 v{tmp[0]}, {'s100' if extra is None else extra}
    s_lshl_b32 s100, s3, 8
    s_add_u32 s100, s100, {base + slot*4}
    v_mov_b32 v{tmp[1]}, s100
    buffer_store_dword v{tmp[0]}, v{tmp[1]}, {ws}, 0 offen
    s_memtime s[100:101]
    s_waitcnt lgkmcnt(0)
    v_mov_b32 v{tmp[0]}, s100
    buffer_store_dword v{tmp[0]}, v{tmp[1]}, {ws}, 0 offen offset:128
    {L}:
    """)

DBGT = {'on': False}
def dstamp(a, word, wave_sgpr, op="umax", tmp=(253, 254), inv=False, wave=0, few=False):
    if not DBGT['on']: return
    L = a.uid("DS")
    a(f"""
    s_cmp_lg_u32 s{wave_sgpr}, {wave}
    s_cbranch_scc1 {L}
    {'s_and_b32 s100, s2, 0x78' if few else ''}
    {'s_cbranch_scc1 ' + L if few else ''}
    s_memrealtime s[100:101]
    s_waitcnt lgkmcnt(0)
    s_and_b32 s100, s100, 0xffffff
    {'s_sub_u32 s100, 0x1000000, s100' if inv else ''}
    s_mov_b64 s[98:99], exec
    s_mov_b64 exec, 1
    v_mov_b32 v{tmp[0]}, s100
    v_mov_b32 v{tmp[1]}, {word*4}
    buffer_atomic_umax v{tmp[0]}, v{tmp[1]}, s[12:15], 0 offen
    s_mov_b64 exec, s[98:99]
    {L}:
    """)

DEF_SLOTS = {0: 90, 10: 91, 11: 92, 12: 93, 13: 94, 14: 95, 2: 96, 15: 97}
def tdefer(a, slot):
    if not DIAG['on']: return
    a(f"s_memrealtime s[100:101]\n s_waitcnt lgkmcnt(0)\n s_mov_b32 s{DEF_SLOTS[slot]}, s100")
def tflush(a, wave_sgpr):
    for slot, r in DEF_SLOTS.items(): tstamp(a, slot, wave_sgpr, extra=f"s{r}")
```

```python
from asmlib import *
from layout import *
K1_LDS = 163840
MF = "v_mfma_f32_32x32x16_bf16"
S_WS, S_P, S_S, S_X, S_GW = "s[4:7]", "s[8:11]", "s[24:27]", "s[28:31]", "s[52:55]"
sMAT, sJ, sDG, sHD, sW, sBLK, sSO, sT, sLD, sU = 40, 42, 43, 44, 17, 46, 47, 48, 49, 50
sSG, sQ, sPO, sIT, sQS, sPS = 45, 34, 33, 32, 19, 20
EXP=[0,0,0]
BUF = 45056
L_XS = 3*BUF

def products(a, ptr_x, ptr_w, ptr_gw, early, late):
    RS, RB, HS = (13, 8192, 9) if not EXP[0] else (9, 512, 18)
    ACC, PV, FR = 4, 116, 132
    vT, vT2, vST, vPA, vSA, vRP, vRS = 208, 209, 212, 214, 216, 224, 228
    vHI, vC, vL = 205, 206, 207
    a(f"""
    s_and_b32 s{sMAT}, s2, 7
    s_lshl_b32 s{sMAT}, s{sMAT}, 2
    s_bfe_u32 s41, s2, 0x20003
    s_or_b32 s{sMAT}, s{sMAT}, s41
    s_lshr_b32 s41, s2, 5
    s_and_b32 s{sJ}, s41, 1
    s_lshr_b32 s{sDG}, s41, 1
    s_and_b32 s{sHD}, s{sMAT}, 15              ; head
    s_lshl_b32 s{sQ}, s{sJ}, 1
    s_add_u32 s{sQ}, s{sQ}, s{sDG}
    s_movk_i32 s{sQS}, 128
    s_cmp_ge_u32 s{sMAT}, 16
    s_cselect_b32 s8, s{ptr_w+4}, s{ptr_w}
    s_cselect_b32 s9, s{ptr_w+5}, s{ptr_w+1}
    s_cselect_b32 s24, s{ptr_w+6}, s{ptr_w+2}
    s_cselect_b32 s25, s{ptr_w+7}, s{ptr_w+3}
    s_cselect_b32 s{sQS}, {64*896}, s{sQS}
    s_mov_b32 s10, {W_BYTES}
    s_mov_b32 s11, 0x00020000
    s_mov_b32 s26, {W_BYTES}
    s_mov_b32 s27, 0x00020000
    s_lshl_b32 s{sBLK}, s{sDG}, 2
    s_add_u32 s{sBLK}, s{sBLK}, s{sW}
    v_and_b32 v{vL}, 63, v0
    v_lshrrev_b32 v{vHI}, 5, v{vL}
    v_and_b32 v{vC}, 31, v{vL}
    v_lshrrev_b32 v{vT}, 3, v{vL}
    v_lshrrev_b32 v{vT2}, 4, v{vL}
    v_xor_b32 v{vT2}, v{vT2}, v{vL}
    v_and_b32 v{vT2}, 7, v{vT2}
    v_lshlrev_b32 v{vT2}, 4, v{vT2}
    v_lshl_add_u32 v{vSA}, v{vT}, {RS}, v{vT2}
    v_and_b32 v{vPA}, 3, v{vT}
    v_lshrrev_b32 v{vT}, 2, v{vT}
    v_lshl_add_u32 v{vPA}, v{vT}, 3, v{vPA}
    v_lshl_add_u32 v{vPA}, v{vPA}, {RS}, v{vT2}
    v_xor_b32 v{vPA+1}, 64, v{vPA}
    s_min_u32 s{sT}, s{sBLK}, 13
    s_lshl_b32 s{sPO}, s{sT}, {RS+5}
    s_mul_i32 s{sT}, s{sHD}, {512 if not EXP[0] else 229376}
    s_add_u32 s{sPO}, s{sPO}, s{sT}
    s_cmp_ge_u32 s{sMAT}, 16
    s_cbranch_scc1 K1_setB
    s_and_b32 s{sLD}, s{sW}, 1
    s_lshl_b32 s{sLD}, s{sLD}, 6
    v_xor_b32 v{vSA}, s{sLD}, v{vSA}
    s_mul_i32 s{sSO}, s{sJ}, {224*RB}
    s_add_u32 s{sSO}, s{sSO}, s{sT}
    s_lshl_b32 s{sT}, s{sW}, {RS+3}
    s_add_u32 s{sSO}, s{sSO}, s{sT}
    """)
    for i in range(1, 7): a(f"v_add_u32 v{vSA+i}, {i*32*RB}, v{vSA}")
    a(f"""
    s_branch K1_set
    K1_setB:
    """)
    early(a)
    a(f"""
    s_lshl_b32 s{sT}, s{sW}, 6
    v_add_u32 v{vST}, s{sT}, v{vL}
    """)
    for i in range(7):
        a(f"""
        v_add_u32 v{vT}, {256*i}, v{vST}
        v_mul_u32_u24 v{vT2}, 2341, v{vT}
        v_lshrrev_b32 v{vT2}, 16, v{vT2}           ; /28
        v_mul_u32_u24 v{vSA+i}, 448, v{vT2}
        v_lshl_add_u32 v{vSA+i}, v{vT}, 4, v{vSA+i}
        """)
    a(f"""
    s_mul_i32 s{sSO}, s{sHD}, 229376
    s_mul_i32 s{sT}, s{sJ}, 448
    s_add_u32 s{sSO}, s{sSO}, s{sT}
    K1_set:
    s_lshl_b32 s{sLD}, s{sW}, 10
    s_lshl_b32 s{sPS}, s{sW}, 12
    s_add_u32 s{sPS}, s{sPS}, 28672
    """)
    def quarter(priv, a=a):
        a(f"s_and_b32 s{sQ}, s{sQ}, 3")
        if priv:
            a(f"s_lshl_b32 s{sT}, s{sQ}, 7\n s_add_u32 s51, s{sT}, s{sPO}")
            for i in range(4):
                a(f"s_add_u32 m0, s{sPS}, {i*1024}\n s_add_u32 s{sT}, s51, {(16*(i >> 1) + 4*(i & 1))*RB}")
                a(f"buffer_load_dwordx4 v{vPA + (i & 1)}, {S_P}, s{sT} offen lds")
        a(f"s_mul_i32 s{sT}, s{sQ}, s{sQS}\n s_add_u32 s{sT}, s{sT}, s{sSO}")
        for i in range(7):
            a(f"s_add_u32 m0, s{sLD}, {i*4096}\n s_nop 0")
            a(f"buffer_load_dwordx4 v{vSA+i}, {S_S}, s{sT} offen lds")
        a(f"s_add_u32 s{sQ}, s{sQ}, 1")
    def next_buf():
        a(f"s_add_u32 s{sLD}, s{sLD}, {BUF}\n s_add_u32 s{sPS}, s{sPS}, {BUF}")
    a(f"s_cmp_ge_u32 s{sBLK}, 14\n s_cbranch_scc1 K1_side\n s_mov_b32 s{sIT}, 0")
    tdefer(a, 15)
    a("K1_first:")
    quarter(True); next_buf()
    a(f"s_add_u32 s{sIT}, s{sIT}, 1\n s_cmp_lt_u32 s{sIT}, 2\n s_cbranch_scc1 K1_first")
    tdefer(a, 10); dstamp(a, 2, sW, few=True)
    for r in range(112): a(f"v_mov_b32 v{ACC+r}, 0")
    a(f"""
    v_bfe_u32 v{vT}, v{vC}, 1, 3
    v_xor_b32 v{vT}, v{vT}, v{vHI}
    v_lshlrev_b32 v{vT}, 4, v{vT}
    v_lshl_add_u32 v{vT}, v{vC}, 7, v{vT}
    s_lshl_b32 s{sT}, s{sW}, 12
    s_add_u32 s{sT}, s{sT}, 28672
    v_add_u32 v{vRP}, s{sT}, v{vT}
    v_lshrrev_b32 v{vT}, 4, v{vC}
    v_and_b32 v{vT2}, 15, v{vC}
    v_lshlrev_b32 v{vST}, 4, v{vT2}
    v_lshl_add_u32 v{vST}, v{vHI}, 8, v{vST}
    s_lshr_b32 s{sU}, s{sBLK}, 1
    s_lshl_b32 s{sU}, s{sU}, 11
    s_and_b32 s{sT}, s{sBLK}, 1
    s_lshl_b32 s{sT}, s{sT}, 10
    s_add_u32 s{sU}, s{sU}, s{sT}              ; T*2048 + half*1024
    s_mov_b32 s{sIT}, 0
    """)
    for t in range(1, 4): a(f"v_xor_b32 v{vRP+t}, {t << 5}, v{vRP}")
    a(f"s_cmp_ge_u32 s{sMAT}, 16\n s_cbranch_scc1 K1_mainB")
    def main(kind):
        NR = 6 if kind == 'A' else 5
        nad = 4 if kind == 'A' else 1
        if kind == 'A':
            a(f"""
            v_mul_u32_u24 v{vRS}, 14336, v{vT}
            v_add_u32 v{vST}, v{vST}, v{vRS}
            v_lshl_add_u32 v{vT}, v{vT2}, 1, v{vT}
            v_bfe_u32 v{vT2}, v{vT}, 1, 3
            v_xor_b32 v{vT2}, v{vT2}, v{vHI}
            v_lshlrev_b32 v{vT2}, 4, v{vT2}
            v_lshl_add_u32 v{vRS}, v{vT}, 7, v{vT2}
            s_lshl_b32 s{sT}, s{sHD}, 1
            s_add_u32 s{sT}, s{sT}, s{sJ}
            s_mul_i32 s{sT}, s{sT}, {A_RANK}
            s_add_u32 s{sU}, s{sU}, s{sT}
            s_mov_b32 s{sSG}, {2*14336}
            """)
            for t in range(1, 4): a(f"v_xor_b32 v{vRS+t}, {t << 5}, v{vRS}")
        else:
            a(f"""
            v_mul_u32_u24 v{vRS}, {B_CT}, v{vT}
            v_add_u32 v{vST}, v{vST}, v{vRS}
            v_bfe_u32 v{vT}, v{vL}, 2, 2
            v_lshl_add_u32 v{vT}, v{vHI}, 3, v{vT}
            v_mul_u32_u24 v{vRS}, 448, v{vT}
            v_bfe_u32 v{vT}, v{vL}, 4, 1
            v_lshl_add_u32 v{vRS}, v{vT}, 5, v{vRS}
            v_and_b32 v{vT}, 3, v{vL}
            v_lshl_add_u32 v{vRS}, v{vT}, 3, v{vRS}
            s_mul_i32 s{sT}, s{sJ}, {14*B_CT}
            s_add_u32 s{sU}, s{sU}, s{sT}
            s_mul_i32 s{sT}, s{sHD}, {7*2048}
            s_add_u32 s{sU}, s{sU}, s{sT}
            s_add_u32 s{sU}, s{sU}, {WS_B}
            s_mov_b32 s{sSG}, {2*B_CT}
            """)
        a(f"K1_loop{kind}:")
        if DIAG['on']:
            for it in range(4):
                L = a.uid("TI"); a(f"s_cmp_lg_u32 s{sIT}, {it}\n s_cbranch_scc1 {L}"); tdefer(a, 11+it); a(f"{L}:")
        a(f"s_cmp_eq_u32 s{sIT}, 3\n s_cbranch_scc1 K1_w0{kind}\n s_waitcnt vmcnt(11)\n s_branch K1_w1{kind}\n K1_w0{kind}:\n s_waitcnt vmcnt(13)\n K1_w1{kind}:\n s_barrier")
        seq = [(t, p) for t in range(4) for p in range(7)]
        nper = 1 if kind == 'A' else 2
        def fetch(n):
            t, p = seq[n]; r = FR + 4*(n % NR)
            if kind == 'A': a(f"ds_read_b128 {v(r,4)}, v{vRS + t} offset:{p*4096}")
            else:
                a(f"ds_read_b64_tr_b16 {v(r,2)}, v{vRS} offset:{t*7168 + p*64}")
                a(f"ds_read_b64_tr_b16 {v(r+2,2)}, v{vRS} offset:{t*7168 + p*64 + 1792}")
        for t in range(4): a(f"ds_read_b128 {v(PV+4*t,4)}, v{vRP + t}")
        for n in range(NR-1): fetch(n)
        tq = Asm(); quarter(True, tq); groups = [[]]
        for l in tq.lines:
            if l.strip() == "s_nop 0": continue
            groups[-1].append(l)
            if "s_add_u32 m0" in l or "buffer_load" in l: groups.append([])
        for n, (t, p) in enumerate(seq):
            if n >= 2 and groups:
                for l in groups.pop(0): a(l)
            if n + NR - 1 < len(seq): fetch(n + NR - 1)
            a(f"s_waitcnt lgkmcnt({min(NR - 1, len(seq) - 1 - n)*nper})")
            a(f"{MF} {v(ACC+16*p,16)}, {v(PV+4*t,4)}, {v(FR+4*(n % NR),4)}, {v(ACC+16*p,16)}")
        a(f"s_cmp_lg_u32 s{sIT}, 1\n s_cbranch_scc1 K1_nq{kind}")
        late(a)
        a(f"s_mov_b32 s{sPO}, 0x7ff00000\n s_mov_b32 s{sSO}, 0x7ff00000\n K1_nq{kind}:")
        a(f"s_mov_b32 s{sT}, {BUF}\n s_cmp_eq_u32 s{sIT}, 0\n s_cselect_b32 s{sT}, {-2*BUF & 0xffffffff}, s{sT}\n s_add_u32 s{sLD}, s{sLD}, s{sT}\n s_add_u32 s{sPS}, s{sPS}, s{sT}")
        a(f"s_mov_b32 s{sT}, {BUF}\n s_cmp_eq_u32 s{sIT}, 2\n s_cselect_b32 s{sT}, {-2*BUF & 0xffffffff}, s{sT}")
        for t in range(4): a(f"v_add_u32 v{vRP+t}, s{sT}, v{vRP+t}")
        for t in range(nad): a(f"v_add_u32 v{vRS+t}, s{sT}, v{vRS+t}")
        assert not groups
        a(f"s_add_u32 s{sIT}, s{sIT}, 1\n s_cmp_lt_u32 s{sIT}, 4\n s_cbranch_scc1 K1_loop{kind}")
    main('A')
    a("s_branch K1_store\n K1_mainB:")
    main('B')
    a("K1_store:")
    tdefer(a, 2); dstamp(a, 3, sW, few=True)
    for p in range(7):
        for be in range(2):
            r = ACC + 16*p + 8*be
            for q in range(4): a(f"v_cvt_pk_bf16_f32 v{r+q}, v{r+2*q}, v{r+2*q+1}")
            a(f"buffer_store_dwordx4 {v(r,4)}, v{vST}, {S_WS}, s{sU} offen offset:{512*be} sc1")
        if p < 6: a(f"s_add_u32 s{sU}, s{sU}, s{sSG}")
    a("s_branch K1_done")
    a("K1_side:")
    srd(a, 28, ptr_x, X_BYTES); srd(a, 52, ptr_gw, 896)
    a(f"""
    s_lshl_b32 s{sSG}, s{sMAT}, 1
    s_add_u32 s{sSG}, s{sSG}, s{sJ}
    s_mul_i32 s{sU}, s{sSG}, {32*896}
    s_sub_u32 s{sT}, s{sW}, 2
    s_mul_i32 s{sT}, s{sT}, 14336
    s_add_u32 s{sPO}, s{sU}, s{sT}
    s_add_u32 s{sPS}, s{sT}, {L_XS}
    v_lshlrev_b32 v{vST}, 4, v{vL}
    """)
    quarter(False); a(f"s_add_u32 s{sLD}, s{sLD}, {BUF}")
    for q in range(14):
        if q % 4 == 0: a(f"s_add_u32 m0, s{sPS}, {q*1024}\n s_add_u32 s{sT}, s{sPO}, {q*1024}")
        a(f"buffer_load_dwordx4 v{vST}, {S_X}, s{sT} offen offset:{(q%4)*1024} lds")
    quarter(False); a(f"s_add_u32 s{sLD}, s{sLD}, {BUF}")
    a("s_waitcnt vmcnt(21)\n s_barrier")
    quarter(False); a(f"s_sub_u32 s{sLD}, s{sLD}, {2*BUF}")
    a("s_waitcnt vmcnt(7)\n s_barrier")
    quarter(False)
    late(a)
    def xstore(n, swap):
        if n and n % 4 == 0: a(f"s_add_u32 s{sU}, s{sU}, 4096")
        if swap: a(f"v_swap_b32 v{4*n+1}, v{4*n+2}")
        a(f"buffer_store_dwordx4 {v(4*n,4)}, v{vST}, {S_WS}, s{sU} offen offset:{(n%4)*1024} sc1")
    a(f"""
    s_cmp_eq_u32 s{sW}, 3
    s_cbranch_scc1 K1_side3
    v_lshlrev_b32 v{vT2}, 4, v{vHI}
    v_mul_u32_u24 v{vT}, 896, v{vC}
    v_add3_u32 v{vT}, v{vT}, v{vT2}, s{sPS}
    """)
    GW = lambda t: 112 + 4*t if t < 22 else 224 + 4*(t-22)
    for t in range(28):
        if t == 14: a("s_waitcnt lgkmcnt(0)")
        a(f"ds_read_b128 {v(4*t,4)}, v{vT} offset:{32*t}")
    for t in range(28): a(f"buffer_load_dwordx4 {v(GW(t),4)}, v{vT2}, {S_GW}, 0 offen offset:{32*t}")
    a(f"s_add_u32 s{sU}, s{sU}, {WS_XG}\n v_mov_b32 v210, 0\n v_mov_b32 v211, 0")
    a("s_waitcnt vmcnt(37) lgkmcnt(0)\n s_barrier")
    for t in range(14): xstore(t, False)
    a("s_waitcnt vmcnt(44)\n s_barrier")
    for t in range(14, 28): xstore(t, False)
    a("s_waitcnt vmcnt(28)")
    for t in range(28):
        for q in range(4): a(f"v_dot2_f32_bf16 v{210 + (q&1)}, v{4*t+q}, v{GW(t)+q}, v{210 + (q&1)}")
    a(f"""
    s_nop 2
    v_add_f32 v210, v210, v211
    v_mov_b32 v211, v210
    s_nop 1
    v_permlane32_swap_b32 v210, v211
    v_add_f32 v210, v210, v211
    v_mul_f32 v210, 0xbfb8aa3b, v210
    v_exp_f32 v210, v210
    s_nop 0
    v_add_f32 v210, 1.0, v210
    v_rcp_f32 v210, v210
    v_lshlrev_b32 v{vT}, 2, v{vC}
    s_lshl_b32 s{sU}, s{sSG}, 7
    s_add_u32 s{sU}, s{sU}, {WS_G}
    buffer_store_dword v210, v{vT}, {S_WS}, s{sU} offen sc1
    s_branch K1_done
    K1_side3:
    v_and_b32 v{vT}, 15, v{vL}
    v_mul_u32_u24 v{vT}, 896, v{vT}
    v_lshrrev_b32 v{vT2}, 4, v{vL}
    v_lshl_add_u32 v{vT}, v{vT2}, 4, v{vT}
    v_add_u32 v{vT}, {L_XS}, v{vT}
    """)
    for j in range(2):
        for kt in range(2):
            for hh in range(7):
                n = (j*2 + kt)*7 + hh
                if n == 14: a("s_waitcnt lgkmcnt(0)")
                a(f"ds_read_b128 {v(4*n,4)}, v{vT} offset:{kt*16*896 + 448*j + 64*hh}")
    for r in range(4): a(f"v_mov_b32 v{120+r}, -1")
    a(f"""
    v_mov_b32 v124, 0
    v_lshlrev_b32 v{vT2}, 7, v{vL}
    v_cmp_gt_u32 vcc, 16, v{vL}
    v_mov_b32 v125, 0x7ff00000
    s_lshl_b32 s{sT}, s{sSG}, 11
    v_cndmask_b32 v{vT2}, v125, v{vT2}, vcc
    s_add_u32 s{sT}, s{sT}, {WS_CNT}
    buffer_store_dword v124, v{vT2}, {S_WS}, s{sT} offen sc1
    s_lshl_b32 s{sT}, s{sSG}, 13
    s_add_u32 s{sT}, s{sT}, {WS_MO}
    """)
    for q in range(7):
        if q == 4: a(f"s_add_u32 s{sT}, s{sT}, 4096")
        a(f"buffer_store_dwordx4 v[120:123], v{vST}, {S_WS}, s{sT} offen offset:{(q%4)*1024} sc1")
    a(f"s_add_u32 s{sU}, s{sU}, {WS_XP}")
    a("s_waitcnt vmcnt(17) lgkmcnt(0)\n s_barrier")
    for n in range(14): xstore(n, True)
    a("s_waitcnt vmcnt(24)\n s_barrier")
    for n in range(14, 28): xstore(n, True)
    a("K1_done:")
```

```python
from asmlib import *
from layout import *
import team, k1
from team import S_WS, S_DBG, SM, OOB, nops
K2_LDS = k1.K1_LDS
L_BC = 65536
MF32 = "v_mfma_f32_32x32x16_bf16"
MF16 = "v_mfma_f32_16x16x32_bf16"
S_W = "s[8:11]"
sWAVE, sROLE, sSEG, sBUD = 17, 16, 20, 35
sA, sB, sC, sD, sE, sF = 36, 37, 38, 39, 40, 41
NS_O = 6
N_TB, N_TA, N_TH, N_TU, N_O1, N_O2 = 56, 56, 14, 28, 4*NS_O, 7*NS_O
T_TB = 0; T_TA = T_TB + N_TB; T_TH = T_TA + N_TA; T_TU = T_TH + N_TH; T_O1 = T_TU + N_TU; T_O2 = T_O1 + N_O1; T_END = T_O2 + N_O2
D_TEAM, D_SYNC, D_TICK, D_RST = 0, 64, 96, 128
vL16, vCA, vCT = 250, 251, 252

SLEEP = ['']
SKIP = ['']
def lane_setup(a):
    a(f"""
    v_mbcnt_lo_u32_b32 v0, -1, 0
    v_mbcnt_hi_u32_b32 v0, -1, v0
    v_lshlrev_b32 v{vL16}, 4, v0
    v_mov_b32 v{vCA}, 0
    v_lshrrev_b32 v1, 5, v0                 ; hi
    v_and_b32 v2, 31, v0                    ; c32
    v_and_b32 v3, 15, v0                    ; c
    v_lshrrev_b32 v4, 4, v0                 ; g
    """)

def wait_cnt(a, kind, n, pair=None):
    L = a.uid("W")
    adr, want = (vCA, n) if pair is None else (pair[0], f"v{pair[1]}")
    a(f"""
    s_cmp_lg_u32 s{sWAVE}, 0
    s_cbranch_scc1 {L}_ok
    s_lshl_b32 s{sF}, s{sSEG}, 11
    s_add_u32 s{sF}, s{sF}, {WS_CNT + kind}
    {L}:
    buffer_load_dword v{vCT}, v{adr}, {S_WS}, s{sF} offen sc1
    s_waitcnt vmcnt(0)
    v_cmp_gt_u32 vcc, {want}, v{vCT}
    s_cbranch_vccz {L}_ok
    {SLEEP[0]}
    s_sub_u32 s{sBUD}, s{sBUD}, 1
    s_cmp_lg_u32 s{sBUD}, 0
    s_cbranch_scc1 {L}
    s_endpgm
    {L}_ok:
    s_waitcnt vmcnt(0)
    s_barrier
    """)

def wait_done(a, what):
    L = a.uid("WW")
    a(f"s_cmp_lg_u32 s{sWAVE}, 0\n s_cbranch_scc1 {L}")
    team.wait_done(a, what, vCT, vCT+1, "L_exit", SLEEP[0])
    a(f"{L}:\n s_barrier")

def wait_team(a):
    if not GATE[0]: return
    wait_done(a, 'S')
    L = a.uid("WT")
    a(f"""
    s_cmp_lg_u32 s{sWAVE}, 0
    s_cbranch_scc1 {L}_ok
    s_mov_b32 s{sF}, {WS_MO}
    {L}:
    buffer_load_dword v{vCT}, v{vCA}, {S_WS}, s{sF} offen sc1
    s_waitcnt vmcnt(0)
    v_cmp_eq_u32 vcc, -1, v{vCT}
    s_cbranch_vccz {L}_ok
    s_sleep 32
    s_sub_u32 s{sBUD}, s{sBUD}, 1
    s_cmp_lg_u32 s{sBUD}, 0
    s_cbranch_scc1 {L}
    s_endpgm
    {L}_ok:
    s_barrier
    """)
GATE = [True]

def t63(a, slot, reg=None):
    if not DIAG['on']: return
    L = a.uid("T63"); a(f"s_cmp_lg_u32 s{reg or sSEG}, 63\n s_cbranch_scc1 {L}"); tstamp(a, slot, sWAVE, tmp=(254, 255)); a(f"{L}:")

def arrive(a, kind, s_seg, s_extra=None):
    L = a.uid("AR")
    a(f"""
    s_cmp_lg_u32 s{sWAVE}, 0
    s_cbranch_scc1 {L}
    s_lshl_b32 s{sF}, s{s_seg}, 11
    s_add_u32 s{sF}, s{sF}, {WS_CNT + kind}
    {f's_add_u32 s{sF}, s{sF}, s{s_extra}' if s_extra else ''}
    v_mov_b32 v{vCT}, 1
    s_mov_b64 exec, 1
    buffer_atomic_add v{vCT}, v{vCA}, {S_WS}, s{sF} offen
    s_mov_b64 exec, -1
    {L}:
    """)

def perm_rho(a, dst, tmp):
    a(f"""
    v_and_b32 v{dst}, 0x13, v2
    v_bfe_u32 v{tmp}, v2, 2, 1
    v_lshl_add_u32 v{dst}, v{tmp}, 3, v{dst}
    v_bfe_u32 v{tmp}, v2, 3, 1
    v_lshl_add_u32 v{dst}, v{tmp}, 2, v{dst}
    """)

def fetch_m_issue(a, t0):
    a(f"""
    s_lshl_b32 s{sA}, s{sSEG}, 13
    s_add_u32 s{sA}, s{sA}, {WS_MO}
    s_lshl_b32 s{sB}, s{sWAVE}, 10
    s_add_u32 s{sA}, s{sA}, s{sB}
    s_add_u32 s{sC}, s{sWAVE}, 4
    s_min_u32 s{sC}, s{sC}, 6
    s_sub_u32 s{sC}, s{sC}, s{sWAVE}
    s_lshl_b32 s{sC}, s{sC}, 10
    s_add_u32 s{sD}, s{sA}, s{sC}
    v_add_u32 v{t0+8}, s{sB}, v{vL16}
    v_add_u32 v{t0+9}, s{sC}, v{t0+8}
    buffer_load_dwordx4 {v(t0,4)}, v{vL16}, {S_WS}, s{sA} offen sc1
    buffer_load_dwordx4 {v(t0+4,4)}, v{vL16}, {S_WS}, s{sD} offen sc1
    """)

def fetch_m_finish(a, P, t0, lds):
    a(f"""
    s_cmp_eq_u32 s{sSEG}, 63
    s_cselect_b32 s{sE}, 1, 0
    {P}_m1:
    s_waitcnt vmcnt(0)
    v_max3_u32 v{vCT}, v{t0}, v{t0+1}, v{t0+2}
    v_max3_u32 v{vCT}, v{vCT}, v{t0+3}, v{t0+4}
    v_max3_u32 v{vCT}, v{vCT}, v{t0+5}, v{t0+6}
    v_max_u32 v{vCT}, v{vCT}, v{t0+7}
    v_cmp_eq_u32 vcc, -1, v{vCT}
    s_cbranch_vccz {P}_mok
    {P}_mw:
    s_sub_u32 s{sBUD}, s{sBUD}, 1
    s_cmp_eq_u32 s{sBUD}, 0
    s_cbranch_scc1 L_exit
    s_cmp_eq_u32 s{sE}, 1
    s_cbranch_scc1 {P}_m2
    {SLEEP[0]}
    buffer_load_dword v{vCT}, v{vCA}, {S_WS}, s{sD} offen sc1
    s_waitcnt vmcnt(0)
    v_cmp_eq_u32 vcc, -1, v{vCT}
    s_cbranch_vccnz {P}_mw
    s_mov_b32 s{sE}, 1
    {P}_m2:
    buffer_load_dwordx4 {v(t0,4)}, v{vL16}, {S_WS}, s{sA} offen sc1
    buffer_load_dwordx4 {v(t0+4,4)}, v{vL16}, {S_WS}, s{sD} offen sc1
    s_branch {P}_m1
    {P}_mok:
    ds_write_b128 v{t0+8}, {v(t0,4)} offset:{lds}
    ds_write_b128 v{t0+9}, {v(t0+4,4)} offset:{lds}
    s_waitcnt lgkmcnt(0)
    s_barrier
    """)

def gw(a, kind):
    P = "G" + kind
    W = lambda u, t: 256 + (u*28 + t)*4
    ACC, FR, TM, vOUT, vG = 16, 48, 72, 8, 9
    NR = 6
    step, NT = (1, 1) if kind == 'B' else (2, 2)
    cnt = {'B': C_VO, 'A': C_Y, 'H': C_H}[kind]
    a(f"{P}_entry:")
    lane_setup(a)
    if kind != 'B': wait_team(a)
    if kind == 'B':
        a(f"""
        s_mov_b32 s{sSEG}, 0
        s_lshr_b32 s{sA}, s{sROLE}, 2
        s_and_b32 s{sB}, s{sROLE}, 3
        s_lshl_b32 s{sB}, s{sB}, 2
        s_add_u32 s{sB}, s{sB}, s{sWAVE}           ; head
        v_lshlrev_b32 v5, 4, v3
        v_lshl_add_u32 v5, v1, 8, v5
        v_bfe_u32 v6, v0, 4, 1
        v_lshl_add_u32 v{vOUT}, v6, 14, v5
        v_mul_u32_u24 v6, {B_CT}, v6
        v_add_u32 v5, v5, v6
        s_mul_i32 s{sD}, s{sA}, {2*B_CT}
        s_mul_i32 s{sE}, s{sB}, 14336
        s_add_u32 s{sD}, s{sD}, s{sE}
        s_add_u32 s{sD}, s{sD}, {WS_B}
        s_lshl_b32 s42, s{sA}, 15
        s_lshl_b32 s{sE}, s{sB}, 10
        s_add_u32 s42, s42, s{sE}
        s_add_u32 s42, s42, {WS_VO}
        """)
        ustride, ostep = 14336, VO_STEP
    elif kind == 'A':
        perm_rho(a, 5, 6)
        a(f"""
        v_and_b32 v6, 1, v5
        v_mul_u32_u24 v6, 14336, v6
        v_lshrrev_b32 v5, 1, v5
        v_lshl_add_u32 v5, v5, 4, v6
        v_lshl_add_u32 v5, v1, 8, v5
        v_mov_b32 v{vOUT}, v{vL16}
        s_and_b32 s{sSEG}, s{sROLE}, 1
        s_lshr_b32 s{sROLE}, s{sROLE}, 1
        s_lshl_b32 s{sA}, s{sROLE}, 3
        s_lshl_b32 s{sC}, s{sWAVE}, 1
        s_add_u32 s{sA}, s{sA}, s{sC}
        s_mul_i32 s{sD}, s{sA}, 28672
        s_lshl_b32 s42, s{sA}, 11
        s_add_u32 s42, s42, {WS_Y}
        s_mul_i32 s{sE}, s{sSEG}, {VO_STEP}
        s_add_u32 s42, s42, s{sE}
        """)
        ustride, ostep = 28672, VO_STEP
    if kind in 'BA':
        wait_done(a, kind)
        for u in range(NT):
            for t in range(28):
                if t and t % 8 == 0: a(f"s_add_u32 s{sD}, s{sD}, 4096")
                a(f"buffer_load_dwordx4 {v(W(u,t),4)}, v5, {S_WS}, s{sD} offen offset:{(t%8)*512} sc1")
            if u == 0: a(f"s_add_u32 s{sD}, s{sD}, {ustride - 3*4096}")
    else:
        srd(a, 8, 66, F_BYTES)
        a(f"""
        s_and_b32 s{sSEG}, s{sROLE}, 1
        s_lshr_b32 s{sA}, s{sROLE}, 1
        s_lshl_b32 s{sA}, s{sA}, 2
        s_add_u32 s{sA}, s{sA}, s{sWAVE}
        s_lshl_b32 s{sD}, s{sA}, 7
        s_lshl_b32 s42, s{sA}, 12
        s_mul_i32 s{sE}, s{sSEG}, {H_STEP}
        s_add_u32 s42, s42, s{sE}
        s_add_u32 s42, s42, {WS_H}
        v_lshrrev_b32 v5, 3, v0
        v_mul_u32_u24 v5, 3584, v5
        v_and_b32 v6, 7, v0
        v_lshl_add_u32 v5, v6, 4, v5
        v_bfe_u32 v6, v0, 2, 2
        v_lshl_add_u32 v6, v1, 3, v6
        v_lshlrev_b32 v6, 7, v6
        v_bfe_u32 v7, v0, 4, 1
        v_lshl_add_u32 v6, v7, 5, v6
        v_lshl_add_u32 v{vOUT}, v7, 10, 0
        v_and_b32 v7, 1, v0
        v_lshl_add_u32 v6, v7, 4, v6
        v_bfe_u32 v7, v0, 1, 1
        v_lshl_add_u32 v6, v7, 3, v6
        s_mul_i32 s{sE}, s{sWAVE}, 14336
        v_add_u32 v6, s{sE}, v6
        v_lshl_add_u32 v{vOUT}, v1, 8, v{vOUT}
        v_lshl_add_u32 v{vOUT}, v3, 4, v{vOUT}
        v_lshlrev_b32 v10, 2, v2
        """)
        for rnd in range(4):
            for q in range(14):
                a(f"s_add_u32 m0, s{sE}, {q*1024}\n s_nop 0")
                a(f"buffer_load_dwordx4 v5, {S_W}, s{sD} offen lds")
                a(f"s_add_u32 s{sD}, s{sD}, {8*3584}")
            a("s_waitcnt vmcnt(0)")
            for u in range(2):
                for tt in range(7):
                    for z in range(2):
                        a(f"ds_read_b64_tr_b16 {v(W(u, rnd*7+tt) + 2*z, 2)}, v6 offset:{tt*2048 + z*512 + u*64}")
            a("s_waitcnt lgkmcnt(0)")
        a("s_barrier")
        ostep = H_STEP
    nst = 2*NT
    def xdma():
        for q in range(7):
            if q % 4 == 0: a(f"s_add_u32 m0, s43, {q*1024}\n s_add_u32 s{sE}, s44, {q*1024}")
            a(f"buffer_load_dwordx4 v{vL16}, {S_WS}, s{sE} offen offset:{(q%4)*1024} sc1 lds")
        a(f"s_xor_b32 s43, s43, 0x8000\n s_add_u32 s44, s44, {step*28672}")
    a(f"""
    s_mul_i32 s43, s{sWAVE}, 7168
    s_mul_i32 s44, s{sSEG}, 28672
    s_add_u32 s44, s44, s43
    s_add_u32 s44, s44, {WS_XG}
    v_mov_b32 v11, v{vL16}
    s_mov_b32 s45, 0
    """)
    wait_done(a, 'S')
    xdma()
    a("s_waitcnt vmcnt(0)")
    tstamp(a, 6, sWAVE)
    a(f"{P}_loop:")
    a(f"s_waitcnt vmcnt({nst})\n s_barrier")
    if kind == 'H':
        a(f"s_lshl_b32 s{sE}, s{sSEG}, 7\n s_add_u32 s{sE}, s{sE}, {WS_G}")
        a(f"buffer_load_dword v{vG}, v10, {S_WS}, s{sE} offen sc1")
    xdma()
    fetch = lambda t: a(f"ds_read_b128 {v(FR+4*(t % NR),4)}, v11 offset:{t*1024}")
    for t in range(NR-1): fetch(t)
    for t in range(28):
        if t + NR - 1 < 28: fetch(t + NR - 1)
        a(f"s_waitcnt lgkmcnt({min(NR-1, 27-t)})")
        x = v(FR+4*(t % NR), 4)
        if t == 14:
            a(f"s_waitcnt vmcnt({8 if kind == 'H' else 7})\n s_barrier")
            a(f"s_cmp_eq_u32 s45, 0\n s_cbranch_scc1 {P}_noar\n s_sub_u32 s46, s{sSEG}, {step}")
            arrive(a, cnt, 46)
            a(f"{P}_noar:")
        for u in range(NT):
            c = "0" if t == 0 else v(ACC+16*u, 16)
            if kind in SKIP[0]: continue
            if kind == 'B': a(f"{MF32} {v(ACC+16*u,16)}, {x}, {v(W(u,t),4)}, {c}")
            else:           a(f"{MF32} {v(ACC+16*u,16)}, {v(W(u,t),4)}, {x}, {c}")
    a("v_xor_b32 v11, 0x8000, v11")
    if kind == 'H': a(f"s_waitcnt vmcnt(7)\n v_sub_f32 v{vG}, 1.0, v{vG}")
    a("s_nop 10")
    for u in range(NT):
        if kind == 'H':
            for h0 in range(0, 16, 8):
                r = ACC + 16*u + h0
                for q in range(8): a(f"v_mul_f32 v{TM+16+q}, 0xbfb8aa3b, v{r+q}")
                for q in range(8): a(f"v_exp_f32 v{TM+16+q}, v{TM+16+q}")
                for q in range(8): a(f"v_add_f32 v{TM+16+q}, 1.0, v{TM+16+q}\n v_mul_f32 v{r+q}, v{vG}, v{r+q}")
                for q in range(8): a(f"v_rcp_f32 v{TM+16+q}, v{TM+16+q}")
                a("s_nop 0")
                for q in range(8): a(f"v_mul_f32 v{r+q}, v{TM+16+q}, v{r+q}")
        for be in range(2):
            r = ACC + 16*u + 8*be; t = TM + 8*u + 4*be
            order = (0, 4, 2, 6) if kind == 'B' else (0, 2, 4, 6)
            for q in range(4): a(f"v_cvt_pk_bf16_f32 v{t+q}, v{r+order[q]}, v{r+order[q]+1}")
            off = {'B': u*1024 + be*512, 'A': u*2048 + be*1024, 'H': u*2048 + be*512}[kind]
            a(f"buffer_store_dwordx4 {v(t,4)}, v{vOUT}, {S_WS}, s42 offen offset:{off} sc1")
    a(f"""
    s_add_u32 s42, s42, {step*ostep}
    s_add_u32 s45, s45, 1
    s_add_u32 s{sSEG}, s{sSEG}, {step}
    s_cmp_lt_u32 s{sSEG}, 64
    s_cbranch_scc1 {P}_loop
    s_waitcnt vmcnt(0)
    s_barrier
    """)
    a(f"s_sub_u32 s46, s{sSEG}, {step}")
    arrive(a, cnt, 46)
    a("s_branch L_next_free")

def tu(a):
    P = "TU"
    W = lambda hh, k: 256 + (hh*7 + k)*8
    M, D, T, AD, t0 = 16, 48, 64, 72, 80
    a(f"{P}_entry:")
    lane_setup(a)
    wait_team(a)
    a(f"""
    s_mul_i32 s{sD}, s{sROLE}, {B_CT}
    s_mul_i32 s{sE}, s{sWAVE}, {4*14336}
    s_add_u32 s{sD}, s{sD}, s{sE}
    s_add_u32 s{sD}, s{sD}, {WS_B}
    """)
    wait_done(a, 'B')
    for i in range(56):
        if i and i % 4 == 0: a(f"s_add_u32 s{sD}, s{sD}, 4096")
        a(f"buffer_load_dwordx4 {v(256+4*i,4)}, v{vL16}, {S_WS}, s{sD} offen offset:{(i%4)*1024} sc1")
    a(f"""
    v_and_b32 v5, 1, v0
    v_cmp_eq_u32 vcc, 1, v5
    v_mov_b32 v8, 0x44444444
    v_mov_b32 v6, 0xeeeeeeee
    v_cndmask_b32 v8, v8, v6, vcc
    v_lshlrev_b32 v6, 8, v4
    v_lshl_add_u32 v6, v5, 2, v6
    v_bfe_u32 v5, v0, 1, 3
    v_lshl_add_u32 v6, v5, 4, v6
    s_lshl_b32 s42, s{sROLE}, 12
    s_lshl_b32 s{sE}, s{sWAVE}, 10
    s_add_u32 s42, s42, s{sE}
    s_add_u32 s42, s42, {WS_UM}
    s_lshr_b32 s43, s{sROLE}, 2
    s_lshl_b32 s43, s43, 7
    s_mov_b32 s{sSEG}, 0
    """)
    for k in range(7): a(f"v_add_u32 v{AD+k}, {k*1024}, v6")
    wait_done(a, 'S')
    fetch_m_issue(a, t0)
    a(f"{P}_loop:")
    for r in range(16): a(f"v_mov_b32 v{D+r}, 0")
    fetch_m_finish(a, P, t0, 0)
    t63(a, 16)
    for k in range(7):
        a(f"ds_read2_b32 {v(M+4*k,2)}, v{AD+k} offset0:0 offset1:2")
        a(f"ds_read2_b32 {v(M+4*k+2,2)}, v{AD+k} offset0:32 offset1:34")
    for k in range(7):
        a(f"s_waitcnt lgkmcnt({12-2*k})")
        for hh in range(4): a(f"{SM} {v(D+4*hh,4)}, {v(M+4*k,4)}, {v(W(hh,k),8)}, v8")
    a("s_nop 4")
    for hh in range(4):
        d = D + 4*hh
        a(f"v_add_f32 v{d}, v{d}, v{d+1}\n v_add_f32 v{d+2}, v{d+2}, v{d+3}\n v_cvt_pk_bf16_f32 v{T+hh}, v{d}, v{d+2}")
    a(f"buffer_store_dwordx4 {v(T,4)}, v{vL16}, {S_WS}, s42 offen sc1")
    a(f"s_mov_b32 s46, s{sSEG}\n s_add_u32 s{sSEG}, s{sSEG}, 1")
    fetch_m_issue(a, t0)
    a("s_waitcnt vmcnt(2)\n s_barrier")
    arrive(a, C_UM, 46, 43)
    t63(a, 17, 46)
    a(f"""
    s_add_u32 s42, s42, {UM_STEP}
    s_cmp_lt_u32 s{sSEG}, 64
    s_cbranch_scc1 {P}_loop
    s_branch L_next
    """)

def o1(a):
    P = "O1"
    Y = lambda t: 256 + 4*t
    SX, SMM, FR, T, t0 = 16, 32, 48, 72, 88
    vG, vPX, vPM, vRW, vKM, vMX = 8, 9, 10, 11, 12, 13
    NR = 6; L_MM = 28672
    a(f"{P}_entry:")
    lane_setup(a)
    a(f"""
    s_lshr_b32 s{sSEG}, s{sROLE}, 2
    s_and_b32 s43, s{sROLE}, 3
    s_lshl_b32 s44, s43, 2
    s_add_u32 s44, s44, s{sWAVE}               ; head
    v_bfe_u32 v5, v0, 4, 1
    v_lshlrev_b32 v5, 10, v5
    v_lshl_add_u32 v5, v3, 4, v5               ; rt*1024 + c*16
    v_lshl_add_u32 v{vPX}, v1, 8, v5
    s_lshl_b32 s{sA}, s44, 11
    v_add_u32 v{vPX}, s{sA}, v{vPX}
    v_lshl_add_u32 v{vPM}, v1, 9, v5
    s_lshl_b32 s{sA}, s43, 11
    s_lshl_b32 s{sB}, s{sWAVE}, 2
    s_add_u32 s{sA}, s{sA}, s{sB}
    s_add_u32 s{sA}, s{sA}, 32768
    v_add_u32 v{vPM}, s{sA}, v{vPM}
    v_lshlrev_b32 v5, 2, v1
    v_sub_u32 v{vRW}, v2, v5
    v_and_b32 v5, 7, v0
    v_lshlrev_b32 v5, 4, v5
    v_lshl_add_u32 v{vKM}, v1, 7, v5
    v_lshlrev_b32 v14, 2, v2
    s_mul_i32 s45, s{sWAVE}, 7168
    """)
    wait_done(a, 'S')
    a(f"{P}_loop:")
    a(f"""
    s_mul_i32 s{sA}, s{sSEG}, 28672
    s_add_u32 s{sA}, s{sA}, s45
    s_add_u32 s{sA}, s{sA}, {WS_XG}
    """)
    for q in range(7):
        if q % 4 == 0: a(f"s_add_u32 m0, s45, {q*1024}\n s_add_u32 s{sE}, s{sA}, {q*1024}")
        a(f"buffer_load_dwordx4 v{vL16}, {S_WS}, s{sE} offen offset:{(q%4)*1024} sc1 lds")
    a(f"s_lshl_b32 s{sE}, s{sSEG}, 7\n s_add_u32 s{sE}, s{sE}, {WS_G}")
    a(f"buffer_load_dword v{vG}, v14, {S_WS}, s{sE} offen sc1")
    wait_cnt(a, C_Y, 28)
    a(f"""
    s_mul_i32 s{sA}, s{sSEG}, {VO_STEP}
    s_mul_i32 s{sB}, s44, 28672
    s_add_u32 s{sA}, s{sA}, s{sB}
    s_add_u32 s{sA}, s{sA}, {WS_Y}
    """)
    for t in range(28):
        if t and t % 4 == 0: a(f"s_add_u32 s{sA}, s{sA}, 4096")
        a(f"buffer_load_dwordx4 {v(Y(t),4)}, v{vL16}, {S_WS}, s{sA} offen offset:{(t%4)*1024} sc1")
    a("s_barrier")
    def scores(acc, base, stride, off0, vm):
        fetch = lambda t: a(f"ds_read_b128 {v(FR+4*(t % NR),4)}, v{base} offset:{off0 + t*stride}")
        for t in range(NR-1): fetch(t)
        for t in range(28):
            if t + NR - 1 < 28: fetch(t + NR - 1)
            a(f"s_waitcnt lgkmcnt({min(NR-1, 27-t)})" + (f" vmcnt({27-t})" if vm else ""))
            a(f"{MF32} {v(acc,16)}, {v(FR+4*(t % NR),4)}, {v(Y(t),4)}, {'0' if t == 0 else v(acc,16)}")
    scores(SX, vL16, 1024, 0, True)
    a(f"v_mov_b32 v{T}, 0xff800000\n s_nop 10")
    for b in range(4):
        for r in range(4):
            a(f"v_cmp_le_i32 vcc, {8*b+r}, v{vRW}\n s_nop 1\n v_cndmask_b32 v{SX+4*b+r}, v{T}, v{SX+4*b+r}, vcc")
    a(f"v_max3_f32 v{vMX}, v{SX}, v{SX+1}, v{SX+2}")
    for r in range(3, 15, 2): a(f"v_max3_f32 v{vMX}, v{vMX}, v{SX+r}, v{SX+r+1}")
    a(f"v_max_f32 v{vMX}, v{vMX}, v{SX+15}")
    t63(a, 18)
    fetch_m_issue(a, t0); fetch_m_finish(a, P, t0, L_MM)
    t63(a, 19)
    scores(SMM, vKM, 256, L_MM, False)
    a("s_nop 11")
    a(f"v_max3_f32 v{vMX}, v{vMX}, v{SMM}, v{SMM+1}\n v_max3_f32 v{vMX}, v{vMX}, v{SMM+2}, v{SMM+3}")
    a(f"v_mov_b32 v{T}, v{vMX}\n s_nop 1\n v_permlane32_swap_b32 v{T}, v{vMX}\n v_max_f32 v{vMX}, v{vMX}, v{T}")
    vals = [SX+r for r in range(16)] + [SMM+r for r in range(4)]
    a(f"s_mov_b32 s{sB}, {team.SCALE}\n v_mul_f32 v{vMX}, s{sB}, v{vMX}")
    for r in vals: a(f"v_fma_f32 v{r}, v{r}, s{sB}, -v{vMX}")
    for r in vals: a(f"v_exp_f32 v{r}, v{r}")
    a(f"v_add_f32 v{T}, v{vals[0]}, v{vals[1]}\n v_add_f32 v{T+1}, v{vals[2]}, v{vals[3]}")
    for i in range(4, 20, 2): a(f"v_add_f32 v{T}, v{T}, v{vals[i]}\n v_add_f32 v{T+1}, v{T+1}, v{vals[i+1]}")
    a(f"v_add_f32 v{T}, v{T}, v{T+1}\n v_mov_b32 v{T+1}, v{T}\n s_nop 1\n v_permlane32_swap_b32 v{T}, v{T+1}\n v_add_f32 v{T}, v{T}, v{T+1}")
    a(f"v_rcp_f32 v{T}, v{T}\n s_nop 0\n v_mul_f32 v{T}, v{T}, v{vG}")
    for r in vals: a(f"v_mul_f32 v{r}, v{r}, v{T}")
    a(f"s_mul_i32 s{sA}, s{sSEG}, {PX_STEP}\n s_add_u32 s{sA}, s{sA}, {WS_PX}")
    for be in range(2):
        for q, o in enumerate((0, 4, 2, 6)): a(f"v_cvt_pk_bf16_f32 v{T+4+4*be+q}, v{SX+8*be+o}, v{SX+8*be+o+1}")
        a(f"buffer_store_dwordx4 {v(T+4+4*be,4)}, v{vPX}, {S_WS}, s{sA} offen offset:{512*be} sc1")
    for q in range(2):
        a(f"v_cvt_pk_bf16_f32 v{T+12+q}, v{SMM+2*q}, v{SMM+2*q+1}")
        a(f"buffer_store_dword v{T+12+q}, v{vPM}, {S_WS}, s{sA} offen offset:{256*q} sc1")
    a("s_waitcnt vmcnt(0)\n s_barrier")
    arrive(a, C_P, sSEG)
    t63(a, 20)
    a(f"""
    s_add_u32 s{sSEG}, s{sSEG}, {NS_O}
    s_cmp_lt_u32 s{sSEG}, 64
    s_cbranch_scc1 {P}_loop
    s_branch L_next
    """)

def o2(a):
    P = "O2"
    W = lambda t, ct: 256 + (t*4 + ct)*4
    ACC, HF, VO = 16, 48, 160
    PXR, PMR, UMR = HF, HF + 32, HF + 40
    vRW_, vRR, vOA = 8, 9, 10
    a(f"{P}_entry:")
    lane_setup(a)
    wait_team(a)
    srd(a, 8, 68, F_BYTES)
    a(f"""
    s_mul_i32 s{sSEG}, s{sROLE}, 9363
    s_lshr_b32 s{sSEG}, s{sSEG}, 16            ; role / 7
    s_mul_i32 s{sA}, s{sSEG}, 7
    s_sub_u32 s43, s{sROLE}, s{sA}
    s_mul_i32 s{sD}, s{sWAVE}, {448*896}
    s_lshl_b32 s{sA}, s43, 7
    s_add_u32 s{sD}, s{sD}, s{sA}
    v_lshrrev_b32 v5, 3, v0
    v_mul_u32_u24 v5, 896, v5
    v_and_b32 v6, 7, v0
    v_lshl_add_u32 v5, v6, 4, v5
    v_bfe_u32 v6, v0, 2, 2
    v_lshl_add_u32 v6, v4, 3, v6
    v_lshlrev_b32 v6, 7, v6
    v_and_b32 v7, 3, v0
    v_lshl_add_u32 v6, v7, 3, v6
    s_lshl_b32 s{sE}, s{sWAVE}, 14
    v_add_u32 v6, s{sE}, v6
    """)
    for rnd, nt in enumerate((4, 4, 4, 2)):
        for q in range(4*nt):
            a(f"s_add_u32 m0, s{sE}, {q*1024}\n s_nop 0")
            a(f"buffer_load_dwordx4 v5, {S_W}, s{sD} offen lds")
            a(f"s_add_u32 s{sD}, s{sD}, {8*896}")
        a("s_waitcnt vmcnt(0)")
        for tt in range(nt):
            for ct in range(4):
                for z in range(2):
                    a(f"ds_read_b64_tr_b16 {v(W(rnd*4+tt, ct) + 2*z, 2)}, v6 offset:{tt*4096 + z*512 + ct*32}")
        a("s_waitcnt lgkmcnt(0)")
    srd(a, 8, 70, X_BYTES)
    a(f"""
    s_barrier
    v_mul_u32_u24 v{vRW_}, 272, v3
    v_lshl_add_u32 v{vRW_}, v4, 4, v{vRW_}
    s_mul_i32 s{sA}, s{sWAVE}, 8704
    v_add_u32 v{vRW_}, s{sA}, v{vRW_}
    v_lshrrev_b32 v5, 3, v0
    s_lshl_b32 s{sA}, s{sWAVE}, 3
    v_add_u32 v5, s{sA}, v5
    v_and_b32 v6, 7, v0
    v_mul_u32_u24 v{vRR}, 272, v5
    v_lshl_add_u32 v{vRR}, v6, 5, v{vRR}
    v_mul_u32_u24 v{vOA}, 896, v5
    v_lshl_add_u32 v{vOA}, v6, 4, v{vOA}
    s_lshl_b32 s{sA}, s43, 7
    v_add_u32 v{vOA}, s{sA}, v{vOA}
    v_and_b32 v11, 1, v0
    v_mov_b32 v12, 4
    s_add_u32 s{sA}, s{sA}, {C_UM - C_P}
    v_mul_lo_u32 v11, v11, s{sA}
    """)
    wait_done(a, 'S')
    a(f"{P}_loop:")
    wait_cnt(a, C_H, 7)
    a(f"""
    s_mul_i32 s{sA}, s{sSEG}, {H_STEP}
    s_mul_i32 s{sB}, s{sWAVE}, {14*2048}
    s_add_u32 s{sA}, s{sA}, s{sB}
    s_add_u32 s{sA}, s{sA}, {WS_H}
    """)
    for i in range(28):
        if i and i % 4 == 0: a(f"s_add_u32 s{sA}, s{sA}, 4096")
        a(f"buffer_load_dwordx4 {v(HF+4*i,4)}, v{vL16}, {S_WS}, s{sA} offen offset:{(i%4)*1024} sc1")
    acc = lambda ct, rt: v(ACC + (ct*2 + rt)*4, 4)
    for t in range(14):
        for rt in range(2):
            a(f"s_waitcnt vmcnt({27 - 2*t - rt})")
            for ct in range(4): a(f"{MF16} {acc(ct,rt)}, {v(W(t,ct),4)}, {v(HF+8*t+4*rt,4)}, {'0' if t == 0 else acc(ct,rt)}")
    wait_cnt(a, C_VO, 56)
    a(f"""
    s_mul_i32 s{sA}, s{sSEG}, {VO_STEP}
    s_lshl_b32 s{sB}, s43, 16
    s_add_u32 s{sA}, s{sA}, s{sB}
    s_lshl_b32 s{sB}, s{sWAVE}, 12
    s_add_u32 s{sA}, s{sA}, s{sB}
    s_add_u32 s{sA}, s{sA}, {WS_VO}
    """)
    for ct in range(4):
        if ct: a(f"s_add_u32 s{sA}, s{sA}, 16384")
        for hh in range(4): a(f"buffer_load_dwordx4 {v(VO+(hh*4+ct)*4,4)}, v{vL16}, {S_WS}, s{sA} offen offset:{hh*1024} sc1")
    t63(a, 21)
    wait_cnt(a, C_P, 0, (11, 12))
    t63(a, 22)
    a(f"""
    s_mul_i32 s{sA}, s{sSEG}, {UM_STEP}
    s_lshl_b32 s{sB}, s43, 14
    s_add_u32 s{sA}, s{sA}, s{sB}
    s_lshl_b32 s{sB}, s{sWAVE}, 10
    s_add_u32 s{sA}, s{sA}, s{sB}
    s_add_u32 s{sA}, s{sA}, {WS_UM}
    """)
    for ct in range(4):
        if ct: a(f"s_add_u32 s{sA}, s{sA}, 4096")
        a(f"buffer_load_dwordx4 {v(UMR+4*ct,4)}, v{vL16}, {S_WS}, s{sA} offen sc1")
    a(f"""
    s_mul_i32 s{sA}, s{sSEG}, {PX_STEP}
    s_add_u32 s{sA}, s{sA}, {WS_PX}
    s_lshl_b32 s{sB}, s{sWAVE}, 13
    s_add_u32 s{sB}, s{sA}, s{sB}
    s_add_u32 s{sC}, s{sB}, 4096
    s_lshl_b32 s{sD}, s{sWAVE}, 11
    s_add_u32 s{sD}, s{sD}, s{sA}
    s_add_u32 s{sD}, s{sD}, 32768
    """)
    for i in range(8): a(f"buffer_load_dwordx4 {v(PXR+4*i,4)}, v{vL16}, {S_WS}, s{sB + i//4} offen offset:{(i%4)*1024} sc1")
    for i in range(2): a(f"buffer_load_dwordx4 {v(PMR+4*i,4)}, v{vL16}, {S_WS}, s{sD} offen offset:{i*1024} sc1")
    for hh in range(4):
        for rt in range(2):
            a(f"s_waitcnt vmcnt({9 - 2*hh - rt})")
            for ct in range(4): a(f"{MF16} {acc(ct,rt)}, {v(VO+(hh*4+ct)*4,4)}, {v(PXR+8*hh+4*rt,4)}, {acc(ct,rt)}")
    a("s_waitcnt vmcnt(0)")
    for ct in range(4):
        a("s_nop 0")
        for rt in range(2): a(f"{MF16} {acc(ct,rt)}, {v(UMR+4*ct,4)}, {v(PMR+4*rt,4)}, {acc(ct,rt)}")
    a("s_nop 1")
    for ct in range(4):
        for rt in range(2):
            if ct == 3 and rt == 0: a("s_nop 3")
            a(f"ds_write_b128 v{vRW_}, {acc(ct,rt)} offset:{rt*16*272 + ct*64}")
    a("s_waitcnt lgkmcnt(0)\n s_barrier")
    for w in range(4):
        for q in range(2): a(f"ds_read_b128 {v(VO+8*w+4*q,4)}, v{vRR} offset:{w*8704 + q*16}")
    a(f"s_mul_i32 s{sA}, s{sSEG}, {32*896}")
    for w in range(1, 4):
        a(f"s_waitcnt lgkmcnt({6-2*w})")
        for q in range(8): a(f"v_add_f32 v{VO+q}, v{VO+q}, v{VO+8*w+q}")
    for q in range(4): a(f"v_cvt_pk_bf16_f32 v{VO+32+q}, v{VO+2*q}, v{VO+2*q+1}")
    a(f"buffer_store_dwordx4 {v(VO+32,4)}, v{vOA}, {S_W}, s{sA} offen")
    a(f"""
    s_barrier
    s_add_u32 s{sSEG}, s{sSEG}, {NS_O}
    s_cmp_lt_u32 s{sSEG}, 64
    s_cbranch_scc1 {P}_loop
    s_branch L_next
    """)

def bc_atomic(a, L, off, val):
    a(f"""
    s_cmp_lg_u32 s{sWAVE}, 0
    s_cbranch_scc1 {L}_w
    v_mov_b32 v1, {val}
    v_mov_b32 v2, {off}
    v_mov_b32 v3, {L_BC}
    s_mov_b64 exec, 1
    buffer_atomic_add v1, v2, {S_DBG}, 0 offen sc0
    s_waitcnt vmcnt(0)
    ds_write_b32 v3, v1
    s_waitcnt lgkmcnt(0)
    s_mov_b64 exec, -1
    {L}_w:
    v_mov_b32 v3, {L_BC}
    s_barrier
    ds_read_b32 v1, v3
    s_waitcnt lgkmcnt(0)
    v_readfirstlane_b32 s{sROLE}, v1
    s_barrier
    """)

def k2(a, name, o=None):
    o = o or team.Opt(diag=False)
    GATE[0] = o.gate
    SLEEP[0] = f"s_sleep {o.sleep}" if o.sleep else ""
    kernel_head(a, name)
    a(f"""
    s_cmp_ge_u32 s2, 256
    s_cbranch_scc1 L_exit
    s_load_dwordx4 s[76:79], s[0:1], 0         ; x, mem0
    s_load_dwordx8 s[80:87], s[0:1], 16
    s_load_dwordx8 s[64:71], s[0:1], 56        ; B_x w1 w2 gate_w
    s_load_dwordx2 s[88:89], s[0:1], 88
    s_load_dwordx4 s[72:75], s[0:1], 96
    s_getreg_b32 s18, hwreg(HW_REG_XCC_ID)
    v_lshrrev_b32 v1, 6, v0
    s_and_b32 s18, s18, 15
    v_readfirstlane_b32 s{sWAVE}, v1
    s_mov_b32 s{sBUD}, {o.budget}
    s_waitcnt lgkmcnt(0)
    """)
    srd(a, 4, 74, WS_BYTES); srd(a, 12, 72, 256); srd(a, 60, 78, 7168)
    if DIAG['on']: a("s_mov_b32 s3, s2")
    tdefer(a, 0); dstamp(a, 1, sWAVE, inv=True, few=True)
    if o.cpf:
      a(f"""
      s_getpc_b64 s[36:37]
      L_code_ref:
      s_and_b32 s36, s36, 0xffffff00
      s_bfe_u32 s38, s2, 0x20003
      s_lshl_b32 s38, s38, 14
      v_lshlrev_b32 v203, 6, v0
      v_add_u32 v203, s38, v203
      v_min_u32 v203, L_code_end - L_code_ref, v203
      global_load_dword v204, v203, s[36:37]
      """)
    a(f"""
    s_lshl_b32 s36, s2, 2
    s_add_u32 s36, s36, s{sWAVE}
    s_cmp_lg_u32 s36, 1
    s_cbranch_scc1 L_p1
    v_mov_b32 v199, 1
    v_and_b32 v200, 31, v0
    v_lshlrev_b32 v200, 7, v200
    v_mov_b32 v201, 0
    s_mov_b32 s36, {WS_DONE}
    buffer_store_dword v201, v200, {S_WS}, s36 offen sc1
    v_mov_b32 v200, {D_RST}
    s_waitcnt vmcnt(0)
    s_mov_b64 exec, 1
    buffer_atomic_add v199, v200, {S_DBG}, 0 offen
    s_mov_b64 exec, -1
    L_p1:
    """)
    def late(a):
        L = a.uid("LT")
        a(f"""
        s_mov_b64 exec, 1
        v_mov_b32 v200, {D_RST}
        s_cmp_eq_u32 s{k1.sDG}, 3
        s_cselect_b32 s36, 0, s{sWAVE}
        s_cmp_eq_u32 s36, 0
        s_cselect_b32 s36, 0, {OOB}
        buffer_load_dword v201, v200, {S_DBG}, s36 offen sc1
        s_cmp_eq_u32 s{sWAVE}, 1
        s_cbranch_scc1 {L}
        s_mov_b32 s36, {OOB}
        buffer_load_dword v202, v200, {S_DBG}, s36 offen sc1
        s_branch {L}_e
        {L}:
        s_movk_i32 s36, {D_TICK}
        s_cmp_eq_u32 s18, {o.team_xcc}
        s_cselect_b32 s36, {D_TEAM}, s36
        v_mov_b32 v203, s36
        v_mov_b32 v202, 1
        buffer_atomic_add v202, v203, {S_DBG}, 0 offen sc0
        {L}_e:
        s_mov_b64 exec, -1
        """)
    def early(a):
        if not o.bwait: return
        a(f"s_cmp_lg_u32 s{sWAVE}, 0\n s_cbranch_scc1 L_e1\n s_mov_b64 exec, 1")
        team.dbg_wait(a, "L_e0", D_RST, 1, 200, "sc1")
        a("s_mov_b64 exec, -1\n L_e1:\n s_barrier")
    k1.products(a, 76, 80, 70, early, late)
    a(f"""
    v_mbcnt_lo_u32_b32 v0, -1, 0
    v_mbcnt_hi_u32_b32 v0, -1, v0
    s_mov_b32 s70, s88
    s_mov_b32 s71, s89
    s_mov_b64 exec, 1
    """)
    a(f"s_waitcnt vmcnt(0)\n v_cmp_eq_u32 vcc, 0, v201\n s_cbranch_vccz L_rst_ok\n s_cmp_eq_u32 s{k1.sDG}, 3\n s_cselect_b32 s36, 0, s{sWAVE}\n s_cmp_lg_u32 s36, 0\n s_cbranch_scc1 L_rst_ok")
    team.dbg_wait(a, "L_rst", D_RST, 1, 2)
    a(f"""
    s_lshr_b32 s38, s{k1.sMAT}, 2
    s_and_b32 s39, s{k1.sMAT}, 1
    s_add_u32 s39, s39, 8
    s_cmp_ge_u32 s{k1.sBLK}, 14
    s_cselect_b32 s38, s39, s38
    s_lshl_b32 s38, s38, 7
    s_add_u32 s38, s38, {WS_DONE}
    v_mov_b32 v1, 1
    v_mov_b32 v2, 0
    s_cmp_eq_u32 s{k1.sDG}, 3
    s_cbranch_scc1 L_p2
    s_barrier
    v_mov_b32 v1, 2
    s_cmp_lg_u32 s{sWAVE}, 0
    s_cbranch_scc1 L_p3
    L_p2:
    buffer_atomic_add v1, v2, {S_WS}, s38 offen
    L_p3:
    v_mov_b32 v3, {L_BC}
    s_barrier
    s_cmp_lg_u32 s{sWAVE}, 1
    s_cbranch_scc1 L_p4
    ds_write_b32 v3, v202
    s_waitcnt lgkmcnt(0)
    L_p4:
    s_barrier
    ds_read_b32 v1, v3
    s_waitcnt lgkmcnt(0)
    v_readfirstlane_b32 s{sROLE}, v1
    s_mov_b64 exec, -1
    s_barrier
    """)
    tstamp(a, 3, sWAVE); tflush(a, sWAVE); dstamp(a, 4, sWAVE, few=True)
    a(f"""
    s_cmp_lg_u32 s18, {o.team_xcc}
    s_cbranch_scc1 L_have
    s_and_b32 s{sROLE}, s{sROLE}, 0xffff
    s_cmp_lt_u32 s{sROLE}, 32
    s_cbranch_scc1 L_team
    s_branch L_next
    L_next_free:
    """)
    bc_atomic(a, "L_t1", D_TEAM, 0)
    a(f"s_and_b32 s{sROLE}, s{sROLE}, 0xffff\n s_cmp_ge_u32 s{sROLE}, 32\n s_cbranch_scc1 L_next")
    bc_atomic(a, "L_t2", D_TEAM, 0x10001)
    a(f"""
    s_and_b32 s{sROLE}, s{sROLE}, 0xffff
    s_cmp_lt_u32 s{sROLE}, 32
    s_cbranch_scc1 L_team
    L_next:
    """)
    tstamp(a, 7, sWAVE); dstamp(a, 10, sWAVE)
    bc_atomic(a, "L_t3", D_TICK, 1)
    a("L_have:")
    if DIAG['on']: a(f"s_cmp_ge_u32 s{sROLE}, {T_END}\n s_cbranch_scc1 L_exit")
    tstamp(a, 5, sWAVE); tstamp(a, 8, sWAVE, extra=f"s{sROLE}")
    for lab, lo, hi in (("GB", T_TB, T_TA), ("GA", T_TA, T_TH), ("GH", T_TH, T_TU), ("TU", T_TU, T_O1), ("O1", T_O1, T_O2), ("O2", T_O2, T_END)):
        a(f"s_cmp_lt_u32 s{sROLE}, {hi - lo}\n s_cbranch_scc1 {lab}_entry\n s_sub_u32 s{sROLE}, s{sROLE}, {hi - lo}")
    a("L_exit:\n s_endpgm\n L_team_done:")
    dstamp(a, 9, sWAVE, tmp=(56, 57))
    if DIAG['on']:
        tstamp(a, 7, sWAVE, tmp=(56, 57))
        a(f"""
        s_cmp_lg_u32 s17, 3
        s_cbranch_scc1 L_exit
        s_lshl_b32 s36, s16, 14
        s_add_u32 s36, s36, {WS_DIAG + 65536 + 3*4096}
        v_lshrrev_b32 v28, 2, v0
        """)
        for i in range(10): a(f"buffer_store_dword v{160+i}, v28, s[4:7], s36 offen offset:{256*i}")
        a("v_mov_b32 v28, s56\n v_mov_b32 v29, s57\n v_mov_b32 v30, s58\n v_mov_b32 v31, 0")
        a("v_mov_b32 v32, 0\n buffer_store_dwordx4 v[28:31], v32, s[4:7], s36 offen offset:2560")
    a("s_endpgm")
    gw(a, 'B'); gw(a, 'A'); gw(a, 'H'); tu(a); o1(a); o2(a)
    a("L_team:")
    tstamp(a, 5, sWAVE); tstamp(a, 8, sWAVE, extra="1000")
    team.team_body(a, o)
    a("L_code_end:")
```

```python
from asmlib import *
from layout import *

L_M, L_Y, L_UM, L_MISC, L_S, L_B0, L_X, L_X2, L_B1 = 0, 8192, 12288, 16384, 16640, 18432, 0xc000, 0x10000, 0x13800
TEAM_LDS = L_B1 + 30720
SM = "v_smfmac_f32_16x16x64_bf16"
S_WS, S_X, S_DBG = "s[4:7]", "s[8:11]", "s[12:15]"
sRANK, sWAVE, sH, sJ, sSTEP, sCT = 16, 17, 18, 19, 20, 21
sFL, sMODE = 22, 23
sCUR, sNXT, sPRV = 24, 25, 26
sVO, sXO, sCN, sMO, sBUD = 30, 31, 32, 33, 35
sT0, sT1, sT2, sT3 = 36, 37, 38, 39
sM1, sXT, sXL = 45, 47, 46
OOB = 0x7ff00000
SCALE = 0x3db8aa3b
sSC = 44
XSTEP = 32*896

class Opt:
    def __init__(self, **kw):
        self.trace = None; self.diag = True
        self.nsteps = 63
        self.kf = 3; self.nf1 = 5; self.nf = 5; self.ns = 5; self.f2pos = 0; self.kgo = 3; self.nx1 = 0; self.kfirst = 0; self.xb = 0; self.funr = 2; self.nv0 = 10; self.b0p = 2
        self.sleep = 4; self.cpf = 0; self.bwait = 1; self.gate = True; self.budget = 2000000; self.team_xcc = 0
        self.__dict__.update(kw)

def nops(a, n):
    while n > 0:
        k = min(n, 16); a(f"s_nop {k-1}"); n -= k

def load_regs(a, regs, soff, vaddr="v0", fl=" sc1"):
    for i, r in enumerate(regs):
        if i and i % 4 == 0: a(f"s_add_u32 s{soff}, s{soff}, 4096")
        a(f"buffer_load_dwordx4 {v(r,4)}, {vaddr}, {S_WS}, s{soff} offen offset:{(i%4)*1024}{fl}")

TR_S, TR_V3 = 84, 160
def stamp(a, o, kind, pt):
    if o.trace and pt in o.trace.get(kind, []):
        i = o.trace[kind].index(pt)
        a(f"s_memtime s[{TR_S+2*i}:{TR_S+2*i+1}]")
def stamp_flush(a, o, kind, w=None):
    if not o.trace or kind not in o.trace: return
    n = len(o.trace[kind])
    a(f"s_memtime s[52:53]\n s_memrealtime s[50:51]\n s_mov_b32 m0, s{sSTEP}\n s_waitcnt lgkmcnt(0)")
    if kind == 'y':
        a(f"s_lshl_b32 s50, s{sRANK}, 2\n s_add_u32 s50, s50, {w}\n s_lshl_b32 s50, s50, 12\n s_lshl_b32 s51, s{sSTEP}, 2\n s_add_u32 s50, s50, s51\n s_add_u32 s50, s50, {WS_DIAG + 65536}\n v_mov_b32 v62, 0")
        for i in range(n): a(f"v_mov_b32 v63, s{TR_S+2*i}\n buffer_store_dword v63, v62, {S_WS}, s50 offen offset:{256*i}")
        return
    for i in range(n): a(f"v_writelane_b32 v{TR_V3+i}, s{TR_S+2*i}, m0")
    a(f"v_writelane_b32 v{TR_V3+8}, s52, m0\n v_writelane_b32 v{TR_V3+9}, s50, m0")
def count(a, o, r):
    if o.diag: a(f"s_add_u32 s{r}, s{r}, 1")

def ring_advance(a):
    a(f"""
    s_mov_b32 s{sPRV}, s{sCUR}
    s_mov_b32 s{sCUR}, s{sNXT}
    s_add_u32 s{sNXT}, s{sNXT}, 0x10000
    s_and_b32 s{sNXT}, s{sNXT}, {WS_RING | 0x30000}
    """)

def x_dma(a, lo=0, hi=14):
    for q in range(lo, hi):
        if (q - lo) % 4 == 0: a(f"s_add_u32 m0, s{sXL}, {q*1024}\n s_add_u32 s{sT2}, s{sXO}, {q*1024}")
        a(f"buffer_load_dwordx4 v0, {S_WS}, s{sT2} offen offset:{((q-lo)%4)*1024} sc1 lds")
    a(f"s_add_u32 s{sXO}, s{sXO}, {XSTEP}\n s_xor_b32 s{sXL}, s{sXL}, 0x1c000")

def budget_check(a):
    a(f"s_sub_u32 s{sBUD}, s{sBUD}, 1\n s_cmp_eq_u32 s{sBUD}, 0\n s_cbranch_scc1 L_team_done")

def flag_poll(a, o, P, regs, vaddr, off, s_want):
    n = len(regs)
    a("s_mov_b64 exec, 0xff")
    def body(i, wait=True):
        a(f"buffer_load_dword v{regs[i]}, {vaddr}, {S_WS}, s{sFL} offen offset:{off} sc1")
        if wait: a(f"s_waitcnt vmcnt({n-1})")
        a(f"v_cmp_ne_u32 vcc, s{s_want}, v{regs[(i+1)%n]}")
        a(f"s_cbranch_vccz {P}_fok")
    for i in range(n-1): body(i, False)
    body(n-1)
    a(f"{P}_fpoll:")
    for _ in range(o.funr):
        for i in range(n): body(i)
    a(f"s_sub_u32 s{sBUD}, s{sBUD}, 1\n s_cmp_lg_u32 s{sBUD}, 0\n s_cbranch_scc1 {P}_fpoll\n s_branch L_team_done")
    a(f"{P}_fok:")
    a("s_mov_b64 exec, -1")

KORD = (0, 1, 2, 6, 3, 4, 5)

def ywave(a, o, w):
    P = f"Y{w}"
    D, M, T = 12, 28, 8
    Aop = lambda t, k: 256 + (t*7 + k)*8
    def Bop(hh, k):
        i = hh*7 + k
        return 256 + 224 + i*8 if i < 4 else 64 + (i-4)*8
    def lds_wait(L, level):
        a(f"""
        v_mov_b32 v57, {L_MISC + 128}
        {L}:
        ds_read_b32 v56, v57
        s_waitcnt lgkmcnt(0)
        v_cmp_gt_u32 vcc, {level}, v56
        s_cbranch_vccz {L}_ok
        s_sleep 1
        s_sub_u32 s{sBUD}, s{sBUD}, 1
        s_cmp_lg_u32 s{sBUD}, 0
        s_cbranch_scc1 {L}
        s_branch L_team_done
        {L}_ok:
        """)
    lds_wait(f"{P}_wa", 1)
    if w == 0: tstamp(a, 4, sWAVE, tmp=(56, 57)); dstamp(a, 5, sWAVE, tmp=(56, 57))
    a(f"s_mul_i32 s{sT0}, s{sRANK}, {A_RANK}\n s_add_u32 s{sT0}, s{sT0}, {WS_A + w*4*7*2048}")
    load_regs(a, [Aop(t,k)+4*hf for t in range(4) for k in range(7) for hf in range(2)], sT0)
    lds_wait(f"{P}_wb", 2)
    if w == 0: dstamp(a, 11, sWAVE, tmp=(56, 57))
    a(f"s_mul_i32 s{sT0}, s{sCT}, {B_CT}\n s_add_u32 s{sT0}, s{sT0}, {WS_B + w*4*7*2048}")
    load_regs(a, [Bop(h,k)+4*hf for h in range(4) for k in range(7) for hf in range(2)][:54 if w < 2 else 56], sT0)
    if w < 2:
        for q in range(30):
            if q % 4 == 0:
                a(f"s_mul_i32 s{sT0}, s{sCT}, {B_CT}\n s_add_u32 s{sT0}, s{sT0}, {WS_B + ((12+2*w)*14 + q if q < 28 else (4*w+3)*14 + 12)*1024}\n s_mov_b32 m0, {(L_B0, L_B1)[w] + q*1024}\n s_nop 0")
            a(f"buffer_load_dwordx4 v0, {S_WS}, s{sT0} offen offset:{(q%4)*1024} sc1 lds")
    y_addr(a, w)
    a(f"""
    v_lshrrev_b32 v63, 1, v62
    v_lshlrev_b32 v6, 8, v63
    v_lshl_add_u32 v6, v61, 4, v6
    v_and_b32 v63, 1, v62
    v_lshl_add_u32 v6, v63, 3, v6
    v_add_u32 v6, {L_UM + w*1024}, v6
    v_add_u32 v7, {(L_B0, L_B1, 0)[w]}, v0
    v_mov_b32 v4, {L_MISC + 64}
    v_and_b32 v2, 31, v60
    v_lshlrev_b32 v2, 2, v2
    """)
    a(f"s_mul_i32 s{sXO}, s{sJ}, 14336\n s_add_u32 s{sXO}, s{sXO}, {WS_XP + (0 if w == 2 else XSTEP)}\n s_mov_b32 s{sXL}, {L_X if w == 2 else L_X2}")
    if w == 2:
        lds_wait(f"{P}_ws", 3)
        x_dma(a)
        a(f"v_lshlrev_b32 v56, 16, v62\n v_lshl_add_u32 v56, v61, 4, v56\n s_mul_i32 s{sT0}, s{sRANK}, 1280\n s_add_u32 s{sT0}, s{sT0}, {WS_RING}")
        for k in range(5): a(f"buffer_load_dwordx4 v[12:15], v56, {S_WS}, s{sT0} offen offset:{256*k} sc1")
    team_sync(a, o, P, w)
    FRG = [56, 57, 58, 59, 60, 61, 62, 63, 8, 9, 10, 11][:o.nf1]
    def steps(P, ST):
        a(f"{P}_loop:")
        a(f"s_add_u32 s{sM1}, s{sCUR}, {w*1024}")
        for r in range(16): a(f"v_mov_b32 v{D+r}, 0")
        if w == 0:
            a(f"s_mul_i32 s{sT3}, s{sSTEP}, 0x01010101")
            for r in FRG[1:]: a(f"v_mov_b32 v{r}, -1")
        if w == 1 and DBGT['on']:
            for st, word in ((4, 7), (32, 8)):
                L = a.uid("DT"); a(f"s_cmp_lg_u32 s{sSTEP}, {st}\n s_cbranch_scc1 {L}"); dstamp(a, word, sWAVE, tmp=(56, 57), wave=1); a(f"{L}:")
        a("s_waitcnt vmcnt(0)")
        if w == 0:
            a(f"""
            {P}_go:
            ds_read_b32 v56, v4
            s_waitcnt lgkmcnt(0)
            v_cmp_gt_u32 vcc, s{sSTEP}, v56
            s_cbranch_vccz {P}_go_ok
            s_sub_u32 s{sBUD}, s{sBUD}, 1
            s_cmp_lg_u32 s{sBUD}, 0
            s_cbranch_scc1 {P}_go
            s_branch L_team_done
            {P}_go_ok:
            """)
            flag_poll(a, o, P, FRG, "v2", 0, sT3)
        a(f"s_mov_b32 m0, {L_M + w*1024}")
        a("s_barrier   ; B0")
        stamp(a, o, 'y', 0)
        a(f"buffer_load_dwordx4 v0, {S_WS}, s{sM1} offen sc1 lds")
        a("s_barrier   ; B0'")
        a(f"buffer_load_dwordx4 v0, {S_WS}, s{sM1} offen offset:3072 sc1 lds")
        n1 = o.nx1; lo = (0, (n1+2)//3, (n1+2)//3 + (n1+1)//3, n1); nx = lo[w+1] - lo[w]
        if o.xb: a("s_barrier   ; B0''")
        if w < 2 or n1 == 14: x_dma(a, lo[w], lo[w+1])
        elif nx:
            t = Asm(); x_dma(t, lo[w], lo[w+1])
            for l in t.lines[:-2]: a(l)
        sm = lambda t, k: a(f"{SM} {v(D+4*t,4)}, {v(M+4*k,4)}, {v(Aop(t,k),8)}, v1")
        mread = lambda k: a(f"ds_read_b128 {v(M+4*k,4)}, v0 offset:{L_M + 1024*k}")
        a(f"s_waitcnt vmcnt({1+nx})")
        stamp(a, o, 'y', 11)
        a("s_barrier   ; B1")
        for k in KORD[:4]: mread(k)
        a("s_waitcnt lgkmcnt(3)")
        stamp(a, o, 'y', 12)
        sm(0,0); sm(1,0); sm(2,0)
        a(f"s_waitcnt vmcnt({nx})\n s_barrier   ; B1'")
        sm(3,0)
        for k in KORD[4:]: mread(k)
        a(f"{P}_y:")
        a("s_waitcnt lgkmcnt(5)")
        sm(0,1); sm(1,1); sm(2,1); sm(3,1)
        for n, k in enumerate(KORD[2:]):
            a(f"s_waitcnt lgkmcnt({4-n})"); sm(0,k); sm(1,k)
        sm(2,2); a("s_nop 1"); sm(3,2); a("s_nop 1"); sm(2,6)
        a(f"v_add_f32 v{D}, v{D}, v{D+1}\n v_add_f32 v{D+2}, v{D+2}, v{D+3}")
        sm(3,6)
        a(f"v_add_f32 v{D+4}, v{D+4}, v{D+5}\n v_add_f32 v{D+6}, v{D+6}, v{D+7}")
        sm(2,3)
        a(f"v_cmp_u_f32 vcc, v{D}, v{D+2}")
        a(f"v_cvt_pk_bf16_f32 v{T}, v{D}, v{D+4}")
        sm(3,3)
        a(f"v_cvt_pk_bf16_f32 v{T+1}, v{D+2}, v{D+6}")
        a(f"ds_write2_b32 v3, v{T}, v{T+1} offset0:0 offset1:8")
        z = [f"v_mov_b32 v{D+r}, 0" for r in range(8)]
        sm(2,4); a(z[0]); a(z[1]); sm(3,4); a(z[2]); a(z[3]); sm(2,5); a(z[4]); a(z[5]); sm(3,5)
        stamp(a, o, 'y', 15)
        a(z[6]); a("s_waitcnt lgkmcnt(0)\n s_barrier   ; B1y"); a(z[7])
        a("s_nop 1")
        a(f"v_add_f32 v{D+8}, v{D+8}, v{D+9}\n v_add_f32 v{D+10}, v{D+10}, v{D+11}")
        a(f"v_add_f32 v{D+12}, v{D+12}, v{D+13}\n v_add_f32 v{D+14}, v{D+14}, v{D+15}")
        a(f"v_cvt_pk_bf16_f32 v{T+2}, v{D+8}, v{D+12}")
        a(f"v_cvt_pk_bf16_f32 v{T+3}, v{D+10}, v{D+14}")
        a(f"ds_write2_b32 v5, v{T+2}, v{T+3} offset0:0 offset1:8")
        a(f"s_cbranch_vccnz {P}_fail")
        a(f"{P}_yok:")
        for r in range(8, 16): a(f"v_mov_b32 v{D+r}, 0")
        a("s_waitcnt lgkmcnt(0)")
        stamp(a, o, 'y', 16)
        a("s_barrier   ; B2")
        if w < 2: mb_six(a, D, M, T, Bop, w)
        else: mb_four(a, D, M, T, Bop)
        a("s_waitcnt lgkmcnt(0)")
        stamp(a, o, 'y', 4)
        a("s_barrier   ; B3")
        if w == 2 and o.nx1 < 14: x_dma(a, o.nx1, 14)
        stamp_flush(a, o, 'y', w)
        ring_advance(a)
        a(f"s_add_u32 s{sSTEP}, s{sSTEP}, 1\n s_cmp_lt_u32 s{sSTEP}, {o.nsteps}\n s_cbranch_scc1 {P}_loop")
        a(f"s_branch L_team_done")
        a(f"{P}_fail:")
        m_exact(a, P, M)
        a("s_waitcnt vmcnt(0) lgkmcnt(0)")
        budget_check(a)
        for r in range(16): a(f"v_mov_b32 v{D+r}, 0")
        count(a, o, 56)
        a(f"s_mov_b32 m0, {L_M + w*1024}\n s_barrier")
        a(f"buffer_load_dwordx4 v0, {S_WS}, s{sM1} offen sc1 lds")
        a(f"buffer_load_dwordx4 v0, {S_WS}, s{sM1} offen offset:3072 sc1 lds")
        a("s_waitcnt vmcnt(0)\n s_barrier")
        for k in KORD: mread(k)
        a("s_waitcnt lgkmcnt(6)")
        sm(0,0); sm(1,0); sm(2,0); sm(3,0)
        a(f"s_branch {P}_y")
    both_modes(a, P, steps)

def m_exact(a, P, M):
    a("s_mov_b64 s[40:41], 0")
    for r in range(M, M+28): a(f"v_cmp_eq_u32 vcc, -1, v{r}\n s_or_b64 s[40:41], s[40:41], vcc")
    a(f"s_cmp_eq_u64 s[40:41], 0\n s_cbranch_scc1 {P}_yok")

epi = lambda d, t: [f"v_add_f32 v{d}, v{d}, v{d+1}", f"v_add_f32 v{d+2}, v{d+2}, v{d+3}", f"v_cvt_pk_bf16_f32 v{t}, v{d}, v{d+2}"]

def mb_four(a, D, M, T, Bop):
    pend = []
    for hh in range(4):
        for k in range(7):
            a(f"{SM} {v(D+4*hh,4)}, {v(M+4*k,4)}, {v(Bop(hh,k),8)}, v1")
            if pend and k >= 4:
                if k == 4: a("s_nop 2")
                a(pend.pop(0))
        pend = epi(D + 4*hh, T + hh)
    a("s_nop 7")
    for l in pend: a(l)
    a(f"ds_write_b64 v6, {v(T,2)}")
    a(f"ds_write_b64 v6, {v(T+2,2)} offset:512")

def mb_six(a, D, M, T, Bop, w):
    SB = [56, Bop(3,6)]
    nxt = [0]; q = []
    def fetch():
        i = nxt[0]
        if i >= 15: return
        nxt[0] += 1
        a(f"ds_read_b128 {v(SB[i%2],4)}, v7 offset:{i*2048}")
        a(f"ds_read_b128 {v(SB[i%2]+4,4)}, v7 offset:{i*2048 + 1024}")
        q.extend([("f", i)]*2)
    def need(tag):
        if tag in q:
            last = len(q) - 1 - q[::-1].index(tag)
            a(f"s_waitcnt lgkmcnt({len(q)-1-last})"); del q[:last+1]
    sm = lambda d, k, b: a(f"{SM} {v(d,4)}, {v(M+4*k,4)}, {v(b,8)}, v1")
    for k in range(7):
        sm(D+12, k, Bop(2,k))
        if k in (4, 5): fetch()
    for k in range(7):
        sm(D, k, Bop(0,k)); sm(D+4, k, Bop(1,k))
        need(("f", k)); sm(D+8, k, SB[k%2]); fetch()
        if k == 2:
            for l in epi(D+12, T+2): a(l)
            for r in range(4): a(f"v_mov_b32 v{D+12+r}, 0")
    fill = ["s_nop 3"] + epi(D, T) + epi(D+4, T+1) + [f"v_mov_b32 v{D+r}, 0" for r in range(4)] + [f"ds_write_b64 v6, {v(T,2)}"] + epi(D+8, T)
    for k in range(6):
        sm(D+12, k, Bop(3,k))
        for _ in range(3):
            if fill:
                l = fill.pop(0); a(l)
                if l.startswith("ds_"): q.append("w")
    assert not fill
    for k in range(7):
        need(("f", 7+k)); sm(D, k, SB[(7+k)%2]); fetch()
    need(("f", 14)); sm(D+12, 6, SB[0])
    a("s_nop 6")
    for l in epi(D, T+1) + epi(D+12, T+3): a(l)
    a(f"ds_write_b64 v6, {v(T,2)} offset:{3072 - 512*w}")
    a(f"ds_write_b64 v6, {v(T+2,2)} offset:512")

def y_addr(a, w):
    a(f"""
    v_lshrrev_b32 v63, 3, v61
    v_lshlrev_b32 v3, 8, v63
    v_lshl_add_u32 v3, v62, 6, v3
    v_bfe_u32 v63, v61, 1, 1
    v_lshl_add_u32 v3, v63, 4, v3
    v_bfe_u32 v63, v61, 2, 1
    v_lshl_add_u32 v3, v63, 3, v3
    v_and_b32 v63, 1, v61
    v_lshl_add_u32 v3, v63, 2, v3
    v_add_u32 v3, {L_Y + (w*512 if w < 3 else 3584)}, v3
    """)
    if w < 3: a("v_add_u32 v5, 2048, v3")

def dbg_wait(a, L, off, need, t, fl="sc0 sc1"):
    a(f"""
    v_mov_b32 v{t+1}, {off}
    {L}:
    buffer_load_dword v{t}, v{t+1}, {S_DBG}, 0 offen {fl}
    s_waitcnt vmcnt(0)
    v_readfirstlane_b32 s{sT0}, v{t}
    s_and_b32 s{sT1}, s{sT0}, 0xffff
    s_cmp_ge_u32 s{sT1}, {need}
    s_cbranch_scc1 {L}_ok
    s_sub_u32 s{sBUD}, s{sBUD}, 1
    s_cmp_lg_u32 s{sBUD}, 0
    s_cbranch_scc1 {L}
    s_branch L_team_done
    {L}_ok:
    """)

def wait_done(a, what, t0, t1, dead, sleep=""):
    L = a.uid("WD"); first, n = {'A': (0, 4), 'B': (4, 4), 'S': (8, 2), 'a': (0, 1)}[what]
    a(f"""
    v_mbcnt_lo_u32_b32 v{t1}, -1, 0
    v_and_b32 v{t1}, {n-1}, v{t1}
    v_lshlrev_b32 v{t1}, 7, v{t1}
    s_mov_b32 s41, {WS_DONE + first*128}
    {f's_lshr_b32 s40, s{sH}, 2' if what == 'a' else ''}
    {f's_lshl_b32 s40, s40, 7' if what == 'a' else ''}
    {f's_add_u32 s41, s41, s40' if what == 'a' else ''}
    s_mov_b64 exec, {(1 << n) - 1}
    {L}:
    buffer_load_dword v{t0}, v{t1}, {S_WS}, s41 offen sc1
    s_waitcnt vmcnt(0)
    v_cmp_gt_u32 vcc, 64, v{t0}
    s_cbranch_vccz {L}_ok
    {sleep}
    s_sub_u32 s{sBUD}, s{sBUD}, 1
    s_cmp_lg_u32 s{sBUD}, 0
    s_cbranch_scc1 {L}
    s_branch {dead}
    {L}_ok:
    s_mov_b64 exec, -1
    """)

def team_sync(a, o, P, w):
    a("s_waitcnt vmcnt(0) lgkmcnt(0)")
    if w == 0: tstamp(a, 9, sWAVE, tmp=(56, 57))
    a("s_barrier")
    if w < 3: a(f"v_mov_b32 v58, {L_MISC}\n ds_read_b32 v58, v58\n s_waitcnt lgkmcnt(0)\n v_readfirstlane_b32 s{sMODE}, v58")
    if w == 0: tstamp(a, 6, sWAVE, tmp=(56, 57)); dstamp(a, 6, sWAVE, tmp=(56, 57))

def both_modes(a, P, steps):
    a(f"s_cmp_lg_u32 s{sMODE}, 0\n s_cbranch_scc1 {P}_far")
    steps(P, "")
    a(f"{P}_far:")
    steps(P + "f", " sc1")

def wave3(a, o):
    P = "W3"
    DY, DS, M, NEG = 12, 20, 32, 60
    EX, SC, OWN, PR, FR = 64, 68, 76, 96, 136
    vFA, vFS, vST, vXT, vXD, vSG, vPA, vMO, vMA, vCN = 142, 143, 144, 145, 146, 147, 148, 157, 158, 159
    vSX, vS0, vL0, vK0, vK1, vVA, vZ, DP, YO, KM, SET = 170, 171, 172, 173, 174, 176, 184, 188, 192, 208, 236
    vGO, vKX = 185, 186
    U, KX = 256 + 112, 256 + 192
    Aop = lambda t, k: 256 + (t*7 + k)*8
    def watch(level, what):
        wait_done(a, what, 56, 57, "L_team_done")
        a(f"v_mov_b32 v56, {level}\n v_mov_b32 v57, {L_MISC + 128}\n ds_write_b32 v57, v56")
    watch(1, 'a')
    a("s_mov_b64 exec, 1")
    dbg_wait(a, "W3_seats", 0, 32, 56)
    a(f"s_mov_b64 exec, -1\n s_lshr_b32 s{sMODE}, s{sT0}, 16\n v_mov_b32 v56, s{sMODE}\n v_mov_b32 v57, {L_MISC}\n ds_write_b32 v57, v56")
    y_addr(a, 3)
    for k in range(8):
        a(f"s_add_u32 s{sT0}, s{sRANK}, {k}\n s_and_b32 s{sT0}, s{sT0}, 7")
        a(f"s_lshl_b32 s{sT1}, s{sT0}, 11\n v_add_u32 v{vVA+k}, s{sT1}, v0")
        a(f"s_lshl_b32 s{sT1}, s{sT0}, 10\n s_add_u32 s{sT1}, s{sT1}, {R_P + 2048}\n v_add_u32 v{vPA+k}, s{sT1}, v0")
    a(f"""
    v_add_u32 v{vPA+8}, {R_P}, v0
    v_add_u32 v{vKX}, {L_X}, v0
    v_and_b32 v{vK0}, 7, v61
    v_lshlrev_b32 v{vK0}, 5, v{vK0}
    v_lshrrev_b32 v63, 1, v62
    v_lshl_add_u32 v{vK0}, v63, 8, v{vK0}
    v_and_b32 v63, 1, v62
    v_lshl_add_u32 v{vK0}, v63, 3, v{vK0}
    s_mul_i32 s{sT0}, s{sJ}, {14*256}
    v_add_u32 v{vK0}, s{sT0}, v{vK0}
    v_add_u32 v{vK1}, 2048, v{vK0}
    v_mul_u32_u24 v6, 320, v63
    v_lshl_add_u32 v6, v61, 2, v6
    v_lshrrev_b32 v63, 1, v62
    v_cmp_eq_u32 vcc, s{sJ}, v63
    v_cmp_gt_u32 s[40:41], 8, v61
    s_xor_b32 s{sT0}, s{sRANK}, 1
    s_mul_i32 s{sT0}, s{sT0}, 640
    s_add_u32 s{sT0}, s{sT0}, {R_S}
    v_add_u32 v59, s{sT0}, v6
    v_add_u32 v6, {L_S}, v6
    v_mov_b32 v58, {OOB}
    v_mov_b32 v57, {L_S + 1024}
    v_cndmask_b32 v{vSX}, v59, v58, vcc
    v_cndmask_b32 v6, v57, v6, vcc
    v_cndmask_b32 v{vS0}, v58, v{vSX}, s[40:41]
    v_cndmask_b32 v{vL0}, v57, v6, s[40:41]
    v_cmp_gt_u32 vcc, 10, v61
    v_mov_b32 v63, 0x7f800000
    v_mov_b32 v9, 0x42800000
    v_mul_u32_u24 v2, 160, v62
    v_cndmask_b32 v9, v63, v9, vcc
    v_cndmask_b32 v63, 0, v61, vcc
    v_lshl_add_u32 v2, v63, 4, v2
    s_mul_i32 s{sT0}, s{sRANK}, 640
    s_add_u32 s{sT0}, s{sT0}, {R_S}
    v_add_u32 v{vSG}, s{sT0}, v2
    v_add_u32 v2, {L_S}, v2
    v_mov_b32 v63, {L_S + 1536}
    v_cndmask_b32 v2, v63, v2, vcc
    v_mov_b32 v{SC}, 0xf149f2ca
    v_mov_b32 v{SC+1}, 0xf149f2ca
    v_mov_b32 v{SC+2}, 0xf149f2ca
    v_mov_b32 v{SC+3}, 0xf149f2ca
    ds_write_b128 v63, {v(SC,4)}
    v_cndmask_b32 v10, v58, v{vSG}, vcc
    v_lshrrev_b32 v59, 1, v61
    s_lshl_b32 s{sT0}, s{sH}, 2
    s_add_u32 s{sT0}, s{sT0}, 15
    v_add_u32 v59, s{sT0}, v59
    v_mov_b32 v57, s{sH}
    v_cmp_gt_u32 s[40:41], 2, v61
    s_nop 1
    v_cndmask_b32 v59, v59, v57, s[40:41]    ; u
    v_lshrrev_b32 v57, 1, v59
    v_lshlrev_b32 v4, 8, v57
    v_and_b32 v57, 1, v59
    v_lshl_add_u32 v4, v57, 4, v4
    v_and_b32 v57, 1, v61
    v_lshl_add_u32 v4, v57, 3, v4
    v_lshl_add_u32 v4, v62, 5, v4
    s_lshl_b32 s{sT0}, s{sJ}, 7
    s_add_u32 s{sT0}, s{sT0}, {R_P}
    v_add_u32 v4, s{sT0}, v4
    v_cndmask_b32 v4, v58, v4, vcc
    v_cmp_eq_u32 vcc, 0, v60
    s_nop 0
    v_mov_b32 v57, s{sRANK}
    v_cndmask_b32 v{vFS}, v58, v57, vcc
    v_and_b32 v57, 31, v60
    v_lshlrev_b32 v{vFA}, 2, v57
    v_mov_b32 v{vST}, 0
    v_mov_b32 v{vGO}, {L_MISC + 64}
    ds_write_b32 v{vGO}, v{vST}
    v_and_b32 v58, 1, v61
    v_lshl_add_u32 v59, v62, 1, v58
    v_lshlrev_b32 v5, 5, v59
    v_bfe_u32 v57, v61, 1, 1
    v_lshl_add_u32 v5, v57, 4, v5
    v_lshrrev_b32 v57, 2, v61
    v_lshl_add_u32 v5, v57, 2, v5
    s_lshl_b32 s{sT0}, s{sRANK}, 8
    v_add_u32 v5, s{sT0}, v5
    v_lshlrev_b32 v{vMA}, 4, v59
    v_bfe_u32 v57, v61, 3, 1
    v_lshl_add_u32 v{vMA}, v57, 7, v{vMA}
    v_bfe_u32 v57, v61, 1, 2
    v_lshl_add_u32 v{vMA}, v57, 2, v{vMA}
    v_add_u32 v{vMA}, s{sT0}, v{vMA}
    v_mov_b32 v{vZ}, 0
    v_cmp_eq_u32 vcc, 1, v58
    v_mov_b32 v8, 0x01000504
    v_mov_b32 v57, 0x07060302
    v_cndmask_b32 v8, v8, v57, vcc
    v_mul_u32_u24 v59, 896, v59
    v_lshrrev_b32 v57, 1, v61
    v_lshl_add_u32 v59, v57, 2, v59
    s_lshl_b32 s{sT0}, s{sCT}, 5
    v_add_u32 v59, s{sT0}, v59
    buffer_load_dword v{vMO}, v59, s[60:63], 0 offen
    v_min_u32 v{vXT}, 13, v60
    v_lshlrev_b32 v{vXT}, 6, v{vXT}
    s_lshl_b32 s{sT1}, s{sCT}, 14
    s_add_u32 s{sVO}, s{sT1}, {WS_VO}
    s_mul_i32 s{sXT}, s{sRANK}, 896
    s_add_u32 s{sXT}, s{sXT}, {WS_XP + XSTEP}
    s_mov_b32 s{sMO}, {WS_MO}
    s_mov_b32 s{sSC}, {SCALE}
    s_mov_b32 s{sCN}, {WS_CNT + C_VO}
    """)
    for r in range(20): a(f"v_mov_b32 v{DY+r}, 0")
    for r in range(4): a(f"v_mov_b32 v{NEG+r}, -1\n v_mov_b32 v{DP+r}, 0")
    for r in range(6): a(f"v_mov_b32 v{FR+r}, 0")
    a(f"ds_write_b128 v0, {v(DY,4)} offset:{L_Y + 1024}")
    a("s_waitcnt vmcnt(0)")
    def init(P, ST):
        a(f"buffer_store_byte v{vST}, v{vFS}, {S_WS}, s{sFL} offen{ST}")
        a(f"buffer_store_byte v{vST}, v{vFS}, {S_WS}, s{sFL} offen offset:2048{ST}")
        for sl in range(4):
            a(f"s_mov_b32 s{sT0}, {WS_RING + sl*0x10000}")
            a(f"buffer_store_dwordx4 {v(NEG,4)}, v10, {S_WS}, s{sT0} offen{ST}")
            a(f"buffer_store_dwordx2 {v(NEG,2)}, v4, {S_WS}, s{sT0} offen{ST}")
            a(f"buffer_store_dword v{NEG if sl else vMO}, v5, {S_WS}, s{sT0} offen{ST}")
        if not ST: a("s_branch W3_inited")
    both_modes(a, "W3i", init)
    a("W3_inited:")
    a(f"s_waitcnt vmcnt(0)\n s_mov_b64 exec, 1\n v_mov_b32 v56, 1\n v_mov_b32 v57, 64\n buffer_atomic_add v56, v57, {S_DBG}, 0 offen")
    a("s_mov_b64 exec, -1")
    watch(2, 'B'); watch(3, 'S')
    a(f"s_mul_i32 s{sT0}, s{sRANK}, {A_RANK}\n s_add_u32 s{sT0}, s{sT0}, {WS_A + 12*7*2048}")
    load_regs(a, [Aop(t,k)+4*hf for t in range(2) for k in range(7) for hf in range(2)], sT0)
    def vo_wait(L):
        a(f"""
        {L}:
        buffer_load_dword v{vCN}, v{vZ}, {S_WS}, s{sCN} offen sc1
        s_waitcnt vmcnt(0)
        v_cmp_gt_u32 vcc, 56, v{vCN}
        s_cbranch_vccz {L}_ok
        s_sub_u32 s{sBUD}, s{sBUD}, 1
        s_cmp_lg_u32 s{sBUD}, 0
        s_cbranch_scc1 {L}
        s_branch L_team_done
        """)
    a("s_mov_b64 exec, 1")
    dbg_wait(a, "W3_tsync", 64, 32, 56)
    a("s_mov_b64 exec, -1")
    vo_wait("W3_vo0"); a("W3_vo0_ok:")
    a(f"s_add_u32 s{sCN}, s{sCN}, 2048")
    team_sync(a, o, P, 3)
    HORD = (0, 2, 4, 1, 3, 5, 6)
    KT = (KM, KX, KX + 28); KOF = (0, 8, 12, 20)
    def steps(P, ST):
        a(f"s_add_u32 s{sM1}, s{sCUR}, 6144\n s_mov_b32 s{sT3}, 0")
        a(f"{P}_loop:")
        a(f"s_mov_b32 m0, {L_M + 6144}")
        a("s_barrier   ; B0")
        stamp(a, o, 'w3', 0)
        a(f"buffer_load_dwordx4 v0, {S_WS}, s{sM1} offen sc1 lds")
        vq = [f"buffer_store_dword v{vMO}, v{vMA}, {S_WS}, s{sMO} offen sc1",
              f"buffer_load_dword v{vCN}, v{vZ}, {S_WS}, s{sCN} offen sc1",
              f"buffer_load_dword v{vXD}, v{vXT}, {S_WS}, s{sXT} offen sc1"]
        for k in range(8):
            vq.append(f"buffer_load_dwordx4 {v(U+16+8*k,4)}, v{vVA+k}, {S_WS}, s{sVO} offen sc1")
            vq.append(f"buffer_load_dwordx4 {v(U+20+8*k,4)}, v{vVA+k}, {S_WS}, s{sVO} offen offset:1024 sc1")
        a("s_barrier   ; B0'")
        a(f"s_add_u32 s{sXT}, s{sXT}, {XSTEP}\n s_add_u32 s{sT3}, s{sT3}, 0x01010101\n v_add_u32 v{vST}, 1, v{vST}")
        if o.xb: a("s_barrier   ; B0''")
        def keys():
            for kt in range(2):
                for n, hh in enumerate(HORD): a(f"ds_read_b128 {v(KX+28*kt+4*n,4)}, v{vKX} offset:{kt*7168 + hh*1024}")
        if o.kfirst: keys()
        else: nops(a, o.b0p)
        nv = min(o.nv0, len(vq))
        for _ in range(nv): a(vq.pop(0))
        if not o.kfirst: keys()
        a(f"s_waitcnt vmcnt({nv})\n s_barrier   ; B1")
        mread = lambda k: a(f"ds_read_b128 {v(M+4*k,4)}, v0 offset:{L_M + 1024*k}")
        for k in KORD[:4]: mread(k)
        a(f"s_barrier   ; B1'")
        for k in KORD[4:]: mread(k)
        while vq: a(vq.pop(0))
        stamp(a, o, 'w3', 10)
        a(f"{P}_y:")
        for n, k in enumerate(KORD):
            a(f"s_waitcnt lgkmcnt({6-n})" if n < 4 else f"s_waitcnt lgkmcnt(0)" if n == 4 else "")
            a(f"{SM} {v(DY,4)}, {v(M+4*k,4)}, {v(Aop(0,k),8)}, v1")
            a(f"{SM} {v(DY+4,4)}, {v(M+4*k,4)}, {v(Aop(1,k),8)}, v1")
            if n >= 4:
                for hn in range(7)[(n-4)*2 : (n-4)*2 + (2 if n < 6 else 3)]:
                    hh = HORD[hn]; base, off = (vK0, hh*512) if hh < 4 else (vK1, (hh-4)*512)
                    a(f"ds_read2_b64 {v(KM+4*hn,4)}, v{base} offset0:{off//8} offset1:{off//8+2}")
        sets = [SET+4*i for i in range(o.ns)]
        for r in sets[1:]: a(f"v_mov_b32 v{r}, -1")
        nops(a, 5 - o.ns)
        a(f"v_add_f32 v{DY}, v{DY}, v{DY+1}\n v_add_f32 v{DY+2}, v{DY+2}, v{DY+3}")
        a(f"v_cmp_u_f32 vcc, v{DY}, v{DY+2}")
        a(f"v_add_f32 v{DY+4}, v{DY+4}, v{DY+5}\n v_add_f32 v{DY+6}, v{DY+6}, v{DY+7}")
        a(f"v_cvt_pk_bf16_f32 v{DY}, v{DY}, v{DY+4}\n v_cvt_pk_bf16_f32 v{DY+2}, v{DY+2}, v{DY+6}")
        a(f"ds_write2_b32 v3, v{DY}, v{DY+2} offset0:0 offset1:8")
        stamp(a, o, 'w3', 11)
        a("s_barrier   ; B1y")
        a(f"ds_read_b128 {v(YO,4)}, v0 offset:{L_Y}\n ds_read_b128 {v(YO+4,4)}, v0 offset:{L_Y + 1024}")
        a(f"s_cbranch_vccnz {P}_fail")
        a(f"{P}_yok:")
        ssm = lambda kt, st: a(f"{SM} {v(DS+4*kt,4)}, {v(YO+4*st,4)}, {v(KT[kt]+KOF[st],8)}, v1")
        a("s_waitcnt lgkmcnt(1)")
        for kt in range(3): ssm(kt, 0)
        a("s_barrier   ; B2")
        stamp(a, o, 'w3', 1)
        a(f"ds_read_b128 {v(YO+8,4)}, v0 offset:{L_Y + 2048}\n ds_read_b128 {v(YO+12,4)}, v0 offset:{L_Y + 3072}")
        for st in range(1, 4):
            a(f"s_waitcnt lgkmcnt({3-st})")
            for kt in range(3): ssm(kt, st)
        a("s_nop 5")
        for kt in range(3):
            for aa in range(2):
                r = DS + 4*kt + 2*aa
                a(f"v_add_f32 v{r}, v{r}, v{r+1}")
                a(f"buffer_store_dword v{r}, v{vSX if kt else vS0}, {S_WS}, s{sCUR} offen offset:{(0, 32, 96)[kt] + 160*aa}{ST}")
        stamp(a, o, 'w3', 2)
        for kt in range(3):
            o0 = (0, 8, 24)[kt]
            a(f"ds_write2_b32 v{6 if kt else vL0}, v{DS+4*kt}, v{DS+4*kt+2} offset0:{o0} offset1:{o0+40}")
        a(f"ds_read_b128 {v(OWN,4)}, v2")
        for r in range(20): a(f"v_mov_b32 v{DY+r}, 0")
        a("s_waitcnt lgkmcnt(0)")
        for q in range(4): a(f"v_mul_f32 v{OWN+q}, s{sSC}, v{OWN+q}")
        n = o.ns
        def sbody(i, wait):
            a(f"buffer_load_dwordx4 {v(sets[i],4)}, v{vSG}, {S_WS}, s{sCUR} offen sc1")
            if wait: a(f"s_waitcnt vmcnt({n-1})")
            a(f"v_cmp_eq_u32 vcc, -1, v{sets[(i+1) % n]}\n s_cbranch_vccz {P}_sok{i}")
        for i in range(n-1): sbody(i, False)
        sbody(n-1, True)
        a(f"{P}_spoll:")
        for i in range(n): sbody(i, True)
        count(a, o, 57)
        a(f"s_sub_u32 s{sBUD}, s{sBUD}, 1\n s_cmp_lg_u32 s{sBUD}, 0\n s_cbranch_scc1 {P}_spoll\n s_branch L_team_done")
        f2 = f"buffer_store_byte v{vST}, v{vFS}, {S_WS}, s{sFL} offen offset:2048{ST}"
        for i in range(n):
            r = sets[(i+1) % n]
            a(f"{P}_sok{i}:")
            stamp(a, o, 'w3', 3)
            if o.f2pos == 0: a(f2)
            for q in range(4): a(f"v_fma_f32 v{SC+q}, v{r+q}, s{sSC}, v{OWN+q}")
            a(f"v_maximum3_f32 v7, |v{SC}|, |v{SC+1}|, |v{SC+2}|")
            a(f"v_exp_f32 v{EX}, v{SC}")
            a(f"v_maximum3_f32 v7, v7, |v{SC+3}|, |v{SC+3}|")
            a(f"v_exp_f32 v{EX+1}, v{SC+1}")
            a(f"v_cmp_nle_f32 vcc, v7, v9")
            a(f"v_exp_f32 v{EX+2}, v{SC+2}\n v_exp_f32 v{EX+3}, v{SC+3}")
            a(f"v_add_f32 v7, v{EX}, v{EX+1}\n v_add_f32 v11, v{EX+2}, v{EX+3}")
            if i != n-1: a(f"s_cbranch_vccz {P}_sexp\n s_branch {P}_smax")
            else: a(f"s_cbranch_vccnz {P}_smax")
        a(f"{P}_sexp:")
        a("v_add_f32 v7, v7, v11")
        for k, sh in enumerate((8, 4, 2, 1)):
            if k + 1 == o.f2pos: a(f2 + "\n s_nop 0")
            else: a("s_nop 1")
            a(f"v_add_f32_dpp v7, v7, v7 row_ror:{sh} row_mask:0xf bank_mask:0xf")
        a("v_rcp_f32 v7, v7\n s_nop 0")
        a(f"v_mul_f32 v{SC}, v{EX}, v7\n v_mul_f32 v{SC+1}, v{EX+1}, v7\n v_mul_f32 v{SC+2}, v{EX+2}, v7")
        a(f"v_cvt_pk_bf16_f32 v{SC+4}, v{SC}, v{SC+1}\n v_mul_f32 v{SC+3}, v{EX+3}, v7\n v_cvt_pk_bf16_f32 v{SC+5}, v{SC+2}, v{SC+3}")
        a(f"buffer_store_dwordx2 {v(SC+4,2)}, v4, {S_WS}, s{sCUR} offen{ST}")
        stamp(a, o, 'w3', 4)
        order = list(range(2,10)) + [0, 1]
        def pround():
            for k in order:
                if k < 2: a(f"buffer_load_dwordx4 {v(PR+4*k,4)}, v{vPA+8}, {S_WS}, s{sCUR} offen offset:{k*1024} sc1")
                else: a(f"buffer_load_dwordx4 {v(PR+4*k,4)}, v{vPA+k-2}, {S_WS}, s{sCUR} offen sc1")
        flag_poll(a, o, P, list(range(FR, FR+o.nf)), f"v{vFA}", 2048, sT3)
        stamp(a, o, 'w3', 40)
        pround()
        if o.kf < 0: a(f"buffer_store_byte v{vST}, v{vFS}, {S_WS}, s{sFL} offen{ST}")
        a("s_barrier   ; B3")
        for q in range(4): a(f"ds_read_b128 {v(U+4*q,4)}, v0 offset:{L_UM + 1024*q}")
        a(f"s_add_u32 s{sVO}, s{sVO}, {VO_STEP}\n s_add_u32 s{sM1}, s{sNXT}, 6144\n s_add_u32 s{sMO}, s{sMO}, 8192")
        a(f"v_cmp_gt_u32 vcc, 56, v{vCN}\n s_cbranch_vccnz {P}_vo\n {P}_vo_ok:\n s_add_u32 s{sCN}, s{sCN}, 2048")
        def pu(first):
            for n, k in enumerate(order):
                a(f"s_waitcnt vmcnt({9-n + (1 if (first and n > o.kf) else 0)})" + (" lgkmcnt(0)" if n == 8 else ""))
                if first: stamp(a, o, 'w3', 50+n)
                a(f"{SM} {v(DP,4)}, {v(PR+4*k,4)}, {v(U+8*k,8)}, v1")
                if first and n == o.kf: a(f"buffer_store_byte v{vST}, v{vFS}, {S_WS}, s{sFL} offen{ST}")
                if first and n == o.kgo: a(f"ds_write_b32 v{vGO}, v{vST}")
        pu(True)
        a("s_nop 7")
        a(f"{P}_pchk:")
        a(f"v_add_f32 v{DP}, v{DP}, v{DP+1}\n v_add_f32 v{DP+2}, v{DP+2}, v{DP+3}")
        a(f"v_cvt_pk_bf16_f32 v7, v{DP}, v{DP+2}")
        a(f"v_cmp_u_f32 vcc, v{DP}, v{DP+2}\n s_nop 0")
        a("v_mov_b32_dpp v11, v7 quad_perm:[1,0,3,2] row_mask:0xf bank_mask:0xf")
        a(f"v_perm_b32 v{vMO}, v7, v11, v8")
        a(f"v_cndmask_b32 v7, v{vMO}, v{NEG}, vcc")
        a(f"buffer_store_dword v7, v5, {S_WS}, s{sNXT} offen{ST}")
        stamp(a, o, 'w3', 5)
        a(f"s_cbranch_vccnz {P}_pfail")
        a(f"{P}_pok:")
        a(f"buffer_store_dword v{NEG}, v5, {S_WS}, s{sCUR} offen{ST}")
        a(f"buffer_store_dwordx2 {v(NEG,2)}, v4, {S_WS}, s{sPRV} offen{ST}")
        a(f"buffer_store_dwordx4 {v(NEG,4)}, v10, {S_WS}, s{sCUR} offen{ST}")
        a(f"v_xor_b32 v{vKX}, 0x1c000, v{vKX}")
        for r in range(4): a(f"v_mov_b32 v{DP+r}, 0")
        stamp_flush(a, o, 'w3')
        ring_advance(a)
        a(f"s_add_u32 s{sSTEP}, s{sSTEP}, 1")
        a(f"s_cmp_lt_u32 s{sSTEP}, {o.nsteps}\n s_cbranch_scc1 {P}_loop")
        a(f"buffer_store_dword v{vMO}, v{vMA}, {S_WS}, s{sMO} offen sc1")
        a("s_branch L_team_done")
        vo_wait(f"{P}_vo")
        a(f"{P}_fail:")
        m_exact(a, P, M)
        a("s_waitcnt vmcnt(0) lgkmcnt(0)")
        budget_check(a)
        for r in range(8): a(f"v_mov_b32 v{DY+r}, 0")
        count(a, o, 56)
        a(f"s_mov_b32 m0, {L_M + 6144}\n s_barrier")
        a(f"buffer_load_dwordx4 v0, {S_WS}, s{sM1} offen sc1 lds")
        a("s_waitcnt vmcnt(0)\n s_barrier")
        for k in KORD: mread(k)
        a(f"s_branch {P}_y")
        a(f"{P}_smax:")
        r = sets[0]
        a(f"s_waitcnt vmcnt(0)\n buffer_load_dwordx4 {v(r,4)}, v{vSG}, {S_WS}, s{sCUR} offen sc1\n s_waitcnt vmcnt(0)")
        a(f"v_max3_u32 v7, v{r}, v{r+1}, v{r+2}\n v_max_u32 v7, v7, v{r+3}\n v_cmp_eq_u32 vcc, -1, v7\n s_cbranch_vccz {P}_smax2")
        budget_check(a)
        a(f"s_branch {P}_smax\n {P}_smax2:")
        for q in range(4): a(f"v_fma_f32 v{SC+q}, v{r+q}, s{sSC}, v{OWN+q}")
        a(f"v_max3_f32 v7, v{SC}, v{SC+1}, v{SC+2}\n v_max_f32 v7, v7, v{SC+3}")
        for sh in (8, 4, 2, 1):
            a("s_nop 1")
            a(f"v_max_f32_dpp v7, v7, v7 row_ror:{sh} row_mask:0xf bank_mask:0xf")
        for q in range(4): a(f"v_sub_f32 v{SC+q}, v{SC+q}, v7")
        for q in range(4): a(f"v_exp_f32 v{EX+q}, v{SC+q}")
        a(f"v_add_f32 v7, v{EX}, v{EX+1}\n v_add_f32 v11, v{EX+2}, v{EX+3}\n s_branch {P}_sexp")
        a(f"{P}_pfail:")
        a("v_mov_b32 v7, 0")
        for r in range(PR, PR+40, 2): a(f"v_max3_u32 v7, v{r}, v{r+1}, v7")
        a(f"v_cmp_eq_u32 vcc, -1, v7\n s_cbranch_vccnz {P}_pagain")
        a(f"buffer_store_dword v{vMO}, v5, {S_WS}, s{sNXT} offen{ST}\n s_branch {P}_pok")
        a(f"{P}_pagain:")
        budget_check(a)
        count(a, o, 58)
        for r in range(4): a(f"v_mov_b32 v{DP+r}, 0")
        pround()
        pu(False)
        a("s_nop 7")
        a(f"s_branch {P}_pchk")
    both_modes(a, P, steps)

def team_body(a, o):
    a(f"""
    s_lshr_b32 s{sH}, s{sRANK}, 1
    s_and_b32 s{sJ}, s{sRANK}, 1
    s_sub_u32 s{sT0}, s{sRANK}, 28
    s_cmp_ge_u32 s{sRANK}, 28
    s_cselect_b32 s{sCT}, s{sT0}, s{sRANK}
    s_mov_b32 s{sFL}, {WS_FL}
    s_mov_b32 s{sSTEP}, 0
    s_mov_b32 s{sCUR}, {WS_RING}
    s_mov_b32 s{sNXT}, {WS_RING + 0x10000}
    s_mov_b32 s{sPRV}, {WS_RING + 0x30000}
    v_and_b32 v60, 63, v0
    v_and_b32 v61, 15, v60
    v_lshrrev_b32 v62, 4, v60
    v_lshlrev_b32 v0, 4, v60
    v_and_b32 v63, 1, v60
    v_cmp_eq_u32 vcc, 1, v63
    v_mov_b32 v1, 0x44444444
    v_mov_b32 v63, 0xeeeeeeee
    v_cndmask_b32 v1, v1, v63, vcc
    """)
    a(f"v_mov_b32 v56, 0\n v_mov_b32 v57, {L_MISC + 128}\n ds_write_b32 v57, v56\n s_waitcnt lgkmcnt(0)\n s_barrier")
    if o.diag: a("s_mov_b32 s56, 0\n s_mov_b32 s57, 0\n s_mov_b32 s58, 0")
    a(f"""
    s_cmp_eq_u32 s{sWAVE}, 3
    s_cbranch_scc1 W3_entry
    s_cmp_eq_u32 s{sWAVE}, 2
    s_cbranch_scc1 Y2_entry
    s_cmp_eq_u32 s{sWAVE}, 1
    s_cbranch_scc1 Y1_entry
    """)
    ywave(a, o, 0)
    a("Y1_entry:"); ywave(a, o, 1)
    a("Y2_entry:"); ywave(a, o, 2)
    a("W3_entry:"); wave3(a, o)
```

```python
from asmlib import *
from layout import *
K1_LDS = 3*45056
MF = "v_mfma_f32_32x32x16_bf16"
S_WS, S_P, S_S, S_X, S_GW = "s[4:7]", "s[8:11]", "s[24:27]", "s[28:31]", "s[52:55]"
sMAT, sJ, sDG, sHD, sW, sBLK, sSO, sT, sLD, sU = 40, 42, 43, 44, 17, 46, 47, 48, 49, 50
sSG, sQ, sPO, sIT, sQS, sPS = 45, 34, 33, 32, 19, 20
EXP=[0,0,0]
BUF = 45056
L_XS = 3*BUF

def products(a, ptr_w, early, late):
    RS, RB, HS = (13, 8192, 9) if not EXP[0] else (9, 512, 18)
    ACC, PV, FR = 4, 116, 132
    vT, vT2, vST, vPA, vSA, vRP, vRS = 208, 209, 212, 214, 216, 224, 228
    vHI, vC, vL = 205, 206, 207
    a(f"""
    s_and_b32 s{sMAT}, s2, 7
    s_lshl_b32 s{sMAT}, s{sMAT}, 2
    s_bfe_u32 s41, s2, 0x20003
    s_or_b32 s{sMAT}, s{sMAT}, s41
    s_lshr_b32 s41, s2, 5
    s_and_b32 s{sJ}, s41, 1
    s_lshr_b32 s{sDG}, s41, 1
    s_and_b32 s{sHD}, s{sMAT}, 15              ; head
    s_lshl_b32 s{sQ}, s{sJ}, 1
    s_add_u32 s{sQ}, s{sQ}, s{sDG}
    s_movk_i32 s{sQS}, 128
    s_cmp_ge_u32 s{sMAT}, 16
    s_cselect_b32 s8, s{ptr_w+4}, s{ptr_w}
    s_cselect_b32 s9, s{ptr_w+5}, s{ptr_w+1}
    s_cselect_b32 s24, s{ptr_w+6}, s{ptr_w+2}
    s_cselect_b32 s25, s{ptr_w+7}, s{ptr_w+3}
    s_cselect_b32 s{sQS}, {64*896}, s{sQS}
    s_mov_b32 s10, {W_BYTES}
    s_mov_b32 s11, 0x00020000
    s_mov_b32 s26, {W_BYTES}
    s_mov_b32 s27, 0x00020000
    s_lshl_b32 s{sBLK}, s{sDG}, 2
    s_add_u32 s{sBLK}, s{sBLK}, s{sW}
    v_and_b32 v{vL}, 63, v0
    v_lshrrev_b32 v{vHI}, 5, v{vL}
    v_and_b32 v{vC}, 31, v{vL}
    v_lshrrev_b32 v{vT}, 3, v{vL}
    v_lshrrev_b32 v{vT2}, 4, v{vL}
    v_xor_b32 v{vT2}, v{vT2}, v{vL}
    v_and_b32 v{vT2}, 7, v{vT2}
    v_lshlrev_b32 v{vT2}, 4, v{vT2}
    v_lshl_add_u32 v{vSA}, v{vT}, {RS}, v{vT2}
    v_and_b32 v{vPA}, 3, v{vT}
    v_lshrrev_b32 v{vT}, 2, v{vT}
    v_lshl_add_u32 v{vPA}, v{vT}, 3, v{vPA}
    v_lshl_add_u32 v{vPA}, v{vPA}, {RS}, v{vT2}
    v_xor_b32 v{vPA+1}, 64, v{vPA}
    s_min_u32 s{sT}, s{sBLK}, 13
    s_lshl_b32 s{sPO}, s{sT}, {RS+5}
    s_mul_i32 s{sT}, s{sHD}, {512 if not EXP[0] else 229376}
    s_add_u32 s{sPO}, s{sPO}, s{sT}
    s_cmp_ge_u32 s{sMAT}, 16
    s_cbranch_scc1 K1_setB
    s_and_b32 s{sLD}, s{sW}, 1
    s_lshl_b32 s{sLD}, s{sLD}, 6
    v_xor_b32 v{vSA}, s{sLD}, v{vSA}
    s_mul_i32 s{sSO}, s{sJ}, {224*RB}
    s_add_u32 s{sSO}, s{sSO}, s{sT}
    s_lshl_b32 s{sT}, s{sW}, {RS+3}
    s_add_u32 s{sSO}, s{sSO}, s{sT}
    """)
    for i in range(1, 7): a(f"v_add_u32 v{vSA+i}, {i*32*RB}, v{vSA}")
    a(f"""
    s_branch K1_set
    K1_setB:
    """)
    early(a)
    a(f"""
    s_lshl_b32 s{sT}, s{sW}, 6
    v_add_u32 v{vST}, s{sT}, v{vL}
    """)
    for i in range(7):
        a(f"""
        v_add_u32 v{vT}, {256*i}, v{vST}
        v_mul_u32_u24 v{vT2}, 2341, v{vT}
        v_lshrrev_b32 v{vT2}, 16, v{vT2}           ; /28
        v_mul_u32_u24 v{vSA+i}, 448, v{vT2}
        v_lshl_add_u32 v{vSA+i}, v{vT}, 4, v{vSA+i}
        """)
    a(f"""
    s_mul_i32 s{sSO}, s{sHD}, 229376
    s_mul_i32 s{sT}, s{sJ}, 448
    s_add_u32 s{sSO}, s{sSO}, s{sT}
    K1_set:
    s_lshl_b32 s{sLD}, s{sW}, 10
    s_lshl_b32 s{sPS}, s{sW}, 12
    s_add_u32 s{sPS}, s{sPS}, 28672
    """)
    def quarter(priv, a=a):
        a(f"s_and_b32 s{sQ}, s{sQ}, 3")
        if priv:
            a(f"s_lshl_b32 s{sT}, s{sQ}, 7\n s_add_u32 s51, s{sT}, s{sPO}")
            for i in range(4):
                a(f"s_add_u32 m0, s{sPS}, {i*1024}\n s_add_u32 s{sT}, s51, {(16*(i >> 1) + 4*(i & 1))*RB}")
                a(f"buffer_load_dwordx4 v{vPA + (i & 1)}, {S_P}, s{sT} offen lds")
        a(f"s_mul_i32 s{sT}, s{sQ}, s{sQS}\n s_add_u32 s{sT}, s{sT}, s{sSO}")
        for i in range(7):
            a(f"s_add_u32 m0, s{sLD}, {i*4096}\n s_nop 0")
            a(f"buffer_load_dwordx4 v{vSA+i}, {S_S}, s{sT} offen lds")
        a(f"s_add_u32 s{sQ}, s{sQ}, 1")
    def next_buf():
        a(f"s_add_u32 s{sLD}, s{sLD}, {BUF}\n s_add_u32 s{sPS}, s{sPS}, {BUF}")
    a(f"s_cmp_ge_u32 s{sBLK}, 14\n s_cbranch_scc1 K1_side\n s_mov_b32 s{sIT}, 0")
    tdefer(a, 15)
    a("K1_first:")
    quarter(True); next_buf()
    a(f"s_add_u32 s{sIT}, s{sIT}, 1\n s_cmp_lt_u32 s{sIT}, 2\n s_cbranch_scc1 K1_first")
    tdefer(a, 10); dstamp(a, 2, sW, few=True)
    for r in range(112): a(f"v_mov_b32 v{ACC+r}, 0")
    a(f"""
    v_bfe_u32 v{vT}, v{vC}, 1, 3
    v_xor_b32 v{vT}, v{vT}, v{vHI}
    v_lshlrev_b32 v{vT}, 4, v{vT}
    v_lshl_add_u32 v{vT}, v{vC}, 7, v{vT}
    s_lshl_b32 s{sT}, s{sW}, 12
    s_add_u32 s{sT}, s{sT}, 28672
    v_add_u32 v{vRP}, s{sT}, v{vT}
    v_lshrrev_b32 v{vT}, 4, v{vC}
    v_and_b32 v{vT2}, 15, v{vC}
    v_lshlrev_b32 v{vST}, 4, v{vT2}
    v_lshl_add_u32 v{vST}, v{vHI}, 8, v{vST}
    s_lshr_b32 s{sU}, s{sBLK}, 1
    s_lshl_b32 s{sU}, s{sU}, 11
    s_and_b32 s{sT}, s{sBLK}, 1
    s_lshl_b32 s{sT}, s{sT}, 10
    s_add_u32 s{sU}, s{sU}, s{sT}              ; T*2048 + half*1024
    s_mov_b32 s{sIT}, 0
    """)
    for t in range(1, 4): a(f"v_xor_b32 v{vRP+t}, {t << 5}, v{vRP}")
    a(f"s_cmp_ge_u32 s{sMAT}, 16\n s_cbranch_scc1 K1_mainB")
    def main(kind):
        NR = 6 if kind == 'A' else 5
        nad = 4 if kind == 'A' else 1
        if kind == 'A':
            a(f"""
            v_mul_u32_u24 v{vRS}, 14336, v{vT}
            v_add_u32 v{vST}, v{vST}, v{vRS}
            v_lshl_add_u32 v{vT}, v{vT2}, 1, v{vT}
            v_bfe_u32 v{vT2}, v{vT}, 1, 3
            v_xor_b32 v{vT2}, v{vT2}, v{vHI}
            v_lshlrev_b32 v{vT2}, 4, v{vT2}
            v_lshl_add_u32 v{vRS}, v{vT}, 7, v{vT2}
            s_lshl_b32 s{sT}, s{sHD}, 1
            s_add_u32 s{sT}, s{sT}, s{sJ}
            s_mul_i32 s{sT}, s{sT}, {A_RANK}
            s_add_u32 s{sU}, s{sU}, s{sT}
            s_mov_b32 s{sSG}, {2*14336}
            """)
            for t in range(1, 4): a(f"v_xor_b32 v{vRS+t}, {t << 5}, v{vRS}")
        else:
            a(f"""
            v_mul_u32_u24 v{vRS}, {B_CT}, v{vT}
            v_add_u32 v{vST}, v{vST}, v{vRS}
            v_bfe_u32 v{vT}, v{vL}, 2, 2
            v_lshl_add_u32 v{vT}, v{vHI}, 3, v{vT}
            v_mul_u32_u24 v{vRS}, 448, v{vT}
            v_bfe_u32 v{vT}, v{vL}, 4, 1
            v_lshl_add_u32 v{vRS}, v{vT}, 5, v{vRS}
            v_and_b32 v{vT}, 3, v{vL}
            v_lshl_add_u32 v{vRS}, v{vT}, 3, v{vRS}
            s_mul_i32 s{sT}, s{sJ}, {14*B_CT}
            s_add_u32 s{sU}, s{sU}, s{sT}
            s_mul_i32 s{sT}, s{sHD}, {7*2048}
            s_add_u32 s{sU}, s{sU}, s{sT}
            s_add_u32 s{sU}, s{sU}, {WS_B}
            s_mov_b32 s{sSG}, {2*B_CT}
            """)
        a(f"K1_loop{kind}:")
        if DIAG['on']:
            for it in range(4):
                L = a.uid("TI"); a(f"s_cmp_lg_u32 s{sIT}, {it}\n s_cbranch_scc1 {L}"); tdefer(a, 11+it); a(f"{L}:")
        a(f"s_cmp_eq_u32 s{sIT}, 3\n s_cbranch_scc1 K1_w0{kind}\n s_waitcnt vmcnt(11)\n s_branch K1_w1{kind}\n K1_w0{kind}:\n s_waitcnt vmcnt(13)\n K1_w1{kind}:\n s_barrier")
        seq = [(t, p) for t in range(4) for p in range(7)]
        nper = 1 if kind == 'A' else 2
        def fetch(n):
            t, p = seq[n]; r = FR + 4*(n % NR)
            if kind == 'A': a(f"ds_read_b128 {v(r,4)}, v{vRS + t} offset:{p*4096}")
            else:
                a(f"ds_read_b64_tr_b16 {v(r,2)}, v{vRS} offset:{t*7168 + p*64}")
                a(f"ds_read_b64_tr_b16 {v(r+2,2)}, v{vRS} offset:{t*7168 + p*64 + 1792}")
        for t in range(4): a(f"ds_read_b128 {v(PV+4*t,4)}, v{vRP + t}")
        for n in range(NR-1): fetch(n)
        tq = Asm(); quarter(True, tq); groups = [[]]
        for l in tq.lines:
            if l.strip() == "s_nop 0": continue
            groups[-1].append(l)
            if "s_add_u32 m0" in l or "buffer_load" in l: groups.append([])
        for n, (t, p) in enumerate(seq):
            if n >= 2 and groups:
                for l in groups.pop(0): a(l)
            if n + NR - 1 < len(seq): fetch(n + NR - 1)
            a(f"s_waitcnt lgkmcnt({min(NR - 1, len(seq) - 1 - n)*nper})")
            a(f"{MF} {v(ACC+16*p,16)}, {v(PV+4*t,4)}, {v(FR+4*(n % NR),4)}, {v(ACC+16*p,16)}")
        a(f"s_cmp_lg_u32 s{sIT}, 1\n s_cbranch_scc1 K1_nq{kind}")
        late(a)
        a(f"s_mov_b32 s{sPO}, 0x7ff00000\n s_mov_b32 s{sSO}, 0x7ff00000\n K1_nq{kind}:")
        a(f"s_mov_b32 s{sT}, {BUF}\n s_cmp_eq_u32 s{sIT}, 0\n s_cselect_b32 s{sT}, {-2*BUF & 0xffffffff}, s{sT}\n s_add_u32 s{sLD}, s{sLD}, s{sT}\n s_add_u32 s{sPS}, s{sPS}, s{sT}")
        a(f"s_mov_b32 s{sT}, {BUF}\n s_cmp_eq_u32 s{sIT}, 2\n s_cselect_b32 s{sT}, {-2*BUF & 0xffffffff}, s{sT}")
        for t in range(4): a(f"v_add_u32 v{vRP+t}, s{sT}, v{vRP+t}")
        for t in range(nad): a(f"v_add_u32 v{vRS+t}, s{sT}, v{vRS+t}")
        assert not groups
        a(f"s_add_u32 s{sIT}, s{sIT}, 1\n s_cmp_lt_u32 s{sIT}, 4\n s_cbranch_scc1 K1_loop{kind}")
    main('A')
    a("s_branch K1_store\n K1_mainB:")
    main('B')
    a("K1_store:")
    tdefer(a, 2); dstamp(a, 3, sW, few=True)
    for p in range(7):
        for be in range(2):
            r = ACC + 16*p + 8*be
            for q in range(4): a(f"v_cvt_pk_bf16_f32 v{r+q}, v{r+2*q}, v{r+2*q+1}")
            a(f"buffer_store_dwordx4 {v(r,4)}, v{vST}, {S_WS}, s{sU} offen offset:{512*be} sc1")
        if p < 6: a(f"s_add_u32 s{sU}, s{sU}, s{sSG}")
    a("s_branch K1_done")
    a("K1_side:")
    quarter(False); a(f"s_add_u32 s{sLD}, s{sLD}, {BUF}")
    quarter(False); a(f"s_add_u32 s{sLD}, s{sLD}, {BUF}")
    a("s_waitcnt vmcnt(7)\n s_barrier")
    quarter(False); a(f"s_sub_u32 s{sLD}, s{sLD}, {2*BUF}")
    a("s_waitcnt vmcnt(7)\n s_barrier")
    quarter(False)
    a("s_waitcnt vmcnt(7)\n s_barrier\n s_waitcnt vmcnt(0)\n s_barrier")
    a("K1_done:")

def side_job(a, ptr_x, ptr_gw):
    vT, vT2, vST, vHI, vL = 208, 209, 212, 205, 207
    srd(a, 28, ptr_x, X_BYTES); srd(a, 52, ptr_gw, 896)
    a(f"""
    v_mbcnt_lo_u32_b32 v{vL}, -1, 0
    v_mbcnt_hi_u32_b32 v{vL}, -1, v{vL}
    v_lshrrev_b32 v{vHI}, 5, v{vL}
    v_lshlrev_b32 v{vST}, 4, v{vL}
    s_mov_b32 s{sQ}, s{sW}
    s_mul_i32 s{sU}, s{sSG}, {32*896}
    s_mul_i32 s{sPS}, s{sW}, 14336
    s_add_u32 s{sPO}, s{sU}, s{sPS}
    """)
    for q in range(14):
        if q % 4 == 0: a(f"s_add_u32 m0, s{sPS}, {q*1024}\n s_add_u32 s{sT}, s{sPO}, {q*1024}")
        a(f"buffer_load_dwordx4 v{vST}, {S_X}, s{sT} offen offset:{(q%4)*1024} lds")
    XG, XP, GW = 0, 56, 112
    a(f"""
    v_bfe_u32 v{vT}, v{vL}, 4, 1
    v_lshlrev_b32 v{vT2}, 4, v{vHI}
    v_lshl_add_u32 v{vT2}, v{vT}, 5, v{vT2}
    v_and_b32 v210, 15, v{vL}
    v_mul_u32_u24 v211, 896, v210
    v_add_u32 v211, s{sPS}, v211
    v_add_u32 v224, v211, v{vT2}
    v_lshrrev_b32 v225, 4, v{vL}
    v_lshl_add_u32 v225, v225, 4, v211
    v_lshlrev_b32 v226, 10, v{vT}
    v_lshl_add_u32 v226, v{vHI}, 9, v226
    v_lshl_add_u32 v226, v210, 4, v226
    s_lshl_b32 s{sT}, s{sQ}, 8
    v_add_u32 v226, s{sT}, v226
    """)
    for u in range(14): a(f"buffer_load_dwordx4 {v(GW+4*u,4)}, v{vT2}, {S_GW}, 0 offen offset:{64*u}")
    for r in range(4): a(f"v_mov_b32 v{168+r}, -1")
    a(f"""
    v_mov_b32 v172, 0
    v_lshlrev_b32 v173, 7, v{vL}
    v_cmp_gt_u32 vcc, 8, v{vL}
    v_mov_b32 v174, 0x7ff00000
    s_lshl_b32 s{sT}, s{sSG}, 1
    s_add_u32 s{sT}, s{sT}, s{sQ}
    s_lshl_b32 s51, s{sT}, 12
    v_cndmask_b32 v173, v174, v173, vcc
    s_lshl_b32 s{sT}, s{sT}, 10
    s_add_u32 s{sT}, s{sT}, {WS_CNT}
    buffer_store_dword v172, v173, {S_WS}, s{sT} offen sc1
    s_add_u32 s51, s51, {WS_MO}
    """)
    for q in range(4): a(f"buffer_store_dwordx4 v[168:171], v{vST}, {S_WS}, s51 offen offset:{q*1024} sc1")
    a("s_waitcnt vmcnt(19)")
    for u in range(14): a(f"ds_read_b128 {v(XG+4*u,4)}, v224 offset:{64*u}")
    a(f"s_add_u32 s51, s{sU}, {WS_XG}\n s_mul_i32 s{sT}, s{sQ}, 7168\n s_add_u32 s{sU}, s{sU}, s{sT}\n s_add_u32 s{sU}, s{sU}, {WS_XP}\n v_mov_b32 v210, 0\n v_mov_b32 v211, 0\n s_waitcnt lgkmcnt(0)")
    for n in range(14): a(f"ds_read_b128 {v(XP+4*n,4)}, v225 offset:{448*(n // 7) + 64*(n % 7)}")
    for u in range(14):
        if u and u % 2 == 0: a("s_add_u32 s51, s51, 4096")
        a(f"buffer_store_dwordx4 {v(XG+4*u,4)}, v226, {S_WS}, s51 offen offset:{(u % 2)*2048} sc1")
    a("s_waitcnt lgkmcnt(0)")
    for n in range(14):
        if n in (4, 7, 11): a(f"s_add_u32 s{sU}, s{sU}, {4096 if n != 7 else 14336 - 4096}")
        a(f"v_swap_b32 v{XP+4*n+1}, v{XP+4*n+2}")
        a(f"buffer_store_dwordx4 {v(XP+4*n,4)}, v{vST}, {S_WS}, s{sU} offen offset:{(n % 7 % 4)*1024} sc1")
    a("s_waitcnt vmcnt(33)")
    for u in range(14):
        for q in range(4): a(f"v_dot2_f32_bf16 v{210 + (q&1)}, v{XG+4*u+q}, v{GW+4*u+q}, v{210 + (q&1)}")
    a(f"""
    s_nop 2
    v_add_f32 v210, v210, v211
    v_mov_b32 v211, v210
    s_nop 1
    v_permlane32_swap_b32 v210, v211
    v_add_f32 v210, v210, v211
    v_mov_b32 v211, v210
    s_nop 1
    v_permlane16_swap_b32 v210, v211
    v_add_f32 v210, v210, v211
    v_mul_f32 v210, 0xbfb8aa3b, v210
    v_exp_f32 v210, v210
    v_and_b32 v{vT}, 15, v{vL}
    v_add_f32 v210, 1.0, v210
    v_rcp_f32 v210, v210
    v_lshlrev_b32 v{vT}, 2, v{vT}
    s_lshl_b32 s{sU}, s{sSG}, 1
    s_add_u32 s{sU}, s{sU}, s{sQ}
    s_lshl_b32 s{sU}, s{sU}, 6
    s_add_u32 s{sU}, s{sU}, {WS_G}
    buffer_store_dword v210, v{vT}, {S_WS}, s{sU} offen sc1
    """)
    a(f"""
    s_and_b32 s{sT}, s{sSG}, 1
    s_lshl_b32 s{sT}, s{sT}, 7
    s_add_u32 s{sT}, s{sT}, {WS_DONE + 8*128}
    v_mov_b32 v210, 1
    v_mov_b32 v211, 0
    s_waitcnt vmcnt(0)
    s_mov_b64 exec, 1
    buffer_atomic_add v210, v211, {S_WS}, s{sT} offen
    s_mov_b64 exec, -1
    """)
```

```python
from asmlib import *
from layout import *
import team, k1
from team import S_WS, S_DBG, SM, OOB, nops
K2_LDS = k1.K1_LDS
L_BC = 65536
MF32 = "v_mfma_f32_32x32x16_bf16"
MF16 = "v_mfma_f32_16x16x32_bf16"
S_W = "s[8:11]"
sWAVE, sROLE, sSEG, sBUD = 17, 16, 20, 35
sA, sB, sC, sD, sE, sF = 36, 37, 38, 39, 40, 41
NS_O = 6
N_TB, N_TA, N_TH, N_TU, N_O1, N_O2 = 56, 56, 14, 28, 4*NS_O, 7*NS_O
T_TB = 0; T_TA = T_TB + N_TB; T_TH = T_TA + N_TA; T_TU = T_TH + N_TH; T_O1 = T_TU + N_TU; T_O2 = T_O1 + N_O1; T_END = T_O2 + N_O2
D_TEAM, D_SYNC, D_TICK, D_RST = 0, 64, 96, 128
vL16, vCA, vCT = 250, 251, 252

SLEEP = ['']
SKIP = ['']
def lane_setup(a):
    a(f"""
    v_mbcnt_lo_u32_b32 v0, -1, 0
    v_mbcnt_hi_u32_b32 v0, -1, v0
    v_lshlrev_b32 v{vL16}, 4, v0
    v_mov_b32 v{vCA}, 0
    v_lshrrev_b32 v1, 5, v0                 ; hi
    v_and_b32 v2, 31, v0                    ; c32
    v_and_b32 v3, 15, v0                    ; c
    v_lshrrev_b32 v4, 4, v0                 ; g
    """)

def wait_cnt(a, kind, n, pair=None):
    L = a.uid("W")
    adr, want = (vCA, n) if pair is None else (pair[0], f"v{pair[1]}")
    a(f"""
    s_cmp_lg_u32 s{sWAVE}, 0
    s_cbranch_scc1 {L}_ok
    s_lshl_b32 s{sF}, s{sSEG}, 11
    s_add_u32 s{sF}, s{sF}, {WS_CNT + kind}
    {L}:
    buffer_load_dword v{vCT}, v{adr}, {S_WS}, s{sF} offen sc1
    s_waitcnt vmcnt(0)
    v_cmp_gt_u32 vcc, {want}, v{vCT}
    s_cbranch_vccz {L}_ok
    {SLEEP[0]}
    s_sub_u32 s{sBUD}, s{sBUD}, 1
    s_cmp_lg_u32 s{sBUD}, 0
    s_cbranch_scc1 {L}
    s_endpgm
    {L}_ok:
    s_waitcnt vmcnt(0)
    s_barrier
    """)

def wait_done(a, what):
    L = a.uid("WW")
    a(f"s_cmp_lg_u32 s{sWAVE}, 0\n s_cbranch_scc1 {L}")
    team.wait_done(a, what, vCT, vCT+1, "L_exit", SLEEP[0])
    a(f"{L}:\n s_barrier")

def wait_team(a):
    if not GATE[0]: return
    L = a.uid("WT")
    a(f"""
    s_cmp_lg_u32 s{sWAVE}, 0
    s_cbranch_scc1 {L}_ok
    v_mov_b32 v{vCT+1}, {team.D_GO}
    {L}:
    buffer_load_dword v{vCT}, v{vCT+1}, {S_DBG}, 0 offen sc1
    s_waitcnt vmcnt(0)
    v_cmp_eq_u32 vcc, 0, v{vCT}
    s_cbranch_vccz {L}_ok
    s_sleep 32
    s_sub_u32 s{sBUD}, s{sBUD}, 1
    s_cmp_lg_u32 s{sBUD}, 0
    s_cbranch_scc1 {L}
    s_endpgm
    {L}_ok:
    s_barrier
    """)
GATE = [True]

def t63(a, slot, reg=None):
    if not DIAG['on']: return
    L = a.uid("T63"); a(f"s_cmp_lg_u32 s{reg or sSEG}, 63\n s_cbranch_scc1 {L}"); tstamp(a, slot, sWAVE, tmp=(254, 255)); a(f"{L}:")

def arrive(a, kind, s_seg, s_extra=None):
    L = a.uid("AR")
    a(f"""
    s_cmp_lg_u32 s{sWAVE}, 0
    s_cbranch_scc1 {L}
    s_lshl_b32 s{sF}, s{s_seg}, 11
    s_add_u32 s{sF}, s{sF}, {WS_CNT + kind}
    {f's_add_u32 s{sF}, s{sF}, s{s_extra}' if s_extra else ''}
    v_mov_b32 v{vCT}, 1
    s_mov_b64 exec, 1
    buffer_atomic_add v{vCT}, v{vCA}, {S_WS}, s{sF} offen
    s_mov_b64 exec, -1
    {L}:
    """)

def perm_rho(a, dst, tmp):
    a(f"""
    v_and_b32 v{dst}, 0x13, v2
    v_bfe_u32 v{tmp}, v2, 2, 1
    v_lshl_add_u32 v{dst}, v{tmp}, 3, v{dst}
    v_bfe_u32 v{tmp}, v2, 3, 1
    v_lshl_add_u32 v{dst}, v{tmp}, 2, v{dst}
    """)

def fetch_m_issue(a, t0):
    a(f"""
    s_lshl_b32 s{sA}, s{sSEG}, 13
    s_add_u32 s{sA}, s{sA}, {WS_MO}
    s_lshl_b32 s{sB}, s{sWAVE}, 10
    s_add_u32 s{sA}, s{sA}, s{sB}
    s_add_u32 s{sC}, s{sWAVE}, 4
    s_min_u32 s{sC}, s{sC}, 6
    s_sub_u32 s{sC}, s{sC}, s{sWAVE}
    s_lshl_b32 s{sC}, s{sC}, 10
    s_add_u32 s{sD}, s{sA}, s{sC}
    v_add_u32 v{t0+8}, s{sB}, v{vL16}
    v_add_u32 v{t0+9}, s{sC}, v{t0+8}
    buffer_load_dwordx4 {v(t0,4)}, v{vL16}, {S_WS}, s{sA} offen sc1
    buffer_load_dwordx4 {v(t0+4,4)}, v{vL16}, {S_WS}, s{sD} offen sc1
    """)

def fetch_m_finish(a, P, t0, lds):
    a(f"""
    s_cmp_eq_u32 s{sSEG}, 63
    s_cselect_b32 s{sE}, 1, 0
    {P}_m1:
    s_waitcnt vmcnt(0)
    v_max3_u32 v{vCT}, v{t0}, v{t0+1}, v{t0+2}
    v_max3_u32 v{vCT}, v{vCT}, v{t0+3}, v{t0+4}
    v_max3_u32 v{vCT}, v{vCT}, v{t0+5}, v{t0+6}
    v_max_u32 v{vCT}, v{vCT}, v{t0+7}
    v_cmp_eq_u32 vcc, -1, v{vCT}
    s_cbranch_vccz {P}_mok
    {P}_mw:
    s_sub_u32 s{sBUD}, s{sBUD}, 1
    s_cmp_eq_u32 s{sBUD}, 0
    s_cbranch_scc1 L_exit
    s_cmp_eq_u32 s{sE}, 1
    s_cbranch_scc1 {P}_m2
    {SLEEP[0]}
    buffer_load_dword v{vCT}, v{vCA}, {S_WS}, s{sD} offen sc1
    s_waitcnt vmcnt(0)
    v_cmp_eq_u32 vcc, -1, v{vCT}
    s_cbranch_vccnz {P}_mw
    s_mov_b32 s{sE}, 1
    {P}_m2:
    buffer_load_dwordx4 {v(t0,4)}, v{vL16}, {S_WS}, s{sA} offen sc1
    buffer_load_dwordx4 {v(t0+4,4)}, v{vL16}, {S_WS}, s{sD} offen sc1
    s_branch {P}_m1
    {P}_mok:
    ds_write_b128 v{t0+8}, {v(t0,4)} offset:{lds}
    ds_write_b128 v{t0+9}, {v(t0+4,4)} offset:{lds}
    s_waitcnt lgkmcnt(0)
    s_barrier
    """)

def gw(a, kind):
    P = "G" + kind
    W = lambda u, t: 256 + (u*28 + t)*4
    ACC, FR, TM, vOUT, vG = 16, 48, 72, 8, 9
    NR = 6
    step, NT = (1, 1) if kind == 'B' else (2, 2)
    cnt = {'B': C_VO, 'A': C_Y, 'H': C_H}[kind]
    a(f"{P}_entry:")
    if kind == 'B': a(f"s_mov_b32 s45, s{sROLE}\n s_mov_b32 s21, 0\n s_branch L_side\n GB_go:")
    if kind == 'A': a(f"s_add_u32 s45, s{sROLE}, 56\n s_mov_b32 s21, 1\n s_cmp_lt_u32 s45, 64\n s_cbranch_scc1 L_side\n GA_go:")
    lane_setup(a)
    if kind != 'B': wait_team(a)
    if kind == 'B':
        a(f"""
        s_mov_b32 s{sSEG}, 0
        s_lshr_b32 s{sA}, s{sROLE}, 2
        s_and_b32 s{sB}, s{sROLE}, 3
        s_lshl_b32 s{sB}, s{sB}, 2
        s_add_u32 s{sB}, s{sB}, s{sWAVE}           ; head
        v_lshlrev_b32 v5, 4, v3
        v_lshl_add_u32 v5, v1, 8, v5
        v_bfe_u32 v6, v0, 4, 1
        v_lshl_add_u32 v{vOUT}, v6, 14, v5
        v_mul_u32_u24 v6, {B_CT}, v6
        v_add_u32 v5, v5, v6
        s_mul_i32 s{sD}, s{sA}, {2*B_CT}
        s_mul_i32 s{sE}, s{sB}, 14336
        s_add_u32 s{sD}, s{sD}, s{sE}
        s_add_u32 s{sD}, s{sD}, {WS_B}
        s_lshl_b32 s42, s{sA}, 15
        s_lshl_b32 s{sE}, s{sB}, 10
        s_add_u32 s42, s42, s{sE}
        s_add_u32 s42, s42, {WS_VO}
        """)
        ustride, ostep = 14336, VO_STEP
    elif kind == 'A':
        perm_rho(a, 5, 6)
        a(f"""
        v_and_b32 v6, 1, v5
        v_mul_u32_u24 v6, 14336, v6
        v_lshrrev_b32 v5, 1, v5
        v_lshl_add_u32 v5, v5, 4, v6
        v_lshl_add_u32 v5, v1, 8, v5
        v_mov_b32 v{vOUT}, v{vL16}
        s_and_b32 s{sSEG}, s{sROLE}, 1
        s_lshr_b32 s{sROLE}, s{sROLE}, 1
        s_lshl_b32 s{sA}, s{sROLE}, 3
        s_lshl_b32 s{sC}, s{sWAVE}, 1
        s_add_u32 s{sA}, s{sA}, s{sC}
        s_mul_i32 s{sD}, s{sA}, 28672
        s_lshl_b32 s42, s{sA}, 11
        s_add_u32 s42, s42, {WS_Y}
        s_mul_i32 s{sE}, s{sSEG}, {VO_STEP}
        s_add_u32 s42, s42, s{sE}
        """)
        ustride, ostep = 28672, VO_STEP
    if kind in 'BA':
        wait_done(a, kind)
        for u in range(NT):
            for t in range(28):
                if t and t % 8 == 0: a(f"s_add_u32 s{sD}, s{sD}, 4096")
                a(f"buffer_load_dwordx4 {v(W(u,t),4)}, v5, {S_WS}, s{sD} offen offset:{(t%8)*512} sc1")
            if u == 0: a(f"s_add_u32 s{sD}, s{sD}, {ustride - 3*4096}")
    else:
        srd(a, 8, 66, F_BYTES)
        a(f"""
        s_and_b32 s{sSEG}, s{sROLE}, 1
        s_lshr_b32 s{sA}, s{sROLE}, 1
        s_lshl_b32 s{sA}, s{sA}, 2
        s_add_u32 s{sA}, s{sA}, s{sWAVE}
        s_lshl_b32 s{sD}, s{sA}, 7
        s_lshl_b32 s42, s{sA}, 12
        s_mul_i32 s{sE}, s{sSEG}, {H_STEP}
        s_add_u32 s42, s42, s{sE}
        s_add_u32 s42, s42, {WS_H}
        v_lshrrev_b32 v5, 3, v0
        v_mul_u32_u24 v5, 3584, v5
        v_and_b32 v6, 7, v0
        v_lshl_add_u32 v5, v6, 4, v5
        v_bfe_u32 v6, v0, 2, 2
        v_lshl_add_u32 v6, v1, 3, v6
        v_lshlrev_b32 v6, 7, v6
        v_bfe_u32 v7, v0, 4, 1
        v_lshl_add_u32 v6, v7, 5, v6
        v_lshl_add_u32 v{vOUT}, v7, 10, 0
        v_and_b32 v7, 1, v0
        v_lshl_add_u32 v6, v7, 4, v6
        v_bfe_u32 v7, v0, 1, 1
        v_lshl_add_u32 v6, v7, 3, v6
        s_mul_i32 s{sE}, s{sWAVE}, 14336
        v_add_u32 v6, s{sE}, v6
        v_lshl_add_u32 v{vOUT}, v1, 8, v{vOUT}
        v_lshl_add_u32 v{vOUT}, v3, 4, v{vOUT}
        v_lshlrev_b32 v10, 2, v2
        """)
        for rnd in range(4):
            for q in range(14):
                a(f"s_add_u32 m0, s{sE}, {q*1024}\n s_nop 0")
                a(f"buffer_load_dwordx4 v5, {S_W}, s{sD} offen lds")
                a(f"s_add_u32 s{sD}, s{sD}, {8*3584}")
            a("s_waitcnt vmcnt(0)")
            for u in range(2):
                for tt in range(7):
                    for z in range(2):
                        a(f"ds_read_b64_tr_b16 {v(W(u, rnd*7+tt) + 2*z, 2)}, v6 offset:{tt*2048 + z*512 + u*64}")
            a("s_waitcnt lgkmcnt(0)")
        a("s_barrier")
        ostep = H_STEP
    nst = 2*NT
    def xdma():
        for q in range(7):
            if q % 4 == 0: a(f"s_add_u32 m0, s43, {q*1024}\n s_add_u32 s{sE}, s44, {q*1024}")
            a(f"buffer_load_dwordx4 v{vL16}, {S_WS}, s{sE} offen offset:{(q%4)*1024} sc1 lds")
        a(f"s_xor_b32 s43, s43, 0x8000\n s_add_u32 s44, s44, {step*28672}")
    a(f"""
    s_mul_i32 s43, s{sWAVE}, 7168
    s_mul_i32 s44, s{sSEG}, 28672
    s_add_u32 s44, s44, s43
    s_add_u32 s44, s44, {WS_XG}
    v_mov_b32 v11, v{vL16}
    s_mov_b32 s45, 0
    """)
    wait_done(a, 'S')
    xdma()
    a("s_waitcnt vmcnt(0)")
    tstamp(a, 6, sWAVE)
    a(f"{P}_loop:")
    a(f"s_waitcnt vmcnt({nst})\n s_barrier")
    if kind == 'H':
        a(f"s_lshl_b32 s{sE}, s{sSEG}, 7\n s_add_u32 s{sE}, s{sE}, {WS_G}")
        a(f"buffer_load_dword v{vG}, v10, {S_WS}, s{sE} offen sc1")
    xdma()
    fetch = lambda t: a(f"ds_read_b128 {v(FR+4*(t % NR),4)}, v11 offset:{t*1024}")
    for t in range(NR-1): fetch(t)
    for t in range(28):
        if t + NR - 1 < 28: fetch(t + NR - 1)
        a(f"s_waitcnt lgkmcnt({min(NR-1, 27-t)})")
        x = v(FR+4*(t % NR), 4)
        if t == 14:
            a(f"s_waitcnt vmcnt({8 if kind == 'H' else 7})\n s_barrier")
            a(f"s_cmp_eq_u32 s45, 0\n s_cbranch_scc1 {P}_noar\n s_sub_u32 s46, s{sSEG}, {step}")
            arrive(a, cnt, 46)
            a(f"{P}_noar:")
        for u in range(NT):
            c = "0" if t == 0 else v(ACC+16*u, 16)
            if kind in SKIP[0]: continue
            if kind == 'B': a(f"{MF32} {v(ACC+16*u,16)}, {x}, {v(W(u,t),4)}, {c}")
            else:           a(f"{MF32} {v(ACC+16*u,16)}, {v(W(u,t),4)}, {x}, {c}")
    a("v_xor_b32 v11, 0x8000, v11")
    if kind == 'H': a(f"s_waitcnt vmcnt(7)\n v_sub_f32 v{vG}, 1.0, v{vG}")
    a("s_nop 10")
    for u in range(NT):
        if kind == 'H':
            for h0 in range(0, 16, 8):
                r = ACC + 16*u + h0
                for q in range(8): a(f"v_mul_f32 v{TM+16+q}, 0xbfb8aa3b, v{r+q}")
                for q in range(8): a(f"v_exp_f32 v{TM+16+q}, v{TM+16+q}")
                for q in range(8): a(f"v_add_f32 v{TM+16+q}, 1.0, v{TM+16+q}\n v_mul_f32 v{r+q}, v{vG}, v{r+q}")
                for q in range(8): a(f"v_rcp_f32 v{TM+16+q}, v{TM+16+q}")
                a("s_nop 0")
                for q in range(8): a(f"v_mul_f32 v{r+q}, v{TM+16+q}, v{r+q}")
        for be in range(2):
            r = ACC + 16*u + 8*be; t = TM + 8*u + 4*be
            order = (0, 4, 2, 6) if kind == 'B' else (0, 2, 4, 6)
            for q in range(4): a(f"v_cvt_pk_bf16_f32 v{t+q}, v{r+order[q]}, v{r+order[q]+1}")
            off = {'B': u*1024 + be*512, 'A': u*2048 + be*1024, 'H': u*2048 + be*512}[kind]
            a(f"buffer_store_dwordx4 {v(t,4)}, v{vOUT}, {S_WS}, s42 offen offset:{off} sc1")
    a(f"""
    s_add_u32 s42, s42, {step*ostep}
    s_add_u32 s45, s45, 1
    s_add_u32 s{sSEG}, s{sSEG}, {step}
    s_cmp_lt_u32 s{sSEG}, 64
    s_cbranch_scc1 {P}_loop
    s_waitcnt vmcnt(0)
    s_barrier
    """)
    a(f"s_sub_u32 s46, s{sSEG}, {step}")
    arrive(a, cnt, 46)
    a("s_branch L_next_free")

def tu(a):
    P = "TU"
    W = lambda hh, k: 256 + (hh*7 + k)*8
    M, D, T, AD, t0 = 16, 48, 64, 72, 80
    a(f"{P}_entry:")
    lane_setup(a)
    wait_team(a)
    a(f"""
    s_mul_i32 s{sD}, s{sROLE}, {B_CT}
    s_mul_i32 s{sE}, s{sWAVE}, {4*14336}
    s_add_u32 s{sD}, s{sD}, s{sE}
    s_add_u32 s{sD}, s{sD}, {WS_B}
    """)
    wait_done(a, 'B')
    for i in range(56):
        if i and i % 4 == 0: a(f"s_add_u32 s{sD}, s{sD}, 4096")
        a(f"buffer_load_dwordx4 {v(256+4*i,4)}, v{vL16}, {S_WS}, s{sD} offen offset:{(i%4)*1024} sc1")
    a(f"""
    v_and_b32 v5, 1, v0
    v_cmp_eq_u32 vcc, 1, v5
    v_mov_b32 v8, 0x44444444
    v_mov_b32 v6, 0xeeeeeeee
    v_cndmask_b32 v8, v8, v6, vcc
    v_lshlrev_b32 v6, 8, v4
    v_lshl_add_u32 v6, v5, 2, v6
    v_bfe_u32 v5, v0, 1, 3
    v_lshl_add_u32 v6, v5, 4, v6
    s_lshl_b32 s42, s{sROLE}, 12
    s_lshl_b32 s{sE}, s{sWAVE}, 10
    s_add_u32 s42, s42, s{sE}
    s_add_u32 s42, s42, {WS_UM}
    s_lshr_b32 s43, s{sROLE}, 2
    s_lshl_b32 s43, s43, 7
    s_mov_b32 s{sSEG}, 0
    """)
    for k in range(7): a(f"v_add_u32 v{AD+k}, {k*1024}, v6")
    wait_done(a, 'S')
    fetch_m_issue(a, t0)
    a(f"{P}_loop:")
    for r in range(16): a(f"v_mov_b32 v{D+r}, 0")
    fetch_m_finish(a, P, t0, 0)
    t63(a, 16)
    for k in range(7):
        a(f"ds_read2_b32 {v(M+4*k,2)}, v{AD+k} offset0:0 offset1:2")
        a(f"ds_read2_b32 {v(M+4*k+2,2)}, v{AD+k} offset0:32 offset1:34")
    for k in range(7):
        a(f"s_waitcnt lgkmcnt({12-2*k})")
        for hh in range(4): a(f"{SM} {v(D+4*hh,4)}, {v(M+4*k,4)}, {v(W(hh,k),8)}, v8")
    a("s_nop 4")
    for hh in range(4):
        d = D + 4*hh
        a(f"v_add_f32 v{d}, v{d}, v{d+1}\n v_add_f32 v{d+2}, v{d+2}, v{d+3}\n v_cvt_pk_bf16_f32 v{T+hh}, v{d}, v{d+2}")
    a(f"buffer_store_dwordx4 {v(T,4)}, v{vL16}, {S_WS}, s42 offen sc1")
    a(f"s_mov_b32 s46, s{sSEG}\n s_add_u32 s{sSEG}, s{sSEG}, 1")
    fetch_m_issue(a, t0)
    a("s_waitcnt vmcnt(2)\n s_barrier")
    arrive(a, C_UM, 46, 43)
    t63(a, 17, 46)
    a(f"""
    s_add_u32 s42, s42, {UM_STEP}
    s_cmp_lt_u32 s{sSEG}, 64
    s_cbranch_scc1 {P}_loop
    s_branch L_next
    """)

def o1(a):
    P = "O1"
    Y = lambda t: 256 + 4*t
    SX, SMM, FR, T, t0 = 16, 32, 48, 72, 88
    vG, vPX, vPM, vRW, vKM, vMX = 8, 9, 10, 11, 12, 13
    NR = 6; L_MM = 28672
    a(f"{P}_entry:")
    lane_setup(a)
    wait_team(a)
    a(f"""
    s_lshr_b32 s{sSEG}, s{sROLE}, 2
    s_and_b32 s43, s{sROLE}, 3
    s_lshl_b32 s44, s43, 2
    s_add_u32 s44, s44, s{sWAVE}               ; head
    v_bfe_u32 v5, v0, 4, 1
    v_lshlrev_b32 v5, 10, v5
    v_lshl_add_u32 v5, v3, 4, v5               ; rt*1024 + c*16
    v_lshl_add_u32 v{vPX}, v1, 8, v5
    s_lshl_b32 s{sA}, s44, 11
    v_add_u32 v{vPX}, s{sA}, v{vPX}
    v_lshl_add_u32 v{vPM}, v1, 9, v5
    s_lshl_b32 s{sA}, s43, 11
    s_lshl_b32 s{sB}, s{sWAVE}, 2
    s_add_u32 s{sA}, s{sA}, s{sB}
    s_add_u32 s{sA}, s{sA}, 32768
    v_add_u32 v{vPM}, s{sA}, v{vPM}
    v_lshlrev_b32 v5, 2, v1
    v_sub_u32 v{vRW}, v2, v5
    v_and_b32 v5, 7, v0
    v_lshlrev_b32 v5, 4, v5
    v_lshl_add_u32 v{vKM}, v1, 7, v5
    v_lshlrev_b32 v14, 2, v2
    s_mul_i32 s45, s{sWAVE}, 7168
    """)
    wait_done(a, 'S')
    a(f"{P}_loop:")
    a(f"""
    s_mul_i32 s{sA}, s{sSEG}, 28672
    s_add_u32 s{sA}, s{sA}, s45
    s_add_u32 s{sA}, s{sA}, {WS_XG}
    """)
    for q in range(7):
        if q % 4 == 0: a(f"s_add_u32 m0, s45, {q*1024}\n s_add_u32 s{sE}, s{sA}, {q*1024}")
        a(f"buffer_load_dwordx4 v{vL16}, {S_WS}, s{sE} offen offset:{(q%4)*1024} sc1 lds")
    a(f"s_lshl_b32 s{sE}, s{sSEG}, 7\n s_add_u32 s{sE}, s{sE}, {WS_G}")
    a(f"buffer_load_dword v{vG}, v14, {S_WS}, s{sE} offen sc1")
    wait_cnt(a, C_Y, 28)
    a(f"""
    s_mul_i32 s{sA}, s{sSEG}, {VO_STEP}
    s_mul_i32 s{sB}, s44, 28672
    s_add_u32 s{sA}, s{sA}, s{sB}
    s_add_u32 s{sA}, s{sA}, {WS_Y}
    """)
    for t in range(28):
        if t and t % 4 == 0: a(f"s_add_u32 s{sA}, s{sA}, 4096")
        a(f"buffer_load_dwordx4 {v(Y(t),4)}, v{vL16}, {S_WS}, s{sA} offen offset:{(t%4)*1024} sc1")
    a("s_barrier")
    def scores(acc, base, stride, off0, vm):
        fetch = lambda t: a(f"ds_read_b128 {v(FR+4*(t % NR),4)}, v{base} offset:{off0 + t*stride}")
        for t in range(NR-1): fetch(t)
        for t in range(28):
            if t + NR - 1 < 28: fetch(t + NR - 1)
            a(f"s_waitcnt lgkmcnt({min(NR-1, 27-t)})" + (f" vmcnt({27-t})" if vm else ""))
            a(f"{MF32} {v(acc,16)}, {v(FR+4*(t % NR),4)}, {v(Y(t),4)}, {'0' if t == 0 else v(acc,16)}")
    scores(SX, vL16, 1024, 0, True)
    a(f"v_mov_b32 v{T}, 0xff800000\n s_nop 10")
    for b in range(4):
        for r in range(4):
            a(f"v_cmp_le_i32 vcc, {8*b+r}, v{vRW}\n s_nop 1\n v_cndmask_b32 v{SX+4*b+r}, v{T}, v{SX+4*b+r}, vcc")
    a(f"v_max3_f32 v{vMX}, v{SX}, v{SX+1}, v{SX+2}")
    for r in range(3, 15, 2): a(f"v_max3_f32 v{vMX}, v{vMX}, v{SX+r}, v{SX+r+1}")
    a(f"v_max_f32 v{vMX}, v{vMX}, v{SX+15}")
    t63(a, 18)
    fetch_m_issue(a, t0); fetch_m_finish(a, P, t0, L_MM)
    t63(a, 19)
    scores(SMM, vKM, 256, L_MM, False)
    a("s_nop 11")
    a(f"v_max3_f32 v{vMX}, v{vMX}, v{SMM}, v{SMM+1}\n v_max3_f32 v{vMX}, v{vMX}, v{SMM+2}, v{SMM+3}")
    a(f"v_mov_b32 v{T}, v{vMX}\n s_nop 1\n v_permlane32_swap_b32 v{T}, v{vMX}\n v_max_f32 v{vMX}, v{vMX}, v{T}")
    vals = [SX+r for r in range(16)] + [SMM+r for r in range(4)]
    a(f"s_mov_b32 s{sB}, {team.SCALE}\n v_mul_f32 v{vMX}, s{sB}, v{vMX}")
    for r in vals: a(f"v_fma_f32 v{r}, v{r}, s{sB}, -v{vMX}")
    for r in vals: a(f"v_exp_f32 v{r}, v{r}")
    a(f"v_add_f32 v{T}, v{vals[0]}, v{vals[1]}\n v_add_f32 v{T+1}, v{vals[2]}, v{vals[3]}")
    for i in range(4, 20, 2): a(f"v_add_f32 v{T}, v{T}, v{vals[i]}\n v_add_f32 v{T+1}, v{T+1}, v{vals[i+1]}")
    a(f"v_add_f32 v{T}, v{T}, v{T+1}\n v_mov_b32 v{T+1}, v{T}\n s_nop 1\n v_permlane32_swap_b32 v{T}, v{T+1}\n v_add_f32 v{T}, v{T}, v{T+1}")
    a(f"v_rcp_f32 v{T}, v{T}\n s_nop 0\n v_mul_f32 v{T}, v{T}, v{vG}")
    for r in vals: a(f"v_mul_f32 v{r}, v{r}, v{T}")
    a(f"s_mul_i32 s{sA}, s{sSEG}, {PX_STEP}\n s_add_u32 s{sA}, s{sA}, {WS_PX}")
    for be in range(2):
        for q, o in enumerate((0, 4, 2, 6)): a(f"v_cvt_pk_bf16_f32 v{T+4+4*be+q}, v{SX+8*be+o}, v{SX+8*be+o+1}")
        a(f"buffer_store_dwordx4 {v(T+4+4*be,4)}, v{vPX}, {S_WS}, s{sA} offen offset:{512*be} sc1")
    for q in range(2):
        a(f"v_cvt_pk_bf16_f32 v{T+12+q}, v{SMM+2*q}, v{SMM+2*q+1}")
        a(f"buffer_store_dword v{T+12+q}, v{vPM}, {S_WS}, s{sA} offen offset:{256*q} sc1")
    a("s_waitcnt vmcnt(0)\n s_barrier")
    arrive(a, C_P, sSEG)
    t63(a, 20)
    a(f"""
    s_add_u32 s{sSEG}, s{sSEG}, {NS_O}
    s_cmp_lt_u32 s{sSEG}, 64
    s_cbranch_scc1 {P}_loop
    s_branch L_next
    """)

def o2(a):
    P = "O2"
    W = lambda t, ct: 256 + (t*4 + ct)*4
    ACC, HF, VO = 16, 48, 160
    PXR, PMR, UMR = HF, HF + 32, HF + 40
    vRW_, vRR, vOA = 8, 9, 10
    a(f"{P}_entry:")
    lane_setup(a)
    wait_team(a)
    srd(a, 8, 68, F_BYTES)
    a(f"""
    s_mul_i32 s{sSEG}, s{sROLE}, 9363
    s_lshr_b32 s{sSEG}, s{sSEG}, 16            ; role / 7
    s_mul_i32 s{sA}, s{sSEG}, 7
    s_sub_u32 s43, s{sROLE}, s{sA}
    s_mul_i32 s{sD}, s{sWAVE}, {448*896}
    s_lshl_b32 s{sA}, s43, 7
    s_add_u32 s{sD}, s{sD}, s{sA}
    v_lshrrev_b32 v5, 3, v0
    v_mul_u32_u24 v5, 896, v5
    v_and_b32 v6, 7, v0
    v_lshl_add_u32 v5, v6, 4, v5
    v_bfe_u32 v6, v0, 2, 2
    v_lshl_add_u32 v6, v4, 3, v6
    v_lshlrev_b32 v6, 7, v6
    v_and_b32 v7, 3, v0
    v_lshl_add_u32 v6, v7, 3, v6
    s_lshl_b32 s{sE}, s{sWAVE}, 14
    v_add_u32 v6, s{sE}, v6
    """)
    for rnd, nt in enumerate((4, 4, 4, 2)):
        for q in range(4*nt):
            a(f"s_add_u32 m0, s{sE}, {q*1024}\n s_nop 0")
            a(f"buffer_load_dwordx4 v5, {S_W}, s{sD} offen lds")
            a(f"s_add_u32 s{sD}, s{sD}, {8*896}")
        a("s_waitcnt vmcnt(0)")
        for tt in range(nt):
            for ct in range(4):
                for z in range(2):
                    a(f"ds_read_b64_tr_b16 {v(W(rnd*4+tt, ct) + 2*z, 2)}, v6 offset:{tt*4096 + z*512 + ct*32}")
        a("s_waitcnt lgkmcnt(0)")
    srd(a, 8, 88, X_BYTES)
    a(f"""
    s_barrier
    v_mul_u32_u24 v{vRW_}, 272, v3
    v_lshl_add_u32 v{vRW_}, v4, 4, v{vRW_}
    s_mul_i32 s{sA}, s{sWAVE}, 8704
    v_add_u32 v{vRW_}, s{sA}, v{vRW_}
    v_lshrrev_b32 v5, 3, v0
    s_lshl_b32 s{sA}, s{sWAVE}, 3
    v_add_u32 v5, s{sA}, v5
    v_and_b32 v6, 7, v0
    v_mul_u32_u24 v{vRR}, 272, v5
    v_lshl_add_u32 v{vRR}, v6, 5, v{vRR}
    v_mul_u32_u24 v{vOA}, 896, v5
    v_lshl_add_u32 v{vOA}, v6, 4, v{vOA}
    s_lshl_b32 s{sA}, s43, 7
    v_add_u32 v{vOA}, s{sA}, v{vOA}
    v_and_b32 v11, 1, v0
    v_mov_b32 v12, 4
    s_add_u32 s{sA}, s{sA}, {C_UM - C_P}
    v_mul_lo_u32 v11, v11, s{sA}
    """)
    wait_done(a, 'S')
    a(f"{P}_loop:")
    wait_cnt(a, C_H, 7)
    a(f"""
    s_mul_i32 s{sA}, s{sSEG}, {H_STEP}
    s_mul_i32 s{sB}, s{sWAVE}, {14*2048}
    s_add_u32 s{sA}, s{sA}, s{sB}
    s_add_u32 s{sA}, s{sA}, {WS_H}
    """)
    for i in range(28):
        if i and i % 4 == 0: a(f"s_add_u32 s{sA}, s{sA}, 4096")
        a(f"buffer_load_dwordx4 {v(HF+4*i,4)}, v{vL16}, {S_WS}, s{sA} offen offset:{(i%4)*1024} sc1")
    acc = lambda ct, rt: v(ACC + (ct*2 + rt)*4, 4)
    for t in range(14):
        for rt in range(2):
            a(f"s_waitcnt vmcnt({27 - 2*t - rt})")
            for ct in range(4): a(f"{MF16} {acc(ct,rt)}, {v(W(t,ct),4)}, {v(HF+8*t+4*rt,4)}, {'0' if t == 0 else acc(ct,rt)}")
    wait_cnt(a, C_VO, 56)
    a(f"""
    s_mul_i32 s{sA}, s{sSEG}, {VO_STEP}
    s_lshl_b32 s{sB}, s43, 16
    s_add_u32 s{sA}, s{sA}, s{sB}
    s_lshl_b32 s{sB}, s{sWAVE}, 12
    s_add_u32 s{sA}, s{sA}, s{sB}
    s_add_u32 s{sA}, s{sA}, {WS_VO}
    """)
    for ct in range(4):
        if ct: a(f"s_add_u32 s{sA}, s{sA}, 16384")
        for hh in range(4): a(f"buffer_load_dwordx4 {v(VO+(hh*4+ct)*4,4)}, v{vL16}, {S_WS}, s{sA} offen offset:{hh*1024} sc1")
    t63(a, 21)
    wait_cnt(a, C_P, 0, (11, 12))
    t63(a, 22)
    a(f"""
    s_mul_i32 s{sA}, s{sSEG}, {UM_STEP}
    s_lshl_b32 s{sB}, s43, 14
    s_add_u32 s{sA}, s{sA}, s{sB}
    s_lshl_b32 s{sB}, s{sWAVE}, 10
    s_add_u32 s{sA}, s{sA}, s{sB}
    s_add_u32 s{sA}, s{sA}, {WS_UM}
    """)
    for ct in range(4):
        if ct: a(f"s_add_u32 s{sA}, s{sA}, 4096")
        a(f"buffer_load_dwordx4 {v(UMR+4*ct,4)}, v{vL16}, {S_WS}, s{sA} offen sc1")
    a(f"""
    s_mul_i32 s{sA}, s{sSEG}, {PX_STEP}
    s_add_u32 s{sA}, s{sA}, {WS_PX}
    s_lshl_b32 s{sB}, s{sWAVE}, 13
    s_add_u32 s{sB}, s{sA}, s{sB}
    s_add_u32 s{sC}, s{sB}, 4096
    s_lshl_b32 s{sD}, s{sWAVE}, 11
    s_add_u32 s{sD}, s{sD}, s{sA}
    s_add_u32 s{sD}, s{sD}, 32768
    """)
    for i in range(8): a(f"buffer_load_dwordx4 {v(PXR+4*i,4)}, v{vL16}, {S_WS}, s{sB + i//4} offen offset:{(i%4)*1024} sc1")
    for i in range(2): a(f"buffer_load_dwordx4 {v(PMR+4*i,4)}, v{vL16}, {S_WS}, s{sD} offen offset:{i*1024} sc1")
    for hh in range(4):
        for rt in range(2):
            a(f"s_waitcnt vmcnt({9 - 2*hh - rt})")
            for ct in range(4): a(f"{MF16} {acc(ct,rt)}, {v(VO+(hh*4+ct)*4,4)}, {v(PXR+8*hh+4*rt,4)}, {acc(ct,rt)}")
    a("s_waitcnt vmcnt(0)")
    for ct in range(4):
        a("s_nop 0")
        for rt in range(2): a(f"{MF16} {acc(ct,rt)}, {v(UMR+4*ct,4)}, {v(PMR+4*rt,4)}, {acc(ct,rt)}")
    a("s_nop 1")
    for ct in range(4):
        for rt in range(2):
            if ct == 3 and rt == 0: a("s_nop 3")
            a(f"ds_write_b128 v{vRW_}, {acc(ct,rt)} offset:{rt*16*272 + ct*64}")
    a("s_waitcnt lgkmcnt(0)\n s_barrier")
    for w in range(4):
        for q in range(2): a(f"ds_read_b128 {v(VO+8*w+4*q,4)}, v{vRR} offset:{w*8704 + q*16}")
    a(f"s_mul_i32 s{sA}, s{sSEG}, {32*896}")
    for w in range(1, 4):
        a(f"s_waitcnt lgkmcnt({6-2*w})")
        for q in range(8): a(f"v_add_f32 v{VO+q}, v{VO+q}, v{VO+8*w+q}")
    for q in range(4): a(f"v_cvt_pk_bf16_f32 v{VO+32+q}, v{VO+2*q}, v{VO+2*q+1}")
    a(f"buffer_store_dwordx4 {v(VO+32,4)}, v{vOA}, {S_W}, s{sA} offen")
    a(f"""
    s_barrier
    s_add_u32 s{sSEG}, s{sSEG}, {NS_O}
    s_cmp_lt_u32 s{sSEG}, 64
    s_cbranch_scc1 {P}_loop
    s_branch L_next
    """)

def bc_atomic(a, L, off, val):
    a(f"""
    s_cmp_lg_u32 s{sWAVE}, 0
    s_cbranch_scc1 {L}_w
    v_mov_b32 v1, {val}
    v_mov_b32 v2, {off}
    v_mov_b32 v3, {L_BC}
    s_mov_b64 exec, 1
    buffer_atomic_add v1, v2, {S_DBG}, 0 offen sc0
    s_waitcnt vmcnt(0)
    ds_write_b32 v3, v1
    s_waitcnt lgkmcnt(0)
    s_mov_b64 exec, -1
    {L}_w:
    v_mov_b32 v3, {L_BC}
    s_barrier
    ds_read_b32 v1, v3
    s_waitcnt lgkmcnt(0)
    v_readfirstlane_b32 s{sROLE}, v1
    s_barrier
    """)

def k2(a, name, o=None):
    o = o or team.Opt(diag=False)
    GATE[0] = o.gate
    SLEEP[0] = f"s_sleep {o.sleep}" if o.sleep else ""
    kernel_head(a, name)
    a(f"""
    s_cmp_ge_u32 s2, 256
    s_cbranch_scc1 L_exit
    s_load_dwordx4 s[76:79], s[0:1], 0         ; x, mem0
    s_load_dwordx8 s[80:87], s[0:1], 16
    s_load_dwordx8 s[64:71], s[0:1], 56        ; B_x w1 w2 gate_w
    s_load_dwordx2 s[88:89], s[0:1], 88
    s_load_dwordx4 s[72:75], s[0:1], 96
    s_getreg_b32 s18, hwreg(HW_REG_XCC_ID)
    v_lshrrev_b32 v1, 6, v0
    s_and_b32 s18, s18, 15
    v_readfirstlane_b32 s{sWAVE}, v1
    s_mov_b32 s{sBUD}, {o.budget}
    s_waitcnt lgkmcnt(0)
    """)
    srd(a, 4, 74, WS_BYTES); srd(a, 12, 72, 256); srd(a, 60, 78, 7168)
    if DIAG['on']: a("s_mov_b32 s3, s2")
    tdefer(a, 0); dstamp(a, 1, sWAVE, inv=True, few=True)
    if o.cpf:
      a(f"""
      s_getpc_b64 s[36:37]
      L_code_ref:
      s_and_b32 s36, s36, 0xffffff00
      s_bfe_u32 s38, s2, 0x20003
      s_lshl_b32 s38, s38, 14
      v_lshlrev_b32 v203, 6, v0
      v_add_u32 v203, s38, v203
      v_min_u32 v203, L_code_end - L_code_ref, v203
      global_load_dword v204, v203, s[36:37]
      """)
    a(f"""
    s_lshl_b32 s36, s2, 2
    s_add_u32 s36, s36, s{sWAVE}
    s_cmp_lg_u32 s36, 1
    s_cbranch_scc1 L_p1
    v_mov_b32 v199, 1
    v_and_b32 v200, 31, v0
    v_lshlrev_b32 v200, 7, v200
    v_mov_b32 v201, 0
    s_mov_b32 s36, {WS_DONE}
    buffer_store_dword v201, v200, {S_WS}, s36 offen sc1
    v_mov_b32 v200, {D_RST}
    s_waitcnt vmcnt(0)
    s_mov_b64 exec, 1
    buffer_atomic_add v199, v200, {S_DBG}, 0 offen
    s_mov_b64 exec, -1
    L_p1:
    """)
    def late(a):
        L = a.uid("LT")
        a(f"""
        s_mov_b64 exec, 1
        v_mov_b32 v200, {D_RST}
        s_cmp_eq_u32 s{k1.sDG}, 3
        s_cselect_b32 s36, 0, s{sWAVE}
        s_cmp_eq_u32 s36, 0
        s_cselect_b32 s36, 0, {OOB}
        buffer_load_dword v201, v200, {S_DBG}, s36 offen sc1
        s_cmp_eq_u32 s{sWAVE}, 1
        s_cbranch_scc1 {L}
        s_mov_b32 s36, {OOB}
        buffer_load_dword v202, v200, {S_DBG}, s36 offen sc1
        s_branch {L}_e
        {L}:
        s_movk_i32 s36, {D_TICK}
        s_cmp_eq_u32 s18, {o.team_xcc}
        s_cselect_b32 s36, {D_TEAM}, s36
        v_mov_b32 v203, s36
        v_mov_b32 v202, 1
        buffer_atomic_add v202, v203, {S_DBG}, 0 offen sc0
        {L}_e:
        s_mov_b64 exec, -1
        """)
    def early(a):
        if not o.bwait: return
        a(f"s_cmp_lg_u32 s{sWAVE}, 0\n s_cbranch_scc1 L_e1\n s_mov_b64 exec, 1")
        team.dbg_wait(a, "L_e0", D_RST, 1, 200, "sc1")
        a("s_mov_b64 exec, -1\n L_e1:\n s_barrier")
    k1.products(a, 80, early, late)
    a(f"""
    v_mbcnt_lo_u32_b32 v0, -1, 0
    v_mbcnt_hi_u32_b32 v0, -1, v0
    s_mov_b64 exec, 1
    """)
    a(f"s_waitcnt vmcnt(0)\n s_cmp_ge_u32 s{k1.sBLK}, 14\n s_cbranch_scc1 L_rst_ok\n v_cmp_eq_u32 vcc, 0, v201\n s_cbranch_vccz L_rst_ok\n s_cmp_eq_u32 s{k1.sDG}, 3\n s_cselect_b32 s36, 0, s{sWAVE}\n s_cmp_lg_u32 s36, 0\n s_cbranch_scc1 L_rst_ok")
    team.dbg_wait(a, "L_rst", D_RST, 1, 2)
    a(f"""
    s_lshr_b32 s38, s{k1.sMAT}, 2
    s_lshl_b32 s38, s38, 7
    s_add_u32 s38, s38, {WS_DONE}
    v_mov_b32 v1, 1
    v_mov_b32 v2, 0
    s_cmp_eq_u32 s{k1.sDG}, 3
    s_cbranch_scc1 L_p2
    s_barrier
    v_mov_b32 v1, 2
    s_cmp_lg_u32 s{sWAVE}, 0
    s_cbranch_scc1 L_p3
    L_p2:
    s_cmp_ge_u32 s{k1.sBLK}, 14
    s_cbranch_scc1 L_p3
    buffer_atomic_add v1, v2, {S_WS}, s38 offen
    L_p3:
    v_mov_b32 v3, {L_BC}
    s_barrier
    s_cmp_lg_u32 s{sWAVE}, 1
    s_cbranch_scc1 L_p4
    ds_write_b32 v3, v202
    s_waitcnt lgkmcnt(0)
    L_p4:
    s_barrier
    ds_read_b32 v1, v3
    s_waitcnt lgkmcnt(0)
    v_readfirstlane_b32 s{sROLE}, v1
    s_mov_b64 exec, -1
    s_barrier
    """)
    tstamp(a, 3, sWAVE); tflush(a, sWAVE); dstamp(a, 4, sWAVE, few=True)
    a(f"""
    s_cmp_lg_u32 s18, {o.team_xcc}
    s_cbranch_scc1 L_have
    s_and_b32 s{sROLE}, s{sROLE}, 0xffff
    s_cmp_lt_u32 s{sROLE}, 32
    s_cbranch_scc1 L_team
    s_branch L_next
    L_next_free:
    """)
    bc_atomic(a, "L_t1", D_TEAM, 0)
    a(f"s_and_b32 s{sROLE}, s{sROLE}, 0xffff\n s_cmp_ge_u32 s{sROLE}, 32\n s_cbranch_scc1 L_next")
    bc_atomic(a, "L_t2", D_TEAM, 0x10001)
    a(f"""
    s_and_b32 s{sROLE}, s{sROLE}, 0xffff
    s_cmp_lt_u32 s{sROLE}, 32
    s_cbranch_scc1 L_team
    L_next:
    """)
    tstamp(a, 7, sWAVE); dstamp(a, 10, sWAVE)
    bc_atomic(a, "L_t3", D_TICK, 1)
    a("L_have:")
    if DIAG['on']: a(f"s_cmp_ge_u32 s{sROLE}, {T_END}\n s_cbranch_scc1 L_exit")
    tstamp(a, 5, sWAVE); tstamp(a, 8, sWAVE, extra=f"s{sROLE}")
    for lab, lo, hi in (("GB", T_TB, T_TA), ("GA", T_TA, T_TH), ("GH", T_TH, T_TU), ("TU", T_TU, T_O1), ("O1", T_O1, T_O2), ("O2", T_O2, T_END)):
        a(f"s_cmp_lt_u32 s{sROLE}, {hi - lo}\n s_cbranch_scc1 {lab}_entry\n s_sub_u32 s{sROLE}, s{sROLE}, {hi - lo}")
    a("L_exit:\n s_endpgm\n L_team_done:")
    dstamp(a, 9, sWAVE, tmp=(56, 57))
    if DIAG['on']:
        tstamp(a, 7, sWAVE, tmp=(56, 57))
        a(f"""
        s_cmp_lg_u32 s17, 3
        s_cbranch_scc1 L_exit
        s_lshl_b32 s36, s16, 14
        s_add_u32 s36, s36, {WS_DIAG + 65536 + 3*4096}
        v_lshrrev_b32 v28, 2, v0
        """)
        for i in range(10): a(f"buffer_store_dword v{160+i}, v28, s[4:7], s36 offen offset:{256*i}")
        a("v_mov_b32 v28, s56\n v_mov_b32 v29, s57\n v_mov_b32 v30, s58\n v_mov_b32 v31, 0")
        a("v_mov_b32 v32, 0\n buffer_store_dwordx4 v[28:31], v32, s[4:7], s36 offen offset:2560")
    a("s_endpgm")
    a(f"L_side:\n s_cmp_ge_u32 s{sWAVE}, 2\n s_cbranch_scc1 L_side_e")
    k1.side_job(a, 76, 70)
    a("L_side_e:\n s_barrier\n s_cmp_eq_u32 s21, 0\n s_cbranch_scc1 GB_go\n s_branch GA_go")
    gw(a, 'B'); gw(a, 'A'); gw(a, 'H'); tu(a); o1(a); o2(a)
    a("L_team:")
    tstamp(a, 5, sWAVE); tstamp(a, 8, sWAVE, extra="1000")
    team.team_body(a, o)
    a("L_code_end:")
```

```python
from asmlib import *
from layout import *

L_M, L_Y, L_UM, L_MISC, L_S, L_B0, L_X, L_X2, L_B1 = 0, 8192, 12288, 16384, 16640, 18432, 0xc000, 0x10000, 0x13800
TEAM_LDS = L_B1 + 30720
SM = "v_smfmac_f32_16x16x64_bf16"
S_WS, S_X, S_DBG = "s[4:7]", "s[8:11]", "s[12:15]"
sRANK, sWAVE, sH, sJ, sSTEP, sCT = 16, 17, 18, 19, 20, 21
sFL, sMODE = 22, 23
sCUR, sNXT, sPRV = 24, 25, 26
sVO, sXO, sCN, sMO, sBUD = 30, 31, 32, 33, 35
sT0, sT1, sT2, sT3 = 36, 37, 38, 39
sM1, sXT, sXL = 45, 47, 46
OOB = 0x7ff00000
D_GO = 192
SCALE = 0x3db8aa3b
sSC = 44
XSTEP = 32*896

class Opt:
    def __init__(self, **kw):
        self.trace = None; self.diag = True
        self.nsteps = 63
        self.kf = 3; self.nf1 = 5; self.nf = 5; self.ns = 5; self.f2pos = 0; self.kgo = 3; self.nx1 = 0; self.kfirst = 0; self.xb = 0; self.funr = 2; self.nv0 = 10; self.b0p = 2
        self.sleep = 4; self.cpf = 0; self.outf = ''; self.tlb = 1; self.bwait = 1; self.gate = True; self.budget = 2000000; self.team_xcc = 0
        self.__dict__.update(kw)

def nops(a, n):
    while n > 0:
        k = min(n, 16); a(f"s_nop {k-1}"); n -= k

def load_regs(a, regs, soff, vaddr="v0", fl=" sc1"):
    for i, r in enumerate(regs):
        if i and i % 4 == 0: a(f"s_add_u32 s{soff}, s{soff}, 4096")
        a(f"buffer_load_dwordx4 {v(r,4)}, {vaddr}, {S_WS}, s{soff} offen offset:{(i%4)*1024}{fl}")

TR_S, TR_V3 = 84, 160
def stamp(a, o, kind, pt):
    if o.trace and pt in o.trace.get(kind, []):
        i = o.trace[kind].index(pt)
        a(f"s_memtime s[{TR_S+2*i}:{TR_S+2*i+1}]")
def stamp_flush(a, o, kind, w=None):
    if not o.trace or kind not in o.trace: return
    n = len(o.trace[kind])
    a(f"s_memtime s[52:53]\n s_memrealtime s[50:51]\n s_mov_b32 m0, s{sSTEP}\n s_waitcnt lgkmcnt(0)")
    if kind == 'y':
        a(f"s_lshl_b32 s50, s{sRANK}, 2\n s_add_u32 s50, s50, {w}\n s_lshl_b32 s50, s50, 12\n s_lshl_b32 s51, s{sSTEP}, 2\n s_add_u32 s50, s50, s51\n s_add_u32 s50, s50, {WS_DIAG + 65536}\n v_mov_b32 v62, 0")
        for i in range(n): a(f"v_mov_b32 v63, s{TR_S+2*i}\n buffer_store_dword v63, v62, {S_WS}, s50 offen offset:{256*i}")
        return
    for i in range(n): a(f"v_writelane_b32 v{TR_V3+i}, s{TR_S+2*i}, m0")
    a(f"v_writelane_b32 v{TR_V3+8}, s52, m0\n v_writelane_b32 v{TR_V3+9}, s50, m0")
def count(a, o, r):
    if o.diag: a(f"s_add_u32 s{r}, s{r}, 1")

def ring_advance(a):
    a(f"""
    s_mov_b32 s{sPRV}, s{sCUR}
    s_mov_b32 s{sCUR}, s{sNXT}
    s_add_u32 s{sNXT}, s{sNXT}, 0x10000
    s_and_b32 s{sNXT}, s{sNXT}, {WS_RING | 0x30000}
    """)

def x_dma(a, lo=0, hi=14):
    for q in range(lo, hi):
        if (q - lo) % 4 == 0: a(f"s_add_u32 m0, s{sXL}, {q*1024}\n s_add_u32 s{sT2}, s{sXO}, {q*1024}")
        a(f"buffer_load_dwordx4 v0, {S_WS}, s{sT2} offen offset:{((q-lo)%4)*1024} sc1 lds")
    a(f"s_add_u32 s{sXO}, s{sXO}, {XSTEP}\n s_xor_b32 s{sXL}, s{sXL}, 0x1c000")

def budget_check(a):
    a(f"s_sub_u32 s{sBUD}, s{sBUD}, 1\n s_cmp_eq_u32 s{sBUD}, 0\n s_cbranch_scc1 L_team_done")

def flag_poll(a, o, P, regs, vaddr, off, s_want):
    n = len(regs)
    a("s_mov_b64 exec, 0xff")
    def body(i, wait=True):
        a(f"buffer_load_dword v{regs[i]}, {vaddr}, {S_WS}, s{sFL} offen offset:{off} sc1")
        if wait: a(f"s_waitcnt vmcnt({n-1})")
        a(f"v_cmp_ne_u32 vcc, s{s_want}, v{regs[(i+1)%n]}")
        a(f"s_cbranch_vccz {P}_fok")
    for i in range(n-1): body(i, False)
    body(n-1)
    a(f"{P}_fpoll:")
    for _ in range(o.funr):
        for i in range(n): body(i)
    a(f"s_sub_u32 s{sBUD}, s{sBUD}, 1\n s_cmp_lg_u32 s{sBUD}, 0\n s_cbranch_scc1 {P}_fpoll\n s_branch L_team_done")
    a(f"{P}_fok:")
    a("s_mov_b64 exec, -1")

KORD = (0, 1, 2, 6, 3, 4, 5)

def ywave(a, o, w):
    P = f"Y{w}"
    D, M, T = 12, 28, 8
    Aop = lambda t, k: 256 + (t*7 + k)*8
    def Bop(hh, k):
        i = hh*7 + k
        return 256 + 224 + i*8 if i < 4 else 64 + (i-4)*8
    def lds_wait(L, level):
        a(f"""
        v_mov_b32 v57, {L_MISC + 128}
        {L}:
        ds_read_b32 v56, v57
        s_waitcnt lgkmcnt(0)
        v_cmp_gt_u32 vcc, {level}, v56
        s_cbranch_vccz {L}_ok
        s_sleep 1
        s_sub_u32 s{sBUD}, s{sBUD}, 1
        s_cmp_lg_u32 s{sBUD}, 0
        s_cbranch_scc1 {L}
        s_branch L_team_done
        {L}_ok:
        """)
    lds_wait(f"{P}_wa", 1)
    if w == 0: tstamp(a, 4, sWAVE, tmp=(56, 57)); dstamp(a, 5, sWAVE, tmp=(56, 57))
    a(f"s_mul_i32 s{sT0}, s{sRANK}, {A_RANK}\n s_add_u32 s{sT0}, s{sT0}, {WS_A + w*4*7*2048}")
    load_regs(a, [Aop(t,k)+4*hf for t in range(4) for k in range(7) for hf in range(2)], sT0)
    lds_wait(f"{P}_wb", 2)
    if w == 0: dstamp(a, 11, sWAVE, tmp=(56, 57))
    a(f"s_mul_i32 s{sT0}, s{sCT}, {B_CT}\n s_add_u32 s{sT0}, s{sT0}, {WS_B + w*4*7*2048}")
    load_regs(a, [Bop(h,k)+4*hf for h in range(4) for k in range(7) for hf in range(2)][:54 if w < 2 else 56], sT0)
    if w < 2:
        for q in range(30):
            if q % 4 == 0:
                a(f"s_mul_i32 s{sT0}, s{sCT}, {B_CT}\n s_add_u32 s{sT0}, s{sT0}, {WS_B + ((12+2*w)*14 + q if q < 28 else (4*w+3)*14 + 12)*1024}\n s_mov_b32 m0, {(L_B0, L_B1)[w] + q*1024}\n s_nop 0")
            a(f"buffer_load_dwordx4 v0, {S_WS}, s{sT0} offen offset:{(q%4)*1024} sc1 lds")
    y_addr(a, w)
    a(f"""
    v_lshrrev_b32 v63, 1, v62
    v_lshlrev_b32 v6, 8, v63
    v_lshl_add_u32 v6, v61, 4, v6
    v_and_b32 v63, 1, v62
    v_lshl_add_u32 v6, v63, 3, v6
    v_add_u32 v6, {L_UM + w*1024}, v6
    v_add_u32 v7, {(L_B0, L_B1, 0)[w]}, v0
    v_mov_b32 v4, {L_MISC + 64}
    v_and_b32 v2, 31, v60
    v_lshlrev_b32 v2, 2, v2
    """)
    a(f"s_mul_i32 s{sXO}, s{sJ}, 14336\n s_add_u32 s{sXO}, s{sXO}, {WS_XP + (0 if w == 2 else XSTEP)}\n s_mov_b32 s{sXL}, {L_X if w == 2 else L_X2}")
    if w == 2:
        lds_wait(f"{P}_ws", 3)
        x_dma(a)
        if o.tlb:
            a(f"v_min_u32 v56, 14, v60\n v_lshlrev_b32 v56, 21, v56\n s_mov_b32 s{sT0}, {WS_VO}\n buffer_load_dword v57, v56, {S_WS}, s{sT0} offen sc1")
        a(f"v_lshlrev_b32 v56, 16, v62\n v_lshl_add_u32 v56, v61, 4, v56\n s_mul_i32 s{sT0}, s{sRANK}, 1280\n s_add_u32 s{sT0}, s{sT0}, {WS_RING}")
        for k in range(5): a(f"buffer_load_dwordx4 v[12:15], v56, {S_WS}, s{sT0} offen offset:{256*k} sc1")
    team_sync(a, o, P, w)
    FRG = [56, 57, 58, 59, 60, 61, 62, 63, 8, 9, 10, 11][:o.nf1]
    def steps(P, ST):
        a(f"{P}_loop:")
        a(f"s_add_u32 s{sM1}, s{sCUR}, {w*1024}")
        for r in range(16): a(f"v_mov_b32 v{D+r}, 0")
        if w == 0:
            a(f"s_mul_i32 s{sT3}, s{sSTEP}, 0x01010101")
            for r in FRG[1:]: a(f"v_mov_b32 v{r}, -1")
        if w == 1 and DBGT['on']:
            for st, word in ((4, 7), (32, 8)):
                L = a.uid("DT"); a(f"s_cmp_lg_u32 s{sSTEP}, {st}\n s_cbranch_scc1 {L}"); dstamp(a, word, sWAVE, tmp=(56, 57), wave=1); a(f"{L}:")
        a("s_waitcnt vmcnt(0)")
        if w == 0:
            a(f"""
            {P}_go:
            ds_read_b32 v56, v4
            s_waitcnt lgkmcnt(0)
            v_cmp_gt_u32 vcc, s{sSTEP}, v56
            s_cbranch_vccz {P}_go_ok
            s_sub_u32 s{sBUD}, s{sBUD}, 1
            s_cmp_lg_u32 s{sBUD}, 0
            s_cbranch_scc1 {P}_go
            s_branch L_team_done
            {P}_go_ok:
            """)
            flag_poll(a, o, P, FRG, "v2", 0, sT3)
        a(f"s_mov_b32 m0, {L_M + w*1024}")
        a("s_barrier   ; B0")
        stamp(a, o, 'y', 0)
        a(f"buffer_load_dwordx4 v0, {S_WS}, s{sM1} offen sc1 lds")
        a("s_barrier   ; B0'")
        a(f"buffer_load_dwordx4 v0, {S_WS}, s{sM1} offen offset:3072 sc1 lds")
        n1 = o.nx1; lo = (0, (n1+2)//3, (n1+2)//3 + (n1+1)//3, n1); nx = lo[w+1] - lo[w]
        if o.xb: a("s_barrier   ; B0''")
        if w < 2 or n1 == 14: x_dma(a, lo[w], lo[w+1])
        elif nx:
            t = Asm(); x_dma(t, lo[w], lo[w+1])
            for l in t.lines[:-2]: a(l)
        sm = lambda t, k: a(f"{SM} {v(D+4*t,4)}, {v(M+4*k,4)}, {v(Aop(t,k),8)}, v1")
        mread = lambda k: a(f"ds_read_b128 {v(M+4*k,4)}, v0 offset:{L_M + 1024*k}")
        a(f"s_waitcnt vmcnt({1+nx})")
        stamp(a, o, 'y', 11)
        a("s_barrier   ; B1")
        for k in KORD[:4]: mread(k)
        a("s_waitcnt lgkmcnt(3)")
        stamp(a, o, 'y', 12)
        sm(0,0); sm(1,0); sm(2,0)
        a(f"s_waitcnt vmcnt({nx})\n s_barrier   ; B1'")
        sm(3,0)
        for k in KORD[4:]: mread(k)
        a(f"{P}_y:")
        a("s_waitcnt lgkmcnt(5)")
        sm(0,1); sm(1,1); sm(2,1); sm(3,1)
        for n, k in enumerate(KORD[2:]):
            a(f"s_waitcnt lgkmcnt({4-n})"); sm(0,k); sm(1,k)
        sm(2,2); a("s_nop 1"); sm(3,2); a("s_nop 1"); sm(2,6)
        a(f"v_add_f32 v{D}, v{D}, v{D+1}\n v_add_f32 v{D+2}, v{D+2}, v{D+3}")
        sm(3,6)
        a(f"v_add_f32 v{D+4}, v{D+4}, v{D+5}\n v_add_f32 v{D+6}, v{D+6}, v{D+7}")
        sm(2,3)
        a(f"v_cmp_u_f32 vcc, v{D}, v{D+2}")
        a(f"v_cvt_pk_bf16_f32 v{T}, v{D}, v{D+4}")
        sm(3,3)
        a(f"v_cvt_pk_bf16_f32 v{T+1}, v{D+2}, v{D+6}")
        a(f"ds_write2_b32 v3, v{T}, v{T+1} offset0:0 offset1:8")
        z = [f"v_mov_b32 v{D+r}, 0" for r in range(8)]
        sm(2,4); a(z[0]); a(z[1]); sm(3,4); a(z[2]); a(z[3]); sm(2,5); a(z[4]); a(z[5]); sm(3,5)
        stamp(a, o, 'y', 15)
        a(z[6]); a("s_waitcnt lgkmcnt(0)\n s_barrier   ; B1y"); a(z[7])
        a("s_nop 1")
        a(f"v_add_f32 v{D+8}, v{D+8}, v{D+9}\n v_add_f32 v{D+10}, v{D+10}, v{D+11}")
        a(f"v_add_f32 v{D+12}, v{D+12}, v{D+13}\n v_add_f32 v{D+14}, v{D+14}, v{D+15}")
        a(f"v_cvt_pk_bf16_f32 v{T+2}, v{D+8}, v{D+12}")
        a(f"v_cvt_pk_bf16_f32 v{T+3}, v{D+10}, v{D+14}")
        a(f"ds_write2_b32 v5, v{T+2}, v{T+3} offset0:0 offset1:8")
        a(f"s_cbranch_vccnz {P}_fail")
        a(f"{P}_yok:")
        for r in range(8, 16): a(f"v_mov_b32 v{D+r}, 0")
        a("s_waitcnt lgkmcnt(0)")
        stamp(a, o, 'y', 16)
        a("s_barrier   ; B2")
        if w < 2: mb_six(a, D, M, T, Bop, w)
        else: mb_four(a, D, M, T, Bop)
        a("s_waitcnt lgkmcnt(0)")
        stamp(a, o, 'y', 4)
        a("s_barrier   ; B3")
        if w == 2 and o.nx1 < 14: x_dma(a, o.nx1, 14)
        stamp_flush(a, o, 'y', w)
        ring_advance(a)
        a(f"s_add_u32 s{sSTEP}, s{sSTEP}, 1\n s_cmp_lt_u32 s{sSTEP}, {o.nsteps}\n s_cbranch_scc1 {P}_loop")
        a(f"s_branch L_team_done")
        a(f"{P}_fail:")
        m_exact(a, P, M)
        a("s_waitcnt vmcnt(0) lgkmcnt(0)")
        budget_check(a)
        for r in range(16): a(f"v_mov_b32 v{D+r}, 0")
        count(a, o, 56)
        a(f"s_mov_b32 m0, {L_M + w*1024}\n s_barrier")
        a(f"buffer_load_dwordx4 v0, {S_WS}, s{sM1} offen sc1 lds")
        a(f"buffer_load_dwordx4 v0, {S_WS}, s{sM1} offen offset:3072 sc1 lds")
        a("s_waitcnt vmcnt(0)\n s_barrier")
        for k in KORD: mread(k)
        a("s_waitcnt lgkmcnt(6)")
        sm(0,0); sm(1,0); sm(2,0); sm(3,0)
        a(f"s_branch {P}_y")
    both_modes(a, P, steps)

def m_exact(a, P, M):
    a("s_mov_b64 s[40:41], 0")
    for r in range(M, M+28): a(f"v_cmp_eq_u32 vcc, -1, v{r}\n s_or_b64 s[40:41], s[40:41], vcc")
    a(f"s_cmp_eq_u64 s[40:41], 0\n s_cbranch_scc1 {P}_yok")

epi = lambda d, t: [f"v_add_f32 v{d}, v{d}, v{d+1}", f"v_add_f32 v{d+2}, v{d+2}, v{d+3}", f"v_cvt_pk_bf16_f32 v{t}, v{d}, v{d+2}"]

def mb_four(a, D, M, T, Bop):
    pend = []
    for hh in range(4):
        for k in range(7):
            a(f"{SM} {v(D+4*hh,4)}, {v(M+4*k,4)}, {v(Bop(hh,k),8)}, v1")
            if pend and k >= 4:
                if k == 4: a("s_nop 2")
                a(pend.pop(0))
        pend = epi(D + 4*hh, T + hh)
    a("s_nop 7")
    for l in pend: a(l)
    a(f"ds_write_b64 v6, {v(T,2)}")
    a(f"ds_write_b64 v6, {v(T+2,2)} offset:512")

def mb_six(a, D, M, T, Bop, w):
    SB = [56, Bop(3,6)]
    nxt = [0]; q = []
    def fetch():
        i = nxt[0]
        if i >= 15: return
        nxt[0] += 1
        a(f"ds_read_b128 {v(SB[i%2],4)}, v7 offset:{i*2048}")
        a(f"ds_read_b128 {v(SB[i%2]+4,4)}, v7 offset:{i*2048 + 1024}")
        q.extend([("f", i)]*2)
    def need(tag):
        if tag in q:
            last = len(q) - 1 - q[::-1].index(tag)
            a(f"s_waitcnt lgkmcnt({len(q)-1-last})"); del q[:last+1]
    sm = lambda d, k, b: a(f"{SM} {v(d,4)}, {v(M+4*k,4)}, {v(b,8)}, v1")
    for k in range(7):
        sm(D+12, k, Bop(2,k))
        if k in (4, 5): fetch()
    for k in range(7):
        sm(D, k, Bop(0,k)); sm(D+4, k, Bop(1,k))
        need(("f", k)); sm(D+8, k, SB[k%2]); fetch()
        if k == 2:
            for l in epi(D+12, T+2): a(l)
            for r in range(4): a(f"v_mov_b32 v{D+12+r}, 0")
    fill = ["s_nop 3"] + epi(D, T) + epi(D+4, T+1) + [f"v_mov_b32 v{D+r}, 0" for r in range(4)] + [f"ds_write_b64 v6, {v(T,2)}"] + epi(D+8, T)
    for k in range(6):
        sm(D+12, k, Bop(3,k))
        for _ in range(3):
            if fill:
                l = fill.pop(0); a(l)
                if l.startswith("ds_"): q.append("w")
    assert not fill
    for k in range(7):
        need(("f", 7+k)); sm(D, k, SB[(7+k)%2]); fetch()
    need(("f", 14)); sm(D+12, 6, SB[0])
    a("s_nop 6")
    for l in epi(D, T+1) + epi(D+12, T+3): a(l)
    a(f"ds_write_b64 v6, {v(T,2)} offset:{3072 - 512*w}")
    a(f"ds_write_b64 v6, {v(T+2,2)} offset:512")

def y_addr(a, w):
    a(f"""
    v_lshrrev_b32 v63, 3, v61
    v_lshlrev_b32 v3, 8, v63
    v_lshl_add_u32 v3, v62, 6, v3
    v_bfe_u32 v63, v61, 1, 1
    v_lshl_add_u32 v3, v63, 4, v3
    v_bfe_u32 v63, v61, 2, 1
    v_lshl_add_u32 v3, v63, 3, v3
    v_and_b32 v63, 1, v61
    v_lshl_add_u32 v3, v63, 2, v3
    v_add_u32 v3, {L_Y + (w*512 if w < 3 else 3584)}, v3
    """)
    if w < 3: a("v_add_u32 v5, 2048, v3")

def dbg_wait(a, L, off, need, t, fl="sc0 sc1"):
    a(f"""
    v_mov_b32 v{t+1}, {off}
    {L}:
    buffer_load_dword v{t}, v{t+1}, {S_DBG}, 0 offen {fl}
    s_waitcnt vmcnt(0)
    v_readfirstlane_b32 s{sT0}, v{t}
    s_and_b32 s{sT1}, s{sT0}, 0xffff
    s_cmp_ge_u32 s{sT1}, {need}
    s_cbranch_scc1 {L}_ok
    s_sub_u32 s{sBUD}, s{sBUD}, 1
    s_cmp_lg_u32 s{sBUD}, 0
    s_cbranch_scc1 {L}
    s_branch L_team_done
    {L}_ok:
    """)

def wait_done(a, what, t0, t1, dead, sleep=""):
    L = a.uid("WD"); first, n = {'A': (0, 4), 'B': (4, 4), 'S': (8, 2), 'a': (0, 1)}[what]
    a(f"""
    v_mbcnt_lo_u32_b32 v{t1}, -1, 0
    v_and_b32 v{t1}, {n-1}, v{t1}
    v_lshlrev_b32 v{t1}, 7, v{t1}
    s_mov_b32 s41, {WS_DONE + first*128}
    {f's_lshr_b32 s40, s{sH}, 2' if what == 'a' else ''}
    {f's_lshl_b32 s40, s40, 7' if what == 'a' else ''}
    {f's_add_u32 s41, s41, s40' if what == 'a' else ''}
    s_mov_b64 exec, {(1 << n) - 1}
    {L}:
    buffer_load_dword v{t0}, v{t1}, {S_WS}, s41 offen sc1
    s_waitcnt vmcnt(0)
    v_cmp_gt_u32 vcc, 64, v{t0}
    s_cbranch_vccz {L}_ok
    {sleep}
    s_sub_u32 s{sBUD}, s{sBUD}, 1
    s_cmp_lg_u32 s{sBUD}, 0
    s_cbranch_scc1 {L}
    s_branch {dead}
    {L}_ok:
    s_mov_b64 exec, -1
    """)

def team_sync(a, o, P, w):
    a("s_waitcnt vmcnt(0) lgkmcnt(0)")
    if w == 0: tstamp(a, 9, sWAVE, tmp=(56, 57))
    if w == 1:
        a(f"s_cmp_lg_u32 s{sRANK}, 0\n s_cbranch_scc1 {P}_nogo\n v_mov_b32 v56, 1\n v_mov_b32 v57, {D_GO}\n buffer_store_dword v56, v57, {S_DBG}, 0 offen sc1\n {P}_nogo:")
    a("s_barrier")
    if w < 3: a(f"v_mov_b32 v58, {L_MISC}\n ds_read_b32 v58, v58\n s_waitcnt lgkmcnt(0)\n v_readfirstlane_b32 s{sMODE}, v58")
    if w == 0: tstamp(a, 6, sWAVE, tmp=(56, 57)); dstamp(a, 6, sWAVE, tmp=(56, 57))

def both_modes(a, P, steps):
    a(f"s_cmp_lg_u32 s{sMODE}, 0\n s_cbranch_scc1 {P}_far")
    steps(P, "")
    a(f"{P}_far:")
    steps(P + "f", " sc1")

def wave3(a, o):
    P = "W3"
    DY, DS, M, NEG = 12, 20, 32, 60
    EX, SC, OWN, PR, FR = 64, 68, 76, 96, 136
    vFA, vFS, vST, vXT, vXD, vSG, vPA, vMO, vMA, vCN = 142, 143, 144, 145, 146, 147, 148, 157, 158, 159
    vSX, vS0, vL0, vK0, vK1, vVA, vZ, DP, YO, KM, SET = 170, 171, 172, 173, 174, 176, 184, 188, 192, 208, 236
    vGO, vKX = 185, 186
    U, KX = 256 + 112, 256 + 192
    Aop = lambda t, k: 256 + (t*7 + k)*8
    def watch(level, what):
        wait_done(a, what, 56, 57, "L_team_done", "s_sleep 4" if what == 'S' else "")
        a(f"v_mov_b32 v56, {level}\n v_mov_b32 v57, {L_MISC + 128}\n ds_write_b32 v57, v56")
    watch(1, 'a')
    a("s_mov_b64 exec, 1")
    dbg_wait(a, "W3_seats", 0, 32, 56)
    a(f"s_mov_b64 exec, -1\n s_lshr_b32 s{sMODE}, s{sT0}, 16\n v_mov_b32 v56, s{sMODE}\n v_mov_b32 v57, {L_MISC}\n ds_write_b32 v57, v56")
    y_addr(a, 3)
    for k in range(8):
        a(f"s_add_u32 s{sT0}, s{sRANK}, {k}\n s_and_b32 s{sT0}, s{sT0}, 7")
        a(f"s_lshl_b32 s{sT1}, s{sT0}, 11\n v_add_u32 v{vVA+k}, s{sT1}, v0")
        a(f"s_lshl_b32 s{sT1}, s{sT0}, 10\n s_add_u32 s{sT1}, s{sT1}, {R_P + 2048}\n v_add_u32 v{vPA+k}, s{sT1}, v0")
    a(f"""
    v_add_u32 v{vPA+8}, {R_P}, v0
    v_add_u32 v{vKX}, {L_X}, v0
    v_and_b32 v{vK0}, 7, v61
    v_lshlrev_b32 v{vK0}, 5, v{vK0}
    v_lshrrev_b32 v63, 1, v62
    v_lshl_add_u32 v{vK0}, v63, 8, v{vK0}
    v_and_b32 v63, 1, v62
    v_lshl_add_u32 v{vK0}, v63, 3, v{vK0}
    s_mul_i32 s{sT0}, s{sJ}, {14*256}
    v_add_u32 v{vK0}, s{sT0}, v{vK0}
    v_add_u32 v{vK1}, 2048, v{vK0}
    v_mul_u32_u24 v6, 320, v63
    v_lshl_add_u32 v6, v61, 2, v6
    v_lshrrev_b32 v63, 1, v62
    v_cmp_eq_u32 vcc, s{sJ}, v63
    v_cmp_gt_u32 s[40:41], 8, v61
    s_xor_b32 s{sT0}, s{sRANK}, 1
    s_mul_i32 s{sT0}, s{sT0}, 640
    s_add_u32 s{sT0}, s{sT0}, {R_S}
    v_add_u32 v59, s{sT0}, v6
    v_add_u32 v6, {L_S}, v6
    v_mov_b32 v58, {OOB}
    v_mov_b32 v57, {L_S + 1024}
    v_cndmask_b32 v{vSX}, v59, v58, vcc
    v_cndmask_b32 v6, v57, v6, vcc
    v_cndmask_b32 v{vS0}, v58, v{vSX}, s[40:41]
    v_cndmask_b32 v{vL0}, v57, v6, s[40:41]
    v_cmp_gt_u32 vcc, 10, v61
    v_mov_b32 v63, 0x7f800000
    v_mov_b32 v9, 0x42800000
    v_mul_u32_u24 v2, 160, v62
    v_cndmask_b32 v9, v63, v9, vcc
    v_cndmask_b32 v63, 0, v61, vcc
    v_lshl_add_u32 v2, v63, 4, v2
    s_mul_i32 s{sT0}, s{sRANK}, 640
    s_add_u32 s{sT0}, s{sT0}, {R_S}
    v_add_u32 v{vSG}, s{sT0}, v2
    v_add_u32 v2, {L_S}, v2
    v_mov_b32 v63, {L_S + 1536}
    v_cndmask_b32 v2, v63, v2, vcc
    v_mov_b32 v{SC}, 0xf149f2ca
    v_mov_b32 v{SC+1}, 0xf149f2ca
    v_mov_b32 v{SC+2}, 0xf149f2ca
    v_mov_b32 v{SC+3}, 0xf149f2ca
    ds_write_b128 v63, {v(SC,4)}
    v_cndmask_b32 v10, v58, v{vSG}, vcc
    v_lshrrev_b32 v59, 1, v61
    s_lshl_b32 s{sT0}, s{sH}, 2
    s_add_u32 s{sT0}, s{sT0}, 15
    v_add_u32 v59, s{sT0}, v59
    v_mov_b32 v57, s{sH}
    v_cmp_gt_u32 s[40:41], 2, v61
    s_nop 1
    v_cndmask_b32 v59, v59, v57, s[40:41]    ; u
    v_lshrrev_b32 v57, 1, v59
    v_lshlrev_b32 v4, 8, v57
    v_and_b32 v57, 1, v59
    v_lshl_add_u32 v4, v57, 4, v4
    v_and_b32 v57, 1, v61
    v_lshl_add_u32 v4, v57, 3, v4
    v_lshl_add_u32 v4, v62, 5, v4
    s_lshl_b32 s{sT0}, s{sJ}, 7
    s_add_u32 s{sT0}, s{sT0}, {R_P}
    v_add_u32 v4, s{sT0}, v4
    v_cndmask_b32 v4, v58, v4, vcc
    v_cmp_eq_u32 vcc, 0, v60
    s_nop 0
    v_mov_b32 v57, s{sRANK}
    v_cndmask_b32 v{vFS}, v58, v57, vcc
    v_and_b32 v57, 31, v60
    v_lshlrev_b32 v{vFA}, 2, v57
    v_mov_b32 v{vST}, 0
    v_mov_b32 v{vGO}, {L_MISC + 64}
    ds_write_b32 v{vGO}, v{vST}
    v_and_b32 v58, 1, v61
    v_lshl_add_u32 v59, v62, 1, v58
    v_lshlrev_b32 v5, 5, v59
    v_bfe_u32 v57, v61, 1, 1
    v_lshl_add_u32 v5, v57, 4, v5
    v_lshrrev_b32 v57, 2, v61
    v_lshl_add_u32 v5, v57, 2, v5
    s_lshl_b32 s{sT0}, s{sRANK}, 8
    v_add_u32 v5, s{sT0}, v5
    v_lshlrev_b32 v{vMA}, 4, v59
    v_bfe_u32 v57, v61, 3, 1
    v_lshl_add_u32 v{vMA}, v57, 7, v{vMA}
    v_bfe_u32 v57, v61, 1, 2
    v_lshl_add_u32 v{vMA}, v57, 2, v{vMA}
    v_add_u32 v{vMA}, s{sT0}, v{vMA}
    v_mov_b32 v{vZ}, 0
    v_cmp_eq_u32 vcc, 1, v58
    v_mov_b32 v8, 0x01000504
    v_mov_b32 v57, 0x07060302
    v_cndmask_b32 v8, v8, v57, vcc
    v_mul_u32_u24 v59, 896, v59
    v_lshrrev_b32 v57, 1, v61
    v_lshl_add_u32 v59, v57, 2, v59
    s_lshl_b32 s{sT0}, s{sCT}, 5
    v_add_u32 v59, s{sT0}, v59
    buffer_load_dword v{vMO}, v59, s[60:63], 0 offen
    v_min_u32 v{vXT}, 13, v60
    v_lshlrev_b32 v{vXT}, 6, v{vXT}
    s_lshl_b32 s{sT1}, s{sCT}, 14
    s_add_u32 s{sVO}, s{sT1}, {WS_VO}
    s_mul_i32 s{sXT}, s{sRANK}, 896
    s_add_u32 s{sXT}, s{sXT}, {WS_XP + XSTEP}
    s_mov_b32 s{sMO}, {WS_MO}
    s_mov_b32 s{sSC}, {SCALE}
    s_mov_b32 s{sCN}, {WS_CNT + C_VO}
    """)
    for r in range(20): a(f"v_mov_b32 v{DY+r}, 0")
    for r in range(4): a(f"v_mov_b32 v{NEG+r}, -1\n v_mov_b32 v{DP+r}, 0")
    for r in range(6): a(f"v_mov_b32 v{FR+r}, 0")
    a(f"ds_write_b128 v0, {v(DY,4)} offset:{L_Y + 1024}")
    a("s_waitcnt vmcnt(0)")
    def init(P, ST):
        a(f"buffer_store_byte v{vST}, v{vFS}, {S_WS}, s{sFL} offen{ST}")
        a(f"buffer_store_byte v{vST}, v{vFS}, {S_WS}, s{sFL} offen offset:2048{ST}")
        for sl in range(4):
            a(f"s_mov_b32 s{sT0}, {WS_RING + sl*0x10000}")
            a(f"buffer_store_dwordx4 {v(NEG,4)}, v10, {S_WS}, s{sT0} offen{ST}")
            a(f"buffer_store_dwordx2 {v(NEG,2)}, v4, {S_WS}, s{sT0} offen{ST}")
            a(f"buffer_store_dword v{NEG if sl else vMO}, v5, {S_WS}, s{sT0} offen{ST}")
        if not ST: a("s_branch W3_inited")
    both_modes(a, "W3i", init)
    a("W3_inited:")
    a(f"s_waitcnt vmcnt(0)\n s_mov_b64 exec, 1\n v_mov_b32 v56, 1\n v_mov_b32 v57, 64\n buffer_atomic_add v56, v57, {S_DBG}, 0 offen")
    a("s_mov_b64 exec, -1")
    watch(2, 'B'); watch(3, 'S')
    a(f"s_mul_i32 s{sT0}, s{sRANK}, {A_RANK}\n s_add_u32 s{sT0}, s{sT0}, {WS_A + 12*7*2048}")
    load_regs(a, [Aop(t,k)+4*hf for t in range(2) for k in range(7) for hf in range(2)], sT0)
    def vo_wait(L):
        a(f"""
        {L}:
        buffer_load_dword v{vCN}, v{vZ}, {S_WS}, s{sCN} offen sc1
        s_waitcnt vmcnt(0)
        v_cmp_gt_u32 vcc, 56, v{vCN}
        s_cbranch_vccz {L}_ok
        s_sub_u32 s{sBUD}, s{sBUD}, 1
        s_cmp_lg_u32 s{sBUD}, 0
        s_cbranch_scc1 {L}
        s_branch L_team_done
        """)
    a("s_mov_b64 exec, 1")
    dbg_wait(a, "W3_tsync", 64, 32, 56)
    a("s_mov_b64 exec, -1")
    vo_wait("W3_vo0"); a("W3_vo0_ok:")
    a(f"s_add_u32 s{sCN}, s{sCN}, 2048")
    team_sync(a, o, P, 3)
    HORD = (0, 2, 4, 1, 3, 5, 6)
    KT = (KM, KX, KX + 28); KOF = (0, 8, 12, 20)
    def steps(P, ST):
        a(f"s_add_u32 s{sM1}, s{sCUR}, 6144\n s_mov_b32 s{sT3}, 0")
        a(f"{P}_loop:")
        a(f"s_mov_b32 m0, {L_M + 6144}")
        a("s_barrier   ; B0")
        stamp(a, o, 'w3', 0)
        a(f"buffer_load_dwordx4 v0, {S_WS}, s{sM1} offen sc1 lds")
        vq = [f"buffer_store_dword v{vMO}, v{vMA}, {S_WS}, s{sMO} offen sc1",
              f"buffer_load_dword v{vCN}, v{vZ}, {S_WS}, s{sCN} offen sc1",
              f"buffer_load_dword v{vXD}, v{vXT}, {S_WS}, s{sXT} offen sc1"]
        for k in range(8):
            vq.append(f"buffer_load_dwordx4 {v(U+16+8*k,4)}, v{vVA+k}, {S_WS}, s{sVO} offen sc1")
            vq.append(f"buffer_load_dwordx4 {v(U+20+8*k,4)}, v{vVA+k}, {S_WS}, s{sVO} offen offset:1024 sc1")
        a("s_barrier   ; B0'")
        a(f"s_add_u32 s{sXT}, s{sXT}, {XSTEP}\n s_add_u32 s{sT3}, s{sT3}, 0x01010101\n v_add_u32 v{vST}, 1, v{vST}")
        if o.xb: a("s_barrier   ; B0''")
        def keys():
            for kt in range(2):
                for n, hh in enumerate(HORD): a(f"ds_read_b128 {v(KX+28*kt+4*n,4)}, v{vKX} offset:{kt*7168 + hh*1024}")
        if o.kfirst: keys()
        else: nops(a, o.b0p)
        nv = min(o.nv0, len(vq))
        for _ in range(nv): a(vq.pop(0))
        if not o.kfirst: keys()
        a(f"s_waitcnt vmcnt({nv})\n s_barrier   ; B1")
        mread = lambda k: a(f"ds_read_b128 {v(M+4*k,4)}, v0 offset:{L_M + 1024*k}")
        for k in KORD[:4]: mread(k)
        a(f"s_barrier   ; B1'")
        for k in KORD[4:]: mread(k)
        while vq: a(vq.pop(0))
        stamp(a, o, 'w3', 10)
        a(f"{P}_y:")
        for n, k in enumerate(KORD):
            a(f"s_waitcnt lgkmcnt({6-n})" if n < 4 else f"s_waitcnt lgkmcnt(0)" if n == 4 else "")
            a(f"{SM} {v(DY,4)}, {v(M+4*k,4)}, {v(Aop(0,k),8)}, v1")
            a(f"{SM} {v(DY+4,4)}, {v(M+4*k,4)}, {v(Aop(1,k),8)}, v1")
            if n >= 4:
                for hn in range(7)[(n-4)*2 : (n-4)*2 + (2 if n < 6 else 3)]:
                    hh = HORD[hn]; base, off = (vK0, hh*512) if hh < 4 else (vK1, (hh-4)*512)
                    a(f"ds_read2_b64 {v(KM+4*hn,4)}, v{base} offset0:{off//8} offset1:{off//8+2}")
        sets = [SET+4*i for i in range(o.ns)]
        for r in sets[1:]: a(f"v_mov_b32 v{r}, -1")
        nops(a, 5 - o.ns)
        a(f"v_add_f32 v{DY}, v{DY}, v{DY+1}\n v_add_f32 v{DY+2}, v{DY+2}, v{DY+3}")
        a(f"v_cmp_u_f32 vcc, v{DY}, v{DY+2}")
        a(f"v_add_f32 v{DY+4}, v{DY+4}, v{DY+5}\n v_add_f32 v{DY+6}, v{DY+6}, v{DY+7}")
        a(f"v_cvt_pk_bf16_f32 v{DY}, v{DY}, v{DY+4}\n v_cvt_pk_bf16_f32 v{DY+2}, v{DY+2}, v{DY+6}")
        a(f"ds_write2_b32 v3, v{DY}, v{DY+2} offset0:0 offset1:8")
        stamp(a, o, 'w3', 11)
        a("s_barrier   ; B1y")
        a(f"ds_read_b128 {v(YO,4)}, v0 offset:{L_Y}\n ds_read_b128 {v(YO+4,4)}, v0 offset:{L_Y + 1024}")
        a(f"s_cbranch_vccnz {P}_fail")
        a(f"{P}_yok:")
        ssm = lambda kt, st: a(f"{SM} {v(DS+4*kt,4)}, {v(YO+4*st,4)}, {v(KT[kt]+KOF[st],8)}, v1")
        a("s_waitcnt lgkmcnt(1)")
        for kt in range(3): ssm(kt, 0)
        a("s_barrier   ; B2")
        stamp(a, o, 'w3', 1)
        a(f"ds_read_b128 {v(YO+8,4)}, v0 offset:{L_Y + 2048}\n ds_read_b128 {v(YO+12,4)}, v0 offset:{L_Y + 3072}")
        for st in range(1, 4):
            a(f"s_waitcnt lgkmcnt({3-st})")
            for kt in range(3): ssm(kt, st)
        a("s_nop 5")
        for kt in range(3):
            for aa in range(2):
                r = DS + 4*kt + 2*aa
                a(f"v_add_f32 v{r}, v{r}, v{r+1}")
                a(f"buffer_store_dword v{r}, v{vSX if kt else vS0}, {S_WS}, s{sCUR} offen offset:{(0, 32, 96)[kt] + 160*aa}{ST}")
        stamp(a, o, 'w3', 2)
        for kt in range(3):
            o0 = (0, 8, 24)[kt]
            a(f"ds_write2_b32 v{6 if kt else vL0}, v{DS+4*kt}, v{DS+4*kt+2} offset0:{o0} offset1:{o0+40}")
        a(f"ds_read_b128 {v(OWN,4)}, v2")
        for r in range(20): a(f"v_mov_b32 v{DY+r}, 0")
        a("s_waitcnt lgkmcnt(0)")
        for q in range(4): a(f"v_mul_f32 v{OWN+q}, s{sSC}, v{OWN+q}")
        n = o.ns
        def sbody(i, wait):
            a(f"buffer_load_dwordx4 {v(sets[i],4)}, v{vSG}, {S_WS}, s{sCUR} offen sc1")
            if wait: a(f"s_waitcnt vmcnt({n-1})")
            a(f"v_cmp_eq_u32 vcc, -1, v{sets[(i+1) % n]}\n s_cbranch_vccz {P}_sok{i}")
        for i in range(n-1): sbody(i, False)
        sbody(n-1, True)
        a(f"{P}_spoll:")
        for i in range(n): sbody(i, True)
        count(a, o, 57)
        a(f"s_sub_u32 s{sBUD}, s{sBUD}, 1\n s_cmp_lg_u32 s{sBUD}, 0\n s_cbranch_scc1 {P}_spoll\n s_branch L_team_done")
        f2 = f"buffer_store_byte v{vST}, v{vFS}, {S_WS}, s{sFL} offen offset:2048{ST}"
        for i in range(n):
            r = sets[(i+1) % n]
            a(f"{P}_sok{i}:")
            stamp(a, o, 'w3', 3)
            if o.f2pos == 0: a(f2)
            for q in range(4): a(f"v_fma_f32 v{SC+q}, v{r+q}, s{sSC}, v{OWN+q}")
            a(f"v_maximum3_f32 v7, |v{SC}|, |v{SC+1}|, |v{SC+2}|")
            a(f"v_exp_f32 v{EX}, v{SC}")
            a(f"v_maximum3_f32 v7, v7, |v{SC+3}|, |v{SC+3}|")
            a(f"v_exp_f32 v{EX+1}, v{SC+1}")
            a(f"v_cmp_nle_f32 vcc, v7, v9")
            a(f"v_exp_f32 v{EX+2}, v{SC+2}\n v_exp_f32 v{EX+3}, v{SC+3}")
            a(f"v_add_f32 v7, v{EX}, v{EX+1}\n v_add_f32 v11, v{EX+2}, v{EX+3}")
            if i != n-1: a(f"s_cbranch_vccz {P}_sexp\n s_branch {P}_smax")
            else: a(f"s_cbranch_vccnz {P}_smax")
        a(f"{P}_sexp:")
        a("v_add_f32 v7, v7, v11")
        for k, sh in enumerate((8, 4, 2, 1)):
            if k + 1 == o.f2pos: a(f2 + "\n s_nop 0")
            else: a("s_nop 1")
            a(f"v_add_f32_dpp v7, v7, v7 row_ror:{sh} row_mask:0xf bank_mask:0xf")
        a("v_rcp_f32 v7, v7\n s_nop 0")
        a(f"v_mul_f32 v{SC}, v{EX}, v7\n v_mul_f32 v{SC+1}, v{EX+1}, v7\n v_mul_f32 v{SC+2}, v{EX+2}, v7")
        a(f"v_cvt_pk_bf16_f32 v{SC+4}, v{SC}, v{SC+1}\n v_mul_f32 v{SC+3}, v{EX+3}, v7\n v_cvt_pk_bf16_f32 v{SC+5}, v{SC+2}, v{SC+3}")
        a(f"buffer_store_dwordx2 {v(SC+4,2)}, v4, {S_WS}, s{sCUR} offen{ST}")
        stamp(a, o, 'w3', 4)
        order = list(range(2,10)) + [0, 1]
        def pround():
            for k in order:
                if k < 2: a(f"buffer_load_dwordx4 {v(PR+4*k,4)}, v{vPA+8}, {S_WS}, s{sCUR} offen offset:{k*1024} sc1")
                else: a(f"buffer_load_dwordx4 {v(PR+4*k,4)}, v{vPA+k-2}, {S_WS}, s{sCUR} offen sc1")
        flag_poll(a, o, P, list(range(FR, FR+o.nf)), f"v{vFA}", 2048, sT3)
        stamp(a, o, 'w3', 40)
        pround()
        if o.kf < 0: a(f"buffer_store_byte v{vST}, v{vFS}, {S_WS}, s{sFL} offen{ST}")
        a("s_barrier   ; B3")
        for q in range(4): a(f"ds_read_b128 {v(U+4*q,4)}, v0 offset:{L_UM + 1024*q}")
        a(f"s_add_u32 s{sVO}, s{sVO}, {VO_STEP}\n s_add_u32 s{sM1}, s{sNXT}, 6144\n s_add_u32 s{sMO}, s{sMO}, 8192")
        a(f"v_cmp_gt_u32 vcc, 56, v{vCN}\n s_cbranch_vccnz {P}_vo\n {P}_vo_ok:\n s_add_u32 s{sCN}, s{sCN}, 2048")
        def pu(first):
            for n, k in enumerate(order):
                a(f"s_waitcnt vmcnt({9-n + (1 if (first and n > o.kf) else 0)})" + (" lgkmcnt(0)" if n == 8 else ""))
                if first: stamp(a, o, 'w3', 50+n)
                a(f"{SM} {v(DP,4)}, {v(PR+4*k,4)}, {v(U+8*k,8)}, v1")
                if first and n == o.kf: a(f"buffer_store_byte v{vST}, v{vFS}, {S_WS}, s{sFL} offen{ST}")
                if first and n == o.kgo: a(f"ds_write_b32 v{vGO}, v{vST}")
        pu(True)
        a("s_nop 7")
        a(f"{P}_pchk:")
        a(f"v_add_f32 v{DP}, v{DP}, v{DP+1}\n v_add_f32 v{DP+2}, v{DP+2}, v{DP+3}")
        a(f"v_cvt_pk_bf16_f32 v7, v{DP}, v{DP+2}")
        a(f"v_cmp_u_f32 vcc, v{DP}, v{DP+2}\n s_nop 0")
        a("v_mov_b32_dpp v11, v7 quad_perm:[1,0,3,2] row_mask:0xf bank_mask:0xf")
        a(f"v_perm_b32 v{vMO}, v7, v11, v8")
        a(f"v_cndmask_b32 v7, v{vMO}, v{NEG}, vcc")
        a(f"buffer_store_dword v7, v5, {S_WS}, s{sNXT} offen{ST}")
        stamp(a, o, 'w3', 5)
        a(f"s_cbranch_vccnz {P}_pfail")
        a(f"{P}_pok:")
        a(f"buffer_store_dword v{NEG}, v5, {S_WS}, s{sCUR} offen{ST}")
        a(f"buffer_store_dwordx2 {v(NEG,2)}, v4, {S_WS}, s{sPRV} offen{ST}")
        a(f"buffer_store_dwordx4 {v(NEG,4)}, v10, {S_WS}, s{sCUR} offen{ST}")
        a(f"v_xor_b32 v{vKX}, 0x1c000, v{vKX}")
        for r in range(4): a(f"v_mov_b32 v{DP+r}, 0")
        stamp_flush(a, o, 'w3')
        ring_advance(a)
        a(f"s_add_u32 s{sSTEP}, s{sSTEP}, 1")
        a(f"s_cmp_lt_u32 s{sSTEP}, {o.nsteps}\n s_cbranch_scc1 {P}_loop")
        a(f"buffer_store_dword v{vMO}, v{vMA}, {S_WS}, s{sMO} offen sc1")
        a("s_branch L_team_done")
        vo_wait(f"{P}_vo")
        a(f"{P}_fail:")
        m_exact(a, P, M)
        a("s_waitcnt vmcnt(0) lgkmcnt(0)")
        budget_check(a)
        for r in range(8): a(f"v_mov_b32 v{DY+r}, 0")
        count(a, o, 56)
        a(f"s_mov_b32 m0, {L_M + 6144}\n s_barrier")
        a(f"buffer_load_dwordx4 v0, {S_WS}, s{sM1} offen sc1 lds")
        a("s_waitcnt vmcnt(0)\n s_barrier")
        for k in KORD: mread(k)
        a(f"s_branch {P}_y")
        a(f"{P}_smax:")
        r = sets[0]
        a(f"s_waitcnt vmcnt(0)\n buffer_load_dwordx4 {v(r,4)}, v{vSG}, {S_WS}, s{sCUR} offen sc1\n s_waitcnt vmcnt(0)")
        a(f"v_max3_u32 v7, v{r}, v{r+1}, v{r+2}\n v_max_u32 v7, v7, v{r+3}\n v_cmp_eq_u32 vcc, -1, v7\n s_cbranch_vccz {P}_smax2")
        budget_check(a)
        a(f"s_branch {P}_smax\n {P}_smax2:")
        for q in range(4): a(f"v_fma_f32 v{SC+q}, v{r+q}, s{sSC}, v{OWN+q}")
        a(f"v_max3_f32 v7, v{SC}, v{SC+1}, v{SC+2}\n v_max_f32 v7, v7, v{SC+3}")
        for sh in (8, 4, 2, 1):
            a("s_nop 1")
            a(f"v_max_f32_dpp v7, v7, v7 row_ror:{sh} row_mask:0xf bank_mask:0xf")
        for q in range(4): a(f"v_sub_f32 v{SC+q}, v{SC+q}, v7")
        for q in range(4): a(f"v_exp_f32 v{EX+q}, v{SC+q}")
        a(f"v_add_f32 v7, v{EX}, v{EX+1}\n v_add_f32 v11, v{EX+2}, v{EX+3}\n s_branch {P}_sexp")
        a(f"{P}_pfail:")
        a("v_mov_b32 v7, 0")
        for r in range(PR, PR+40, 2): a(f"v_max3_u32 v7, v{r}, v{r+1}, v7")
        a(f"v_cmp_eq_u32 vcc, -1, v7\n s_cbranch_vccnz {P}_pagain")
        a(f"buffer_store_dword v{vMO}, v5, {S_WS}, s{sNXT} offen{ST}\n s_branch {P}_pok")
        a(f"{P}_pagain:")
        budget_check(a)
        count(a, o, 58)
        for r in range(4): a(f"v_mov_b32 v{DP+r}, 0")
        pround()
        pu(False)
        a("s_nop 7")
        a(f"s_branch {P}_pchk")
    both_modes(a, P, steps)

def team_body(a, o):
    a(f"""
    s_lshr_b32 s{sH}, s{sRANK}, 1
    s_and_b32 s{sJ}, s{sRANK}, 1
    s_sub_u32 s{sT0}, s{sRANK}, 28
    s_cmp_ge_u32 s{sRANK}, 28
    s_cselect_b32 s{sCT}, s{sT0}, s{sRANK}
    s_mov_b32 s{sFL}, {WS_FL}
    s_mov_b32 s{sSTEP}, 0
    s_mov_b32 s{sCUR}, {WS_RING}
    s_mov_b32 s{sNXT}, {WS_RING + 0x10000}
    s_mov_b32 s{sPRV}, {WS_RING + 0x30000}
    v_and_b32 v60, 63, v0
    v_and_b32 v61, 15, v60
    v_lshrrev_b32 v62, 4, v60
    v_lshlrev_b32 v0, 4, v60
    v_and_b32 v63, 1, v60
    v_cmp_eq_u32 vcc, 1, v63
    v_mov_b32 v1, 0x44444444
    v_mov_b32 v63, 0xeeeeeeee
    v_cndmask_b32 v1, v1, v63, vcc
    """)
    a(f"v_mov_b32 v56, 0\n v_mov_b32 v57, {L_MISC + 128}\n ds_write_b32 v57, v56\n s_waitcnt lgkmcnt(0)\n s_barrier")
    if o.diag: a("s_mov_b32 s56, 0\n s_mov_b32 s57, 0\n s_mov_b32 s58, 0")
    a(f"""
    s_cmp_eq_u32 s{sWAVE}, 3
    s_cbranch_scc1 W3_entry
    s_cmp_eq_u32 s{sWAVE}, 2
    s_cbranch_scc1 Y2_entry
    s_cmp_eq_u32 s{sWAVE}, 1
    s_cbranch_scc1 Y1_entry
    """)
    ywave(a, o, 0)
    a("Y1_entry:"); ywave(a, o, 1)
    a("Y2_entry:"); ywave(a, o, 2)
    a("W3_entry:"); wave3(a, o)
```

```python
from asmlib import *
from layout import *
import team, k1
from team import S_WS, S_DBG, SM, OOB, nops
K2_LDS = k1.K1_LDS
L_BC = 65536
MF32 = "v_mfma_f32_32x32x16_bf16"
MF16 = "v_mfma_f32_16x16x32_bf16"
S_W = "s[8:11]"
sWAVE, sROLE, sSEG, sBUD = 17, 16, 20, 35
sA, sB, sC, sD, sE, sF = 36, 37, 38, 39, 40, 41
NS_O = 6
N_TB, N_TA, N_TH, N_TU, N_O1, N_O2 = 56, 56, 14, 28, 4*NS_O, 7*NS_O
T_TB = 0; T_TA = T_TB + N_TB; T_TH = T_TA + N_TA; T_TU = T_TH + N_TH; T_O1 = T_TU + N_TU; T_O2 = T_O1 + N_O1; T_END = T_O2 + N_O2
D_TEAM, D_SYNC, D_TICK, D_RST = 0, 64, 96, 128
vL16, vCA, vCT = 250, 251, 252

SLEEP = ['']
SKIP = ['']
OUTF = ['']
PROBE = [0, 63]
def lane_setup(a):
    a(f"""
    v_mbcnt_lo_u32_b32 v0, -1, 0
    v_mbcnt_hi_u32_b32 v0, -1, v0
    v_lshlrev_b32 v{vL16}, 4, v0
    v_mov_b32 v{vCA}, 0
    v_lshrrev_b32 v1, 5, v0                 ; hi
    v_and_b32 v2, 31, v0                    ; c32
    v_and_b32 v3, 15, v0                    ; c
    v_lshrrev_b32 v4, 4, v0                 ; g
    """)

def wait_cnt(a, kind, n, pair=None):
    L = a.uid("W")
    adr, want = (vCA, n) if pair is None else (pair[0], f"v{pair[1]}")
    a(f"""
    s_cmp_lg_u32 s{sWAVE}, 0
    s_cbranch_scc1 {L}_ok
    s_lshl_b32 s{sF}, s{sSEG}, 11
    s_add_u32 s{sF}, s{sF}, {WS_CNT + kind}
    {L}:
    buffer_load_dword v{vCT}, v{adr}, {S_WS}, s{sF} offen sc1
    s_waitcnt vmcnt(0)
    v_cmp_gt_u32 vcc, {want}, v{vCT}
    s_cbranch_vccz {L}_ok
    {SLEEP[0]}
    s_sub_u32 s{sBUD}, s{sBUD}, 1
    s_cmp_lg_u32 s{sBUD}, 0
    s_cbranch_scc1 {L}
    s_endpgm
    {L}_ok:
    s_waitcnt vmcnt(0)
    s_barrier
    """)

def wait_done(a, what):
    L = a.uid("WW")
    a(f"s_cmp_lg_u32 s{sWAVE}, 0\n s_cbranch_scc1 {L}")
    team.wait_done(a, what, vCT, vCT+1, "L_exit", SLEEP[0])
    a(f"{L}:\n s_barrier")

def wait_team(a):
    if not GATE[0]: return
    L = a.uid("WT")
    a(f"""
    s_cmp_lg_u32 s{sWAVE}, 0
    s_cbranch_scc1 {L}_ok
    v_mov_b32 v{vCT+1}, {team.D_GO}
    {L}:
    buffer_load_dword v{vCT}, v{vCT+1}, {S_DBG}, 0 offen sc1
    s_waitcnt vmcnt(0)
    v_cmp_eq_u32 vcc, 0, v{vCT}
    s_cbranch_vccz {L}_ok
    s_sleep 32
    s_sub_u32 s{sBUD}, s{sBUD}, 1
    s_cmp_lg_u32 s{sBUD}, 0
    s_cbranch_scc1 {L}
    s_endpgm
    {L}_ok:
    s_barrier
    """)
GATE = [True]

def t63(a, slot, reg=None):
    if not DIAG['on']: return
    L = a.uid("T63"); a(f"s_cmp_lg_u32 s{reg or sSEG}, 63\n s_cbranch_scc1 {L}"); tstamp(a, slot, sWAVE, tmp=(254, 255)); a(f"{L}:")

def arrive(a, kind, s_seg, s_extra=None):
    L = a.uid("AR")
    a(f"""
    s_cmp_lg_u32 s{sWAVE}, 0
    s_cbranch_scc1 {L}
    s_lshl_b32 s{sF}, s{s_seg}, 11
    s_add_u32 s{sF}, s{sF}, {WS_CNT + kind}
    {f's_add_u32 s{sF}, s{sF}, s{s_extra}' if s_extra else ''}
    v_mov_b32 v{vCT}, 1
    s_mov_b64 exec, 1
    buffer_atomic_add v{vCT}, v{vCA}, {S_WS}, s{sF} offen
    s_mov_b64 exec, -1
    {L}:
    """)

def perm_rho(a, dst, tmp):
    a(f"""
    v_and_b32 v{dst}, 0x13, v2
    v_bfe_u32 v{tmp}, v2, 2, 1
    v_lshl_add_u32 v{dst}, v{tmp}, 3, v{dst}
    v_bfe_u32 v{tmp}, v2, 3, 1
    v_lshl_add_u32 v{dst}, v{tmp}, 2, v{dst}
    """)

def fetch_m_issue(a, t0):
    a(f"""
    s_lshl_b32 s{sA}, s{sSEG}, 13
    s_add_u32 s{sA}, s{sA}, {WS_MO}
    s_lshl_b32 s{sB}, s{sWAVE}, 10
    s_add_u32 s{sA}, s{sA}, s{sB}
    s_add_u32 s{sC}, s{sWAVE}, 4
    s_min_u32 s{sC}, s{sC}, 6
    s_sub_u32 s{sC}, s{sC}, s{sWAVE}
    s_lshl_b32 s{sC}, s{sC}, 10
    s_add_u32 s{sD}, s{sA}, s{sC}
    v_add_u32 v{t0+8}, s{sB}, v{vL16}
    v_add_u32 v{t0+9}, s{sC}, v{t0+8}
    buffer_load_dwordx4 {v(t0,4)}, v{vL16}, {S_WS}, s{sA} offen sc1
    buffer_load_dwordx4 {v(t0+4,4)}, v{vL16}, {S_WS}, s{sD} offen sc1
    """)

def fetch_m_finish(a, P, t0, lds):
    a(f"""
    s_cmp_eq_u32 s{sSEG}, 63
    s_cselect_b32 s{sE}, 1, 0
    {P}_m1:
    s_waitcnt vmcnt(0)
    v_max3_u32 v{vCT}, v{t0}, v{t0+1}, v{t0+2}
    v_max3_u32 v{vCT}, v{vCT}, v{t0+3}, v{t0+4}
    v_max3_u32 v{vCT}, v{vCT}, v{t0+5}, v{t0+6}
    v_max_u32 v{vCT}, v{vCT}, v{t0+7}
    v_cmp_eq_u32 vcc, -1, v{vCT}
    s_cbranch_vccz {P}_mok
    {P}_mw:
    s_sub_u32 s{sBUD}, s{sBUD}, 1
    s_cmp_eq_u32 s{sBUD}, 0
    s_cbranch_scc1 L_exit
    s_cmp_eq_u32 s{sE}, 1
    s_cbranch_scc1 {P}_m2
    {SLEEP[0]}
    buffer_load_dword v{vCT}, v{vCA}, {S_WS}, s{sD} offen sc1
    s_waitcnt vmcnt(0)
    v_cmp_eq_u32 vcc, -1, v{vCT}
    s_cbranch_vccnz {P}_mw
    s_mov_b32 s{sE}, 1
    {P}_m2:
    buffer_load_dwordx4 {v(t0,4)}, v{vL16}, {S_WS}, s{sA} offen sc1
    buffer_load_dwordx4 {v(t0+4,4)}, v{vL16}, {S_WS}, s{sD} offen sc1
    s_branch {P}_m1
    {P}_mok:
    ds_write_b128 v{t0+8}, {v(t0,4)} offset:{lds}
    ds_write_b128 v{t0+9}, {v(t0+4,4)} offset:{lds}
    s_waitcnt lgkmcnt(0)
    s_barrier
    """)

def gw(a, kind):
    P = "G" + kind
    W = lambda u, t: 256 + (u*28 + t)*4
    ACC, FR, TM, vOUT, vG = 16, 48, 72, 8, 9
    NR = 6
    step, NT = (1, 1) if kind == 'B' else (2, 2)
    cnt = {'B': C_VO, 'A': C_Y, 'H': C_H}[kind]
    a(f"{P}_entry:")
    if kind == 'B': a(f"s_mov_b32 s45, s{sROLE}\n s_mov_b32 s21, 0\n s_branch L_side\n GB_go:")
    if kind == 'A': a(f"s_add_u32 s45, s{sROLE}, 56\n s_mov_b32 s21, 1\n s_cmp_lt_u32 s45, 64\n s_cbranch_scc1 L_side\n GA_go:")
    lane_setup(a)
    if kind != 'B': wait_team(a)
    if kind == 'B':
        a(f"""
        s_mov_b32 s{sSEG}, 0
        s_lshr_b32 s{sA}, s{sROLE}, 2
        s_and_b32 s{sB}, s{sROLE}, 3
        s_lshl_b32 s{sB}, s{sB}, 2
        s_add_u32 s{sB}, s{sB}, s{sWAVE}           ; head
        v_lshlrev_b32 v5, 4, v3
        v_lshl_add_u32 v5, v1, 8, v5
        v_bfe_u32 v6, v0, 4, 1
        v_lshl_add_u32 v{vOUT}, v6, 14, v5
        v_mul_u32_u24 v6, {B_CT}, v6
        v_add_u32 v5, v5, v6
        s_mul_i32 s{sD}, s{sA}, {2*B_CT}
        s_mul_i32 s{sE}, s{sB}, 14336
        s_add_u32 s{sD}, s{sD}, s{sE}
        s_add_u32 s{sD}, s{sD}, {WS_B}
        s_lshl_b32 s42, s{sA}, 15
        s_lshl_b32 s{sE}, s{sB}, 10
        s_add_u32 s42, s42, s{sE}
        s_add_u32 s42, s42, {WS_VO}
        """)
        ustride, ostep = 14336, VO_STEP
    elif kind == 'A':
        perm_rho(a, 5, 6)
        a(f"""
        v_and_b32 v6, 1, v5
        v_mul_u32_u24 v6, 14336, v6
        v_lshrrev_b32 v5, 1, v5
        v_lshl_add_u32 v5, v5, 4, v6
        v_lshl_add_u32 v5, v1, 8, v5
        v_mov_b32 v{vOUT}, v{vL16}
        s_and_b32 s{sSEG}, s{sROLE}, 1
        s_lshr_b32 s{sROLE}, s{sROLE}, 1
        s_lshl_b32 s{sA}, s{sROLE}, 3
        s_lshl_b32 s{sC}, s{sWAVE}, 1
        s_add_u32 s{sA}, s{sA}, s{sC}
        s_mul_i32 s{sD}, s{sA}, 28672
        s_lshl_b32 s42, s{sA}, 11
        s_add_u32 s42, s42, {WS_Y}
        s_mul_i32 s{sE}, s{sSEG}, {VO_STEP}
        s_add_u32 s42, s42, s{sE}
        """)
        ustride, ostep = 28672, VO_STEP
    if kind in 'BA':
        wait_done(a, kind)
        for u in range(NT):
            for t in range(28):
                if t and t % 8 == 0: a(f"s_add_u32 s{sD}, s{sD}, 4096")
                a(f"buffer_load_dwordx4 {v(W(u,t),4)}, v5, {S_WS}, s{sD} offen offset:{(t%8)*512} sc1")
            if u == 0: a(f"s_add_u32 s{sD}, s{sD}, {ustride - 3*4096}")
    else:
        srd(a, 8, 66, F_BYTES)
        a(f"""
        s_and_b32 s{sSEG}, s{sROLE}, 1
        s_lshr_b32 s{sA}, s{sROLE}, 1
        s_lshl_b32 s{sA}, s{sA}, 2
        s_add_u32 s{sA}, s{sA}, s{sWAVE}
        s_lshl_b32 s{sD}, s{sA}, 7
        s_lshl_b32 s42, s{sA}, 12
        s_mul_i32 s{sE}, s{sSEG}, {H_STEP}
        s_add_u32 s42, s42, s{sE}
        s_add_u32 s42, s42, {WS_H}
        v_lshrrev_b32 v5, 3, v0
        v_mul_u32_u24 v5, 3584, v5
        v_and_b32 v6, 7, v0
        v_lshl_add_u32 v5, v6, 4, v5
        v_bfe_u32 v6, v0, 2, 2
        v_lshl_add_u32 v6, v1, 3, v6
        v_lshlrev_b32 v6, 7, v6
        v_bfe_u32 v7, v0, 4, 1
        v_lshl_add_u32 v6, v7, 5, v6
        v_lshl_add_u32 v{vOUT}, v7, 10, 0
        v_and_b32 v7, 1, v0
        v_lshl_add_u32 v6, v7, 4, v6
        v_bfe_u32 v7, v0, 1, 1
        v_lshl_add_u32 v6, v7, 3, v6
        s_mul_i32 s{sE}, s{sWAVE}, 14336
        v_add_u32 v6, s{sE}, v6
        v_lshl_add_u32 v{vOUT}, v1, 8, v{vOUT}
        v_lshl_add_u32 v{vOUT}, v3, 4, v{vOUT}
        v_lshlrev_b32 v10, 2, v2
        """)
        for rnd in range(4):
            for q in range(14):
                a(f"s_add_u32 m0, s{sE}, {q*1024}\n s_nop 0")
                a(f"buffer_load_dwordx4 v5, {S_W}, s{sD} offen lds")
                a(f"s_add_u32 s{sD}, s{sD}, {8*3584}")
            a("s_waitcnt vmcnt(0)")
            for u in range(2):
                for tt in range(7):
                    for z in range(2):
                        a(f"ds_read_b64_tr_b16 {v(W(u, rnd*7+tt) + 2*z, 2)}, v6 offset:{tt*2048 + z*512 + u*64}")
            a("s_waitcnt lgkmcnt(0)")
        a("s_barrier")
        ostep = H_STEP
    nst = 2*NT
    def xdma():
        for q in range(7):
            if q % 4 == 0: a(f"s_add_u32 m0, s43, {q*1024}\n s_add_u32 s{sE}, s44, {q*1024}")
            a(f"buffer_load_dwordx4 v{vL16}, {S_WS}, s{sE} offen offset:{(q%4)*1024} sc1 lds")
        a(f"s_xor_b32 s43, s43, 0x8000\n s_add_u32 s44, s44, {step*28672}")
    a(f"""
    s_mul_i32 s43, s{sWAVE}, 7168
    s_mul_i32 s44, s{sSEG}, 28672
    s_add_u32 s44, s44, s43
    s_add_u32 s44, s44, {WS_XG}
    v_mov_b32 v11, v{vL16}
    s_mov_b32 s45, 0
    """)
    wait_done(a, 'S')
    xdma()
    a("s_waitcnt vmcnt(0)")
    tstamp(a, 6, sWAVE)
    a(f"{P}_loop:")
    a(f"s_waitcnt vmcnt({nst})\n s_barrier")
    if kind == 'H':
        a(f"s_lshl_b32 s{sE}, s{sSEG}, 7\n s_add_u32 s{sE}, s{sE}, {WS_G}")
        a(f"buffer_load_dword v{vG}, v10, {S_WS}, s{sE} offen sc1")
    xdma()
    fetch = lambda t: a(f"ds_read_b128 {v(FR+4*(t % NR),4)}, v11 offset:{t*1024}")
    for t in range(NR-1): fetch(t)
    for t in range(28):
        if t + NR - 1 < 28: fetch(t + NR - 1)
        a(f"s_waitcnt lgkmcnt({min(NR-1, 27-t)})")
        x = v(FR+4*(t % NR), 4)
        if t == 14:
            a(f"s_waitcnt vmcnt({8 if kind == 'H' else 7})\n s_barrier")
            a(f"s_cmp_eq_u32 s45, 0\n s_cbranch_scc1 {P}_noar\n s_sub_u32 s46, s{sSEG}, {step}")
            arrive(a, cnt, 46)
            a(f"{P}_noar:")
        for u in range(NT):
            c = "0" if t == 0 else v(ACC+16*u, 16)
            if kind in SKIP[0]: continue
            if kind == 'B': a(f"{MF32} {v(ACC+16*u,16)}, {x}, {v(W(u,t),4)}, {c}")
            else:           a(f"{MF32} {v(ACC+16*u,16)}, {v(W(u,t),4)}, {x}, {c}")
    a("v_xor_b32 v11, 0x8000, v11")
    if kind == 'H': a(f"s_waitcnt vmcnt(7)\n v_sub_f32 v{vG}, 1.0, v{vG}")
    a("s_nop 10")
    for u in range(NT):
        if kind == 'H':
            for h0 in range(0, 16, 8):
                r = ACC + 16*u + h0
                for q in range(8): a(f"v_mul_f32 v{TM+16+q}, 0xbfb8aa3b, v{r+q}")
                for q in range(8): a(f"v_exp_f32 v{TM+16+q}, v{TM+16+q}")
                for q in range(8): a(f"v_add_f32 v{TM+16+q}, 1.0, v{TM+16+q}\n v_mul_f32 v{r+q}, v{vG}, v{r+q}")
                for q in range(8): a(f"v_rcp_f32 v{TM+16+q}, v{TM+16+q}")
                a("s_nop 0")
                for q in range(8): a(f"v_mul_f32 v{r+q}, v{TM+16+q}, v{r+q}")
        for be in range(2):
            r = ACC + 16*u + 8*be; t = TM + 8*u + 4*be
            order = (0, 4, 2, 6) if kind == 'B' else (0, 2, 4, 6)
            for q in range(4): a(f"v_cvt_pk_bf16_f32 v{t+q}, v{r+order[q]}, v{r+order[q]+1}")
            off = {'B': u*1024 + be*512, 'A': u*2048 + be*1024, 'H': u*2048 + be*512}[kind]
            a(f"buffer_store_dwordx4 {v(t,4)}, v{vOUT}, {S_WS}, s42 offen offset:{off} sc1")
    a(f"""
    s_add_u32 s42, s42, {step*ostep}
    s_add_u32 s45, s45, 1
    s_add_u32 s{sSEG}, s{sSEG}, {step}
    s_cmp_lt_u32 s{sSEG}, 64
    s_cbranch_scc1 {P}_loop
    s_waitcnt vmcnt(0)
    s_barrier
    """)
    a(f"s_sub_u32 s46, s{sSEG}, {step}")
    arrive(a, cnt, 46)
    a("s_branch L_next_free")

def tu(a):
    P = "TU"
    W = lambda hh, k: 256 + (hh*7 + k)*8
    M, D, T, AD, t0 = 16, 48, 64, 72, 80
    a(f"{P}_entry:")
    lane_setup(a)
    wait_team(a)
    a(f"""
    s_mul_i32 s{sD}, s{sROLE}, {B_CT}
    s_mul_i32 s{sE}, s{sWAVE}, {4*14336}
    s_add_u32 s{sD}, s{sD}, s{sE}
    s_add_u32 s{sD}, s{sD}, {WS_B}
    """)
    wait_done(a, 'B')
    for i in range(56):
        if i and i % 4 == 0: a(f"s_add_u32 s{sD}, s{sD}, 4096")
        a(f"buffer_load_dwordx4 {v(256+4*i,4)}, v{vL16}, {S_WS}, s{sD} offen offset:{(i%4)*1024} sc1")
    a(f"""
    v_and_b32 v5, 1, v0
    v_cmp_eq_u32 vcc, 1, v5
    v_mov_b32 v8, 0x44444444
    v_mov_b32 v6, 0xeeeeeeee
    v_cndmask_b32 v8, v8, v6, vcc
    v_lshlrev_b32 v6, 8, v4
    v_lshl_add_u32 v6, v5, 2, v6
    v_bfe_u32 v5, v0, 1, 3
    v_lshl_add_u32 v6, v5, 4, v6
    s_lshl_b32 s42, s{sROLE}, 12
    s_lshl_b32 s{sE}, s{sWAVE}, 10
    s_add_u32 s42, s42, s{sE}
    s_add_u32 s42, s42, {WS_UM}
    s_lshr_b32 s43, s{sROLE}, 2
    s_lshl_b32 s43, s43, 7
    s_mov_b32 s{sSEG}, 0
    """)
    for k in range(7): a(f"v_add_u32 v{AD+k}, {k*1024}, v6")
    wait_done(a, 'S')
    fetch_m_issue(a, t0)
    a(f"{P}_loop:")
    for r in range(16): a(f"v_mov_b32 v{D+r}, 0")
    fetch_m_finish(a, P, t0, 0)
    t63(a, 16)
    for k in range(7):
        a(f"ds_read2_b32 {v(M+4*k,2)}, v{AD+k} offset0:0 offset1:2")
        a(f"ds_read2_b32 {v(M+4*k+2,2)}, v{AD+k} offset0:32 offset1:34")
    for k in range(7):
        a(f"s_waitcnt lgkmcnt({12-2*k})")
        for hh in range(4): a(f"{SM} {v(D+4*hh,4)}, {v(M+4*k,4)}, {v(W(hh,k),8)}, v8")
    a("s_nop 4")
    for hh in range(4):
        d = D + 4*hh
        a(f"v_add_f32 v{d}, v{d}, v{d+1}\n v_add_f32 v{d+2}, v{d+2}, v{d+3}\n v_cvt_pk_bf16_f32 v{T+hh}, v{d}, v{d+2}")
    a(f"buffer_store_dwordx4 {v(T,4)}, v{vL16}, {S_WS}, s42 offen sc1")
    a(f"s_mov_b32 s46, s{sSEG}\n s_add_u32 s{sSEG}, s{sSEG}, 1")
    fetch_m_issue(a, t0)
    a("s_waitcnt vmcnt(2)\n s_barrier")
    arrive(a, C_UM, 46, 43)
    t63(a, 17, 46)
    a(f"""
    s_add_u32 s42, s42, {UM_STEP}
    s_cmp_lt_u32 s{sSEG}, 64
    s_cbranch_scc1 {P}_loop
    s_branch L_next
    """)

def o1(a):
    P = "O1"
    Y = lambda t: 256 + 4*t
    SX, SMM, FR, T, t0 = 16, 32, 48, 72, 88
    vG, vPX, vPM, vRW, vKM, vMX = 8, 9, 10, 11, 12, 13
    NR = 6; L_MM = 28672
    a(f"{P}_entry:")
    lane_setup(a)
    wait_team(a)
    a(f"""
    s_lshr_b32 s{sSEG}, s{sROLE}, 2
    s_and_b32 s43, s{sROLE}, 3
    s_lshl_b32 s44, s43, 2
    s_add_u32 s44, s44, s{sWAVE}               ; head
    v_bfe_u32 v5, v0, 4, 1
    v_lshlrev_b32 v5, 10, v5
    v_lshl_add_u32 v5, v3, 4, v5               ; rt*1024 + c*16
    v_lshl_add_u32 v{vPX}, v1, 8, v5
    s_lshl_b32 s{sA}, s44, 11
    v_add_u32 v{vPX}, s{sA}, v{vPX}
    v_lshl_add_u32 v{vPM}, v1, 9, v5
    s_lshl_b32 s{sA}, s43, 11
    s_lshl_b32 s{sB}, s{sWAVE}, 2
    s_add_u32 s{sA}, s{sA}, s{sB}
    s_add_u32 s{sA}, s{sA}, 32768
    v_add_u32 v{vPM}, s{sA}, v{vPM}
    v_lshlrev_b32 v5, 2, v1
    v_sub_u32 v{vRW}, v2, v5
    v_and_b32 v5, 7, v0
    v_lshlrev_b32 v5, 4, v5
    v_lshl_add_u32 v{vKM}, v1, 7, v5
    v_lshlrev_b32 v14, 2, v2
    s_mul_i32 s45, s{sWAVE}, 7168
    """)
    wait_done(a, 'S')
    a(f"{P}_loop:")
    a(f"""
    s_mul_i32 s{sA}, s{sSEG}, 28672
    s_add_u32 s{sA}, s{sA}, s45
    s_add_u32 s{sA}, s{sA}, {WS_XG}
    """)
    for q in range(7):
        if q % 4 == 0: a(f"s_add_u32 m0, s45, {q*1024}\n s_add_u32 s{sE}, s{sA}, {q*1024}")
        a(f"buffer_load_dwordx4 v{vL16}, {S_WS}, s{sE} offen offset:{(q%4)*1024} sc1 lds")
    a(f"s_lshl_b32 s{sE}, s{sSEG}, 7\n s_add_u32 s{sE}, s{sE}, {WS_G}")
    a(f"buffer_load_dword v{vG}, v14, {S_WS}, s{sE} offen sc1")
    wait_cnt(a, C_Y, 28)
    a(f"""
    s_mul_i32 s{sA}, s{sSEG}, {VO_STEP}
    s_mul_i32 s{sB}, s44, 28672
    s_add_u32 s{sA}, s{sA}, s{sB}
    s_add_u32 s{sA}, s{sA}, {WS_Y}
    """)
    for t in range(28):
        if t and t % 4 == 0: a(f"s_add_u32 s{sA}, s{sA}, 4096")
        a(f"buffer_load_dwordx4 {v(Y(t),4)}, v{vL16}, {S_WS}, s{sA} offen offset:{(t%4)*1024} sc1")
    a("s_barrier")
    def scores(acc, base, stride, off0, vm):
        fetch = lambda t: a(f"ds_read_b128 {v(FR+4*(t % NR),4)}, v{base} offset:{off0 + t*stride}")
        for t in range(NR-1): fetch(t)
        for t in range(28):
            if t + NR - 1 < 28: fetch(t + NR - 1)
            a(f"s_waitcnt lgkmcnt({min(NR-1, 27-t)})" + (f" vmcnt({27-t})" if vm else ""))
            a(f"{MF32} {v(acc,16)}, {v(FR+4*(t % NR),4)}, {v(Y(t),4)}, {'0' if t == 0 else v(acc,16)}")
    scores(SX, vL16, 1024, 0, True)
    a(f"v_mov_b32 v{T}, 0xff800000\n s_nop 10")
    for b in range(4):
        for r in range(4):
            a(f"v_cmp_le_i32 vcc, {8*b+r}, v{vRW}\n s_nop 1\n v_cndmask_b32 v{SX+4*b+r}, v{T}, v{SX+4*b+r}, vcc")
    a(f"v_max3_f32 v{vMX}, v{SX}, v{SX+1}, v{SX+2}")
    for r in range(3, 15, 2): a(f"v_max3_f32 v{vMX}, v{vMX}, v{SX+r}, v{SX+r+1}")
    a(f"v_max_f32 v{vMX}, v{vMX}, v{SX+15}")
    t63(a, 18)
    fetch_m_issue(a, t0); fetch_m_finish(a, P, t0, L_MM)
    t63(a, 19)
    scores(SMM, vKM, 256, L_MM, False)
    a("s_nop 11")
    a(f"v_max3_f32 v{vMX}, v{vMX}, v{SMM}, v{SMM+1}\n v_max3_f32 v{vMX}, v{vMX}, v{SMM+2}, v{SMM+3}")
    a(f"v_mov_b32 v{T}, v{vMX}\n s_nop 1\n v_permlane32_swap_b32 v{T}, v{vMX}\n v_max_f32 v{vMX}, v{vMX}, v{T}")
    vals = [SX+r for r in range(16)] + [SMM+r for r in range(4)]
    a(f"s_mov_b32 s{sB}, {team.SCALE}\n v_mul_f32 v{vMX}, s{sB}, v{vMX}")
    for r in vals: a(f"v_fma_f32 v{r}, v{r}, s{sB}, -v{vMX}")
    for r in vals: a(f"v_exp_f32 v{r}, v{r}")
    a(f"v_add_f32 v{T}, v{vals[0]}, v{vals[1]}\n v_add_f32 v{T+1}, v{vals[2]}, v{vals[3]}")
    for i in range(4, 20, 2): a(f"v_add_f32 v{T}, v{T}, v{vals[i]}\n v_add_f32 v{T+1}, v{T+1}, v{vals[i+1]}")
    a(f"v_add_f32 v{T}, v{T}, v{T+1}\n v_mov_b32 v{T+1}, v{T}\n s_nop 1\n v_permlane32_swap_b32 v{T}, v{T+1}\n v_add_f32 v{T}, v{T}, v{T+1}")
    a(f"v_rcp_f32 v{T}, v{T}\n s_nop 0\n v_mul_f32 v{T}, v{T}, v{vG}")
    for r in vals: a(f"v_mul_f32 v{r}, v{r}, v{T}")
    a(f"s_mul_i32 s{sA}, s{sSEG}, {PX_STEP}\n s_add_u32 s{sA}, s{sA}, {WS_PX}")
    for be in range(2):
        for q, o in enumerate((0, 4, 2, 6)): a(f"v_cvt_pk_bf16_f32 v{T+4+4*be+q}, v{SX+8*be+o}, v{SX+8*be+o+1}")
        a(f"buffer_store_dwordx4 {v(T+4+4*be,4)}, v{vPX}, {S_WS}, s{sA} offen offset:{512*be} sc1")
    for q in range(2):
        a(f"v_cvt_pk_bf16_f32 v{T+12+q}, v{SMM+2*q}, v{SMM+2*q+1}")
        a(f"buffer_store_dword v{T+12+q}, v{vPM}, {S_WS}, s{sA} offen offset:{256*q} sc1")
    a("s_waitcnt vmcnt(0)\n s_barrier")
    arrive(a, C_P, sSEG)
    t63(a, 20)
    a(f"""
    s_add_u32 s{sSEG}, s{sSEG}, {NS_O}
    s_cmp_lt_u32 s{sSEG}, 64
    s_cbranch_scc1 {P}_loop
    s_branch L_next
    """)

def o2(a):
    P = "O2"
    W = lambda t, ct: 256 + (t*4 + ct)*4
    ACC, HF, VO = 16, 48, 160
    PXR, PMR, UMR = HF, HF + 32, HF + 40
    vRW_, vRR, vOA = 8, 9, 10
    a(f"{P}_entry:")
    lane_setup(a)
    wait_team(a)
    srd(a, 8, 68, F_BYTES)
    a(f"""
    s_mul_i32 s{sSEG}, s{sROLE}, 9363
    s_lshr_b32 s{sSEG}, s{sSEG}, 16            ; role / 7
    s_mul_i32 s{sA}, s{sSEG}, 7
    s_sub_u32 s43, s{sROLE}, s{sA}
    s_mul_i32 s{sD}, s{sWAVE}, {448*896}
    s_lshl_b32 s{sA}, s43, 7
    s_add_u32 s{sD}, s{sD}, s{sA}
    v_lshrrev_b32 v5, 3, v0
    v_mul_u32_u24 v5, 896, v5
    v_and_b32 v6, 7, v0
    v_lshl_add_u32 v5, v6, 4, v5
    v_bfe_u32 v6, v0, 2, 2
    v_lshl_add_u32 v6, v4, 3, v6
    v_lshlrev_b32 v6, 7, v6
    v_and_b32 v7, 3, v0
    v_lshl_add_u32 v6, v7, 3, v6
    s_lshl_b32 s{sE}, s{sWAVE}, 14
    v_add_u32 v6, s{sE}, v6
    """)
    for rnd, nt in enumerate((4, 4, 4, 2)):
        for q in range(4*nt):
            a(f"s_add_u32 m0, s{sE}, {q*1024}\n s_nop 0")
            a(f"buffer_load_dwordx4 v5, {S_W}, s{sD} offen lds")
            a(f"s_add_u32 s{sD}, s{sD}, {8*896}")
        a("s_waitcnt vmcnt(0)")
        for tt in range(nt):
            for ct in range(4):
                for z in range(2):
                    a(f"ds_read_b64_tr_b16 {v(W(rnd*4+tt, ct) + 2*z, 2)}, v6 offset:{tt*4096 + z*512 + ct*32}")
        a("s_waitcnt lgkmcnt(0)")
    srd(a, 8, 88, X_BYTES)
    a(f"""
    s_barrier
    v_mul_u32_u24 v{vRW_}, 272, v3
    v_lshl_add_u32 v{vRW_}, v4, 4, v{vRW_}
    s_mul_i32 s{sA}, s{sWAVE}, 8704
    v_add_u32 v{vRW_}, s{sA}, v{vRW_}
    v_lshrrev_b32 v5, 3, v0
    s_lshl_b32 s{sA}, s{sWAVE}, 3
    v_add_u32 v5, s{sA}, v5
    v_and_b32 v6, 7, v0
    v_mul_u32_u24 v{vRR}, 272, v5
    v_lshl_add_u32 v{vRR}, v6, 5, v{vRR}
    v_mul_u32_u24 v{vOA}, 896, v5
    v_lshl_add_u32 v{vOA}, v6, 4, v{vOA}
    s_lshl_b32 s{sA}, s43, 7
    v_add_u32 v{vOA}, s{sA}, v{vOA}
    v_and_b32 v11, 1, v0
    v_mov_b32 v12, 4
    s_add_u32 s{sA}, s{sA}, {C_UM - C_P}
    v_mul_lo_u32 v11, v11, s{sA}
    """)
    wait_done(a, 'S')
    a(f"{P}_loop:")
    wait_cnt(a, C_H, 7)
    a(f"""
    s_mul_i32 s{sA}, s{sSEG}, {H_STEP}
    s_mul_i32 s{sB}, s{sWAVE}, {14*2048}
    s_add_u32 s{sA}, s{sA}, s{sB}
    s_add_u32 s{sA}, s{sA}, {WS_H}
    """)
    for i in range(28):
        if i and i % 4 == 0: a(f"s_add_u32 s{sA}, s{sA}, 4096")
        a(f"buffer_load_dwordx4 {v(HF+4*i,4)}, v{vL16}, {S_WS}, s{sA} offen offset:{(i%4)*1024} sc1")
    acc = lambda ct, rt: v(ACC + (ct*2 + rt)*4, 4)
    for t in range(14):
        for rt in range(2):
            a(f"s_waitcnt vmcnt({27 - 2*t - rt})")
            for ct in range(4): a(f"{MF16} {acc(ct,rt)}, {v(W(t,ct),4)}, {v(HF+8*t+4*rt,4)}, {'0' if t == 0 else acc(ct,rt)}")
    wait_cnt(a, C_VO, 56)
    a(f"""
    s_mul_i32 s{sA}, s{sSEG}, {VO_STEP}
    s_lshl_b32 s{sB}, s43, 16
    s_add_u32 s{sA}, s{sA}, s{sB}
    s_lshl_b32 s{sB}, s{sWAVE}, 12
    s_add_u32 s{sA}, s{sA}, s{sB}
    s_add_u32 s{sA}, s{sA}, {WS_VO}
    """)
    for ct in range(4):
        if ct: a(f"s_add_u32 s{sA}, s{sA}, 16384")
        for hh in range(4): a(f"buffer_load_dwordx4 {v(VO+(hh*4+ct)*4,4)}, v{vL16}, {S_WS}, s{sA} offen offset:{hh*1024} sc1")
    t63(a, 21)
    wait_cnt(a, C_P, 0, (11, 12))
    t63(a, 22)
    a(f"""
    s_mul_i32 s{sA}, s{sSEG}, {UM_STEP}
    s_lshl_b32 s{sB}, s43, 14
    s_add_u32 s{sA}, s{sA}, s{sB}
    s_lshl_b32 s{sB}, s{sWAVE}, 10
    s_add_u32 s{sA}, s{sA}, s{sB}
    s_add_u32 s{sA}, s{sA}, {WS_UM}
    """)
    for ct in range(4):
        if ct: a(f"s_add_u32 s{sA}, s{sA}, 4096")
        a(f"buffer_load_dwordx4 {v(UMR+4*ct,4)}, v{vL16}, {S_WS}, s{sA} offen sc1")
    a(f"""
    s_mul_i32 s{sA}, s{sSEG}, {PX_STEP}
    s_add_u32 s{sA}, s{sA}, {WS_PX}
    s_lshl_b32 s{sB}, s{sWAVE}, 13
    s_add_u32 s{sB}, s{sA}, s{sB}
    s_add_u32 s{sC}, s{sB}, 4096
    s_lshl_b32 s{sD}, s{sWAVE}, 11
    s_add_u32 s{sD}, s{sD}, s{sA}
    s_add_u32 s{sD}, s{sD}, 32768
    """)
    for i in range(8): a(f"buffer_load_dwordx4 {v(PXR+4*i,4)}, v{vL16}, {S_WS}, s{sB + i//4} offen offset:{(i%4)*1024} sc1")
    for i in range(2): a(f"buffer_load_dwordx4 {v(PMR+4*i,4)}, v{vL16}, {S_WS}, s{sD} offen offset:{i*1024} sc1")
    for hh in range(4):
        for rt in range(2):
            a(f"s_waitcnt vmcnt({9 - 2*hh - rt})")
            for ct in range(4): a(f"{MF16} {acc(ct,rt)}, {v(VO+(hh*4+ct)*4,4)}, {v(PXR+8*hh+4*rt,4)}, {acc(ct,rt)}")
    a("s_waitcnt vmcnt(0)")
    for ct in range(4):
        a("s_nop 0")
        for rt in range(2): a(f"{MF16} {acc(ct,rt)}, {v(UMR+4*ct,4)}, {v(PMR+4*rt,4)}, {acc(ct,rt)}")
    a("s_nop 1")
    for ct in range(4):
        for rt in range(2):
            if ct == 3 and rt == 0: a("s_nop 3")
            a(f"ds_write_b128 v{vRW_}, {acc(ct,rt)} offset:{rt*16*272 + ct*64}")
    a("s_waitcnt lgkmcnt(0)\n s_barrier")
    for w in range(4):
        for q in range(2): a(f"ds_read_b128 {v(VO+8*w+4*q,4)}, v{vRR} offset:{w*8704 + q*16}")
    a(f"s_mul_i32 s{sA}, s{sSEG}, {32*896}")
    for w in range(1, 4):
        a(f"s_waitcnt lgkmcnt({6-2*w})")
        for q in range(8): a(f"v_add_f32 v{VO+q}, v{VO+q}, v{VO+8*w+q}")
    if PROBE[0]:
        a(f"s_memrealtime s[96:97]\n s_waitcnt lgkmcnt(0)\n s_sub_u32 s96, s96, s98\n s_cmp_gt_u32 s96, {PROBE[0]}\n s_cselect_b32 s96, 1.0, 0\n s_cmp_eq_u32 s{sSEG}, {PROBE[1]}\n s_cselect_b32 s96, s96, 0\n v_add_f32 v{VO}, s96, v{VO}")
    for q in range(4): a(f"v_cvt_pk_bf16_f32 v{VO+32+q}, v{VO+2*q}, v{VO+2*q+1}")
    a(f"buffer_store_dwordx4 {v(VO+32,4)}, v{vOA}, {S_W}, s{sA} offen {OUTF[0]}")
    a(f"""
    s_barrier
    s_add_u32 s{sSEG}, s{sSEG}, {NS_O}
    s_cmp_lt_u32 s{sSEG}, 64
    s_cbranch_scc1 {P}_loop
    s_branch L_next
    """)

def bc_atomic(a, L, off, val):
    a(f"""
    s_cmp_lg_u32 s{sWAVE}, 0
    s_cbranch_scc1 {L}_w
    v_mov_b32 v1, {val}
    v_mov_b32 v2, {off}
    v_mov_b32 v3, {L_BC}
    s_mov_b64 exec, 1
    buffer_atomic_add v1, v2, {S_DBG}, 0 offen sc0
    s_waitcnt vmcnt(0)
    ds_write_b32 v3, v1
    s_waitcnt lgkmcnt(0)
    s_mov_b64 exec, -1
    {L}_w:
    v_mov_b32 v3, {L_BC}
    s_barrier
    ds_read_b32 v1, v3
    s_waitcnt lgkmcnt(0)
    v_readfirstlane_b32 s{sROLE}, v1
    s_barrier
    """)

def k2(a, name, o=None):
    o = o or team.Opt(diag=False)
    GATE[0] = o.gate; OUTF[0] = o.outf
    SLEEP[0] = f"s_sleep {o.sleep}" if o.sleep else ""
    kernel_head(a, name)
    a(f"""
    s_cmp_ge_u32 s2, 256
    s_cbranch_scc1 L_exit
    s_load_dwordx4 s[76:79], s[0:1], 0         ; x, mem0
    s_load_dwordx8 s[80:87], s[0:1], 16
    s_load_dwordx8 s[64:71], s[0:1], 56        ; B_x w1 w2 gate_w
    s_load_dwordx2 s[88:89], s[0:1], 88
    s_load_dwordx4 s[72:75], s[0:1], 96
    s_getreg_b32 s18, hwreg(HW_REG_XCC_ID)
    v_lshrrev_b32 v1, 6, v0
    s_and_b32 s18, s18, 15
    v_readfirstlane_b32 s{sWAVE}, v1
    s_mov_b32 s{sBUD}, {o.budget}
    s_waitcnt lgkmcnt(0)
    """)
    srd(a, 4, 74, WS_BYTES); srd(a, 12, 72, 256); srd(a, 60, 78, 7168)
    if PROBE[0]: a("s_memrealtime s[98:99]\n s_waitcnt lgkmcnt(0)")
    if DIAG['on']: a("s_mov_b32 s3, s2")
    tdefer(a, 0); dstamp(a, 1, sWAVE, inv=True, few=True)
    if o.cpf:
      a(f"""
      s_getpc_b64 s[36:37]
      L_code_ref:
      s_and_b32 s36, s36, 0xffffff00
      s_bfe_u32 s38, s2, 0x20003
      s_lshl_b32 s38, s38, 14
      v_lshlrev_b32 v203, 6, v0
      v_add_u32 v203, s38, v203
      v_min_u32 v203, L_code_end - L_code_ref, v203
      global_load_dword v204, v203, s[36:37]
      """)
    a(f"""
    s_lshl_b32 s36, s2, 2
    s_add_u32 s36, s36, s{sWAVE}
    s_cmp_lg_u32 s36, 1
    s_cbranch_scc1 L_p1
    v_mov_b32 v199, 1
    v_and_b32 v200, 31, v0
    v_lshlrev_b32 v200, 7, v200
    v_mov_b32 v201, 0
    s_mov_b32 s36, {WS_DONE}
    buffer_store_dword v201, v200, {S_WS}, s36 offen sc1
    v_mov_b32 v200, {D_RST}
    s_waitcnt vmcnt(0)
    s_mov_b64 exec, 1
    buffer_atomic_add v199, v200, {S_DBG}, 0 offen
    s_mov_b64 exec, -1
    L_p1:
    """)
    def late(a):
        L = a.uid("LT")
        a(f"""
        s_mov_b64 exec, 1
        v_mov_b32 v200, {D_RST}
        s_cmp_eq_u32 s{k1.sDG}, 3
        s_cselect_b32 s36, 0, s{sWAVE}
        s_cmp_eq_u32 s36, 0
        s_cselect_b32 s36, 0, {OOB}
        buffer_load_dword v201, v200, {S_DBG}, s36 offen sc1
        s_cmp_eq_u32 s{sWAVE}, 1
        s_cbranch_scc1 {L}
        s_mov_b32 s36, {OOB}
        buffer_load_dword v202, v200, {S_DBG}, s36 offen sc1
        s_branch {L}_e
        {L}:
        s_movk_i32 s36, {D_TICK}
        s_cmp_eq_u32 s18, {o.team_xcc}
        s_cselect_b32 s36, {D_TEAM}, s36
        v_mov_b32 v203, s36
        v_mov_b32 v202, 1
        buffer_atomic_add v202, v203, {S_DBG}, 0 offen sc0
        {L}_e:
        s_mov_b64 exec, -1
        """)
    def early(a):
        if not o.bwait: return
        a(f"s_cmp_lg_u32 s{sWAVE}, 0\n s_cbranch_scc1 L_e1\n s_mov_b64 exec, 1")
        team.dbg_wait(a, "L_e0", D_RST, 1, 200, "sc1")
        a("s_mov_b64 exec, -1\n L_e1:\n s_barrier")
    k1.products(a, 80, early, late)
    a(f"""
    v_mbcnt_lo_u32_b32 v0, -1, 0
    v_mbcnt_hi_u32_b32 v0, -1, v0
    s_mov_b64 exec, 1
    """)
    a(f"s_waitcnt vmcnt(0)\n s_cmp_ge_u32 s{k1.sBLK}, 14\n s_cbranch_scc1 L_rst_ok\n v_cmp_eq_u32 vcc, 0, v201\n s_cbranch_vccz L_rst_ok\n s_cmp_eq_u32 s{k1.sDG}, 3\n s_cselect_b32 s36, 0, s{sWAVE}\n s_cmp_lg_u32 s36, 0\n s_cbranch_scc1 L_rst_ok")
    team.dbg_wait(a, "L_rst", D_RST, 1, 2)
    a(f"""
    s_lshr_b32 s38, s{k1.sMAT}, 2
    s_lshl_b32 s38, s38, 7
    s_add_u32 s38, s38, {WS_DONE}
    v_mov_b32 v1, 1
    v_mov_b32 v2, 0
    s_cmp_eq_u32 s{k1.sDG}, 3
    s_cbranch_scc1 L_p2
    s_barrier
    v_mov_b32 v1, 2
    s_cmp_lg_u32 s{sWAVE}, 0
    s_cbranch_scc1 L_p3
    L_p2:
    s_cmp_ge_u32 s{k1.sBLK}, 14
    s_cbranch_scc1 L_p3
    buffer_atomic_add v1, v2, {S_WS}, s38 offen
    L_p3:
    v_mov_b32 v3, {L_BC}
    s_barrier
    s_cmp_lg_u32 s{sWAVE}, 1
    s_cbranch_scc1 L_p4
    ds_write_b32 v3, v202
    s_waitcnt lgkmcnt(0)
    L_p4:
    s_barrier
    ds_read_b32 v1, v3
    s_waitcnt lgkmcnt(0)
    v_readfirstlane_b32 s{sROLE}, v1
    s_mov_b64 exec, -1
    s_barrier
    """)
    tstamp(a, 3, sWAVE); tflush(a, sWAVE); dstamp(a, 4, sWAVE, few=True)
    a(f"""
    s_cmp_lg_u32 s18, {o.team_xcc}
    s_cbranch_scc1 L_have
    s_and_b32 s{sROLE}, s{sROLE}, 0xffff
    s_cmp_lt_u32 s{sROLE}, 32
    s_cbranch_scc1 L_team
    s_branch L_next
    L_next_free:
    """)
    bc_atomic(a, "L_t1", D_TEAM, 0)
    a(f"s_and_b32 s{sROLE}, s{sROLE}, 0xffff\n s_cmp_ge_u32 s{sROLE}, 32\n s_cbranch_scc1 L_next")
    bc_atomic(a, "L_t2", D_TEAM, 0x10001)
    a(f"""
    s_and_b32 s{sROLE}, s{sROLE}, 0xffff
    s_cmp_lt_u32 s{sROLE}, 32
    s_cbranch_scc1 L_team
    L_next:
    """)
    tstamp(a, 7, sWAVE); dstamp(a, 10, sWAVE)
    bc_atomic(a, "L_t3", D_TICK, 1)
    a("L_have:")
    if DIAG['on']: a(f"s_cmp_ge_u32 s{sROLE}, {T_END}\n s_cbranch_scc1 L_exit")
    tstamp(a, 5, sWAVE); tstamp(a, 8, sWAVE, extra=f"s{sROLE}")
    for lab, lo, hi in (("GB", T_TB, T_TA), ("GA", T_TA, T_TH), ("GH", T_TH, T_TU), ("TU", T_TU, T_O1), ("O1", T_O1, T_O2), ("O2", T_O2, T_END)):
        a(f"s_cmp_lt_u32 s{sROLE}, {hi - lo}\n s_cbranch_scc1 {lab}_entry\n s_sub_u32 s{sROLE}, s{sROLE}, {hi - lo}")
    a("L_exit:\n s_endpgm\n L_team_done:")
    dstamp(a, 9, sWAVE, tmp=(56, 57))
    if DIAG['on']:
        tstamp(a, 7, sWAVE, tmp=(56, 57))
        a(f"""
        s_cmp_lg_u32 s17, 3
        s_cbranch_scc1 L_exit
        s_lshl_b32 s36, s16, 14
        s_add_u32 s36, s36, {WS_DIAG + 65536 + 3*4096}
        v_lshrrev_b32 v28, 2, v0
        """)
        for i in range(10): a(f"buffer_store_dword v{160+i}, v28, s[4:7], s36 offen offset:{256*i}")
        a("v_mov_b32 v28, s56\n v_mov_b32 v29, s57\n v_mov_b32 v30, s58\n v_mov_b32 v31, 0")
        a("v_mov_b32 v32, 0\n buffer_store_dwordx4 v[28:31], v32, s[4:7], s36 offen offset:2560")
    a("s_endpgm")
    a(f"L_side:\n s_cmp_ge_u32 s{sWAVE}, 2\n s_cbranch_scc1 L_side_e")
    k1.side_job(a, 76, 70)
    a("L_side_e:\n s_barrier\n s_cmp_eq_u32 s21, 0\n s_cbranch_scc1 GB_go\n s_branch GA_go")
    gw(a, 'B'); gw(a, 'A'); gw(a, 'H'); tu(a); o1(a); o2(a)
    a("L_team:")
    tstamp(a, 5, sWAVE); tstamp(a, 8, sWAVE, extra="1000")
    team.team_body(a, o)
    a("L_code_end:")
```

```python
import sys
from asmlib import *
from layout import *
import k1 as K1
NAME = 'gated_mix__memory_aug_recurrent_mem_tr__dense_activation_silu__prompt'
def gen(only=None, o=None):
    import k2 as K2
    a = Asm()
    a.raw(f"; @launch grid=(256,1,1) block=(256,1,1) lds={K2.K2_LDS}")
    a('.amdgcn_target "amdgcn-amd-amdhsa--gfx950"'); a('.text')
    K2.k2(a, NAME + "_kernel", o)
    kernel_desc(a, NAME + "_kernel", vgpr=512, accum=256)
    t = a.text()
    xp = getattr(o, 'xp', '')
    if xp:
        import re
        out = []; on = False
        for l in t.split("\n"):
            if re.match(r"Y\df?_yok:", l): on = 'm' in xp
            if re.match(r"Y\df?_y:", l): on = 'y' in xp
            if "; B3" in l or "; B1y" in l and 'y' in xp: on = False
            if on and "v_smfmac" in l: l = "    s_nop 3"
            out.append(l)
        t = "\n".join(out)
    al = getattr(o, 'align', 0)
    if al & 1: t = t.replace("    v_smfmac", ".p2align 3\n    v_smfmac")
    if al & 2:
        import re
        t = re.sub(r"^((?:Y\df?|W3f?)_loop:)", r".p2align 6\n\1", t, flags=re.M)
    if al & 4: t = t.replace("    buffer_load_dword v", ".p2align 3\n    buffer_load_dword v").replace("    v_exp_f32", ".p2align 3\n    v_exp_f32")
    return t
if __name__ == '__main__':
    only = sys.argv[1] if len(sys.argv) > 1 else None
    open('out.s', 'w').write(gen(only))
```

```python
from asmlib import *
from layout import *
K1_LDS = 3*45056
MF = "v_mfma_f32_32x32x16_bf16"
S_WS, S_P, S_S, S_X, S_GW = "s[4:7]", "s[8:11]", "s[24:27]", "s[28:31]", "s[52:55]"
sJ, sDG, sHD, sW, sBLK, sSO, sT, sLD, sU = 42, 43, 44, 17, 46, 47, 48, 49, 50
sSG, sQ, sPO, sIT, sPS = 45, 34, 33, 32, 20

def products(a, kind, s_id, ptr_w, late=None):
    NP = 7
    SH = NP*4096; BUF = SH + 16384; NPC = NP + 4
    K = "K" + kind
    ACC, PV, FR = 4, 116, 132
    vT, vT2, vST, vPA, vSA, vRP, vRS = 208, 209, 212, 214, 216, 224, 228
    vHI, vC, vL = 205, 206, 207
    a(f"""
    s_and_b32 s{sHD}, s{s_id}, 3
    s_lshl_b32 s{sHD}, s{sHD}, 2
    s_bfe_u32 s41, s{s_id}, 0x20003
    s_or_b32 s{sHD}, s{sHD}, s41
    s_bfe_u32 s{sJ}, s{s_id}, 0x10005
    s_lshr_b32 s{sDG}, s{s_id}, 6
    s_lshl_b32 s{sQ}, s{sJ}, 1
    s_add_u32 s{sQ}, s{sQ}, s{sDG}
    """)
    w0 = ptr_w + (0 if kind == 'A' else 4)
    srd(a, 8, w0, W_BYTES); srd(a, 24, w0+2, W_BYTES)
    a(f"""
    s_lshl_b32 s{sBLK}, s{sDG}, 2
    s_add_u32 s{sBLK}, s{sBLK}, s{sW}
    v_mbcnt_lo_u32_b32 v{vL}, -1, 0
    v_mbcnt_hi_u32_b32 v{vL}, -1, v{vL}
    v_lshrrev_b32 v{vHI}, 5, v{vL}
    v_and_b32 v{vC}, 31, v{vL}
    v_lshrrev_b32 v{vT}, 3, v{vL}
    v_lshrrev_b32 v{vT2}, 4, v{vL}
    v_xor_b32 v{vT2}, v{vT2}, v{vL}
    v_and_b32 v{vT2}, 7, v{vT2}
    v_lshlrev_b32 v{vT2}, 4, v{vT2}
    v_lshl_add_u32 v{vSA}, v{vT}, 13, v{vT2}
    v_and_b32 v{vPA}, 3, v{vT}
    v_lshrrev_b32 v{vT}, 2, v{vT}
    v_lshl_add_u32 v{vPA}, v{vT}, 3, v{vPA}
    v_lshl_add_u32 v{vPA}, v{vPA}, 13, v{vT2}
    v_xor_b32 v{vPA+1}, 64, v{vPA}
    s_lshl_b32 s{sPO}, s{sBLK}, 18
    s_lshl_b32 s{sT}, s{sHD}, 9
    s_add_u32 s{sPO}, s{sPO}, s{sT}
    s_lshl_b32 s{sLD}, s{sW}, 10
    s_lshl_b32 s{sPS}, s{sW}, 12
    s_add_u32 s{sPS}, s{sPS}, {SH}
    """)
    if kind == 'A':
        a(f"""
        s_and_b32 s{sSO}, s{sW}, 1
        s_lshl_b32 s{sSO}, s{sSO}, 6
        v_xor_b32 v{vSA}, s{sSO}, v{vSA}
        s_mul_i32 s{sSG}, s{sJ}, 7
        s_lshl_b32 s{sSO}, s{sSG}, 18
        s_add_u32 s{sSO}, s{sSO}, s{sT}
        s_lshl_b32 s{sT}, s{sW}, 16
        s_add_u32 s{sSO}, s{sSO}, s{sT}
        """)
        for i in range(1, NP): a(f"v_add_u32 v{vSA+i}, {i*32*8192}, v{vSA}")
    else:
        a(f"s_lshl_b32 s{sT}, s{sW}, 6\n v_add_u32 v{vST}, s{sT}, v{vL}")
        for i in range(7):
            a(f"""
            v_add_u32 v{vT}, {256*i}, v{vST}
            v_mul_u32_u24 v{vT2}, 2341, v{vT}
            v_lshrrev_b32 v{vT2}, 16, v{vT2}           ; /28
            v_mul_u32_u24 v{vSA+i}, 448, v{vT2}
            v_lshl_add_u32 v{vSA+i}, v{vT}, 4, v{vSA+i}
            """)
        a(f"s_mul_i32 s{sSO}, s{sHD}, 229376\n s_mul_i32 s{sT}, s{sJ}, 448\n s_add_u32 s{sSO}, s{sSO}, s{sT}")
    def quarter(priv, a=a):
        a(f"s_and_b32 s{sQ}, s{sQ}, 3")
        if priv:
            a(f"s_lshl_b32 s{sT}, s{sQ}, 7\n s_add_u32 s51, s{sT}, s{sPO}")
            for i in range(4):
                a(f"s_add_u32 m0, s{sPS}, {i*1024}\n s_add_u32 s{sT}, s51, {(16*(i >> 1) + 4*(i & 1))*8192}")
                a(f"buffer_load_dwordx4 v{vPA + (i & 1)}, {S_P}, s{sT} offen lds")
        a(f"s_mul_i32 s{sT}, s{sQ}, {128 if kind == 'A' else 64*896}\n s_add_u32 s{sT}, s{sT}, s{sSO}")
        for i in range(NP):
            a(f"s_add_u32 m0, s{sLD}, {i*4096}\n s_nop 0")
            a(f"buffer_load_dwordx4 v{vSA+i}, {S_S}, s{sT} offen lds")
        a(f"s_add_u32 s{sQ}, s{sQ}, 1")
    a(f"s_cmp_ge_u32 s{sBLK}, 14\n s_cbranch_scc1 {K}_side\n s_mov_b32 s{sIT}, 0")
    if True: tdefer(a, 15)
    a(f"{K}_first:")
    quarter(True)
    a(f"s_add_u32 s{sLD}, s{sLD}, {BUF}\n s_add_u32 s{sPS}, s{sPS}, {BUF}")
    a(f"s_add_u32 s{sIT}, s{sIT}, 1\n s_cmp_lt_u32 s{sIT}, 2\n s_cbranch_scc1 {K}_first")
    if True: tdefer(a, 10); dstamp(a, 2, sW, few=True)
    for r in range(16*NP): a(f"v_mov_b32 v{ACC+r}, 0")
    a(f"""
    v_bfe_u32 v{vT}, v{vC}, 1, 3
    v_xor_b32 v{vT}, v{vT}, v{vHI}
    v_lshlrev_b32 v{vT}, 4, v{vT}
    v_lshl_add_u32 v{vT}, v{vC}, 7, v{vT}
    s_lshl_b32 s{sT}, s{sW}, 12
    s_add_u32 s{sT}, s{sT}, {SH}
    v_add_u32 v{vRP}, s{sT}, v{vT}
    v_lshrrev_b32 v{vT}, 4, v{vC}
    v_and_b32 v{vT2}, 15, v{vC}
    v_lshlrev_b32 v{vST}, 4, v{vT2}
    v_lshl_add_u32 v{vST}, v{vHI}, 8, v{vST}
    s_lshl_b32 s{sU}, s{sBLK}, 10              ; T*2048 + half*1024
    s_mov_b32 s{sIT}, 0
    """)
    for t in range(1, 4): a(f"v_xor_b32 v{vRP+t}, {t << 5}, v{vRP}")
    NR = 6 if kind == 'A' else 5
    nad = 4 if kind == 'A' else 1
    if kind == 'A':
        a(f"""
        v_mul_u32_u24 v{vRS}, 14336, v{vT}
        v_add_u32 v{vST}, v{vST}, v{vRS}
        v_lshl_add_u32 v{vT}, v{vT2}, 1, v{vT}
        v_bfe_u32 v{vT2}, v{vT}, 1, 3
        v_xor_b32 v{vT2}, v{vT2}, v{vHI}
        v_lshlrev_b32 v{vT2}, 4, v{vT2}
        v_lshl_add_u32 v{vRS}, v{vT}, 7, v{vT2}
        s_mul_i32 s{sT}, s{sHD}, 14
        s_add_u32 s{sT}, s{sT}, s{sSG}
        s_mul_i32 s{sT}, s{sT}, 28672
        s_add_u32 s{sU}, s{sU}, s{sT}
        """)
        for t in range(1, 4): a(f"v_xor_b32 v{vRS+t}, {t << 5}, v{vRS}")
    else:
        a(f"""
        v_mul_u32_u24 v{vRS}, {B_CT}, v{vT}
        v_add_u32 v{vST}, v{vST}, v{vRS}
        v_bfe_u32 v{vT}, v{vL}, 2, 2
        v_lshl_add_u32 v{vT}, v{vHI}, 3, v{vT}
        v_mul_u32_u24 v{vRS}, 448, v{vT}
        v_bfe_u32 v{vT}, v{vL}, 4, 1
        v_lshl_add_u32 v{vRS}, v{vT}, 5, v{vRS}
        v_and_b32 v{vT}, 3, v{vL}
        v_lshl_add_u32 v{vRS}, v{vT}, 3, v{vRS}
        s_mul_i32 s{sT}, s{sJ}, {14*B_CT}
        s_add_u32 s{sU}, s{sU}, s{sT}
        s_mul_i32 s{sT}, s{sHD}, {7*2048}
        s_add_u32 s{sU}, s{sU}, s{sT}
        s_add_u32 s{sU}, s{sU}, {WS_B}
        """)
    a(f"{K}_loop:")
    if DIAG['on']:
        for it in range(4):
            L = a.uid("TI"); a(f"s_cmp_lg_u32 s{sIT}, {it}\n s_cbranch_scc1 {L}"); tdefer(a, 11+it); a(f"{L}:")
    if late: a(f"s_cmp_eq_u32 s{sIT}, 3\n s_cbranch_scc1 {K}_w0\n s_waitcnt vmcnt({NPC})\n s_branch {K}_w1\n {K}_w0:\n s_waitcnt vmcnt({NPC+2})\n {K}_w1:\n s_barrier")
    else: a(f"s_waitcnt vmcnt({NPC})\n s_barrier")
    seq = [(t, p) for t in range(4) for p in range(NP)]
    nper = 1 if kind == 'A' else 2
    def fetch(n):
        t, p = seq[n]; r = FR + 4*(n % NR)
        if kind == 'A': a(f"ds_read_b128 {v(r,4)}, v{vRS + t} offset:{p*4096}")
        else:
            a(f"ds_read_b64_tr_b16 {v(r,2)}, v{vRS} offset:{t*7168 + p*64}")
            a(f"ds_read_b64_tr_b16 {v(r+2,2)}, v{vRS} offset:{t*7168 + p*64 + 1792}")
    for t in range(4): a(f"ds_read_b128 {v(PV+4*t,4)}, v{vRP + t}")
    for n in range(NR-1): fetch(n)
    tq = Asm(); quarter(True, tq); groups = [[]]
    for l in tq.lines:
        if l.strip() == "s_nop 0": continue
        groups[-1].append(l)
        if "buffer_load" in l or "s_add_u32 m0" in l: groups.append([])
    for n, (t, p) in enumerate(seq):
        if n >= 2 and groups:
            for l in groups.pop(0): a(l)
        if n + NR - 1 < len(seq): fetch(n + NR - 1)
        a(f"s_waitcnt lgkmcnt({min(NR - 1, len(seq) - 1 - n)*nper})")
        a(f"{MF} {v(ACC+16*p,16)}, {v(PV+4*t,4)}, {v(FR+4*(n % NR),4)}, {v(ACC+16*p,16)}")
    assert not groups
    a(f"s_cmp_lg_u32 s{sIT}, 1\n s_cbranch_scc1 {K}_nq")
    if late: late(a)
    a(f"s_mov_b32 s{sPO}, 0x7ff00000\n s_mov_b32 s{sSO}, 0x7ff00000\n {K}_nq:")
    a(f"s_mov_b32 s{sT}, {BUF}\n s_cmp_eq_u32 s{sIT}, 0\n s_cselect_b32 s{sT}, {-2*BUF & 0xffffffff}, s{sT}\n s_add_u32 s{sLD}, s{sLD}, s{sT}\n s_add_u32 s{sPS}, s{sPS}, s{sT}")
    a(f"s_mov_b32 s{sT}, {BUF}\n s_cmp_eq_u32 s{sIT}, 2\n s_cselect_b32 s{sT}, {-2*BUF & 0xffffffff}, s{sT}")
    for t in range(4): a(f"v_add_u32 v{vRP+t}, s{sT}, v{vRP+t}")
    for t in range(nad): a(f"v_add_u32 v{vRS+t}, s{sT}, v{vRS+t}")
    a(f"s_add_u32 s{sIT}, s{sIT}, 1\n s_cmp_lt_u32 s{sIT}, 4\n s_cbranch_scc1 {K}_loop")
    if True: tdefer(a, 2); dstamp(a, 3, sW, few=True)
    for p in range(NP):
        for be in range(2):
            r = ACC + 16*p + 8*be
            for q in range(4): a(f"v_cvt_pk_bf16_f32 v{r+q}, v{r+2*q}, v{r+2*q+1}")
            a(f"buffer_store_dwordx4 {v(r,4)}, v{vST}, {S_WS}, s{sU} offen offset:{512*be} sc1")
        if p < NP-1: a(f"s_add_u32 s{sU}, s{sU}, {28672 if kind == 'A' else 2*B_CT}")
    a(f"s_branch {K}_done")
    a(f"{K}_side:")
    quarter(False); a(f"s_add_u32 s{sLD}, s{sLD}, {BUF}")
    quarter(False); a(f"s_add_u32 s{sLD}, s{sLD}, {BUF}")
    a(f"s_waitcnt vmcnt({NP})\n s_barrier")
    quarter(False); a(f"s_sub_u32 s{sLD}, s{sLD}, {2*BUF}")
    a(f"s_waitcnt vmcnt({NP})\n s_barrier")
    quarter(False)
    a(f"s_waitcnt vmcnt({NP})\n s_barrier\n s_waitcnt vmcnt(0)\n s_barrier")
    a(f"{K}_done:")

def signal(a, K, s_first):
    a(f"""
    s_waitcnt vmcnt(0)
    s_lshr_b32 s38, s{sHD}, 2
    s_add_u32 s38, s38, s{s_first}
    s_lshl_b32 s38, s38, 7
    s_add_u32 s38, s38, {WS_DONE}
    s_mov_b64 exec, 1
    v_mov_b32 v1, 1
    v_mov_b32 v2, 0
    s_cmp_eq_u32 s{sDG}, 3
    s_cbranch_scc1 {K}_s2
    s_barrier
    v_mov_b32 v1, 2
    s_cmp_lg_u32 s{sW}, 0
    s_cbranch_scc1 {K}_s3
    {K}_s2:
    s_cmp_ge_u32 s{sBLK}, 14
    s_cbranch_scc1 {K}_s3
    buffer_atomic_add v1, v2, {S_WS}, s38 offen
    {K}_s3:
    s_mov_b64 exec, -1
    s_barrier
    """)

def side_job(a, ptr_x, ptr_gw):
    vT, vT2, vST, vHI, vL = 208, 209, 212, 205, 207
    srd(a, 28, ptr_x, X_BYTES); srd(a, 52, ptr_gw, 896)
    a(f"""
    v_mbcnt_lo_u32_b32 v{vL}, -1, 0
    v_mbcnt_hi_u32_b32 v{vL}, -1, v{vL}
    v_lshrrev_b32 v{vHI}, 5, v{vL}
    v_lshlrev_b32 v{vST}, 4, v{vL}
    s_mov_b32 s{sQ}, s{sW}
    s_mul_i32 s{sU}, s{sSG}, {32*896}
    s_mul_i32 s{sPS}, s{sW}, 14336
    s_add_u32 s{sPO}, s{sU}, s{sPS}
    """)
    for q in range(14):
        if q % 4 == 0: a(f"s_add_u32 m0, s{sPS}, {q*1024}\n s_add_u32 s{sT}, s{sPO}, {q*1024}")
        a(f"buffer_load_dwordx4 v{vST}, {S_X}, s{sT} offen offset:{(q%4)*1024} lds")
    XG, XP, GW = 0, 56, 112
    a(f"""
    v_bfe_u32 v{vT}, v{vL}, 4, 1
    v_lshlrev_b32 v{vT2}, 4, v{vHI}
    v_lshl_add_u32 v{vT2}, v{vT}, 5, v{vT2}
    v_and_b32 v210, 15, v{vL}
    v_mul_u32_u24 v211, 896, v210
    v_add_u32 v211, s{sPS}, v211
    v_add_u32 v224, v211, v{vT2}
    v_lshrrev_b32 v225, 4, v{vL}
    v_lshl_add_u32 v225, v225, 4, v211
    v_lshlrev_b32 v226, 10, v{vT}
    v_lshl_add_u32 v226, v{vHI}, 9, v226
    v_lshl_add_u32 v226, v210, 4, v226
    s_lshl_b32 s{sT}, s{sQ}, 8
    v_add_u32 v226, s{sT}, v226
    """)
    for u in range(14): a(f"buffer_load_dwordx4 {v(GW+4*u,4)}, v{vT2}, {S_GW}, 0 offen offset:{64*u}")
    for r in range(4): a(f"v_mov_b32 v{168+r}, -1")
    a(f"""
    v_mov_b32 v172, 0
    v_lshlrev_b32 v173, 7, v{vL}
    v_cmp_gt_u32 vcc, 8, v{vL}
    v_mov_b32 v174, 0x7ff00000
    s_lshl_b32 s{sT}, s{sSG}, 1
    s_add_u32 s{sT}, s{sT}, s{sQ}
    s_lshl_b32 s51, s{sT}, 12
    v_cndmask_b32 v173, v174, v173, vcc
    s_lshl_b32 s{sT}, s{sT}, 10
    s_add_u32 s{sT}, s{sT}, {WS_CNT}
    buffer_store_dword v172, v173, {S_WS}, s{sT} offen sc1
    s_add_u32 s51, s51, {WS_MO}
    """)
    for q in range(4): a(f"buffer_store_dwordx4 v[168:171], v{vST}, {S_WS}, s51 offen offset:{q*1024} sc1")
    a("s_waitcnt vmcnt(19)")
    for u in range(14): a(f"ds_read_b128 {v(XG+4*u,4)}, v224 offset:{64*u}")
    a(f"s_add_u32 s51, s{sU}, {WS_XG}\n s_mul_i32 s{sT}, s{sQ}, 7168\n s_add_u32 s{sU}, s{sU}, s{sT}\n s_add_u32 s{sU}, s{sU}, {WS_XP}\n v_mov_b32 v210, 0\n v_mov_b32 v211, 0\n s_waitcnt lgkmcnt(0)")
    for n in range(14): a(f"ds_read_b128 {v(XP+4*n,4)}, v225 offset:{448*(n // 7) + 64*(n % 7)}")
    for u in range(14):
        if u and u % 2 == 0: a("s_add_u32 s51, s51, 4096")
        a(f"buffer_store_dwordx4 {v(XG+4*u,4)}, v226, {S_WS}, s51 offen offset:{(u % 2)*2048} sc1")
    a("s_waitcnt lgkmcnt(0)")
    for n in range(14):
        if n in (4, 7, 11): a(f"s_add_u32 s{sU}, s{sU}, {4096 if n != 7 else 14336 - 4096}")
        a(f"v_swap_b32 v{XP+4*n+1}, v{XP+4*n+2}")
        a(f"buffer_store_dwordx4 {v(XP+4*n,4)}, v{vST}, {S_WS}, s{sU} offen offset:{(n % 7 % 4)*1024} sc1")
    a("s_waitcnt vmcnt(33)")
    for u in range(14):
        for q in range(4): a(f"v_dot2_f32_bf16 v{210 + (q&1)}, v{XG+4*u+q}, v{GW+4*u+q}, v{210 + (q&1)}")
    a(f"""
    s_nop 2
    v_add_f32 v210, v210, v211
    v_mov_b32 v211, v210
    s_nop 1
    v_permlane32_swap_b32 v210, v211
    v_add_f32 v210, v210, v211
    v_mov_b32 v211, v210
    s_nop 1
    v_permlane16_swap_b32 v210, v211
    v_add_f32 v210, v210, v211
    v_mul_f32 v210, 0xbfb8aa3b, v210
    v_exp_f32 v210, v210
    v_and_b32 v{vT}, 15, v{vL}
    v_add_f32 v210, 1.0, v210
    v_rcp_f32 v210, v210
    v_lshlrev_b32 v{vT}, 2, v{vT}
    s_lshl_b32 s{sU}, s{sSG}, 1
    s_add_u32 s{sU}, s{sU}, s{sQ}
    s_lshl_b32 s{sU}, s{sU}, 6
    s_add_u32 s{sU}, s{sU}, {WS_G}
    buffer_store_dword v210, v{vT}, {S_WS}, s{sU} offen sc1
    """)
    a(f"""
    s_and_b32 s{sT}, s{sSG}, 1
    s_lshl_b32 s{sT}, s{sT}, 7
    s_add_u32 s{sT}, s{sT}, {WS_DONE + 8*128}
    v_mov_b32 v210, 1
    v_mov_b32 v211, 0
    s_waitcnt vmcnt(0)
    s_mov_b64 exec, 1
    buffer_atomic_add v210, v211, {S_WS}, s{sT} offen
    s_mov_b64 exec, -1
    """)
```

```python
from asmlib import *
from layout import *
import team, k1
from team import S_WS, S_DBG, SM, OOB, nops
K2_LDS = k1.K1_LDS
L_BC = 65536
MF32 = "v_mfma_f32_32x32x16_bf16"
MF16 = "v_mfma_f32_16x16x32_bf16"
S_W = "s[8:11]"
sWAVE, sROLE, sSEG, sBUD = 17, 16, 20, 35
sA, sB, sC, sD, sE, sF = 36, 37, 38, 39, 40, 41
NS_O = 6
N_TB, N_TA, N_TH, N_TU, N_O1, N_O2 = 56, 56, 14, 28, 4*NS_O, 7*NS_O
T_TB = 0; T_TA = T_TB + N_TB; T_TH = T_TA + N_TA; T_TU = T_TH + N_TH; T_O1 = T_TU + N_TU; T_O2 = T_O1 + N_O1; T_END = T_O2 + N_O2
D_TEAM, D_SYNC, D_TICK, D_RST = 0, 64, 96, 128
vL16, vCA, vCT = 250, 251, 252

SLEEP = ['']
SKIP = ['']
OUTF = ['']
PROBE = [0, 63]
def lane_setup(a):
    a(f"""
    v_mbcnt_lo_u32_b32 v0, -1, 0
    v_mbcnt_hi_u32_b32 v0, -1, v0
    v_lshlrev_b32 v{vL16}, 4, v0
    v_mov_b32 v{vCA}, 0
    v_lshrrev_b32 v1, 5, v0                 ; hi
    v_and_b32 v2, 31, v0                    ; c32
    v_and_b32 v3, 15, v0                    ; c
    v_lshrrev_b32 v4, 4, v0                 ; g
    """)

def wait_cnt(a, kind, n, pair=None):
    L = a.uid("W")
    adr, want = (vCA, n) if pair is None else (pair[0], f"v{pair[1]}")
    a(f"""
    s_cmp_lg_u32 s{sWAVE}, 0
    s_cbranch_scc1 {L}_ok
    s_lshl_b32 s{sF}, s{sSEG}, 11
    s_add_u32 s{sF}, s{sF}, {WS_CNT + kind}
    {L}:
    buffer_load_dword v{vCT}, v{adr}, {S_WS}, s{sF} offen sc1
    s_waitcnt vmcnt(0)
    v_cmp_gt_u32 vcc, {want}, v{vCT}
    s_cbranch_vccz {L}_ok
    {SLEEP[0]}
    s_sub_u32 s{sBUD}, s{sBUD}, 1
    s_cmp_lg_u32 s{sBUD}, 0
    s_cbranch_scc1 {L}
    s_endpgm
    {L}_ok:
    s_waitcnt vmcnt(0)
    s_barrier
    """)

def wait_done(a, what):
    L = a.uid("WW")
    a(f"s_cmp_lg_u32 s{sWAVE}, 0\n s_cbranch_scc1 {L}")
    team.wait_done(a, what, vCT, vCT+1, "L_exit", SLEEP[0])
    a(f"{L}:\n s_barrier")

def wait_team(a):
    if not GATE[0]: return
    L = a.uid("WT")
    a(f"""
    s_cmp_lg_u32 s{sWAVE}, 0
    s_cbranch_scc1 {L}_ok
    v_mov_b32 v{vCT+1}, {team.D_GO}
    {L}:
    buffer_load_dword v{vCT}, v{vCT+1}, {S_DBG}, 0 offen sc1
    s_waitcnt vmcnt(0)
    v_cmp_eq_u32 vcc, 0, v{vCT}
    s_cbranch_vccz {L}_ok
    s_sleep 32
    s_sub_u32 s{sBUD}, s{sBUD}, 1
    s_cmp_lg_u32 s{sBUD}, 0
    s_cbranch_scc1 {L}
    s_endpgm
    {L}_ok:
    s_barrier
    """)
GATE = [True]

def t63(a, slot, reg=None):
    if not DIAG['on']: return
    L = a.uid("T63"); a(f"s_cmp_lg_u32 s{reg or sSEG}, 63\n s_cbranch_scc1 {L}"); tstamp(a, slot, sWAVE, tmp=(254, 255)); a(f"{L}:")

def arrive(a, kind, s_seg, s_extra=None):
    L = a.uid("AR")
    a(f"""
    s_cmp_lg_u32 s{sWAVE}, 0
    s_cbranch_scc1 {L}
    s_lshl_b32 s{sF}, s{s_seg}, 11
    s_add_u32 s{sF}, s{sF}, {WS_CNT + kind}
    {f's_add_u32 s{sF}, s{sF}, s{s_extra}' if s_extra else ''}
    v_mov_b32 v{vCT}, 1
    s_mov_b64 exec, 1
    buffer_atomic_add v{vCT}, v{vCA}, {S_WS}, s{sF} offen
    s_mov_b64 exec, -1
    {L}:
    """)

def perm_rho(a, dst, tmp):
    a(f"""
    v_and_b32 v{dst}, 0x13, v2
    v_bfe_u32 v{tmp}, v2, 2, 1
    v_lshl_add_u32 v{dst}, v{tmp}, 3, v{dst}
    v_bfe_u32 v{tmp}, v2, 3, 1
    v_lshl_add_u32 v{dst}, v{tmp}, 2, v{dst}
    """)

def fetch_m_issue(a, t0):
    a(f"""
    s_lshl_b32 s{sA}, s{sSEG}, 13
    s_add_u32 s{sA}, s{sA}, {WS_MO}
    s_lshl_b32 s{sB}, s{sWAVE}, 10
    s_add_u32 s{sA}, s{sA}, s{sB}
    s_add_u32 s{sC}, s{sWAVE}, 4
    s_min_u32 s{sC}, s{sC}, 6
    s_sub_u32 s{sC}, s{sC}, s{sWAVE}
    s_lshl_b32 s{sC}, s{sC}, 10
    s_add_u32 s{sD}, s{sA}, s{sC}
    v_add_u32 v{t0+8}, s{sB}, v{vL16}
    v_add_u32 v{t0+9}, s{sC}, v{t0+8}
    buffer_load_dwordx4 {v(t0,4)}, v{vL16}, {S_WS}, s{sA} offen sc1
    buffer_load_dwordx4 {v(t0+4,4)}, v{vL16}, {S_WS}, s{sD} offen sc1
    """)

def fetch_m_finish(a, P, t0, lds):
    a(f"""
    s_cmp_eq_u32 s{sSEG}, 63
    s_cselect_b32 s{sE}, 1, 0
    {P}_m1:
    s_waitcnt vmcnt(0)
    v_max3_u32 v{vCT}, v{t0}, v{t0+1}, v{t0+2}
    v_max3_u32 v{vCT}, v{vCT}, v{t0+3}, v{t0+4}
    v_max3_u32 v{vCT}, v{vCT}, v{t0+5}, v{t0+6}
    v_max_u32 v{vCT}, v{vCT}, v{t0+7}
    v_cmp_eq_u32 vcc, -1, v{vCT}
    s_cbranch_vccz {P}_mok
    {P}_mw:
    s_sub_u32 s{sBUD}, s{sBUD}, 1
    s_cmp_eq_u32 s{sBUD}, 0
    s_cbranch_scc1 L_exit
    s_cmp_eq_u32 s{sE}, 1
    s_cbranch_scc1 {P}_m2
    {SLEEP[0]}
    buffer_load_dword v{vCT}, v{vCA}, {S_WS}, s{sD} offen sc1
    s_waitcnt vmcnt(0)
    v_cmp_eq_u32 vcc, -1, v{vCT}
    s_cbranch_vccnz {P}_mw
    s_mov_b32 s{sE}, 1
    {P}_m2:
    buffer_load_dwordx4 {v(t0,4)}, v{vL16}, {S_WS}, s{sA} offen sc1
    buffer_load_dwordx4 {v(t0+4,4)}, v{vL16}, {S_WS}, s{sD} offen sc1
    s_branch {P}_m1
    {P}_mok:
    ds_write_b128 v{t0+8}, {v(t0,4)} offset:{lds}
    ds_write_b128 v{t0+9}, {v(t0+4,4)} offset:{lds}
    s_waitcnt lgkmcnt(0)
    s_barrier
    """)

def gw(a, kind):
    P = "G" + kind
    W = lambda u, t: 256 + (u*28 + t)*4
    ACC, FR, TM, vOUT, vG = 16, 48, 72, 8, 9
    NR = 6
    step, NT = (1, 1) if kind == 'B' else (2, 2)
    cnt = {'B': C_VO, 'A': C_Y, 'H': C_H}[kind]
    a(f"{P}_entry:")
    if kind == 'B': a(f"s_mov_b32 s45, s{sROLE}\n s_mov_b32 s21, 0\n s_branch L_side\n GB_go:")
    if kind == 'A': a(f"s_add_u32 s45, s{sROLE}, 56\n s_mov_b32 s21, 1\n s_cmp_lt_u32 s45, 64\n s_cbranch_scc1 L_side\n GA_go:")
    lane_setup(a)
    if kind != 'B': wait_team(a)
    if kind == 'B':
        a(f"""
        s_mov_b32 s{sSEG}, 0
        s_lshr_b32 s{sA}, s{sROLE}, 2
        s_and_b32 s{sB}, s{sROLE}, 3
        s_lshl_b32 s{sB}, s{sB}, 2
        s_add_u32 s{sB}, s{sB}, s{sWAVE}           ; head
        v_lshlrev_b32 v5, 4, v3
        v_lshl_add_u32 v5, v1, 8, v5
        v_bfe_u32 v6, v0, 4, 1
        v_lshl_add_u32 v{vOUT}, v6, 14, v5
        v_mul_u32_u24 v6, {B_CT}, v6
        v_add_u32 v5, v5, v6
        s_mul_i32 s{sD}, s{sA}, {2*B_CT}
        s_mul_i32 s{sE}, s{sB}, 14336
        s_add_u32 s{sD}, s{sD}, s{sE}
        s_add_u32 s{sD}, s{sD}, {WS_B}
        s_lshl_b32 s42, s{sA}, 15
        s_lshl_b32 s{sE}, s{sB}, 10
        s_add_u32 s42, s42, s{sE}
        s_add_u32 s42, s42, {WS_VO}
        """)
        ustride, ostep = 14336, VO_STEP
    elif kind == 'A':
        perm_rho(a, 5, 6)
        a(f"""
        v_and_b32 v6, 1, v5
        v_mul_u32_u24 v6, 14336, v6
        v_lshrrev_b32 v5, 1, v5
        v_lshl_add_u32 v5, v5, 4, v6
        v_lshl_add_u32 v5, v1, 8, v5
        v_mov_b32 v{vOUT}, v{vL16}
        s_and_b32 s{sSEG}, s{sROLE}, 1
        s_lshr_b32 s{sROLE}, s{sROLE}, 1
        s_lshl_b32 s{sA}, s{sROLE}, 3
        s_lshl_b32 s{sC}, s{sWAVE}, 1
        s_add_u32 s{sA}, s{sA}, s{sC}
        s_mul_i32 s{sD}, s{sA}, 28672
        s_lshl_b32 s42, s{sA}, 11
        s_add_u32 s42, s42, {WS_Y}
        s_mul_i32 s{sE}, s{sSEG}, {VO_STEP}
        s_add_u32 s42, s42, s{sE}
        """)
        ustride, ostep = 28672, VO_STEP
    if kind in 'BA':
        wait_done(a, kind)
        for u in range(NT):
            for t in range(28):
                if t and t % 8 == 0: a(f"s_add_u32 s{sD}, s{sD}, 4096")
                a(f"buffer_load_dwordx4 {v(W(u,t),4)}, v5, {S_WS}, s{sD} offen offset:{(t%8)*512} sc1")
            if u == 0: a(f"s_add_u32 s{sD}, s{sD}, {ustride - 3*4096}")
    else:
        srd(a, 8, 66, F_BYTES)
        a(f"""
        s_and_b32 s{sSEG}, s{sROLE}, 1
        s_lshr_b32 s{sA}, s{sROLE}, 1
        s_lshl_b32 s{sA}, s{sA}, 2
        s_add_u32 s{sA}, s{sA}, s{sWAVE}
        s_lshl_b32 s{sD}, s{sA}, 7
        s_lshl_b32 s42, s{sA}, 12
        s_mul_i32 s{sE}, s{sSEG}, {H_STEP}
        s_add_u32 s42, s42, s{sE}
        s_add_u32 s42, s42, {WS_H}
        v_lshrrev_b32 v5, 3, v0
        v_mul_u32_u24 v5, 3584, v5
        v_and_b32 v6, 7, v0
        v_lshl_add_u32 v5, v6, 4, v5
        v_bfe_u32 v6, v0, 2, 2
        v_lshl_add_u32 v6, v1, 3, v6
        v_lshlrev_b32 v6, 7, v6
        v_bfe_u32 v7, v0, 4, 1
        v_lshl_add_u32 v6, v7, 5, v6
        v_lshl_add_u32 v{vOUT}, v7, 10, 0
        v_and_b32 v7, 1, v0
        v_lshl_add_u32 v6, v7, 4, v6
        v_bfe_u32 v7, v0, 1, 1
        v_lshl_add_u32 v6, v7, 3, v6
        s_mul_i32 s{sE}, s{sWAVE}, 14336
        v_add_u32 v6, s{sE}, v6
        v_lshl_add_u32 v{vOUT}, v1, 8, v{vOUT}
        v_lshl_add_u32 v{vOUT}, v3, 4, v{vOUT}
        v_lshlrev_b32 v10, 2, v2
        """)
        for rnd in range(4):
            for q in range(14):
                a(f"s_add_u32 m0, s{sE}, {q*1024}\n s_nop 0")
                a(f"buffer_load_dwordx4 v5, {S_W}, s{sD} offen lds")
                a(f"s_add_u32 s{sD}, s{sD}, {8*3584}")
            a("s_waitcnt vmcnt(0)")
            for u in range(2):
                for tt in range(7):
                    for z in range(2):
                        a(f"ds_read_b64_tr_b16 {v(W(u, rnd*7+tt) + 2*z, 2)}, v6 offset:{tt*2048 + z*512 + u*64}")
            a("s_waitcnt lgkmcnt(0)")
        a("s_barrier")
        ostep = H_STEP
    nst = 2*NT
    def xdma():
        for q in range(7):
            if q % 4 == 0: a(f"s_add_u32 m0, s43, {q*1024}\n s_add_u32 s{sE}, s44, {q*1024}")
            a(f"buffer_load_dwordx4 v{vL16}, {S_WS}, s{sE} offen offset:{(q%4)*1024} sc1 lds")
        a(f"s_xor_b32 s43, s43, 0x8000\n s_add_u32 s44, s44, {step*28672}")
    a(f"""
    s_mul_i32 s43, s{sWAVE}, 7168
    s_mul_i32 s44, s{sSEG}, 28672
    s_add_u32 s44, s44, s43
    s_add_u32 s44, s44, {WS_XG}
    v_mov_b32 v11, v{vL16}
    s_mov_b32 s45, 0
    """)
    wait_done(a, 'S')
    xdma()
    a("s_waitcnt vmcnt(0)")
    tstamp(a, 6, sWAVE)
    a(f"{P}_loop:")
    a(f"s_waitcnt vmcnt({nst})\n s_barrier")
    if kind == 'H':
        a(f"s_lshl_b32 s{sE}, s{sSEG}, 7\n s_add_u32 s{sE}, s{sE}, {WS_G}")
        a(f"buffer_load_dword v{vG}, v10, {S_WS}, s{sE} offen sc1")
    xdma()
    fetch = lambda t: a(f"ds_read_b128 {v(FR+4*(t % NR),4)}, v11 offset:{t*1024}")
    for t in range(NR-1): fetch(t)
    for t in range(28):
        if t + NR - 1 < 28: fetch(t + NR - 1)
        a(f"s_waitcnt lgkmcnt({min(NR-1, 27-t)})")
        x = v(FR+4*(t % NR), 4)
        if t == 14:
            a(f"s_waitcnt vmcnt({8 if kind == 'H' else 7})\n s_barrier")
            a(f"s_cmp_eq_u32 s45, 0\n s_cbranch_scc1 {P}_noar\n s_sub_u32 s46, s{sSEG}, {step}")
            arrive(a, cnt, 46)
            a(f"{P}_noar:")
        for u in range(NT):
            c = "0" if t == 0 else v(ACC+16*u, 16)
            if kind in SKIP[0]: continue
            if kind == 'B': a(f"{MF32} {v(ACC+16*u,16)}, {x}, {v(W(u,t),4)}, {c}")
            else:           a(f"{MF32} {v(ACC+16*u,16)}, {v(W(u,t),4)}, {x}, {c}")
    a("v_xor_b32 v11, 0x8000, v11")
    if kind == 'H': a(f"s_waitcnt vmcnt(7)\n v_sub_f32 v{vG}, 1.0, v{vG}")
    a("s_nop 10")
    for u in range(NT):
        if kind == 'H':
            for h0 in range(0, 16, 8):
                r = ACC + 16*u + h0
                for q in range(8): a(f"v_mul_f32 v{TM+16+q}, 0xbfb8aa3b, v{r+q}")
                for q in range(8): a(f"v_exp_f32 v{TM+16+q}, v{TM+16+q}")
                for q in range(8): a(f"v_add_f32 v{TM+16+q}, 1.0, v{TM+16+q}\n v_mul_f32 v{r+q}, v{vG}, v{r+q}")
                for q in range(8): a(f"v_rcp_f32 v{TM+16+q}, v{TM+16+q}")
                a("s_nop 0")
                for q in range(8): a(f"v_mul_f32 v{r+q}, v{TM+16+q}, v{r+q}")
        for be in range(2):
            r = ACC + 16*u + 8*be; t = TM + 8*u + 4*be
            order = (0, 4, 2, 6) if kind == 'B' else (0, 2, 4, 6)
            for q in range(4): a(f"v_cvt_pk_bf16_f32 v{t+q}, v{r+order[q]}, v{r+order[q]+1}")
            off = {'B': u*1024 + be*512, 'A': u*2048 + be*1024, 'H': u*2048 + be*512}[kind]
            a(f"buffer_store_dwordx4 {v(t,4)}, v{vOUT}, {S_WS}, s42 offen offset:{off} sc1")
    a(f"""
    s_add_u32 s42, s42, {step*ostep}
    s_add_u32 s45, s45, 1
    s_add_u32 s{sSEG}, s{sSEG}, {step}
    s_cmp_lt_u32 s{sSEG}, 64
    s_cbranch_scc1 {P}_loop
    s_waitcnt vmcnt(0)
    s_barrier
    """)
    a(f"s_sub_u32 s46, s{sSEG}, {step}")
    arrive(a, cnt, 46)
    a("s_branch L_next_free")

def tu(a):
    P = "TU"
    W = lambda hh, k: 256 + (hh*7 + k)*8
    M, D, T, AD, t0 = 16, 48, 64, 72, 80
    a(f"{P}_entry:")
    lane_setup(a)
    wait_team(a)
    a(f"""
    s_mul_i32 s{sD}, s{sROLE}, {B_CT}
    s_mul_i32 s{sE}, s{sWAVE}, {4*14336}
    s_add_u32 s{sD}, s{sD}, s{sE}
    s_add_u32 s{sD}, s{sD}, {WS_B}
    """)
    wait_done(a, 'B')
    for i in range(56):
        if i and i % 4 == 0: a(f"s_add_u32 s{sD}, s{sD}, 4096")
        a(f"buffer_load_dwordx4 {v(256+4*i,4)}, v{vL16}, {S_WS}, s{sD} offen offset:{(i%4)*1024} sc1")
    a(f"""
    v_and_b32 v5, 1, v0
    v_cmp_eq_u32 vcc, 1, v5
    v_mov_b32 v8, 0x44444444
    v_mov_b32 v6, 0xeeeeeeee
    v_cndmask_b32 v8, v8, v6, vcc
    v_lshlrev_b32 v6, 8, v4
    v_lshl_add_u32 v6, v5, 2, v6
    v_bfe_u32 v5, v0, 1, 3
    v_lshl_add_u32 v6, v5, 4, v6
    s_lshl_b32 s42, s{sROLE}, 12
    s_lshl_b32 s{sE}, s{sWAVE}, 10
    s_add_u32 s42, s42, s{sE}
    s_add_u32 s42, s42, {WS_UM}
    s_lshr_b32 s43, s{sROLE}, 2
    s_lshl_b32 s43, s43, 7
    s_mov_b32 s{sSEG}, 0
    """)
    for k in range(7): a(f"v_add_u32 v{AD+k}, {k*1024}, v6")
    wait_done(a, 'S')
    fetch_m_issue(a, t0)
    a(f"{P}_loop:")
    for r in range(16): a(f"v_mov_b32 v{D+r}, 0")
    fetch_m_finish(a, P, t0, 0)
    t63(a, 16)
    for k in range(7):
        a(f"ds_read2_b32 {v(M+4*k,2)}, v{AD+k} offset0:0 offset1:2")
        a(f"ds_read2_b32 {v(M+4*k+2,2)}, v{AD+k} offset0:32 offset1:34")
    for k in range(7):
        a(f"s_waitcnt lgkmcnt({12-2*k})")
        for hh in range(4): a(f"{SM} {v(D+4*hh,4)}, {v(M+4*k,4)}, {v(W(hh,k),8)}, v8")
    a("s_nop 4")
    for hh in range(4):
        d = D + 4*hh
        a(f"v_add_f32 v{d}, v{d}, v{d+1}\n v_add_f32 v{d+2}, v{d+2}, v{d+3}\n v_cvt_pk_bf16_f32 v{T+hh}, v{d}, v{d+2}")
    a(f"buffer_store_dwordx4 {v(T,4)}, v{vL16}, {S_WS}, s42 offen sc1")
    a(f"s_mov_b32 s46, s{sSEG}\n s_add_u32 s{sSEG}, s{sSEG}, 1")
    fetch_m_issue(a, t0)
    a("s_waitcnt vmcnt(2)\n s_barrier")
    arrive(a, C_UM, 46, 43)
    t63(a, 17, 46)
    a(f"""
    s_add_u32 s42, s42, {UM_STEP}
    s_cmp_lt_u32 s{sSEG}, 64
    s_cbranch_scc1 {P}_loop
    s_branch L_next
    """)

def o1(a):
    P = "O1"
    Y = lambda t: 256 + 4*t
    SX, SMM, FR, T, t0 = 16, 32, 48, 72, 88
    vG, vPX, vPM, vRW, vKM, vMX = 8, 9, 10, 11, 12, 13
    NR = 6; L_MM = 28672
    a(f"{P}_entry:")
    lane_setup(a)
    wait_team(a)
    a(f"""
    s_lshr_b32 s{sSEG}, s{sROLE}, 2
    s_and_b32 s43, s{sROLE}, 3
    s_lshl_b32 s44, s43, 2
    s_add_u32 s44, s44, s{sWAVE}               ; head
    v_bfe_u32 v5, v0, 4, 1
    v_lshlrev_b32 v5, 10, v5
    v_lshl_add_u32 v5, v3, 4, v5               ; rt*1024 + c*16
    v_lshl_add_u32 v{vPX}, v1, 8, v5
    s_lshl_b32 s{sA}, s44, 11
    v_add_u32 v{vPX}, s{sA}, v{vPX}
    v_lshl_add_u32 v{vPM}, v1, 9, v5
    s_lshl_b32 s{sA}, s43, 11
    s_lshl_b32 s{sB}, s{sWAVE}, 2
    s_add_u32 s{sA}, s{sA}, s{sB}
    s_add_u32 s{sA}, s{sA}, 32768
    v_add_u32 v{vPM}, s{sA}, v{vPM}
    v_lshlrev_b32 v5, 2, v1
    v_sub_u32 v{vRW}, v2, v5
    v_and_b32 v5, 7, v0
    v_lshlrev_b32 v5, 4, v5
    v_lshl_add_u32 v{vKM}, v1, 7, v5
    v_lshlrev_b32 v14, 2, v2
    s_mul_i32 s45, s{sWAVE}, 7168
    """)
    wait_done(a, 'S')
    a(f"{P}_loop:")
    a(f"""
    s_mul_i32 s{sA}, s{sSEG}, 28672
    s_add_u32 s{sA}, s{sA}, s45
    s_add_u32 s{sA}, s{sA}, {WS_XG}
    """)
    for q in range(7):
        if q % 4 == 0: a(f"s_add_u32 m0, s45, {q*1024}\n s_add_u32 s{sE}, s{sA}, {q*1024}")
        a(f"buffer_load_dwordx4 v{vL16}, {S_WS}, s{sE} offen offset:{(q%4)*1024} sc1 lds")
    a(f"s_lshl_b32 s{sE}, s{sSEG}, 7\n s_add_u32 s{sE}, s{sE}, {WS_G}")
    a(f"buffer_load_dword v{vG}, v14, {S_WS}, s{sE} offen sc1")
    wait_cnt(a, C_Y, 28)
    a(f"""
    s_mul_i32 s{sA}, s{sSEG}, {VO_STEP}
    s_mul_i32 s{sB}, s44, 28672
    s_add_u32 s{sA}, s{sA}, s{sB}
    s_add_u32 s{sA}, s{sA}, {WS_Y}
    """)
    for t in range(28):
        if t and t % 4 == 0: a(f"s_add_u32 s{sA}, s{sA}, 4096")
        a(f"buffer_load_dwordx4 {v(Y(t),4)}, v{vL16}, {S_WS}, s{sA} offen offset:{(t%4)*1024} sc1")
    a("s_barrier")
    def scores(acc, base, stride, off0, vm):
        fetch = lambda t: a(f"ds_read_b128 {v(FR+4*(t % NR),4)}, v{base} offset:{off0 + t*stride}")
        for t in range(NR-1): fetch(t)
        for t in range(28):
            if t + NR - 1 < 28: fetch(t + NR - 1)
            a(f"s_waitcnt lgkmcnt({min(NR-1, 27-t)})" + (f" vmcnt({27-t})" if vm else ""))
            a(f"{MF32} {v(acc,16)}, {v(FR+4*(t % NR),4)}, {v(Y(t),4)}, {'0' if t == 0 else v(acc,16)}")
    scores(SX, vL16, 1024, 0, True)
    a(f"v_mov_b32 v{T}, 0xff800000\n s_nop 10")
    for b in range(4):
        for r in range(4):
            a(f"v_cmp_le_i32 vcc, {8*b+r}, v{vRW}\n s_nop 1\n v_cndmask_b32 v{SX+4*b+r}, v{T}, v{SX+4*b+r}, vcc")
    a(f"v_max3_f32 v{vMX}, v{SX}, v{SX+1}, v{SX+2}")
    for r in range(3, 15, 2): a(f"v_max3_f32 v{vMX}, v{vMX}, v{SX+r}, v{SX+r+1}")
    a(f"v_max_f32 v{vMX}, v{vMX}, v{SX+15}")
    t63(a, 18)
    fetch_m_issue(a, t0); fetch_m_finish(a, P, t0, L_MM)
    t63(a, 19)
    scores(SMM, vKM, 256, L_MM, False)
    a("s_nop 11")
    a(f"v_max3_f32 v{vMX}, v{vMX}, v{SMM}, v{SMM+1}\n v_max3_f32 v{vMX}, v{vMX}, v{SMM+2}, v{SMM+3}")
    a(f"v_mov_b32 v{T}, v{vMX}\n s_nop 1\n v_permlane32_swap_b32 v{T}, v{vMX}\n v_max_f32 v{vMX}, v{vMX}, v{T}")
    vals = [SX+r for r in range(16)] + [SMM+r for r in range(4)]
    a(f"s_mov_b32 s{sB}, {team.SCALE}\n v_mul_f32 v{vMX}, s{sB}, v{vMX}")
    for r in vals: a(f"v_fma_f32 v{r}, v{r}, s{sB}, -v{vMX}")
    for r in vals: a(f"v_exp_f32 v{r}, v{r}")
    a(f"v_add_f32 v{T}, v{vals[0]}, v{vals[1]}\n v_add_f32 v{T+1}, v{vals[2]}, v{vals[3]}")
    for i in range(4, 20, 2): a(f"v_add_f32 v{T}, v{T}, v{vals[i]}\n v_add_f32 v{T+1}, v{T+1}, v{vals[i+1]}")
    a(f"v_add_f32 v{T}, v{T}, v{T+1}\n v_mov_b32 v{T+1}, v{T}\n s_nop 1\n v_permlane32_swap_b32 v{T}, v{T+1}\n v_add_f32 v{T}, v{T}, v{T+1}")
    a(f"v_rcp_f32 v{T}, v{T}\n s_nop 0\n v_mul_f32 v{T}, v{T}, v{vG}")
    for r in vals: a(f"v_mul_f32 v{r}, v{r}, v{T}")
    a(f"s_mul_i32 s{sA}, s{sSEG}, {PX_STEP}\n s_add_u32 s{sA}, s{sA}, {WS_PX}")
    for be in range(2):
        for q, o in enumerate((0, 4, 2, 6)): a(f"v_cvt_pk_bf16_f32 v{T+4+4*be+q}, v{SX+8*be+o}, v{SX+8*be+o+1}")
        a(f"buffer_store_dwordx4 {v(T+4+4*be,4)}, v{vPX}, {S_WS}, s{sA} offen offset:{512*be} sc1")
    for q in range(2):
        a(f"v_cvt_pk_bf16_f32 v{T+12+q}, v{SMM+2*q}, v{SMM+2*q+1}")
        a(f"buffer_store_dword v{T+12+q}, v{vPM}, {S_WS}, s{sA} offen offset:{256*q} sc1")
    a("s_waitcnt vmcnt(0)\n s_barrier")
    arrive(a, C_P, sSEG)
    t63(a, 20)
    a(f"""
    s_add_u32 s{sSEG}, s{sSEG}, {NS_O}
    s_cmp_lt_u32 s{sSEG}, 64
    s_cbranch_scc1 {P}_loop
    s_branch L_next
    """)

def o2(a):
    P = "O2"
    W = lambda t, ct: 256 + (t*4 + ct)*4
    ACC, HF, VO = 16, 48, 160
    PXR, PMR, UMR = HF, HF + 32, HF + 40
    vRW_, vRR, vOA = 8, 9, 10
    a(f"{P}_entry:")
    lane_setup(a)
    wait_team(a)
    srd(a, 8, 68, F_BYTES)
    a(f"""
    s_mul_i32 s{sSEG}, s{sROLE}, 9363
    s_lshr_b32 s{sSEG}, s{sSEG}, 16            ; role / 7
    s_mul_i32 s{sA}, s{sSEG}, 7
    s_sub_u32 s43, s{sROLE}, s{sA}
    s_mul_i32 s{sD}, s{sWAVE}, {448*896}
    s_lshl_b32 s{sA}, s43, 7
    s_add_u32 s{sD}, s{sD}, s{sA}
    v_lshrrev_b32 v5, 3, v0
    v_mul_u32_u24 v5, 896, v5
    v_and_b32 v6, 7, v0
    v_lshl_add_u32 v5, v6, 4, v5
    v_bfe_u32 v6, v0, 2, 2
    v_lshl_add_u32 v6, v4, 3, v6
    v_lshlrev_b32 v6, 7, v6
    v_and_b32 v7, 3, v0
    v_lshl_add_u32 v6, v7, 3, v6
    s_lshl_b32 s{sE}, s{sWAVE}, 14
    v_add_u32 v6, s{sE}, v6
    """)
    for rnd, nt in enumerate((4, 4, 4, 2)):
        for q in range(4*nt):
            a(f"s_add_u32 m0, s{sE}, {q*1024}\n s_nop 0")
            a(f"buffer_load_dwordx4 v5, {S_W}, s{sD} offen lds")
            a(f"s_add_u32 s{sD}, s{sD}, {8*896}")
        a("s_waitcnt vmcnt(0)")
        for tt in range(nt):
            for ct in range(4):
                for z in range(2):
                    a(f"ds_read_b64_tr_b16 {v(W(rnd*4+tt, ct) + 2*z, 2)}, v6 offset:{tt*4096 + z*512 + ct*32}")
        a("s_waitcnt lgkmcnt(0)")
    srd(a, 8, 88, X_BYTES)
    a(f"""
    s_barrier
    v_mul_u32_u24 v{vRW_}, 272, v3
    v_lshl_add_u32 v{vRW_}, v4, 4, v{vRW_}
    s_mul_i32 s{sA}, s{sWAVE}, 8704
    v_add_u32 v{vRW_}, s{sA}, v{vRW_}
    v_lshrrev_b32 v5, 3, v0
    s_lshl_b32 s{sA}, s{sWAVE}, 3
    v_add_u32 v5, s{sA}, v5
    v_and_b32 v6, 7, v0
    v_mul_u32_u24 v{vRR}, 272, v5
    v_lshl_add_u32 v{vRR}, v6, 5, v{vRR}
    v_mul_u32_u24 v{vOA}, 896, v5
    v_lshl_add_u32 v{vOA}, v6, 4, v{vOA}
    s_lshl_b32 s{sA}, s43, 7
    v_add_u32 v{vOA}, s{sA}, v{vOA}
    v_and_b32 v11, 1, v0
    v_mov_b32 v12, 4
    s_add_u32 s{sA}, s{sA}, {C_UM - C_P}
    v_mul_lo_u32 v11, v11, s{sA}
    """)
    wait_done(a, 'S')
    a(f"{P}_loop:")
    wait_cnt(a, C_H, 7)
    a(f"""
    s_mul_i32 s{sA}, s{sSEG}, {H_STEP}
    s_mul_i32 s{sB}, s{sWAVE}, {14*2048}
    s_add_u32 s{sA}, s{sA}, s{sB}
    s_add_u32 s{sA}, s{sA}, {WS_H}
    """)
    for i in range(28):
        if i and i % 4 == 0: a(f"s_add_u32 s{sA}, s{sA}, 4096")
        a(f"buffer_load_dwordx4 {v(HF+4*i,4)}, v{vL16}, {S_WS}, s{sA} offen offset:{(i%4)*1024} sc1")
    acc = lambda ct, rt: v(ACC + (ct*2 + rt)*4, 4)
    for t in range(14):
        for rt in range(2):
            a(f"s_waitcnt vmcnt({27 - 2*t - rt})")
            for ct in range(4): a(f"{MF16} {acc(ct,rt)}, {v(W(t,ct),4)}, {v(HF+8*t+4*rt,4)}, {'0' if t == 0 else acc(ct,rt)}")
    wait_cnt(a, C_VO, 56)
    a(f"""
    s_mul_i32 s{sA}, s{sSEG}, {VO_STEP}
    s_lshl_b32 s{sB}, s43, 16
    s_add_u32 s{sA}, s{sA}, s{sB}
    s_lshl_b32 s{sB}, s{sWAVE}, 12
    s_add_u32 s{sA}, s{sA}, s{sB}
    s_add_u32 s{sA}, s{sA}, {WS_VO}
    """)
    for ct in range(4):
        if ct: a(f"s_add_u32 s{sA}, s{sA}, 16384")
        for hh in range(4): a(f"buffer_load_dwordx4 {v(VO+(hh*4+ct)*4,4)}, v{vL16}, {S_WS}, s{sA} offen offset:{hh*1024} sc1")
    t63(a, 21)
    wait_cnt(a, C_P, 0, (11, 12))
    t63(a, 22)
    a(f"""
    s_mul_i32 s{sA}, s{sSEG}, {UM_STEP}
    s_lshl_b32 s{sB}, s43, 14
    s_add_u32 s{sA}, s{sA}, s{sB}
    s_lshl_b32 s{sB}, s{sWAVE}, 10
    s_add_u32 s{sA}, s{sA}, s{sB}
    s_add_u32 s{sA}, s{sA}, {WS_UM}
    """)
    for ct in range(4):
        if ct: a(f"s_add_u32 s{sA}, s{sA}, 4096")
        a(f"buffer_load_dwordx4 {v(UMR+4*ct,4)}, v{vL16}, {S_WS}, s{sA} offen sc1")
    a(f"""
    s_mul_i32 s{sA}, s{sSEG}, {PX_STEP}
    s_add_u32 s{sA}, s{sA}, {WS_PX}
    s_lshl_b32 s{sB}, s{sWAVE}, 13
    s_add_u32 s{sB}, s{sA}, s{sB}
    s_add_u32 s{sC}, s{sB}, 4096
    s_lshl_b32 s{sD}, s{sWAVE}, 11
    s_add_u32 s{sD}, s{sD}, s{sA}
    s_add_u32 s{sD}, s{sD}, 32768
    """)
    for i in range(8): a(f"buffer_load_dwordx4 {v(PXR+4*i,4)}, v{vL16}, {S_WS}, s{sB + i//4} offen offset:{(i%4)*1024} sc1")
    for i in range(2): a(f"buffer_load_dwordx4 {v(PMR+4*i,4)}, v{vL16}, {S_WS}, s{sD} offen offset:{i*1024} sc1")
    for hh in range(4):
        for rt in range(2):
            a(f"s_waitcnt vmcnt({9 - 2*hh - rt})")
            for ct in range(4): a(f"{MF16} {acc(ct,rt)}, {v(VO+(hh*4+ct)*4,4)}, {v(PXR+8*hh+4*rt,4)}, {acc(ct,rt)}")
    a("s_waitcnt vmcnt(0)")
    for ct in range(4):
        a("s_nop 0")
        for rt in range(2): a(f"{MF16} {acc(ct,rt)}, {v(UMR+4*ct,4)}, {v(PMR+4*rt,4)}, {acc(ct,rt)}")
    a("s_nop 1")
    for ct in range(4):
        for rt in range(2):
            if ct == 3 and rt == 0: a("s_nop 3")
            a(f"ds_write_b128 v{vRW_}, {acc(ct,rt)} offset:{rt*16*272 + ct*64}")
    a("s_waitcnt lgkmcnt(0)\n s_barrier")
    for w in range(4):
        for q in range(2): a(f"ds_read_b128 {v(VO+8*w+4*q,4)}, v{vRR} offset:{w*8704 + q*16}")
    a(f"s_mul_i32 s{sA}, s{sSEG}, {32*896}")
    for w in range(1, 4):
        a(f"s_waitcnt lgkmcnt({6-2*w})")
        for q in range(8): a(f"v_add_f32 v{VO+q}, v{VO+q}, v{VO+8*w+q}")
    if PROBE[0]:
        a(f"s_memrealtime s[96:97]\n s_waitcnt lgkmcnt(0)\n s_sub_u32 s96, s96, s98\n s_cmp_gt_u32 s96, {PROBE[0]}\n s_cselect_b32 s96, 1.0, 0\n s_cmp_eq_u32 s{sSEG}, {PROBE[1]}\n s_cselect_b32 s96, s96, 0\n v_add_f32 v{VO}, s96, v{VO}")
    for q in range(4): a(f"v_cvt_pk_bf16_f32 v{VO+32+q}, v{VO+2*q}, v{VO+2*q+1}")
    a(f"buffer_store_dwordx4 {v(VO+32,4)}, v{vOA}, {S_W}, s{sA} offen {OUTF[0]}")
    a(f"""
    s_barrier
    s_add_u32 s{sSEG}, s{sSEG}, {NS_O}
    s_cmp_lt_u32 s{sSEG}, 64
    s_cbranch_scc1 {P}_loop
    s_branch L_next
    """)

def bc_atomic(a, L, off, val):
    a(f"""
    s_cmp_lg_u32 s{sWAVE}, 0
    s_cbranch_scc1 {L}_w
    v_mov_b32 v1, {val}
    v_mov_b32 v2, {off}
    v_mov_b32 v3, {L_BC}
    s_mov_b64 exec, 1
    buffer_atomic_add v1, v2, {S_DBG}, 0 offen sc0
    s_waitcnt vmcnt(0)
    ds_write_b32 v3, v1
    s_waitcnt lgkmcnt(0)
    s_mov_b64 exec, -1
    {L}_w:
    v_mov_b32 v3, {L_BC}
    s_barrier
    ds_read_b32 v1, v3
    s_waitcnt lgkmcnt(0)
    v_readfirstlane_b32 s{sROLE}, v1
    s_barrier
    """)

def k2(a, name, o=None):
    o = o or team.Opt(diag=False)
    GATE[0] = o.gate; OUTF[0] = o.outf
    SLEEP[0] = f"s_sleep {o.sleep}" if o.sleep else ""
    kernel_head(a, name)
    a(f"""
    s_cmp_ge_u32 s2, 256
    s_cbranch_scc1 L_exit
    s_load_dwordx4 s[76:79], s[0:1], 0         ; x, mem0
    s_load_dwordx8 s[80:87], s[0:1], 16
    s_load_dwordx8 s[64:71], s[0:1], 56        ; B_x w1 w2 gate_w
    s_load_dwordx2 s[88:89], s[0:1], 88
    s_load_dwordx4 s[72:75], s[0:1], 96
    s_getreg_b32 s18, hwreg(HW_REG_XCC_ID)
    v_lshrrev_b32 v1, 6, v0
    s_and_b32 s18, s18, 15
    v_readfirstlane_b32 s{sWAVE}, v1
    s_mov_b32 s{sBUD}, {o.budget}
    s_waitcnt lgkmcnt(0)
    """)
    srd(a, 4, 74, WS_BYTES); srd(a, 12, 72, 256); srd(a, 60, 78, 7168)
    if PROBE[0]: a("s_memrealtime s[98:99]\n s_waitcnt lgkmcnt(0)")
    if DIAG['on']: a("s_mov_b32 s3, s2")
    tdefer(a, 0); dstamp(a, 1, sWAVE, inv=True, few=True)
    if o.cpf:
      a(f"""
      s_getpc_b64 s[36:37]
      L_code_ref:
      s_and_b32 s36, s36, 0xffffff00
      s_bfe_u32 s38, s2, 0x20003
      s_lshl_b32 s38, s38, 14
      v_lshlrev_b32 v203, 6, v0
      v_add_u32 v203, s38, v203
      v_min_u32 v203, L_code_end - L_code_ref, v203
      global_load_dword v204, v203, s[36:37]
      """)
    a(f"""
    s_lshl_b32 s36, s2, 2
    s_add_u32 s36, s36, s{sWAVE}
    s_cmp_lg_u32 s36, 1
    s_cbranch_scc1 L_p1
    v_mov_b32 v199, 1
    v_and_b32 v200, 31, v0
    v_lshlrev_b32 v200, 7, v200
    v_mov_b32 v201, 0
    s_mov_b32 s36, {WS_DONE}
    buffer_store_dword v201, v200, {S_WS}, s36 offen sc1
    v_mov_b32 v200, {D_RST}
    s_waitcnt vmcnt(0)
    s_mov_b64 exec, 1
    buffer_atomic_add v199, v200, {S_DBG}, 0 offen
    s_mov_b64 exec, -1
    L_p1:
    """)
    def late(a):
        L = a.uid("LT")
        a(f"""
        s_mov_b64 exec, 1
        v_mov_b32 v200, {D_RST}
        s_cmp_eq_u32 s{k1.sDG}, 3
        s_cselect_b32 s36, 0, s{sWAVE}
        s_cmp_eq_u32 s36, 0
        s_cselect_b32 s36, 0, {OOB}
        buffer_load_dword v201, v200, {S_DBG}, s36 offen sc1
        s_cmp_eq_u32 s{sWAVE}, 1
        s_cbranch_scc1 {L}
        s_mov_b32 s36, {OOB}
        buffer_load_dword v202, v200, {S_DBG}, s36 offen sc1
        s_branch {L}_e
        {L}:
        s_movk_i32 s36, {D_TICK}
        s_cmp_eq_u32 s18, {o.team_xcc}
        s_cselect_b32 s36, {D_TEAM}, s36
        v_mov_b32 v203, s36
        v_mov_b32 v202, 1
        buffer_atomic_add v202, v203, {S_DBG}, 0 offen sc0
        {L}_e:
        s_mov_b64 exec, -1
        """)
    a("s_and_b32 s19, s2, 4\n s_cbranch_scc1 L_doB")
    k1.products(a, 'A', 2, 80, late)
    a("s_branch L_tile_done\n L_doB:")
    if o.bwait:
        a(f"s_cmp_lg_u32 s{sWAVE}, 0\n s_cbranch_scc1 L_e1\n s_mov_b64 exec, 1")
        team.dbg_wait(a, "L_e0", D_RST, 1, 200, "sc1")
        a("s_mov_b64 exec, -1\n L_e1:\n s_barrier")
    k1.products(a, 'B', 2, 80, late)
    a("L_tile_done:")
    a(f"""
    s_waitcnt vmcnt(0)
    s_mov_b64 exec, 1
    s_cmp_ge_u32 s{k1.sBLK}, 14
    s_cbranch_scc1 L_rst_ok
    v_cmp_eq_u32 vcc, 0, v201
    s_cbranch_vccz L_rst_ok
    s_cmp_eq_u32 s{k1.sDG}, 3
    s_cselect_b32 s36, 0, s{sWAVE}
    s_cmp_lg_u32 s36, 0
    s_cbranch_scc1 L_rst_ok
    """)
    team.dbg_wait(a, "L_rst", D_RST, 1, 2)
    k1.signal(a, "KS", 19)
    a(f"""
    v_mbcnt_lo_u32_b32 v0, -1, 0
    v_mbcnt_hi_u32_b32 v0, -1, v0
    v_mov_b32 v3, {L_BC}
    s_cmp_lg_u32 s{sWAVE}, 1
    s_cbranch_scc1 L_p4
    s_mov_b64 exec, 1
    ds_write_b32 v3, v202
    s_waitcnt lgkmcnt(0)
    s_mov_b64 exec, -1
    L_p4:
    s_barrier
    ds_read_b32 v1, v3
    s_waitcnt lgkmcnt(0)
    v_readfirstlane_b32 s{sROLE}, v1
    s_barrier
    """)
    tstamp(a, 3, sWAVE); tflush(a, sWAVE); dstamp(a, 4, sWAVE, few=True)
    a(f"""
    s_cmp_lg_u32 s18, {o.team_xcc}
    s_cbranch_scc1 L_have
    s_and_b32 s{sROLE}, s{sROLE}, 0xffff
    s_cmp_lt_u32 s{sROLE}, 32
    s_cbranch_scc1 L_team
    s_branch L_next
    L_next_free:
    """)
    bc_atomic(a, "L_t1", D_TEAM, 0)
    a(f"s_and_b32 s{sROLE}, s{sROLE}, 0xffff\n s_cmp_ge_u32 s{sROLE}, 32\n s_cbranch_scc1 L_next")
    bc_atomic(a, "L_t2", D_TEAM, 0x10001)
    a(f"""
    s_and_b32 s{sROLE}, s{sROLE}, 0xffff
    s_cmp_lt_u32 s{sROLE}, 32
    s_cbranch_scc1 L_team
    L_next:
    """)
    tstamp(a, 7, sWAVE); dstamp(a, 10, sWAVE)
    bc_atomic(a, "L_t3", D_TICK, 1)
    a("L_have:")
    if DIAG['on']: a(f"s_cmp_ge_u32 s{sROLE}, {T_END}\n s_cbranch_scc1 L_exit")
    tstamp(a, 5, sWAVE); tstamp(a, 8, sWAVE, extra=f"s{sROLE}")
    for lab, lo, hi in (("GB", T_TB, T_TA), ("GA", T_TA, T_TH), ("GH", T_TH, T_TU), ("TU", T_TU, T_O1), ("O1", T_O1, T_O2), ("O2", T_O2, T_END)):
        a(f"s_cmp_lt_u32 s{sROLE}, {hi - lo}\n s_cbranch_scc1 {lab}_entry\n s_sub_u32 s{sROLE}, s{sROLE}, {hi - lo}")
    a("L_exit:\n s_endpgm\n L_team_done:")
    dstamp(a, 9, sWAVE, tmp=(56, 57))
    if DIAG['on']:
        tstamp(a, 7, sWAVE, tmp=(56, 57))
        a(f"""
        s_cmp_lg_u32 s17, 3
        s_cbranch_scc1 L_exit
        s_lshl_b32 s36, s16, 14
        s_add_u32 s36, s36, {WS_DIAG + 65536 + 3*4096}
        v_lshrrev_b32 v28, 2, v0
        """)
        for i in range(10): a(f"buffer_store_dword v{160+i}, v28, s[4:7], s36 offen offset:{256*i}")
        a("v_mov_b32 v28, s56\n v_mov_b32 v29, s57\n v_mov_b32 v30, s58\n v_mov_b32 v31, 0")
        a("v_mov_b32 v32, 0\n buffer_store_dwordx4 v[28:31], v32, s[4:7], s36 offen offset:2560")
    a("s_endpgm")
    a(f"L_side:\n s_cmp_ge_u32 s{sWAVE}, 2\n s_cbranch_scc1 L_side_e")
    k1.side_job(a, 76, 70)
    a("L_side_e:\n s_barrier\n s_cmp_eq_u32 s21, 0\n s_cbranch_scc1 GB_go\n s_branch GA_go")
    gw(a, 'B'); gw(a, 'A'); gw(a, 'H'); tu(a); o1(a); o2(a)
    a("L_team:")
    tstamp(a, 5, sWAVE); tstamp(a, 8, sWAVE, extra="1000")
    team.team_body(a, o)
    a("L_code_end:\n s_endpgm\n .fill 2048, 4, 0xbf810000      ; the look-ahead above may read past the last loop")
```

```python
from asmlib import *
from layout import *

L_M, L_Y, L_UM, L_MISC, L_S, L_B0, L_X, L_X2, L_B1 = 0, 8192, 12288, 16384, 16640, 18432, 0xc000, 0x10000, 0x13800
TEAM_LDS = L_B1 + 30720
SM = "v_smfmac_f32_16x16x64_bf16"
S_WS, S_X, S_DBG = "s[4:7]", "s[8:11]", "s[12:15]"
sRANK, sWAVE, sH, sJ, sSTEP, sCT = 16, 17, 18, 19, 20, 21
sFL, sMODE = 22, 23
sCUR, sNXT, sPRV, sPP = 24, 25, 26, 27
sVO, sXO, sCN, sMO, sBUD = 30, 31, 32, 33, 35
sT0, sT1, sT2, sT3 = 36, 37, 38, 39
sM1, sXT, sXL = 45, 47, 46
OOB = 0x7ff00000
D_GO = 192
SCALE = 0x3db8aa3b
sSC = 44
XSTEP = 32*896

class Opt:
    def __init__(self, **kw):
        self.trace = None; self.diag = True
        self.nsteps = 63
        self.kf = 3; self.nf1 = 5; self.nf = 5; self.ns = 5; self.f2pos = 0; self.kgo = 3; self.nxa = 14; self.kfirst = 0; self.rlate = 1; self.dum = 1; self.d2 = 0; self.funr = 2; self.nv0 = 11; self.b0p = 2
        self.sleep = 4; self.cpf = 0; self.sst = 2; self.b1a = 2; self.p1 = 1; self.ne = 6; self.pw = 2; self.sdup = 1; self.pk = 1; self.kp = -1; self.pp = [3]; self.by = 1; self.outf = ''; self.tlb = 1; self.bwait = 1; self.gate = True; self.budget = 2000000; self.team_xcc = 0
        self.__dict__.update(kw)

def nops(a, n):
    while n > 0:
        k = min(n, 16); a(f"s_nop {k-1}"); n -= k

def load_regs(a, regs, soff, vaddr="v0", fl=" sc1"):
    for i, r in enumerate(regs):
        if i and i % 4 == 0: a(f"s_add_u32 s{soff}, s{soff}, 4096")
        a(f"buffer_load_dwordx4 {v(r,4)}, {vaddr}, {S_WS}, s{soff} offen offset:{(i%4)*1024}{fl}")

TR_S, TR_V3 = 84, 160
def stamp(a, o, kind, pt):
    if o.trace and pt in o.trace.get(kind, []):
        i = o.trace[kind].index(pt)
        a(f"s_memtime s[{TR_S+2*i}:{TR_S+2*i+1}]")
def stamp_flush(a, o, kind, w=None):
    if not o.trace or kind not in o.trace: return
    n = len(o.trace[kind])
    a(f"s_memtime s[52:53]\n s_memrealtime s[50:51]\n s_mov_b32 m0, s{sSTEP}\n s_waitcnt lgkmcnt(0)")
    if kind == 'y':
        a(f"s_lshl_b32 s50, s{sRANK}, 2\n s_add_u32 s50, s50, {w}\n s_lshl_b32 s50, s50, 12\n s_lshl_b32 s51, s{sSTEP}, 2\n s_add_u32 s50, s50, s51\n s_add_u32 s50, s50, {WS_DIAG + 65536}\n v_mov_b32 v62, 0")
        for i in range(n): a(f"v_mov_b32 v63, s{TR_S+2*i}\n buffer_store_dword v63, v62, {S_WS}, s50 offen offset:{256*i}")
        return
    for i in range(n): a(f"v_writelane_b32 v{TR_V3+i}, s{TR_S+2*i}, m0")
    a(f"v_writelane_b32 v{TR_V3+8}, s52, m0\n v_writelane_b32 v{TR_V3+9}, s50, m0")
def count(a, o, r):
    if o.diag: a(f"s_add_u32 s{r}, s{r}, 1")

def ring_advance(a):
    a(f"""
    s_mov_b32 s{sPRV}, s{sCUR}
    s_mov_b32 s{sCUR}, s{sNXT}
    s_add_u32 s{sNXT}, s{sNXT}, 0x10000
    s_and_b32 s{sNXT}, s{sNXT}, {WS_RING | 0x30000}
    """)

def x_dma(a, lo=0, hi=14):
    for q in range(lo, hi):
        if (q - lo) % 4 == 0: a(f"s_add_u32 m0, s{sXL}, {q*1024}\n s_add_u32 s{sT2}, s{sXO}, {q*1024}")
        a(f"buffer_load_dwordx4 v0, {S_WS}, s{sT2} offen offset:{((q-lo)%4)*1024} sc1 lds")
    a(f"s_add_u32 s{sXO}, s{sXO}, {XSTEP}\n s_xor_b32 s{sXL}, s{sXL}, 0x1c000")

def budget_check(a):
    a(f"s_sub_u32 s{sBUD}, s{sBUD}, 1\n s_cmp_eq_u32 s{sBUD}, 0\n s_cbranch_scc1 L_team_done")

def flag_poll(a, o, P, regs, vaddr, off, s_want, pre=()):
    n = len(regs)
    a("s_mov_b64 exec, 0xff")
    def body(i, wait=True):
        a(f"buffer_load_dword v{regs[i]}, {vaddr}, {S_WS}, s{sFL} offen offset:{off} sc1")
        if wait: a(f"s_waitcnt vmcnt({n-1})")
        a(f"v_cmp_ne_u32 vcc, s{s_want}, v{regs[(i+1)%n]}")
        a(f"s_cbranch_vccz {P}_fok")
    if pre:
        for i in range(n-1):
            a(f"buffer_load_dword v{regs[i]}, {vaddr}, {S_WS}, s{sFL} offen offset:{off} sc1")
            k = i - (n - 1 - len(pre))
            if k >= 0: a(f"s_waitcnt vmcnt({len(pre) - 1 - k + 1 + i + 1})")
            a(f"v_cmp_ne_u32 vcc, s{s_want}, v{pre[max(k, 0)] if k >= 0 else regs[i+1]}")
            a(f"s_cbranch_vccz {P}_fok")
    else:
        for i in range(n-1): body(i, False)
    body(n-1)
    a(f"{P}_fpoll:")
    for _ in range(o.funr):
        for i in range(n): body(i)
    a(f"s_sub_u32 s{sBUD}, s{sBUD}, 1\n s_cmp_lg_u32 s{sBUD}, 0\n s_cbranch_scc1 {P}_fpoll\n s_branch L_team_done")
    a(f"{P}_fok:")
    a("s_mov_b64 exec, -1")

KORD = (0, 1, 2, 6, 3, 4, 5)

def ywave(a, o, w):
    P = f"Y{w}"
    D, M, T = 12, 28, 8
    Aop = lambda t, k: 256 + (t*7 + k)*8
    def Bop(hh, k):
        i = hh*7 + k
        return 256 + 224 + i*8 if i < 4 else 64 + (i-4)*8
    def lds_wait(L, level):
        a(f"""
        v_mov_b32 v57, {L_MISC + 128}
        {L}:
        ds_read_b32 v56, v57
        s_waitcnt lgkmcnt(0)
        v_cmp_gt_u32 vcc, {level}, v56
        s_cbranch_vccz {L}_ok
        s_sleep 1
        s_sub_u32 s{sBUD}, s{sBUD}, 1
        s_cmp_lg_u32 s{sBUD}, 0
        s_cbranch_scc1 {L}
        s_branch L_team_done
        {L}_ok:
        """)
    lds_wait(f"{P}_wa", 1)
    if w == 0: tstamp(a, 4, sWAVE, tmp=(56, 57)); dstamp(a, 5, sWAVE, tmp=(56, 57))
    a(f"s_mul_i32 s{sT0}, s{sRANK}, {A_RANK}\n s_add_u32 s{sT0}, s{sT0}, {WS_A + w*4*7*2048}")
    load_regs(a, [Aop(t,k)+4*hf for t in range(4) for k in range(7) for hf in range(2)], sT0)
    lds_wait(f"{P}_wb", 2)
    if w == 0: dstamp(a, 11, sWAVE, tmp=(56, 57))
    a(f"s_mul_i32 s{sT0}, s{sCT}, {B_CT}\n s_add_u32 s{sT0}, s{sT0}, {WS_B + w*4*7*2048}")
    load_regs(a, [Bop(h,k)+4*hf for h in range(4) for k in range(7) for hf in range(2)][:54 if w < 2 else 56], sT0)
    if w < 2:
        for q in range(30):
            if q % 4 == 0:
                a(f"s_mul_i32 s{sT0}, s{sCT}, {B_CT}\n s_add_u32 s{sT0}, s{sT0}, {WS_B + ((12+2*w)*14 + q if q < 28 else (4*w+3)*14 + 12)*1024}\n s_mov_b32 m0, {(L_B0, L_B1)[w] + q*1024}\n s_nop 0")
            a(f"buffer_load_dwordx4 v0, {S_WS}, s{sT0} offen offset:{(q%4)*1024} sc1 lds")
    y_addr(a, w)
    a(f"""
    v_lshrrev_b32 v63, 1, v62
    v_lshlrev_b32 v6, 8, v63
    v_lshl_add_u32 v6, v61, 4, v6
    v_and_b32 v63, 1, v62
    v_lshl_add_u32 v6, v63, 3, v6
    v_add_u32 v6, {L_UM + w*1024}, v6
    v_add_u32 v7, {(L_B0, L_B1, 0)[w]}, v0
    v_mov_b32 v4, {L_MISC + 64}
    v_and_b32 v2, 31, v60
    v_lshlrev_b32 v2, 2, v2
    """)
    a(f"s_mul_i32 s{sXO}, s{sJ}, 14336\n s_add_u32 s{sXO}, s{sXO}, {WS_XP}\n s_mov_b32 s{sXL}, {L_X}")
    if w == 2:
        lds_wait(f"{P}_ws", 3)
        x_dma(a)
        if o.tlb:
            a(f"v_min_u32 v56, 14, v60\n v_lshlrev_b32 v56, 21, v56\n s_mov_b32 s{sT0}, {WS_VO}\n buffer_load_dword v57, v56, {S_WS}, s{sT0} offen sc1")
        a(f"v_lshlrev_b32 v56, 16, v62\n v_lshl_add_u32 v56, v61, 4, v56\n s_mul_i32 s{sT0}, s{sRANK}, 1280\n s_add_u32 s{sT0}, s{sT0}, {WS_RING}")
        for k in range(5): a(f"buffer_load_dwordx4 v[12:15], v56, {S_WS}, s{sT0} offen offset:{256*k} sc1")
    team_sync(a, o, P, w)
    pc = (w - max(o.b1a, 0)) % 3
    FRG = [56, 57, 58, 59, 60, 61, 62, 63, 8, 9, 10, 11][:o.nf1]
    def steps(P, ST):
        a(f"{P}_loop:")
        a(f"s_add_u32 s{sM1}, s{sCUR}, {pc*1024}")
        for r in range(16): a(f"v_mov_b32 v{D+r}, 0")
        if w == o.pw:
            a(f"s_mul_i32 s{sT3}, s{sSTEP}, 0x01010101")
            for r in FRG[1:]: a(f"v_mov_b32 v{r}, -1")
        if w == 1 and DBGT['on']:
            for st, word in ((4, 7), (32, 8)):
                L = a.uid("DT"); a(f"s_cmp_lg_u32 s{sSTEP}, {st}\n s_cbranch_scc1 {L}"); dstamp(a, word, sWAVE, tmp=(56, 57), wave=1); a(f"{L}:")
        second = w == 1 and o.nxa < 14
        if w == o.pw or second:
            a(f"""
            {P}_go:
            ds_read_b32 v56, v4
            s_waitcnt lgkmcnt(0)
            v_cmp_gt_u32 vcc, s{sSTEP}, v56
            s_cbranch_vccz {P}_go_ok
            s_sub_u32 s{sBUD}, s{sBUD}, 1
            s_cmp_lg_u32 s{sBUD}, 0
            s_cbranch_scc1 {P}_go
            s_branch L_team_done
            {P}_go_ok:
            """)
        if second: x_dma(a, o.nxa, 14)
        if w != o.pw: a("s_waitcnt vmcnt(0)")
        a(f"s_mov_b32 m0, {L_M + pc*1024}")
        if w == o.pw: flag_poll(a, o, P, FRG, "v2", 0, sT3)
        early = w == o.pw == o.b1a
        if early: a(f"buffer_load_dwordx4 v0, {S_WS}, s{sM1} offen sc1 lds")
        a("s_barrier   ; B0")
        stamp(a, o, 'y', 0)
        if o.p1 and w != o.b1a and o.pw != o.b1a: nops(a, o.p1)
        if not early: a(f"buffer_load_dwordx4 v0, {S_WS}, s{sM1} offen sc1 lds")
        a("s_barrier   ; B0'")
        a(f"buffer_load_dwordx4 v0, {S_WS}, s{sM1} offen offset:3072 sc1 lds")
        nx = 0
        sm = lambda t, k: a(f"{SM} {v(D+4*t,4)}, {v(M+4*k,4)}, {v(Aop(t,k),8)}, v1")
        mread = lambda k: a(f"ds_read_b128 {v(M+4*k,4)}, v0 offset:{L_M + 1024*k}")
        if o.b1a >= 0:
            if w == o.b1a: a(f"s_waitcnt vmcnt({1+nx})")
            a("s_barrier   ; B1a"); mread(KORD[0])
        a(f"s_waitcnt vmcnt({1+nx})")
        stamp(a, o, 'y', 11)
        a("s_barrier   ; B1")
        for k in KORD[1 if o.b1a >= 0 else 0:4]: mread(k)
        a("s_waitcnt lgkmcnt(3)")
        stamp(a, o, 'y', 12)
        sm(0,0); sm(1,0); sm(2,0)
        a(f"s_waitcnt vmcnt({nx})\n s_barrier   ; B1'")
        sm(3,0)
        for k in KORD[4:]: mread(k)
        a(f"{P}_y:")
        a("s_waitcnt lgkmcnt(5)")
        sm(0,1); sm(1,1); sm(2,1); sm(3,1)
        for n, k in enumerate(KORD[2:]):
            a(f"s_waitcnt lgkmcnt({4-n})"); sm(0,k); sm(1,k)
        sm(2,2); a("s_nop 1"); sm(3,2); a("s_nop 1"); sm(2,6)
        a(f"v_add_f32 v{D}, v{D}, v{D+1}\n v_add_f32 v{D+2}, v{D+2}, v{D+3}")
        sm(3,6)
        a(f"v_add_f32 v{D+4}, v{D+4}, v{D+5}\n v_add_f32 v{D+6}, v{D+6}, v{D+7}")
        sm(2,3)
        a(f"v_cmp_u_f32 vcc, v{D}, v{D+2}")
        a(f"v_cvt_pk_bf16_f32 v{T}, v{D}, v{D+4}")
        sm(3,3)
        a(f"v_cvt_pk_bf16_f32 v{T+1}, v{D+2}, v{D+6}")
        a(f"ds_write2_b32 v3, v{T}, v{T+1} offset0:0 offset1:8")
        z = [f"v_mov_b32 v{D+r}, 0" for r in range(8)]
        if o.by == 0:
            sm(2,4); a(z[0]); a(z[1]); sm(3,4); a(z[2]); a(z[3]); sm(2,5); a(z[4]); a(z[5]); sm(3,5)
            stamp(a, o, 'y', 15)
            a(z[6]); a("s_waitcnt lgkmcnt(0)\n s_barrier   ; B1y"); a(z[7])
            a("s_nop 1")
        else:
            sm(2,4); a(z[0]); a(z[1]); sm(3,4); a(z[2]); a(z[3]); sm(2,5); a("s_waitcnt lgkmcnt(0)\n s_barrier   ; B1y"); sm(3,5)
            stamp(a, o, 'y', 15)
            for l in z[4:]: a(l)
            a("s_nop 1")
        a(f"v_add_f32 v{D+8}, v{D+8}, v{D+9}\n v_add_f32 v{D+10}, v{D+10}, v{D+11}")
        a(f"v_add_f32 v{D+12}, v{D+12}, v{D+13}\n v_add_f32 v{D+14}, v{D+14}, v{D+15}")
        a(f"v_cvt_pk_bf16_f32 v{T+2}, v{D+8}, v{D+12}")
        a(f"v_cvt_pk_bf16_f32 v{T+3}, v{D+10}, v{D+14}")
        a(f"ds_write2_b32 v5, v{T+2}, v{T+3} offset0:0 offset1:8")
        a(f"s_cbranch_vccnz {P}_fail")
        a(f"{P}_yok:")
        for r in range(8, 16): a(f"v_mov_b32 v{D+r}, 0")
        a("s_waitcnt lgkmcnt(0)")
        stamp(a, o, 'y', 16)
        a("s_barrier   ; B2")
        if w < 2: mb_six(a, D, M, T, Bop, w)
        else: mb_four(a, D, M, T, Bop)
        a("s_waitcnt lgkmcnt(0)")
        stamp(a, o, 'y', 4)
        a("s_barrier   ; B3")
        if w == 2: x_dma(a, 0, o.nxa)
        stamp_flush(a, o, 'y', w)
        ring_advance(a)
        a(f"s_add_u32 s{sSTEP}, s{sSTEP}, 1\n s_cmp_lt_u32 s{sSTEP}, {o.nsteps}\n s_cbranch_scc1 {P}_loop")
        a(f"s_branch L_team_done")
        a(f"{P}_fail:")
        m_exact(a, P, M, 56)
        a("s_waitcnt vmcnt(1) lgkmcnt(0)".replace("vmcnt(1) ", ""))
        budget_check(a)
        for r in range(16): a(f"v_mov_b32 v{D+r}, 0")
        count(a, o, 56)
        a(f"s_mov_b32 m0, {L_M + pc*1024}\n s_barrier")
        a(f"buffer_load_dwordx4 v0, {S_WS}, s{sM1} offen sc1 lds")
        a(f"buffer_load_dwordx4 v0, {S_WS}, s{sM1} offen offset:3072 sc1 lds")
        a("s_waitcnt vmcnt(0)\n s_barrier")
        for k in KORD: mread(k)
        a("s_waitcnt lgkmcnt(6)")
        sm(0,0); sm(1,0); sm(2,0); sm(3,0)
        a(f"s_branch {P}_y")
    both_modes(a, P, steps)

def m_exact(a, P, M, t):
    a(f"v_max_u32 v{t}, v{M}, v{M+1}")
    for r in range(M+2, M+28, 2): a(f"v_max3_u32 v{t}, v{t}, v{r}, v{r+1}")
    a(f"v_cmp_eq_u32 vcc, -1, v{t}\n s_cbranch_vccz {P}_yok")

epi = lambda d, t: [f"v_add_f32 v{d}, v{d}, v{d+1}", f"v_add_f32 v{d+2}, v{d+2}, v{d+3}", f"v_cvt_pk_bf16_f32 v{t}, v{d}, v{d+2}"]

def mb_four(a, D, M, T, Bop):
    pend = []
    for hh in range(4):
        for k in range(7):
            a(f"{SM} {v(D+4*hh,4)}, {v(M+4*k,4)}, {v(Bop(hh,k),8)}, v1")
            if pend and k >= 4:
                if k == 4: a("s_nop 2")
                a(pend.pop(0))
        pend = epi(D + 4*hh, T + hh)
    a("s_nop 7")
    for l in pend: a(l)
    a(f"ds_write_b64 v6, {v(T,2)}")
    a(f"ds_write_b64 v6, {v(T+2,2)} offset:512")

def mb_six(a, D, M, T, Bop, w):
    SB = [56, Bop(3,6)]
    nxt = [0]; q = []
    def fetch():
        i = nxt[0]
        if i >= 15: return
        nxt[0] += 1
        a(f"ds_read_b128 {v(SB[i%2],4)}, v7 offset:{i*2048}")
        a(f"ds_read_b128 {v(SB[i%2]+4,4)}, v7 offset:{i*2048 + 1024}")
        q.extend([("f", i)]*2)
    def need(tag):
        if tag in q:
            last = len(q) - 1 - q[::-1].index(tag)
            a(f"s_waitcnt lgkmcnt({len(q)-1-last})"); del q[:last+1]
    sm = lambda d, k, b: a(f"{SM} {v(d,4)}, {v(M+4*k,4)}, {v(b,8)}, v1")
    for k in range(7):
        sm(D+12, k, Bop(2,k))
        if k in (4, 5): fetch()
    for k in range(7):
        sm(D, k, Bop(0,k)); sm(D+4, k, Bop(1,k))
        need(("f", k)); sm(D+8, k, SB[k%2]); fetch()
        if k == 2:
            for l in epi(D+12, T+2): a(l)
            for r in range(4): a(f"v_mov_b32 v{D+12+r}, 0")
    fill = ["s_nop 3"] + epi(D, T) + epi(D+4, T+1) + [f"v_mov_b32 v{D+r}, 0" for r in range(4)] + [f"ds_write_b64 v6, {v(T,2)}"] + epi(D+8, T)
    for k in range(6):
        sm(D+12, k, Bop(3,k))
        for _ in range(3):
            if fill:
                l = fill.pop(0); a(l)
                if l.startswith("ds_"): q.append("w")
    assert not fill
    for k in range(7):
        need(("f", 7+k)); sm(D, k, SB[(7+k)%2]); fetch()
    need(("f", 14)); sm(D+12, 6, SB[0])
    a("s_nop 6")
    for l in epi(D, T+1) + epi(D+12, T+3): a(l)
    a(f"ds_write_b64 v6, {v(T,2)} offset:{3072 - 512*w}")
    a(f"ds_write_b64 v6, {v(T+2,2)} offset:512")

def y_addr(a, w):
    a(f"""
    v_lshrrev_b32 v63, 3, v61
    v_lshlrev_b32 v3, 8, v63
    v_lshl_add_u32 v3, v62, 6, v3
    v_bfe_u32 v63, v61, 1, 1
    v_lshl_add_u32 v3, v63, 4, v3
    v_bfe_u32 v63, v61, 2, 1
    v_lshl_add_u32 v3, v63, 3, v3
    v_and_b32 v63, 1, v61
    v_lshl_add_u32 v3, v63, 2, v3
    v_add_u32 v3, {L_Y + (w*512 if w < 3 else 3584)}, v3
    """)
    if w < 3: a("v_add_u32 v5, 2048, v3")

def dbg_wait(a, L, off, need, t, fl="sc0 sc1"):
    a(f"""
    v_mov_b32 v{t+1}, {off}
    {L}:
    buffer_load_dword v{t}, v{t+1}, {S_DBG}, 0 offen {fl}
    s_waitcnt vmcnt(0)
    v_readfirstlane_b32 s{sT0}, v{t}
    s_and_b32 s{sT1}, s{sT0}, 0xffff
    s_cmp_ge_u32 s{sT1}, {need}
    s_cbranch_scc1 {L}_ok
    s_sub_u32 s{sBUD}, s{sBUD}, 1
    s_cmp_lg_u32 s{sBUD}, 0
    s_cbranch_scc1 {L}
    s_branch L_team_done
    {L}_ok:
    """)

def wait_done(a, what, t0, t1, dead, sleep=""):
    L = a.uid("WD"); first, n, need = {'A': (0, 4, 64), 'B': (4, 4, 64), 'S': (8, 2, 64), 'a': (0, 1, 64)}[what]
    a(f"""
    v_mbcnt_lo_u32_b32 v{t1}, -1, 0
    v_and_b32 v{t1}, {n-1}, v{t1}
    v_lshlrev_b32 v{t1}, 7, v{t1}
    s_mov_b32 s41, {WS_DONE + first*128}
    {f's_lshr_b32 s40, s{sH}, 2' if what == 'a' else ''}
    {f's_lshl_b32 s40, s40, 7' if what == 'a' else ''}
    {f's_add_u32 s41, s41, s40' if what == 'a' else ''}
    s_mov_b64 exec, {(1 << n) - 1}
    {L}:
    buffer_load_dword v{t0}, v{t1}, {S_WS}, s41 offen sc1
    s_waitcnt vmcnt(0)
    v_cmp_gt_u32 vcc, {hex(need)}, v{t0}
    s_cbranch_vccz {L}_ok
    {sleep}
    s_sub_u32 s{sBUD}, s{sBUD}, 1
    s_cmp_lg_u32 s{sBUD}, 0
    s_cbranch_scc1 {L}
    s_branch {dead}
    {L}_ok:
    s_mov_b64 exec, -1
    """)

def team_sync(a, o, P, w):
    a("s_waitcnt vmcnt(0) lgkmcnt(0)")
    if w == 0: tstamp(a, 9, sWAVE, tmp=(56, 57))
    if w == 1:
        a(f"s_cmp_lg_u32 s{sRANK}, 0\n s_cbranch_scc1 {P}_nogo\n v_mov_b32 v56, 1\n v_mov_b32 v57, {D_GO}\n buffer_store_dword v56, v57, {S_DBG}, 0 offen sc1\n {P}_nogo:")
    a("s_barrier")
    if w < 3: a(f"v_mov_b32 v58, {L_MISC}\n ds_read_b32 v58, v58\n s_waitcnt lgkmcnt(0)\n v_readfirstlane_b32 s{sMODE}, v58")
    if w == 0: tstamp(a, 6, sWAVE, tmp=(56, 57)); dstamp(a, 6, sWAVE, tmp=(56, 57))

def both_modes(a, P, steps):
    a(f"s_cmp_lg_u32 s{sMODE}, 0\n s_cbranch_scc1 {P}_far")
    steps(P, "")
    a(f"{P}_far:")
    steps(P + "f", " sc1")

def wave3(a, o):
    P = "W3"
    DY, DS, M, NEG = 12, 20, 32, 60
    EX, SC, OWN, PR, FR = 64, 68, 76, 96, 136
    vFA, vFS, vST, vXT, vXD, vSG, vPA, vMO, vMA, vCN = 142, 143, 144, 145, 146, 147, 148, 157, 158, 159
    vSX, vS0, vL0, vK0, vK1, vVA, vZ, DP, YO, KM, SET = 170, 171, 172, 173, 174, 176, 184, 188, 192, 208, 236
    vGO, vKX = 185, 186
    U, KX = 256 + 112, 256 + 192
    Aop = lambda t, k: 256 + (t*7 + k)*8
    def watch(level, what):
        wait_done(a, what, 56, 57, "L_team_done", "s_sleep 4" if what == 'S' else "")
        a(f"v_mov_b32 v56, {level}\n v_mov_b32 v57, {L_MISC + 128}\n ds_write_b32 v57, v56")
    watch(1, 'a')
    a("s_mov_b64 exec, 1")
    dbg_wait(a, "W3_seats", 0, 32, 56)
    a(f"s_mov_b64 exec, -1\n s_lshr_b32 s{sMODE}, s{sT0}, 16\n v_mov_b32 v56, s{sMODE}\n v_mov_b32 v57, {L_MISC}\n ds_write_b32 v57, v56")
    y_addr(a, 3)
    for k in range(8):
        a(f"s_add_u32 s{sT0}, s{sRANK}, {k}\n s_and_b32 s{sT0}, s{sT0}, 7")
        a(f"s_lshl_b32 s{sT1}, s{sT0}, 11\n v_add_u32 v{vVA+k}, s{sT1}, v0")
        a(f"s_lshl_b32 s{sT1}, s{sT0}, 10\n s_add_u32 s{sT1}, s{sT1}, {R_P + 2048}\n v_add_u32 v{vPA+k}, s{sT1}, v0")
    a(f"""
    v_add_u32 v{vPA+8}, {R_P}, v0
    v_add_u32 v{vKX}, {L_X}, v0
    v_and_b32 v{vK0}, 7, v61
    v_lshlrev_b32 v{vK0}, 5, v{vK0}
    v_lshrrev_b32 v63, 1, v62
    v_lshl_add_u32 v{vK0}, v63, 8, v{vK0}
    v_and_b32 v63, 1, v62
    v_lshl_add_u32 v{vK0}, v63, 3, v{vK0}
    s_mul_i32 s{sT0}, s{sJ}, {14*256}
    v_add_u32 v{vK0}, s{sT0}, v{vK0}
    v_add_u32 v{vK1}, 2048, v{vK0}
    v_mul_u32_u24 v6, 320, v63
    v_lshl_add_u32 v6, v61, 2, v6
    v_lshrrev_b32 v63, 1, v62
    v_cmp_eq_u32 vcc, s{sJ}, v63
    v_cmp_gt_u32 s[40:41], 8, v61
    s_xor_b32 s{sT0}, s{sRANK}, 1
    s_mul_i32 s{sT0}, s{sT0}, 640
    s_add_u32 s{sT0}, s{sT0}, {R_S}
    v_add_u32 v59, s{sT0}, v6
    v_add_u32 v6, {L_S}, v6
    v_mov_b32 v58, {OOB}
    v_mov_b32 v57, {L_S + 1024}
    v_cndmask_b32 v{vSX}, v59, v58, vcc
    v_cndmask_b32 v6, v57, v6, vcc
    v_cndmask_b32 v{vS0}, v58, v{vSX}, s[40:41]
    v_cndmask_b32 v{vL0}, v57, v6, s[40:41]
    v_cmp_gt_u32 vcc, 10, v61
    v_mov_b32 v63, 0x7f800000
    v_mov_b32 v9, 0x42800000
    v_mul_u32_u24 v2, 160, v62
    v_cndmask_b32 v9, v63, v9, vcc
    v_cndmask_b32 v63, 0, v61, vcc
    v_lshl_add_u32 v2, v63, 4, v2
    s_mul_i32 s{sT0}, s{sRANK}, 640
    s_add_u32 s{sT0}, s{sT0}, {R_S}
    v_add_u32 v{vSG}, s{sT0}, v2
    v_add_u32 v2, {L_S}, v2
    v_mov_b32 v63, {L_S + 1536}
    v_cndmask_b32 v2, v63, v2, vcc
    v_mov_b32 v{SC}, 0xf149f2ca
    v_mov_b32 v{SC+1}, 0xf149f2ca
    v_mov_b32 v{SC+2}, 0xf149f2ca
    v_mov_b32 v{SC+3}, 0xf149f2ca
    ds_write_b128 v63, {v(SC,4)}
    v_cndmask_b32 v10, v58, v{vSG}, vcc
    v_lshrrev_b32 v59, 1, v61
    s_lshl_b32 s{sT0}, s{sH}, 2
    s_add_u32 s{sT0}, s{sT0}, 15
    v_add_u32 v59, s{sT0}, v59
    v_mov_b32 v57, s{sH}
    v_cmp_gt_u32 s[40:41], 2, v61
    s_nop 1
    v_cndmask_b32 v59, v59, v57, s[40:41]    ; u
    v_lshrrev_b32 v57, 1, v59
    v_lshlrev_b32 v4, 8, v57
    v_and_b32 v57, 1, v59
    v_lshl_add_u32 v4, v57, 4, v4
    v_and_b32 v57, 1, v61
    v_lshl_add_u32 v4, v57, 3, v4
    v_lshl_add_u32 v4, v62, 5, v4
    s_lshl_b32 s{sT0}, s{sJ}, 7
    s_add_u32 s{sT0}, s{sT0}, {R_P}
    v_add_u32 v4, s{sT0}, v4
    v_cndmask_b32 v4, v58, v4, vcc
    v_cmp_eq_u32 vcc, 0, v60
    s_nop 0
    v_mov_b32 v57, s{sRANK}
    v_cndmask_b32 v{vFS}, v58, v57, vcc
    v_and_b32 v57, 7, v60
    v_lshlrev_b32 v{vFA}, 2, v57
    v_mov_b32 v{vST}, 0
    v_mov_b32 v{vGO}, {L_MISC + 64}
    ds_write_b32 v{vGO}, v{vST}
    v_and_b32 v58, 1, v61
    v_lshl_add_u32 v59, v62, 1, v58
    v_lshlrev_b32 v5, 5, v59
    v_bfe_u32 v57, v61, 1, 1
    v_lshl_add_u32 v5, v57, 4, v5
    v_lshrrev_b32 v57, 2, v61
    v_lshl_add_u32 v5, v57, 2, v5
    s_lshl_b32 s{sT0}, s{sRANK}, 8
    v_add_u32 v5, s{sT0}, v5
    v_lshlrev_b32 v{vMA}, 4, v59
    v_bfe_u32 v57, v61, 3, 1
    v_lshl_add_u32 v{vMA}, v57, 7, v{vMA}
    v_bfe_u32 v57, v61, 1, 2
    v_lshl_add_u32 v{vMA}, v57, 2, v{vMA}
    v_add_u32 v{vMA}, s{sT0}, v{vMA}
    v_mov_b32 v{vZ}, 0
    v_cmp_eq_u32 vcc, 1, v58
    v_mov_b32 v8, 0x01000504
    v_mov_b32 v57, 0x07060302
    v_cndmask_b32 v8, v8, v57, vcc
    v_mul_u32_u24 v59, 896, v59
    v_lshrrev_b32 v57, 1, v61
    v_lshl_add_u32 v59, v57, 2, v59
    s_lshl_b32 s{sT0}, s{sCT}, 5
    v_add_u32 v59, s{sT0}, v59
    buffer_load_dword v{vMO}, v59, s[60:63], 0 offen
    v_min_u32 v{vXT}, 13, v60
    v_lshlrev_b32 v{vXT}, 6, v{vXT}
    s_lshl_b32 s{sT1}, s{sCT}, 14
    s_add_u32 s{sVO}, s{sT1}, {WS_VO}
    s_mul_i32 s{sXT}, s{sRANK}, 896
    s_add_u32 s{sXT}, s{sXT}, {WS_XP + XSTEP}
    s_mov_b32 s{sMO}, {WS_MO}
    s_mov_b32 s{sSC}, {SCALE}
    s_sub_u32 s49, s{sJ}, 1
    s_not_b32 s48, s49
    s_mov_b32 s{sCN}, {WS_CNT + C_VO}
    """)
    if o.dum:
        a(f"s_cmp_lt_u32 s{sRANK}, 28\n s_cbranch_scc1 W3_real")
        for r in list(range(vPA, vPA+9)) + list(range(vVA, vVA+8)): a(f"v_mov_b32 v{r}, {OOB}")
        a("W3_real:")
    for r in range(20): a(f"v_mov_b32 v{DY+r}, 0")
    for r in range(4): a(f"v_mov_b32 v{NEG+r}, -1\n v_mov_b32 v{DP+r}, 0")
    for r in range(6): a(f"v_mov_b32 v{FR+r}, 0")
    a(f"ds_write_b128 v0, {v(DY,4)} offset:{L_Y + 1024}")
    a("s_waitcnt vmcnt(0)")
    def init(P, ST):
        a(f"buffer_store_byte v{vST}, v{vFS}, {S_WS}, s{sFL} offen{ST}")
        a(f"buffer_store_byte v{vST}, v{vFS}, {S_WS}, s{sFL} offen offset:2048{ST}")
        for sl in range(4):
            a(f"s_mov_b32 s{sT0}, {WS_RING + sl*0x10000}")
            a(f"buffer_store_dwordx4 {v(NEG,4)}, v10, {S_WS}, s{sT0} offen{ST}")
            a(f"buffer_store_dwordx2 {v(NEG,2)}, v4, {S_WS}, s{sT0} offen{ST}")
            a(f"buffer_store_dword v{NEG if sl else vMO}, v5, {S_WS}, s{sT0} offen{ST}")
        if not ST: a("s_branch W3_inited")
    both_modes(a, "W3i", init)
    a("W3_inited:")
    a(f"s_waitcnt vmcnt(0)\n s_mov_b64 exec, 1\n v_mov_b32 v56, 1\n v_mov_b32 v57, 64\n buffer_atomic_add v56, v57, {S_DBG}, 0 offen")
    a("s_mov_b64 exec, -1")
    watch(2, 'B'); watch(3, 'S')
    a(f"s_mul_i32 s{sT0}, s{sRANK}, {A_RANK}\n s_add_u32 s{sT0}, s{sT0}, {WS_A + 12*7*2048}")
    load_regs(a, [Aop(t,k)+4*hf for t in range(2) for k in range(7) for hf in range(2)], sT0)
    def vo_wait(L):
        a(f"""
        {L}:
        buffer_load_dword v{vCN}, v{vZ}, {S_WS}, s{sCN} offen sc1
        s_waitcnt vmcnt(0)
        v_cmp_gt_u32 vcc, 56, v{vCN}
        s_cbranch_vccz {L}_ok
        s_sub_u32 s{sBUD}, s{sBUD}, 1
        s_cmp_lg_u32 s{sBUD}, 0
        s_cbranch_scc1 {L}
        s_branch L_team_done
        """)
    a("s_mov_b64 exec, 1")
    dbg_wait(a, "W3_tsync", 64, 32, 56)
    a("s_mov_b64 exec, -1")
    vo_wait("W3_vo0"); a("W3_vo0_ok:")
    a(f"s_add_u32 s{sCN}, s{sCN}, 2048")
    team_sync(a, o, P, 3)
    HORD = (0, 2, 4, 1, 3, 5, 6)
    KT = (KM, KX, KX + 28); KOF = (0, 8, 12, 20)
    def steps(P, ST):
        a(f"s_add_u32 s{sM1}, s{sCUR}, 6144\n s_mov_b32 s{sT3}, 0")
        a(f"{P}_loop:")
        a(f"s_mov_b32 m0, {L_M + 6144}")
        a("s_barrier   ; B0")
        stamp(a, o, 'w3', 0)
        if o.pw != o.b1a: nops(a, o.p1)
        a(f"buffer_load_dwordx4 v0, {S_WS}, s{sM1} offen sc1 lds")
        vq = [f"buffer_store_dword v{vMO}, v{vMA}, {S_WS}, s{sMO} offen sc1",
              f"buffer_load_dword v{vCN}, v{vZ}, {S_WS}, s{sCN} offen sc1",
              f"buffer_load_dword v{vXD}, v{vXT}, {S_WS}, s{sXT} offen sc1"]
        if o.rlate:
            vq += [f"buffer_store_dword v{NEG}, v5, {S_WS}, s{sPRV} offen{ST}", f"buffer_store_dwordx2 {v(NEG,2)}, v4, {S_WS}, s{sPP} offen{ST}",
                   f"buffer_store_dwordx4 {v(NEG,4)}, v10, {S_WS}, s{sPRV} offen{ST}"]
        for k in range(8):
            vq.append(f"buffer_load_dwordx4 {v(U+16+8*k,4)}, v{vVA+k}, {S_WS}, s{sVO} offen sc1")
            vq.append(f"buffer_load_dwordx4 {v(U+20+8*k,4)}, v{vVA+k}, {S_WS}, s{sVO} offen offset:1024 sc1")
        a("s_barrier   ; B0'")
        a(f"s_add_u32 s{sXT}, s{sXT}, {XSTEP}\n s_add_u32 s{sT3}, s{sT3}, 0x01010101\n v_add_u32 v{vST}, 1, v{vST}")
        def keys():
            for kt in range(2):
                for n, hh in enumerate(HORD): a(f"ds_read_b128 {v(KX+28*kt+4*n,4)}, v{vKX} offset:{kt*7168 + hh*1024}")
        if o.kfirst == 1: keys()
        else: nops(a, o.b0p)
        nv = min(o.nv0, len(vq))
        for _ in range(nv): a(vq.pop(0))
        if o.kfirst == 0: keys()
        if o.b1a >= 0: a("s_barrier   ; B1a")
        if o.kfirst == 2: keys()
        a(f"s_waitcnt vmcnt({nv})\n s_barrier   ; B1")
        mread = lambda k: a(f"ds_read_b128 {v(M+4*k,4)}, v0 offset:{L_M + 1024*k}")
        for k in KORD[:4]: mread(k)
        a(f"s_barrier   ; B1'")
        for k in KORD[4:]: mread(k)
        while vq: a(vq.pop(0))
        stamp(a, o, 'w3', 10)
        a(f"{P}_y:")
        for n, k in enumerate(KORD):
            a(f"s_waitcnt lgkmcnt({6-n})" if n < 4 else f"s_waitcnt lgkmcnt(0)" if n == 4 else "")
            a(f"{SM} {v(DY,4)}, {v(M+4*k,4)}, {v(Aop(0,k),8)}, v1")
            a(f"{SM} {v(DY+4,4)}, {v(M+4*k,4)}, {v(Aop(1,k),8)}, v1")
            if n >= 4:
                for hn in range(7)[(n-4)*2 : (n-4)*2 + (2 if n < 6 else 3)]:
                    hh = HORD[hn]; base, off = (vK0, hh*512) if hh < 4 else (vK1, (hh-4)*512)
                    a(f"ds_read2_b64 {v(KM+4*hn,4)}, v{base} offset0:{off//8} offset1:{off//8+2}")
        sets = [SET+4*i for i in range(o.ns)]
        for r in sets[1:]: a(f"v_mov_b32 v{r}, -1")
        nops(a, 5 - o.ns)
        a(f"v_add_f32 v{DY}, v{DY}, v{DY+1}\n v_add_f32 v{DY+2}, v{DY+2}, v{DY+3}")
        a(f"v_cmp_u_f32 vcc, v{DY}, v{DY+2}")
        a(f"v_add_f32 v{DY+4}, v{DY+4}, v{DY+5}\n v_add_f32 v{DY+6}, v{DY+6}, v{DY+7}")
        a(f"v_cvt_pk_bf16_f32 v{DY}, v{DY}, v{DY+4}\n v_cvt_pk_bf16_f32 v{DY+2}, v{DY+2}, v{DY+6}")
        a(f"ds_write2_b32 v3, v{DY}, v{DY+2} offset0:0 offset1:8")
        stamp(a, o, 'w3', 11)
        a("s_barrier   ; B1y")
        a(f"ds_read_b128 {v(YO,4)}, v0 offset:{L_Y}\n ds_read_b128 {v(YO+4,4)}, v0 offset:{L_Y + 1024}")
        a(f"s_cbranch_vccnz {P}_fail")
        a(f"{P}_yok:")
        ssm = lambda kt, st: a(f"{SM} {v(DS+4*kt,4)}, {v(YO+4*st,4)}, {v(KT[kt]+KOF[st],8)}, v1")
        sseq = [(kt, st) for st in range(4) for kt in range(3)]
        a("s_waitcnt lgkmcnt(1)")
        for n, (kt, st) in enumerate(sseq):
            if n == o.ne:
                a("s_barrier   ; B2")
                stamp(a, o, 'w3', 1)
                a(f"ds_read_b128 {v(YO+8,4)}, v0 offset:{L_Y + 2048}\n ds_read_b128 {v(YO+12,4)}, v0 offset:{L_Y + 3072}")
            if kt == 0 and st: a(f"s_waitcnt lgkmcnt({3-st if n >= o.ne else 0})")
            ssm(kt, st)
        a("s_nop 5")
        sst = lambda kt, aa: a(f"buffer_store_dword v{DS + 4*kt + 2*aa}, v{vSX if kt else vS0}, {S_WS}, s{sCUR} offen offset:{(0, 32, 96)[kt] + 160*aa}{ST}")
        sad = lambda kt, aa: a(f"v_add_f32 v{DS + 4*kt + 2*aa}, v{DS + 4*kt + 2*aa}, v{DS + 4*kt + 2*aa + 1}")
        if o.sst == 0:
            for kt in range(3):
                for aa in range(2): sad(kt, aa); sst(kt, aa)
        else:
            for kt in range(3):
                for aa in range(2): sad(kt, aa)
            if o.sst == 2: a("s_mov_b64 exec, s[48:49]")
            for kt in range(3):
                for aa in range(2): sst(kt, aa)
            if o.sst == 2: a("s_mov_b64 exec, -1")
        stamp(a, o, 'w3', 2)
        for kt in range(3):
            o0 = (0, 8, 24)[kt]
            a(f"ds_write2_b32 v{6 if kt else vL0}, v{DS+4*kt}, v{DS+4*kt+2} offset0:{o0} offset1:{o0+40}")
        a(f"ds_read_b128 {v(OWN,4)}, v2")
        for r in range(o.d2, 20): a(f"v_mov_b32 v{DY+r}, 0")
        a("s_waitcnt lgkmcnt(0)")
        for q in range(4): a(f"v_mul_f32 v{OWN+q}, s{sSC}, v{OWN+q}")
        n = o.ns
        f2 = f"buffer_store_byte v{vST}, v{vFS}, {S_WS}, s{sFL} offen offset:2048{ST}"
        cnt = [0]
        def sbody(i, wait):
            a(f"buffer_load_dwordx4 {v(sets[i],4)}, v{vSG}, {S_WS}, s{sCUR} offen sc1")
            extra = 1 if 0 <= cnt[0] - o.kp - 1 < n - 1 and o.kp >= 0 else 0
            if wait: a(f"s_waitcnt vmcnt({n-1+extra})")
            if cnt[0] == o.kp: a(f2)
            cnt[0] += 1
            a(f"v_cmp_eq_u32 vcc, -1, v{sets[(i+1) % n]}\n s_cbranch_vccz {P}_sok{i}")
        for i in range(n-1): sbody(i, False)
        sbody(n-1, True)
        if o.kp >= 0:
            for _ in range(2):
                for i in range(n): sbody(i, True)
        a(f"{P}_spoll:")
        for i in range(n): sbody(i, True)
        count(a, o, 57)
        a(f"s_sub_u32 s{sBUD}, s{sBUD}, 1\n s_cmp_lg_u32 s{sBUD}, 0\n s_cbranch_scc1 {P}_spoll\n s_branch L_team_done")
        def rest():
            a("v_add_f32 v7, v7, v11")
            for k, sh in enumerate((8, 4, 2, 1)):
                if k + 1 == o.f2pos: a(f2 + "\n s_nop 0")
                elif k in o.pp: a(f"buffer_load_dword v{80 + o.pp.index(k)}, v{vFA}, {S_WS}, s{sFL} offen offset:2048 sc1\n s_nop 0")
                else: a("s_nop 1")
                a(f"v_add_f32_dpp v7, v7, v7 row_ror:{sh} row_mask:0xf bank_mask:0xf")
            if o.pk:
                a(f"v_rcp_f32 v74, v7\n s_nop 0")
                a(f"v_pk_mul_f32 {v(SC,2)}, {v(EX,2)}, v[74:75] op_sel_hi:[1,0]\n v_pk_mul_f32 {v(SC+2,2)}, {v(EX+2,2)}, v[74:75] op_sel_hi:[1,0]")
                a(f"v_cvt_pk_bf16_f32 v{SC+4}, v{SC}, v{SC+1}\n v_cvt_pk_bf16_f32 v{SC+5}, v{SC+2}, v{SC+3}")
            else:
                a("v_rcp_f32 v7, v7\n s_nop 0")
                a(f"v_mul_f32 v{SC}, v{EX}, v7\n v_mul_f32 v{SC+1}, v{EX+1}, v7\n v_mul_f32 v{SC+2}, v{EX+2}, v7")
                a(f"v_cvt_pk_bf16_f32 v{SC+4}, v{SC}, v{SC+1}\n v_mul_f32 v{SC+3}, v{EX+3}, v7\n v_cvt_pk_bf16_f32 v{SC+5}, v{SC+2}, v{SC+3}")
            a(f"buffer_store_dwordx2 {v(SC+4,2)}, v4, {S_WS}, s{sCUR} offen{ST}")
        for i in range(n):
            r = sets[(i+1) % n]
            a(f"{P}_sok{i}:")
            stamp(a, o, 'w3', 3)
            if o.f2pos == 0: a(f2)
            for q in range(4): a(f"v_fma_f32 v{SC+q}, v{r+q}, s{sSC}, v{OWN+q}")
            a(f"v_maximum3_f32 v7, |v{SC}|, |v{SC+1}|, |v{SC+2}|")
            a(f"v_exp_f32 v{EX}, v{SC}")
            a(f"v_maximum3_f32 v7, v7, |v{SC+3}|, |v{SC+3}|")
            a(f"v_exp_f32 v{EX+1}, v{SC+1}")
            a(f"v_cmp_nle_f32 vcc, v7, v9")
            a(f"v_exp_f32 v{EX+2}, v{SC+2}\n v_exp_f32 v{EX+3}, v{SC+3}")
            a(f"v_add_f32 v7, v{EX}, v{EX+1}\n v_add_f32 v11, v{EX+2}, v{EX+3}")
            if o.sdup:
                a(f"s_cbranch_vccnz {P}_smax")
                if i == n-1: a(f"{P}_sexp:")
                rest()
                if i != n-1: a(f"s_branch {P}_pub")
            elif i != n-1: a(f"s_cbranch_vccz {P}_sexp\n s_branch {P}_smax")
            else: a(f"s_cbranch_vccnz {P}_smax")
        if not o.sdup:
            a(f"{P}_sexp:"); rest()
        a(f"{P}_pub:")
        stamp(a, o, 'w3', 4)
        order = list(range(2,10)) + [0, 1]
        def pround():
            for k in order:
                if k < 2: a(f"buffer_load_dwordx4 {v(PR+4*k,4)}, v{vPA+8}, {S_WS}, s{sCUR} offen offset:{k*1024} sc1")
                else: a(f"buffer_load_dwordx4 {v(PR+4*k,4)}, v{vPA+k-2}, {S_WS}, s{sCUR} offen sc1")
        flag_poll(a, o, P, list(range(FR, FR+o.nf)), f"v{vFA}", 2048, sT3, [80 + i for i in range(len(o.pp))])
        stamp(a, o, 'w3', 40)
        for r in range(o.d2): a(f"v_mov_b32 v{DY+r}, 0")
        pround()
        if o.kf < 0: a(f"buffer_store_byte v{vST}, v{vFS}, {S_WS}, s{sFL} offen{ST}")
        a("s_barrier   ; B3")
        for q in range(4): a(f"ds_read_b128 {v(U+4*q,4)}, v0 offset:{L_UM + 1024*q}")
        a(f"s_add_u32 s{sVO}, s{sVO}, {VO_STEP}\n s_add_u32 s{sM1}, s{sNXT}, 6144\n s_add_u32 s{sMO}, s{sMO}, 8192")
        a(f"v_cmp_gt_u32 vcc, 56, v{vCN}\n s_cbranch_vccnz {P}_vo\n {P}_vo_ok:\n s_add_u32 s{sCN}, s{sCN}, 2048")
        def pu(first):
            for n, k in enumerate(order):
                a(f"s_waitcnt vmcnt({9-n + (1 if (first and n > o.kf) else 0)})" + (" lgkmcnt(0)" if n == 8 else ""))
                if first: stamp(a, o, 'w3', 50+n)
                a(f"{SM} {v(DP,4)}, {v(PR+4*k,4)}, {v(U+8*k,8)}, v1")
                if first and n == o.kf: a(f"buffer_store_byte v{vST}, v{vFS}, {S_WS}, s{sFL} offen{ST}")
                if first and n == o.kgo: a(f"ds_write_b32 v{vGO}, v{vST}")
        pu(True)
        a("s_nop 7")
        a(f"{P}_pchk:")
        a(f"v_add_f32 v{DP}, v{DP}, v{DP+1}\n v_add_f32 v{DP+2}, v{DP+2}, v{DP+3}")
        a(f"v_cvt_pk_bf16_f32 v7, v{DP}, v{DP+2}")
        a(f"v_cmp_u_f32 vcc, v{DP}, v{DP+2}\n s_nop 0")
        a("v_mov_b32_dpp v11, v7 quad_perm:[1,0,3,2] row_mask:0xf bank_mask:0xf")
        a(f"v_perm_b32 v{vMO}, v7, v11, v8")
        a(f"v_cndmask_b32 v7, v{vMO}, v{NEG}, vcc")
        a(f"buffer_store_dword v7, v5, {S_WS}, s{sNXT} offen{ST}")
        stamp(a, o, 'w3', 5)
        a(f"s_cbranch_vccnz {P}_pfail")
        a(f"{P}_pok:")
        if not o.rlate:
            a(f"buffer_store_dword v{NEG}, v5, {S_WS}, s{sCUR} offen{ST}")
            a(f"buffer_store_dwordx2 {v(NEG,2)}, v4, {S_WS}, s{sPRV} offen{ST}")
            a(f"buffer_store_dwordx4 {v(NEG,4)}, v10, {S_WS}, s{sCUR} offen{ST}")
        a(f"s_mov_b32 s{sPP}, s{sPRV}")
        a(f"v_xor_b32 v{vKX}, 0x1c000, v{vKX}")
        for r in range(4): a(f"v_mov_b32 v{DP+r}, 0")
        stamp_flush(a, o, 'w3')
        ring_advance(a)
        a(f"s_add_u32 s{sSTEP}, s{sSTEP}, 1")
        a(f"s_cmp_lt_u32 s{sSTEP}, {o.nsteps}\n s_cbranch_scc1 {P}_loop")
        a(f"buffer_store_dword v{vMO}, v{vMA}, {S_WS}, s{sMO} offen sc1")
        a("s_branch L_team_done")
        vo_wait(f"{P}_vo")
        a(f"{P}_fail:")
        m_exact(a, P, M, 7)
        a("s_waitcnt lgkmcnt(0)")
        budget_check(a)
        for r in range(8): a(f"v_mov_b32 v{DY+r}, 0")
        count(a, o, 56)
        a(f"s_mov_b32 m0, {L_M + 6144}\n s_barrier")
        a(f"buffer_load_dwordx4 v0, {S_WS}, s{sM1} offen sc1 lds")
        a("s_waitcnt vmcnt(0)\n s_barrier")
        for k in KORD: mread(k)
        a(f"s_branch {P}_y")
        a(f"{P}_smax:")
        r = sets[0]
        a(f"s_waitcnt vmcnt(0)\n buffer_load_dwordx4 {v(r,4)}, v{vSG}, {S_WS}, s{sCUR} offen sc1\n s_waitcnt vmcnt(0)")
        a(f"v_max3_u32 v7, v{r}, v{r+1}, v{r+2}\n v_max_u32 v7, v7, v{r+3}\n v_cmp_eq_u32 vcc, -1, v7\n s_cbranch_vccz {P}_smax2")
        budget_check(a)
        a(f"s_branch {P}_smax\n {P}_smax2:")
        for q in range(4): a(f"v_fma_f32 v{SC+q}, v{r+q}, s{sSC}, v{OWN+q}")
        a(f"v_max3_f32 v7, v{SC}, v{SC+1}, v{SC+2}\n v_max_f32 v7, v7, v{SC+3}")
        for sh in (8, 4, 2, 1):
            a("s_nop 1")
            a(f"v_max_f32_dpp v7, v7, v7 row_ror:{sh} row_mask:0xf bank_mask:0xf")
        for q in range(4): a(f"v_sub_f32 v{SC+q}, v{SC+q}, v7")
        for q in range(4): a(f"v_exp_f32 v{EX+q}, v{SC+q}")
        a(f"v_add_f32 v7, v{EX}, v{EX+1}\n v_add_f32 v11, v{EX+2}, v{EX+3}\n s_branch {P}_sexp")
        a(f"{P}_pfail:")
        a("v_mov_b32 v7, 0")
        for r in range(PR, PR+40, 2): a(f"v_max3_u32 v7, v{r}, v{r+1}, v7")
        a(f"v_cmp_eq_u32 vcc, -1, v7\n s_cbranch_vccnz {P}_pagain")
        a(f"buffer_store_dword v{vMO}, v5, {S_WS}, s{sNXT} offen{ST}\n s_branch {P}_pok")
        a(f"{P}_pagain:")
        budget_check(a)
        count(a, o, 58)
        for r in range(4): a(f"v_mov_b32 v{DP+r}, 0")
        pround()
        pu(False)
        a("s_nop 7")
        a(f"s_branch {P}_pchk")
    both_modes(a, P, steps)

def team_body(a, o):
    a(f"""
    s_lshr_b32 s{sH}, s{sRANK}, 1
    s_and_b32 s{sJ}, s{sRANK}, 1
    s_sub_u32 s{sT0}, s{sRANK}, 28
    s_cmp_ge_u32 s{sRANK}, 28
    s_cselect_b32 s{sCT}, s{sT0}, s{sRANK}
    s_mov_b32 s{sFL}, {WS_FL}
    s_mov_b32 s{sSTEP}, 0
    s_mov_b32 s{sCUR}, {WS_RING}
    s_mov_b32 s{sNXT}, {WS_RING + 0x10000}
    s_mov_b32 s{sPRV}, {WS_RING + 0x30000}
    s_mov_b32 s{sPP}, {WS_RING + 0x20000}
    v_and_b32 v60, 63, v0
    v_and_b32 v61, 15, v60
    v_lshrrev_b32 v62, 4, v60
    v_lshlrev_b32 v0, 4, v60
    v_and_b32 v63, 1, v60
    v_cmp_eq_u32 vcc, 1, v63
    v_mov_b32 v1, 0x44444444
    v_mov_b32 v63, 0xeeeeeeee
    v_cndmask_b32 v1, v1, v63, vcc
    """)
    a(f"v_mov_b32 v56, 0\n v_mov_b32 v57, {L_MISC + 128}\n ds_write_b32 v57, v56\n s_waitcnt lgkmcnt(0)\n s_barrier")
    if o.diag: a("s_mov_b32 s56, 0\n s_mov_b32 s57, 0\n s_mov_b32 s58, 0")
    a(f"""
    s_cmp_eq_u32 s{sWAVE}, 3
    s_cbranch_scc1 W3_entry
    s_cmp_eq_u32 s{sWAVE}, 2
    s_cbranch_scc1 Y2_entry
    s_cmp_eq_u32 s{sWAVE}, 1
    s_cbranch_scc1 Y1_entry
    """)
    ywave(a, o, 0)
    a("Y1_entry:"); ywave(a, o, 1)
    a("Y2_entry:"); ywave(a, o, 2)
    a("W3_entry:"); wave3(a, o)
```

```python
from asmlib import *
from layout import *

L_M, L_Y, L_UM, L_MISC, L_S, L_B0, L_X, L_X2, L_B1 = 0, 8192, 12288, 16384, 16640, 18432, 0xc000, 0x10000, 0x13800
TEAM_LDS = L_B1 + 30720
SM = "v_smfmac_f32_16x16x64_bf16"
S_WS, S_X, S_DBG = "s[4:7]", "s[8:11]", "s[12:15]"
sRANK, sWAVE, sH, sJ, sSTEP, sCT = 16, 17, 18, 19, 20, 21
sFL, sMODE = 22, 23
sCUR, sNXT, sPRV, sPP = 24, 25, 26, 27
sVO, sXO, sCN, sMO, sBUD = 30, 31, 32, 33, 35
sT0, sT1, sT2, sT3 = 36, 37, 38, 39
sM1, sXT, sXL = 45, 47, 46
OOB = 0x7ff00000
D_GO = 192
SCALE = 0x3db8aa3b
sSC = 44
XSTEP = 32*896

class Opt:
    def __init__(self, **kw):
        self.trace = None; self.diag = True
        self.nsteps = 63
        self.kf = 3; self.nf1 = 5; self.nf = 5; self.ns = 5; self.f2pos = 0; self.kgo = 3; self.nxa = 14; self.kfirst = 0; self.rlate = 1; self.dum = 1; self.yo = 0; self.so = 1; self.w3b = 0; self.puw = list(range(10)); self.acc2 = 0; self.nxb = 0; self.d2 = 0; self.funr = 2; self.nv0 = 11; self.b0p = 2
        self.sleep = 4; self.cpf = 0; self.sst = 2; self.b1a = 2; self.p1 = 1; self.ne = 6; self.pw = 2; self.sdup = 1; self.pk = 1; self.kp = -1; self.pp = [5]; self.by = 1; self.outf = ''; self.tlb = 1; self.bwait = 1; self.gate = True; self.budget = 2000000; self.team_xcc = 0
        self.__dict__.update(kw)

def nops(a, n):
    while n > 0:
        k = min(n, 16); a(f"s_nop {k-1}"); n -= k

def load_regs(a, regs, soff, vaddr="v0", fl=" sc1"):
    for i, r in enumerate(regs):
        if i and i % 4 == 0: a(f"s_add_u32 s{soff}, s{soff}, 4096")
        a(f"buffer_load_dwordx4 {v(r,4)}, {vaddr}, {S_WS}, s{soff} offen offset:{(i%4)*1024}{fl}")

TR_S, TR_V3 = 84, 160
def stamp(a, o, kind, pt):
    if o.trace and pt in o.trace.get(kind, []):
        i = o.trace[kind].index(pt)
        a(f"s_memtime s[{TR_S+2*i}:{TR_S+2*i+1}]")
def stamp_flush(a, o, kind, w=None):
    if not o.trace or kind not in o.trace: return
    n = len(o.trace[kind])
    a(f"s_memtime s[52:53]\n s_memrealtime s[50:51]\n s_mov_b32 m0, s{sSTEP}\n s_waitcnt lgkmcnt(0)")
    if kind == 'y':
        a(f"s_lshl_b32 s50, s{sRANK}, 2\n s_add_u32 s50, s50, {w}\n s_lshl_b32 s50, s50, 12\n s_lshl_b32 s51, s{sSTEP}, 2\n s_add_u32 s50, s50, s51\n s_add_u32 s50, s50, {WS_DIAG + 65536}\n v_mov_b32 v62, 0")
        for i in range(n): a(f"v_mov_b32 v63, s{TR_S+2*i}\n buffer_store_dword v63, v62, {S_WS}, s50 offen offset:{256*i}")
        return
    for i in range(n): a(f"v_writelane_b32 v{TR_V3+i}, s{TR_S+2*i}, m0")
    a(f"v_writelane_b32 v{TR_V3+8}, s52, m0\n v_writelane_b32 v{TR_V3+9}, s50, m0")
def count(a, o, r):
    if o.diag: a(f"s_add_u32 s{r}, s{r}, 1")

def ring_advance(a):
    a(f"""
    s_mov_b32 s{sPRV}, s{sCUR}
    s_mov_b32 s{sCUR}, s{sNXT}
    s_add_u32 s{sNXT}, s{sNXT}, 0x10000
    s_and_b32 s{sNXT}, s{sNXT}, {WS_RING | 0x30000}
    """)

def x_dma(a, lo=0, hi=14):
    for q in range(lo, hi):
        if (q - lo) % 4 == 0: a(f"s_add_u32 m0, s{sXL}, {q*1024}\n s_add_u32 s{sT2}, s{sXO}, {q*1024}")
        a(f"buffer_load_dwordx4 v0, {S_WS}, s{sT2} offen offset:{((q-lo)%4)*1024} sc1 lds")
    a(f"s_add_u32 s{sXO}, s{sXO}, {XSTEP}\n s_xor_b32 s{sXL}, s{sXL}, 0x1c000")

def budget_check(a):
    a(f"s_sub_u32 s{sBUD}, s{sBUD}, 1\n s_cmp_eq_u32 s{sBUD}, 0\n s_cbranch_scc1 L_team_done")

def flag_poll(a, o, P, regs, vaddr, off, s_want, pre=()):
    n = len(regs)
    a("s_mov_b64 exec, 0xff")
    def body(i, wait=True):
        a(f"buffer_load_dword v{regs[i]}, {vaddr}, {S_WS}, s{sFL} offen offset:{off} sc1")
        if wait: a(f"s_waitcnt vmcnt({n-1})")
        a(f"v_cmp_ne_u32 vcc, s{s_want}, v{regs[(i+1)%n]}")
        a(f"s_cbranch_vccz {P}_fok")
    if pre:
        for i in range(n-1):
            a(f"buffer_load_dword v{regs[i]}, {vaddr}, {S_WS}, s{sFL} offen offset:{off} sc1")
            k = i - (n - 1 - len(pre))
            if k >= 0: a(f"s_waitcnt vmcnt({len(pre) - 1 - k + 1 + i + 1})")
            a(f"v_cmp_ne_u32 vcc, s{s_want}, v{pre[max(k, 0)] if k >= 0 else regs[i+1]}")
            a(f"s_cbranch_vccz {P}_fok")
    else:
        for i in range(n-1): body(i, False)
    body(n-1)
    a(f"{P}_fpoll:")
    for _ in range(o.funr):
        for i in range(n): body(i)
    a(f"s_sub_u32 s{sBUD}, s{sBUD}, 1\n s_cmp_lg_u32 s{sBUD}, 0\n s_cbranch_scc1 {P}_fpoll\n s_branch L_team_done")
    a(f"{P}_fok:")
    a("s_mov_b64 exec, -1")

KORD = (0, 1, 2, 6, 3, 4, 5)

def ywave(a, o, w):
    P = f"Y{w}"
    D, M, T = 12, 28, 8
    Aop = lambda t, k: 256 + (t*7 + k)*8
    def Bop(hh, k):
        i = hh*7 + k
        return 256 + 224 + i*8 if i < 4 else 64 + (i-4)*8
    def lds_wait(L, level):
        a(f"""
        v_mov_b32 v57, {L_MISC + 128}
        {L}:
        ds_read_b32 v56, v57
        s_waitcnt lgkmcnt(0)
        v_cmp_gt_u32 vcc, {level}, v56
        s_cbranch_vccz {L}_ok
        s_sleep 1
        s_sub_u32 s{sBUD}, s{sBUD}, 1
        s_cmp_lg_u32 s{sBUD}, 0
        s_cbranch_scc1 {L}
        s_branch L_team_done
        {L}_ok:
        """)
    lds_wait(f"{P}_wa", 1)
    if w == 0: tstamp(a, 4, sWAVE, tmp=(56, 57)); dstamp(a, 5, sWAVE, tmp=(56, 57))
    a(f"s_mul_i32 s{sT0}, s{sRANK}, {A_RANK}\n s_add_u32 s{sT0}, s{sT0}, {WS_A + w*4*7*2048}")
    load_regs(a, [Aop(t,k)+4*hf for t in range(4) for k in range(7) for hf in range(2)], sT0)
    lds_wait(f"{P}_wb", 2)
    if w == 0: dstamp(a, 11, sWAVE, tmp=(56, 57))
    a(f"s_mul_i32 s{sT0}, s{sCT}, {B_CT}\n s_add_u32 s{sT0}, s{sT0}, {WS_B + w*4*7*2048}")
    load_regs(a, [Bop(h,k)+4*hf for h in range(4) for k in range(7) for hf in range(2)][:54 if w < 2 else 56], sT0)
    if w < 2:
        for q in range(30):
            if q % 4 == 0:
                a(f"s_mul_i32 s{sT0}, s{sCT}, {B_CT}\n s_add_u32 s{sT0}, s{sT0}, {WS_B + ((12+2*w)*14 + q if q < 28 else (4*w+3)*14 + 12)*1024}\n s_mov_b32 m0, {(L_B0, L_B1)[w] + q*1024}\n s_nop 0")
            a(f"buffer_load_dwordx4 v0, {S_WS}, s{sT0} offen offset:{(q%4)*1024} sc1 lds")
    y_addr(a, w)
    a(f"""
    v_lshrrev_b32 v63, 1, v62
    v_lshlrev_b32 v6, 8, v63
    v_lshl_add_u32 v6, v61, 4, v6
    v_and_b32 v63, 1, v62
    v_lshl_add_u32 v6, v63, 3, v6
    v_add_u32 v6, {L_UM + w*1024}, v6
    v_add_u32 v7, {(L_B0, L_B1, 0)[w]}, v0
    v_mov_b32 v4, {L_MISC + 64}
    v_and_b32 v2, 31, v60
    v_lshlrev_b32 v2, 2, v2
    """)
    a(f"s_mul_i32 s{sXO}, s{sJ}, 14336\n s_add_u32 s{sXO}, s{sXO}, {WS_XP}\n s_mov_b32 s{sXL}, {L_X}")
    if w == 2:
        lds_wait(f"{P}_ws", 3)
        x_dma(a)
        if o.tlb:
            a(f"v_min_u32 v56, 14, v60\n v_lshlrev_b32 v56, 21, v56\n s_mov_b32 s{sT0}, {WS_VO}\n buffer_load_dword v57, v56, {S_WS}, s{sT0} offen sc1")
        a(f"v_lshlrev_b32 v56, 16, v62\n v_lshl_add_u32 v56, v61, 4, v56\n s_mul_i32 s{sT0}, s{sRANK}, 1280\n s_add_u32 s{sT0}, s{sT0}, {WS_RING}")
        for k in range(5): a(f"buffer_load_dwordx4 v[12:15], v56, {S_WS}, s{sT0} offen offset:{256*k} sc1")
    team_sync(a, o, P, w)
    pc = (w - max(o.b1a, 0)) % 3
    FRG = [56, 57, 58, 59, 60, 61, 62, 63, 8, 9, 10, 11][:o.nf1]
    def steps(P, ST):
        a(f"{P}_loop:")
        a(f"s_add_u32 s{sM1}, s{sCUR}, {pc*1024}")
        for r in range(16): a(f"v_mov_b32 v{D+r}, 0")
        if w == o.pw:
            a(f"s_mul_i32 s{sT3}, s{sSTEP}, 0x01010101")
            for r in FRG[1:]: a(f"v_mov_b32 v{r}, -1")
        if w == 1 and DBGT['on']:
            for st, word in ((4, 7), (32, 8)):
                L = a.uid("DT"); a(f"s_cmp_lg_u32 s{sSTEP}, {st}\n s_cbranch_scc1 {L}"); dstamp(a, word, sWAVE, tmp=(56, 57), wave=1); a(f"{L}:")
        second = w == 1 and o.nxa < 14
        if w == o.pw or second:
            a(f"""
            {P}_go:
            ds_read_b32 v56, v4
            s_waitcnt lgkmcnt(0)
            v_cmp_gt_u32 vcc, s{sSTEP}, v56
            s_cbranch_vccz {P}_go_ok
            s_sub_u32 s{sBUD}, s{sBUD}, 1
            s_cmp_lg_u32 s{sBUD}, 0
            s_cbranch_scc1 {P}_go
            s_branch L_team_done
            {P}_go_ok:
            """)
        if second: x_dma(a, o.nxa, 14)
        if w != o.pw: a("s_waitcnt vmcnt(0)")
        a(f"s_mov_b32 m0, {L_M + pc*1024}")
        if w == o.pw: flag_poll(a, o, P, FRG, "v2", 0, sT3)
        early = w == o.pw == o.b1a
        if early: a(f"buffer_load_dwordx4 v0, {S_WS}, s{sM1} offen sc1 lds")
        a("s_barrier   ; B0")
        stamp(a, o, 'y', 0)
        if o.p1 and w != o.b1a and o.pw != o.b1a: nops(a, o.p1)
        if not early: a(f"buffer_load_dwordx4 v0, {S_WS}, s{sM1} offen sc1 lds")
        a("s_barrier   ; B0'")
        a(f"buffer_load_dwordx4 v0, {S_WS}, s{sM1} offen offset:3072 sc1 lds")
        nx = 0
        sm = lambda t, k: a(f"{SM} {v(D+4*t,4)}, {v(M+4*k,4)}, {v(Aop(t,k),8)}, v1")
        mread = lambda k: a(f"ds_read_b128 {v(M+4*k,4)}, v0 offset:{L_M + 1024*k}")
        if o.b1a >= 0:
            if w == o.b1a: a(f"s_waitcnt vmcnt({1+nx})")
            a("s_barrier   ; B1a"); mread(KORD[0])
        a(f"s_waitcnt vmcnt({1+nx})")
        stamp(a, o, 'y', 11)
        a("s_barrier   ; B1")
        for k in KORD[1 if o.b1a >= 0 else 0:4]: mread(k)
        a("s_waitcnt lgkmcnt(3)")
        stamp(a, o, 'y', 12)
        sm(0,0); sm(1,0); sm(2,0)
        a(f"s_waitcnt vmcnt({nx})\n s_barrier   ; B1'")
        sm(3,0)
        for k in KORD[4:]: mread(k)
        a(f"{P}_y:")
        rest = list(KORD[1:])
        if o.yo == 0:
            a("s_waitcnt lgkmcnt(5)")
            sm(0,1); sm(1,1); sm(2,1); sm(3,1); rest = rest[1:]
        for n, k in enumerate(rest):
            a(f"s_waitcnt lgkmcnt({len(rest)-1-n})"); sm(0,k); sm(1,k)
        z = [f"v_mov_b32 v{D+r}, 0" for r in range(8)]
        fill = [["s_nop 1"], ["s_nop 1"],
                [f"v_add_f32 v{D}, v{D}, v{D+1}", f"v_add_f32 v{D+2}, v{D+2}, v{D+3}"],
                [f"v_add_f32 v{D+4}, v{D+4}, v{D+5}", f"v_add_f32 v{D+6}, v{D+6}, v{D+7}"],
                [f"v_cvt_pk_bf16_f32 v{T}, v{D}, v{D+4}", f"v_cvt_pk_bf16_f32 v{T+1}, v{D+2}, v{D+6}"],
                [f"ds_write2_b32 v3, v{T}, v{T+1} offset0:0 offset1:8", f"v_cmp_u_f32 vcc, v{D}, v{D+2}"],
                z[0:2], z[2:4]]
        fill += [z[4:6]]*(o.by == 2) + [["s_waitcnt lgkmcnt(0)", "s_barrier   ; B1y"]]; left = z[6:] if o.by == 2 else z[4:]
        seq2 = [(t, k) for k in rest for t in (2, 3)]
        for n, (t, k) in enumerate(seq2):
            sm(t, k)
            if n == len(seq2) - 1: break
            if fill:
                for l in fill.pop(0): a(l)
            elif left: a(left.pop(0)); a(left.pop(0))
        assert not fill
        stamp(a, o, 'y', 15)
        for l in left: a(l)
        nops(a, 6 - len(left))
        a(f"v_add_f32 v{D+8}, v{D+8}, v{D+9}\n v_add_f32 v{D+10}, v{D+10}, v{D+11}")
        a(f"v_add_f32 v{D+12}, v{D+12}, v{D+13}\n v_add_f32 v{D+14}, v{D+14}, v{D+15}")
        a(f"v_cvt_pk_bf16_f32 v{T+2}, v{D+8}, v{D+12}")
        a(f"v_cvt_pk_bf16_f32 v{T+3}, v{D+10}, v{D+14}")
        a(f"ds_write2_b32 v5, v{T+2}, v{T+3} offset0:0 offset1:8")
        a(f"s_cbranch_vccnz {P}_fail")
        a(f"{P}_yok:")
        for r in range(8, 16): a(f"v_mov_b32 v{D+r}, 0")
        a("s_waitcnt lgkmcnt(0)")
        stamp(a, o, 'y', 16)
        a("s_barrier   ; B2")
        if w == 2 and o.nxb:
            t = Asm(); x_dma(t, 0, o.nxb)
            for l in t.lines[:-2]: a(l)
        if w < 2: mb_six(a, D, M, T, Bop, w)
        else: mb_four(a, D, M, T, Bop)
        a("s_waitcnt lgkmcnt(0)")
        stamp(a, o, 'y', 4)
        a("s_barrier   ; B3")
        if w == 2 and not getattr(o, 'nox', 0): x_dma(a, o.nxb, o.nxa)
        stamp_flush(a, o, 'y', w)
        ring_advance(a)
        a(f"s_add_u32 s{sSTEP}, s{sSTEP}, 1\n s_cmp_lt_u32 s{sSTEP}, {o.nsteps}\n s_cbranch_scc1 {P}_loop")
        a(f"s_branch L_team_done")
        a(f"{P}_fail:")
        m_exact(a, P, M, 56)
        a("s_waitcnt vmcnt(1) lgkmcnt(0)".replace("vmcnt(1) ", ""))
        budget_check(a)
        for r in range(16): a(f"v_mov_b32 v{D+r}, 0")
        count(a, o, 56)
        a(f"s_mov_b32 m0, {L_M + pc*1024}\n s_barrier")
        a(f"buffer_load_dwordx4 v0, {S_WS}, s{sM1} offen sc1 lds")
        a(f"buffer_load_dwordx4 v0, {S_WS}, s{sM1} offen offset:3072 sc1 lds")
        a("s_waitcnt vmcnt(0)\n s_barrier")
        for k in KORD: mread(k)
        a("s_waitcnt lgkmcnt(6)")
        sm(0,0); sm(1,0); sm(2,0); sm(3,0)
        a(f"s_branch {P}_y")
    both_modes(a, P, steps)

def m_exact(a, P, M, t):
    a(f"v_max_u32 v{t}, v{M}, v{M+1}")
    for r in range(M+2, M+28, 2): a(f"v_max3_u32 v{t}, v{t}, v{r}, v{r+1}")
    a(f"v_cmp_eq_u32 vcc, -1, v{t}\n s_cbranch_vccz {P}_yok")

epi = lambda d, t: [f"v_add_f32 v{d}, v{d}, v{d+1}", f"v_add_f32 v{d+2}, v{d+2}, v{d+3}", f"v_cvt_pk_bf16_f32 v{t}, v{d}, v{d+2}"]

def mb_four(a, D, M, T, Bop):
    pend = []
    for hh in range(4):
        for k in range(7):
            a(f"{SM} {v(D+4*hh,4)}, {v(M+4*k,4)}, {v(Bop(hh,k),8)}, v1")
            if pend and k >= 4:
                if k == 4: a("s_nop 2")
                a(pend.pop(0))
        pend = epi(D + 4*hh, T + hh)
    a("s_nop 7")
    for l in pend: a(l)
    a(f"ds_write_b64 v6, {v(T,2)}")
    a(f"ds_write_b64 v6, {v(T+2,2)} offset:512")

def mb_six(a, D, M, T, Bop, w):
    SB = [56, Bop(3,6)]
    nxt = [0]; q = []
    def fetch():
        i = nxt[0]
        if i >= 15: return
        nxt[0] += 1
        a(f"ds_read_b128 {v(SB[i%2],4)}, v7 offset:{i*2048}")
        a(f"ds_read_b128 {v(SB[i%2]+4,4)}, v7 offset:{i*2048 + 1024}")
        q.extend([("f", i)]*2)
    def need(tag):
        if tag in q:
            last = len(q) - 1 - q[::-1].index(tag)
            a(f"s_waitcnt lgkmcnt({len(q)-1-last})"); del q[:last+1]
    sm = lambda d, k, b: a(f"{SM} {v(d,4)}, {v(M+4*k,4)}, {v(b,8)}, v1")
    for k in range(7):
        sm(D+12, k, Bop(2,k))
        if k in (4, 5): fetch()
    for k in range(7):
        sm(D, k, Bop(0,k)); sm(D+4, k, Bop(1,k))
        need(("f", k)); sm(D+8, k, SB[k%2]); fetch()
        if k == 2:
            for l in epi(D+12, T+2): a(l)
            for r in range(4): a(f"v_mov_b32 v{D+12+r}, 0")
    fill = ["s_nop 3"] + epi(D, T) + epi(D+4, T+1) + [f"v_mov_b32 v{D+r}, 0" for r in range(4)] + [f"ds_write_b64 v6, {v(T,2)}"] + epi(D+8, T)
    for k in range(6):
        sm(D+12, k, Bop(3,k))
        for _ in range(3):
            if fill:
                l = fill.pop(0); a(l)
                if l.startswith("ds_"): q.append("w")
    assert not fill
    for k in range(7):
        need(("f", 7+k)); sm(D, k, SB[(7+k)%2]); fetch()
    need(("f", 14)); sm(D+12, 6, SB[0])
    a("s_nop 6")
    for l in epi(D, T+1) + epi(D+12, T+3): a(l)
    a(f"ds_write_b64 v6, {v(T,2)} offset:{3072 - 512*w}")
    a(f"ds_write_b64 v6, {v(T+2,2)} offset:512")

def y_addr(a, w):
    a(f"""
    v_lshrrev_b32 v63, 3, v61
    v_lshlrev_b32 v3, 8, v63
    v_lshl_add_u32 v3, v62, 6, v3
    v_bfe_u32 v63, v61, 1, 1
    v_lshl_add_u32 v3, v63, 4, v3
    v_bfe_u32 v63, v61, 2, 1
    v_lshl_add_u32 v3, v63, 3, v3
    v_and_b32 v63, 1, v61
    v_lshl_add_u32 v3, v63, 2, v3
    v_add_u32 v3, {L_Y + (w*512 if w < 3 else 3584)}, v3
    """)
    if w < 3: a("v_add_u32 v5, 2048, v3")

def dbg_wait(a, L, off, need, t, fl="sc0 sc1"):
    a(f"""
    v_mov_b32 v{t+1}, {off}
    {L}:
    buffer_load_dword v{t}, v{t+1}, {S_DBG}, 0 offen {fl}
    s_waitcnt vmcnt(0)
    v_readfirstlane_b32 s{sT0}, v{t}
    s_and_b32 s{sT1}, s{sT0}, 0xffff
    s_cmp_ge_u32 s{sT1}, {need}
    s_cbranch_scc1 {L}_ok
    s_sub_u32 s{sBUD}, s{sBUD}, 1
    s_cmp_lg_u32 s{sBUD}, 0
    s_cbranch_scc1 {L}
    s_branch L_team_done
    {L}_ok:
    """)

def wait_done(a, what, t0, t1, dead, sleep=""):
    L = a.uid("WD"); first, n, need = {'A': (0, 4, 64), 'B': (4, 4, 64), 'S': (8, 2, 64), 'a': (0, 1, 64)}[what]
    a(f"""
    v_mbcnt_lo_u32_b32 v{t1}, -1, 0
    v_and_b32 v{t1}, {n-1}, v{t1}
    v_lshlrev_b32 v{t1}, 7, v{t1}
    s_mov_b32 s41, {WS_DONE + first*128}
    {f's_lshr_b32 s40, s{sH}, 2' if what == 'a' else ''}
    {f's_lshl_b32 s40, s40, 7' if what == 'a' else ''}
    {f's_add_u32 s41, s41, s40' if what == 'a' else ''}
    s_mov_b64 exec, {(1 << n) - 1}
    {L}:
    buffer_load_dword v{t0}, v{t1}, {S_WS}, s41 offen sc1
    s_waitcnt vmcnt(0)
    v_cmp_gt_u32 vcc, {hex(need)}, v{t0}
    s_cbranch_vccz {L}_ok
    {sleep}
    s_sub_u32 s{sBUD}, s{sBUD}, 1
    s_cmp_lg_u32 s{sBUD}, 0
    s_cbranch_scc1 {L}
    s_branch {dead}
    {L}_ok:
    s_mov_b64 exec, -1
    """)

def team_sync(a, o, P, w):
    a("s_waitcnt vmcnt(0) lgkmcnt(0)")
    if w == 0: tstamp(a, 9, sWAVE, tmp=(56, 57))
    if w == 1:
        a(f"s_cmp_lg_u32 s{sRANK}, 0\n s_cbranch_scc1 {P}_nogo\n v_mov_b32 v56, 1\n v_mov_b32 v57, {D_GO}\n buffer_store_dword v56, v57, {S_DBG}, 0 offen sc1\n {P}_nogo:")
    a("s_barrier")
    if w < 3: a(f"v_mov_b32 v58, {L_MISC}\n ds_read_b32 v58, v58\n s_waitcnt lgkmcnt(0)\n v_readfirstlane_b32 s{sMODE}, v58")
    if w == 0: tstamp(a, 6, sWAVE, tmp=(56, 57)); dstamp(a, 6, sWAVE, tmp=(56, 57))

def both_modes(a, P, steps):
    a(f"s_cmp_lg_u32 s{sMODE}, 0\n s_cbranch_scc1 {P}_far")
    steps(P, "")
    a(f"{P}_far:")
    steps(P + "f", " sc1")

def wave3(a, o):
    P = "W3"
    DY, DS, M, NEG = 12, 20, 32, 60
    EX, SC, OWN, PR, FR = 64, 68, 76, 96, 136
    vFA, vFS, vST, vXT, vXD, vSG, vPA, vMO, vMA, vCN = 142, 143, 144, 145, 146, 147, 148, 157, 158, 159
    vSX, vS0, vL0, vK0, vK1, vVA, vZ, DP, YO, KM, SET = 170, 171, 172, 173, 174, 176, 184, 84, 192, 208, 236
    vGO, vKX = 185, 186
    U, KX = 256 + 112, 256 + 192
    Aop = lambda t, k: 256 + (t*7 + k)*8
    def watch(level, what):
        wait_done(a, what, 56, 57, "L_team_done", "s_sleep 4" if what == 'S' else "")
        a(f"v_mov_b32 v56, {level}\n v_mov_b32 v57, {L_MISC + 128}\n ds_write_b32 v57, v56")
    watch(1, 'a')
    a("s_mov_b64 exec, 1")
    dbg_wait(a, "W3_seats", 0, 32, 56)
    a(f"s_mov_b64 exec, -1\n s_lshr_b32 s{sMODE}, s{sT0}, 16\n v_mov_b32 v56, s{sMODE}\n v_mov_b32 v57, {L_MISC}\n ds_write_b32 v57, v56")
    y_addr(a, 3)
    for k in range(8):
        a(f"s_add_u32 s{sT0}, s{sRANK}, {k}\n s_and_b32 s{sT0}, s{sT0}, 7")
        a(f"s_lshl_b32 s{sT1}, s{sT0}, 11\n v_add_u32 v{vVA+k}, s{sT1}, v0")
        a(f"s_lshl_b32 s{sT1}, s{sT0}, 10\n s_add_u32 s{sT1}, s{sT1}, {R_P + 2048}\n v_add_u32 v{vPA+k}, s{sT1}, v0")
    a(f"""
    v_add_u32 v{vPA+8}, {R_P}, v0
    v_add_u32 v{vKX}, {L_X}, v0
    v_and_b32 v{vK0}, 7, v61
    v_lshlrev_b32 v{vK0}, 5, v{vK0}
    v_lshrrev_b32 v63, 1, v62
    v_lshl_add_u32 v{vK0}, v63, 8, v{vK0}
    v_and_b32 v63, 1, v62
    v_lshl_add_u32 v{vK0}, v63, 3, v{vK0}
    s_mul_i32 s{sT0}, s{sJ}, {14*256}
    v_add_u32 v{vK0}, s{sT0}, v{vK0}
    v_add_u32 v{vK1}, 2048, v{vK0}
    v_mul_u32_u24 v6, 320, v63
    v_lshl_add_u32 v6, v61, 2, v6
    v_lshrrev_b32 v63, 1, v62
    v_cmp_eq_u32 vcc, s{sJ}, v63
    v_cmp_gt_u32 s[40:41], 8, v61
    s_xor_b32 s{sT0}, s{sRANK}, 1
    s_mul_i32 s{sT0}, s{sT0}, 640
    s_add_u32 s{sT0}, s{sT0}, {R_S}
    v_add_u32 v59, s{sT0}, v6
    v_add_u32 v6, {L_S}, v6
    v_mov_b32 v58, {OOB}
    v_mov_b32 v57, {L_S + 1024}
    v_cndmask_b32 v{vSX}, v59, v58, vcc
    v_cndmask_b32 v6, v57, v6, vcc
    v_cndmask_b32 v{vS0}, v58, v{vSX}, s[40:41]
    v_cndmask_b32 v{vL0}, v57, v6, s[40:41]
    v_cmp_gt_u32 vcc, 10, v61
    v_mov_b32 v63, 0x7f800000
    v_mov_b32 v9, 0x42800000
    v_mul_u32_u24 v2, 160, v62
    v_cndmask_b32 v9, v63, v9, vcc
    v_cndmask_b32 v63, 0, v61, vcc
    v_lshl_add_u32 v2, v63, 4, v2
    s_mul_i32 s{sT0}, s{sRANK}, 640
    s_add_u32 s{sT0}, s{sT0}, {R_S}
    v_add_u32 v{vSG}, s{sT0}, v2
    v_add_u32 v2, {L_S}, v2
    v_mov_b32 v63, {L_S + 1536}
    v_cndmask_b32 v2, v63, v2, vcc
    v_mov_b32 v{SC}, 0xf149f2ca
    v_mov_b32 v{SC+1}, 0xf149f2ca
    v_mov_b32 v{SC+2}, 0xf149f2ca
    v_mov_b32 v{SC+3}, 0xf149f2ca
    ds_write_b128 v63, {v(SC,4)}
    v_cndmask_b32 v10, v58, v{vSG}, vcc
    v_lshrrev_b32 v59, 1, v61
    s_lshl_b32 s{sT0}, s{sH}, 2
    s_add_u32 s{sT0}, s{sT0}, 15
    v_add_u32 v59, s{sT0}, v59
    v_mov_b32 v57, s{sH}
    v_cmp_gt_u32 s[40:41], 2, v61
    s_nop 1
    v_cndmask_b32 v59, v59, v57, s[40:41]    ; u
    v_lshrrev_b32 v57, 1, v59
    v_lshlrev_b32 v4, 8, v57
    v_and_b32 v57, 1, v59
    v_lshl_add_u32 v4, v57, 4, v4
    v_and_b32 v57, 1, v61
    v_lshl_add_u32 v4, v57, 3, v4
    v_lshl_add_u32 v4, v62, 5, v4
    s_lshl_b32 s{sT0}, s{sJ}, 7
    s_add_u32 s{sT0}, s{sT0}, {R_P}
    v_add_u32 v4, s{sT0}, v4
    v_cndmask_b32 v4, v58, v4, vcc
    v_cmp_eq_u32 vcc, 0, v60
    s_nop 0
    v_mov_b32 v57, s{sRANK}
    v_cndmask_b32 v{vFS}, v58, v57, vcc
    v_and_b32 v57, 7, v60
    v_lshlrev_b32 v{vFA}, 2, v57
    v_mov_b32 v{vST}, 0
    v_mov_b32 v{vGO}, {L_MISC + 64}
    ds_write_b32 v{vGO}, v{vST}
    v_and_b32 v58, 1, v61
    v_lshl_add_u32 v59, v62, 1, v58
    v_lshlrev_b32 v5, 5, v59
    v_bfe_u32 v57, v61, 1, 1
    v_lshl_add_u32 v5, v57, 4, v5
    v_lshrrev_b32 v57, 2, v61
    v_lshl_add_u32 v5, v57, 2, v5
    s_lshl_b32 s{sT0}, s{sRANK}, 8
    v_add_u32 v5, s{sT0}, v5
    v_lshlrev_b32 v{vMA}, 4, v59
    v_bfe_u32 v57, v61, 3, 1
    v_lshl_add_u32 v{vMA}, v57, 7, v{vMA}
    v_bfe_u32 v57, v61, 1, 2
    v_lshl_add_u32 v{vMA}, v57, 2, v{vMA}
    v_add_u32 v{vMA}, s{sT0}, v{vMA}
    v_mov_b32 v{vZ}, 0
    v_cmp_eq_u32 vcc, 1, v58
    v_mov_b32 v8, 0x01000504
    v_mov_b32 v57, 0x07060302
    v_cndmask_b32 v8, v8, v57, vcc
    v_mul_u32_u24 v59, 896, v59
    v_lshrrev_b32 v57, 1, v61
    v_lshl_add_u32 v59, v57, 2, v59
    s_lshl_b32 s{sT0}, s{sCT}, 5
    v_add_u32 v59, s{sT0}, v59
    buffer_load_dword v{vMO}, v59, s[60:63], 0 offen
    v_min_u32 v{vXT}, 13, v60
    v_lshlrev_b32 v{vXT}, 6, v{vXT}
    s_lshl_b32 s{sT1}, s{sCT}, 14
    s_add_u32 s{sVO}, s{sT1}, {WS_VO}
    s_mul_i32 s{sXT}, s{sRANK}, 896
    s_add_u32 s{sXT}, s{sXT}, {WS_XP + XSTEP}
    s_mov_b32 s{sMO}, {WS_MO}
    s_mov_b32 s{sSC}, {SCALE}
    s_sub_u32 s49, s{sJ}, 1
    s_not_b32 s48, s49
    s_mov_b32 s{sCN}, {WS_CNT + C_VO}
    """)
    if o.dum:
        a(f"s_cmp_lt_u32 s{sRANK}, 28\n s_cbranch_scc1 W3_real")
        for r in list(range(vPA, vPA+9)) + list(range(vVA, vVA+8)): a(f"v_mov_b32 v{r}, {OOB}")
        a("W3_real:")
    if getattr(o, 'novo', 0):
        for r in range(vVA, vVA+8): a(f"v_mov_b32 v{r}, {OOB}")
    for r in range(20): a(f"v_mov_b32 v{DY+r}, 0")
    for r in range(4): a(f"v_mov_b32 v{NEG+r}, -1\n v_mov_b32 v{DP+r}, 0\n v_mov_b32 v{DP+4+r}, 0")
    for r in range(6): a(f"v_mov_b32 v{FR+r}, 0")
    a(f"ds_write_b128 v0, {v(DY,4)} offset:{L_Y + 1024}")
    a("s_waitcnt vmcnt(0)")
    def init(P, ST):
        a(f"buffer_store_byte v{vST}, v{vFS}, {S_WS}, s{sFL} offen{ST}")
        a(f"buffer_store_byte v{vST}, v{vFS}, {S_WS}, s{sFL} offen offset:2048{ST}")
        for sl in range(4):
            a(f"s_mov_b32 s{sT0}, {WS_RING + sl*0x10000}")
            a(f"buffer_store_dwordx4 {v(NEG,4)}, v10, {S_WS}, s{sT0} offen{ST}")
            a(f"buffer_store_dwordx2 {v(NEG,2)}, v4, {S_WS}, s{sT0} offen{ST}")
            a(f"buffer_store_dword v{NEG if sl else vMO}, v5, {S_WS}, s{sT0} offen{ST}")
        if not ST: a("s_branch W3_inited")
    both_modes(a, "W3i", init)
    a("W3_inited:")
    a(f"s_waitcnt vmcnt(0)\n s_mov_b64 exec, 1\n v_mov_b32 v56, 1\n v_mov_b32 v57, 64\n buffer_atomic_add v56, v57, {S_DBG}, 0 offen")
    a("s_mov_b64 exec, -1")
    watch(2, 'B'); watch(3, 'S')
    a(f"s_mul_i32 s{sT0}, s{sRANK}, {A_RANK}\n s_add_u32 s{sT0}, s{sT0}, {WS_A + 12*7*2048}")
    load_regs(a, [Aop(t,k)+4*hf for t in range(2) for k in range(7) for hf in range(2)], sT0)
    def vo_wait(L):
        a(f"""
        {L}:
        buffer_load_dword v{vCN}, v{vZ}, {S_WS}, s{sCN} offen sc1
        s_waitcnt vmcnt(0)
        v_cmp_gt_u32 vcc, 56, v{vCN}
        s_cbranch_vccz {L}_ok
        s_sub_u32 s{sBUD}, s{sBUD}, 1
        s_cmp_lg_u32 s{sBUD}, 0
        s_cbranch_scc1 {L}
        s_branch L_team_done
        """)
    a("s_mov_b64 exec, 1")
    dbg_wait(a, "W3_tsync", 64, 32, 56)
    a("s_mov_b64 exec, -1")
    vo_wait("W3_vo0"); a("W3_vo0_ok:")
    a(f"s_add_u32 s{sCN}, s{sCN}, 2048")
    team_sync(a, o, P, 3)
    HORD = (0, 2, 4, 1, 3, 5, 6)
    KT = (KM, KX, KX + 28); KOF = (0, 8, 12, 20)
    def steps(P, ST):
        a(f"s_add_u32 s{sM1}, s{sCUR}, 6144\n s_mov_b32 s{sT3}, 0")
        a(f"{P}_loop:")
        a(f"s_mov_b32 m0, {L_M + 6144}")
        a("s_barrier   ; B0")
        stamp(a, o, 'w3', 0)
        if o.pw != o.b1a: nops(a, o.p1)
        a(f"buffer_load_dwordx4 v0, {S_WS}, s{sM1} offen sc1 lds")
        vq = [f"buffer_store_dword v{vMO}, v{vMA}, {S_WS}, s{sMO} offen sc1",
              f"buffer_load_dword v{vCN}, v{vZ}, {S_WS}, s{sCN} offen sc1",
              f"buffer_load_dword v{vXD}, v{vXT}, {S_WS}, s{sXT} offen sc1"]
        if o.rlate:
            vq += [f"buffer_store_dword v{NEG}, v5, {S_WS}, s{sPRV} offen{ST}", f"buffer_store_dwordx2 {v(NEG,2)}, v4, {S_WS}, s{sPP} offen{ST}",
                   f"buffer_store_dwordx4 {v(NEG,4)}, v10, {S_WS}, s{sPRV} offen{ST}"]
        for k in range(8):
            vq.append(f"buffer_load_dwordx4 {v(U+16+8*k,4)}, v{vVA+k}, {S_WS}, s{sVO} offen sc1")
            vq.append(f"buffer_load_dwordx4 {v(U+20+8*k,4)}, v{vVA+k}, {S_WS}, s{sVO} offen offset:1024 sc1")
        a("s_barrier   ; B0'")
        a(f"s_add_u32 s{sXT}, s{sXT}, {XSTEP}\n s_add_u32 s{sT3}, s{sT3}, 0x01010101\n v_add_u32 v{vST}, 1, v{vST}")
        def keys():
            for kt in range(2):
                for n, hh in enumerate(HORD): a(f"ds_read_b128 {v(KX+28*kt+4*n,4)}, v{vKX} offset:{kt*7168 + hh*1024}")
        if o.kfirst == 1: keys()
        else: nops(a, o.b0p)
        nv = min(o.nv0, len(vq))
        for _ in range(nv): a(vq.pop(0))
        if o.kfirst == 0: keys()
        if o.b1a >= 0: a("s_barrier   ; B1a")
        if o.kfirst == 2: keys()
        a(f"s_waitcnt vmcnt({nv})\n s_barrier   ; B1")
        mread = lambda k: a(f"ds_read_b128 {v(M+4*k,4)}, v0 offset:{L_M + 1024*k}")
        for k in KORD[:4]: mread(k)
        a(f"s_barrier   ; B1'")
        for k in KORD[4:]: mread(k)
        while vq: a(vq.pop(0))
        stamp(a, o, 'w3', 10)
        a(f"{P}_y:")
        for n, k in enumerate(KORD):
            a(f"s_waitcnt lgkmcnt({6-n})" if n < 4 else f"s_waitcnt lgkmcnt(0)" if n == 4 else "")
            a(f"{SM} {v(DY,4)}, {v(M+4*k,4)}, {v(Aop(0,k),8)}, v1")
            a(f"{SM} {v(DY+4,4)}, {v(M+4*k,4)}, {v(Aop(1,k),8)}, v1")
            if n >= 4:
                for hn in range(7)[(n-4)*2 : (n-4)*2 + (2 if n < 6 else 3)]:
                    hh = HORD[hn]; base, off = (vK0, hh*512) if hh < 4 else (vK1, (hh-4)*512)
                    a(f"ds_read2_b64 {v(KM+4*hn,4)}, v{base} offset0:{off//8} offset1:{off//8+2}")
        sets = [SET+4*i for i in range(o.ns)]
        yrd = f"s_barrier   ; B1y\n ds_read_b128 {v(YO,4)}, v0 offset:{L_Y}\n ds_read_b128 {v(YO+4,4)}, v0 offset:{L_Y + 1024}"
        if o.w3b: a(yrd)
        for r in sets[1:]: a(f"v_mov_b32 v{r}, -1")
        nops(a, 5 - o.ns)
        a(f"v_add_f32 v{DY}, v{DY}, v{DY+1}\n v_add_f32 v{DY+2}, v{DY+2}, v{DY+3}")
        a(f"v_cmp_u_f32 vcc, v{DY}, v{DY+2}")
        a(f"v_add_f32 v{DY+4}, v{DY+4}, v{DY+5}\n v_add_f32 v{DY+6}, v{DY+6}, v{DY+7}")
        a(f"v_cvt_pk_bf16_f32 v{DY}, v{DY}, v{DY+4}\n v_cvt_pk_bf16_f32 v{DY+2}, v{DY+2}, v{DY+6}")
        a(f"ds_write2_b32 v3, v{DY}, v{DY+2} offset0:0 offset1:8")
        stamp(a, o, 'w3', 11)
        if not o.w3b: a(yrd)
        a(f"s_cbranch_vccnz {P}_fail")
        a(f"{P}_yok:")
        ssm = lambda kt, st: a(f"{SM} {v(DS+4*kt,4)}, {v(YO+4*st,4)}, {v(KT[kt]+KOF[st],8)}, v1")
        sseq = [(kt, st) for st in range(2) for kt in range(3)]
        sseq += [(kt, st) for kt in range(3) for st in (2, 3)] if o.so else [(kt, st) for st in (2, 3) for kt in range(3)]
        a(f"s_waitcnt lgkmcnt({2 if o.w3b else 1})")
        for n, (kt, st) in enumerate(sseq):
            if n == o.ne:
                a("s_barrier   ; B2")
                stamp(a, o, 'w3', 1)
                a(f"ds_read_b128 {v(YO+8,4)}, v0 offset:{L_Y + 2048}\n ds_read_b128 {v(YO+12,4)}, v0 offset:{L_Y + 3072}")
            if kt == 0 and st: a(f"s_waitcnt lgkmcnt({3-st if n >= o.ne else 0})")
            ssm(kt, st)
            if o.so and n == 11: a("s_nop 3")
        if not o.so: a("s_nop 5")
        sst = lambda kt, aa: a(f"buffer_store_dword v{DS + 4*kt + 2*aa}, v{vSX if kt else vS0}, {S_WS}, s{sCUR} offen offset:{(0, 32, 96)[kt] + 160*aa}{ST}")
        sad = lambda kt, aa: a(f"v_add_f32 v{DS + 4*kt + 2*aa}, v{DS + 4*kt + 2*aa}, v{DS + 4*kt + 2*aa + 1}")
        if o.sst == 0:
            for kt in range(3):
                for aa in range(2): sad(kt, aa); sst(kt, aa)
        else:
            for kt in range(3):
                for aa in range(2): sad(kt, aa)
            if o.sst == 2: a("s_mov_b64 exec, s[48:49]")
            for kt in range(3):
                for aa in range(2): sst(kt, aa)
            if o.sst == 2: a("s_mov_b64 exec, -1")
        stamp(a, o, 'w3', 2)
        for kt in range(3):
            o0 = (0, 8, 24)[kt]
            a(f"ds_write2_b32 v{6 if kt else vL0}, v{DS+4*kt}, v{DS+4*kt+2} offset0:{o0} offset1:{o0+40}")
        a(f"ds_read_b128 {v(OWN,4)}, v2")
        for r in range(o.d2, 20): a(f"v_mov_b32 v{DY+r}, 0")
        a("s_waitcnt lgkmcnt(0)")
        for q in range(4): a(f"v_mul_f32 v{OWN+q}, s{sSC}, v{OWN+q}")
        n = o.ns
        f2 = f"buffer_store_byte v{vST}, v{vFS}, {S_WS}, s{sFL} offen offset:2048{ST}"
        cnt = [0]
        def sbody(i, wait):
            a(f"buffer_load_dwordx4 {v(sets[i],4)}, v{vSG}, {S_WS}, s{sCUR} offen sc1")
            extra = 1 if 0 <= cnt[0] - o.kp - 1 < n - 1 and o.kp >= 0 else 0
            if wait: a(f"s_waitcnt vmcnt({n-1+extra})")
            if cnt[0] == o.kp: a(f2)
            cnt[0] += 1
            a(f"v_cmp_eq_u32 vcc, -1, v{sets[(i+1) % n]}\n s_cbranch_vccz {P}_sok{i}")
        for i in range(n-1): sbody(i, False)
        sbody(n-1, True)
        if o.kp >= 0:
            for _ in range(2):
                for i in range(n): sbody(i, True)
        a(f"{P}_spoll:")
        for i in range(n): sbody(i, True)
        count(a, o, 57)
        a(f"s_sub_u32 s{sBUD}, s{sBUD}, 1\n s_cmp_lg_u32 s{sBUD}, 0\n s_cbranch_scc1 {P}_spoll\n s_branch L_team_done")
        def rest():
            a("v_add_f32 v7, v7, v11")
            for k, sh in enumerate((8, 4, 2, 1)):
                if k + 1 == o.f2pos: a(f2 + "\n s_nop 0")
                elif k in o.pp: a(f"buffer_load_dword v{80 + o.pp.index(k)}, v{vFA}, {S_WS}, s{sFL} offen offset:2048 sc1\n s_nop 0")
                else: a("s_nop 1")
                a(f"v_add_f32_dpp v7, v7, v7 row_ror:{sh} row_mask:0xf bank_mask:0xf")
            if o.pk:
                ppl = lambda k, alt: a(f"buffer_load_dword v{80 + o.pp.index(k)}, v{vFA}, {S_WS}, s{sFL} offen offset:2048 sc1" if k in o.pp else alt)
                a(f"v_rcp_f32 v74, v7"); ppl(4, "s_nop 0")
                a(f"v_pk_mul_f32 {v(SC,2)}, {v(EX,2)}, v[74:75] op_sel_hi:[1,0]\n v_pk_mul_f32 {v(SC+2,2)}, {v(EX+2,2)}, v[74:75] op_sel_hi:[1,0]")
                a(f"v_cvt_pk_bf16_f32 v{SC+4}, v{SC}, v{SC+1}\n v_cvt_pk_bf16_f32 v{SC+5}, v{SC+2}, v{SC+3}")
                ppl(5, "")
            else:
                a("v_rcp_f32 v7, v7\n s_nop 0")
                a(f"v_mul_f32 v{SC}, v{EX}, v7\n v_mul_f32 v{SC+1}, v{EX+1}, v7\n v_mul_f32 v{SC+2}, v{EX+2}, v7")
                a(f"v_cvt_pk_bf16_f32 v{SC+4}, v{SC}, v{SC+1}\n v_mul_f32 v{SC+3}, v{EX+3}, v7\n v_cvt_pk_bf16_f32 v{SC+5}, v{SC+2}, v{SC+3}")
            a(f"buffer_store_dwordx2 {v(SC+4,2)}, v4, {S_WS}, s{sCUR} offen{ST}")
        for i in range(n):
            r = sets[(i+1) % n]
            a(f"{P}_sok{i}:")
            stamp(a, o, 'w3', 3)
            if o.f2pos == 0: a(f2)
            for q in range(4): a(f"v_fma_f32 v{SC+q}, v{r+q}, s{sSC}, v{OWN+q}")
            a(f"v_maximum3_f32 v7, |v{SC}|, |v{SC+1}|, |v{SC+2}|")
            a(f"v_exp_f32 v{EX}, v{SC}")
            a(f"v_maximum3_f32 v7, v7, |v{SC+3}|, |v{SC+3}|")
            a(f"v_exp_f32 v{EX+1}, v{SC+1}")
            a(f"v_cmp_nle_f32 vcc, v7, v9")
            a(f"v_exp_f32 v{EX+2}, v{SC+2}\n v_exp_f32 v{EX+3}, v{SC+3}")
            a(f"v_add_f32 v7, v{EX}, v{EX+1}\n v_add_f32 v11, v{EX+2}, v{EX+3}")
            if o.sdup:
                a(f"s_cbranch_vccnz {P}_smax")
                if i == n-1: a(f"{P}_sexp:")
                rest()
                if i != n-1: a(f"s_branch {P}_pub")
            elif i != n-1: a(f"s_cbranch_vccz {P}_sexp\n s_branch {P}_smax")
            else: a(f"s_cbranch_vccnz {P}_smax")
        if not o.sdup:
            a(f"{P}_sexp:"); rest()
        a(f"{P}_pub:")
        stamp(a, o, 'w3', 4)
        order = list(range(2,10)) + [0, 1]
        def pround():
            for k in order:
                if k < 2: a(f"buffer_load_dwordx4 {v(PR+4*k,4)}, v{vPA+8}, {S_WS}, s{sCUR} offen offset:{k*1024} sc1")
                else: a(f"buffer_load_dwordx4 {v(PR+4*k,4)}, v{vPA+k-2}, {S_WS}, s{sCUR} offen sc1")
        flag_poll(a, o, P, list(range(FR, FR+o.nf)), f"v{vFA}", 2048, sT3, [80 + i for i in range(len(o.pp))])
        stamp(a, o, 'w3', 40)
        for r in range(o.d2): a(f"v_mov_b32 v{DY+r}, 0")
        pround()
        if o.kf < 0: a(f"buffer_store_byte v{vST}, v{vFS}, {S_WS}, s{sFL} offen{ST}")
        a("s_barrier   ; B3")
        for q in range(4): a(f"ds_read_b128 {v(U+4*q,4)}, v0 offset:{L_UM + 1024*q}")
        a(f"s_add_u32 s{sVO}, s{sVO}, {VO_STEP}\n s_add_u32 s{sM1}, s{sNXT}, 6144\n s_add_u32 s{sMO}, s{sMO}, 8192")
        a(f"v_cmp_gt_u32 vcc, 56, v{vCN}\n s_cbranch_vccnz {P}_vo\n {P}_vo_ok:\n s_add_u32 s{sCN}, s{sCN}, 2048")
        def pu(first):
            for n, k in enumerate(order):
                if n in o.puw:
                    upto = min([x for x in o.puw if x > n] + [10]) - 1
                    a(f"s_waitcnt vmcnt({9-upto + (1 if (first and n > o.kf) else 0)})" + (" lgkmcnt(0)" if upto >= 8 else ""))
                if first: stamp(a, o, 'w3', 50+n)
                a(f"{SM} {v(DP + (4*(n & 1) if o.acc2 else 0),4)}, {v(PR+4*k,4)}, {v(U+8*k,8)}, v1")
                if first and n == o.kf: a(f"buffer_store_byte v{vST}, v{vFS}, {S_WS}, s{sFL} offen{ST}")
                if first and n == o.kgo: a(f"ds_write_b32 v{vGO}, v{vST}")
        pu(True)
        a("s_nop 7" if not o.acc2 else "s_nop 6")
        a(f"{P}_pchk:")
        if o.acc2:
            a(f"v_add_f32 v{DP}, v{DP}, v{DP+1}\n v_add_f32 v{DP+2}, v{DP+2}, v{DP+3}")
            a(f"v_add_f32 v{DP+1}, v{DP+4}, v{DP+5}\n v_add_f32 v{DP+3}, v{DP+6}, v{DP+7}")
        a(f"v_add_f32 v{DP}, v{DP}, v{DP+1}\n v_add_f32 v{DP+2}, v{DP+2}, v{DP+3}")
        a(f"v_cvt_pk_bf16_f32 v7, v{DP}, v{DP+2}")
        a(f"v_cmp_u_f32 vcc, v{DP}, v{DP+2}\n s_nop 0")
        a("v_mov_b32_dpp v11, v7 quad_perm:[1,0,3,2] row_mask:0xf bank_mask:0xf")
        a(f"v_perm_b32 v{vMO}, v7, v11, v8")
        a(f"v_cndmask_b32 v7, v{vMO}, v{NEG}, vcc")
        a(f"buffer_store_dword v7, v5, {S_WS}, s{sNXT} offen{ST}")
        stamp(a, o, 'w3', 5)
        a(f"s_cbranch_vccnz {P}_pfail")
        a(f"{P}_pok:")
        if not o.rlate:
            a(f"buffer_store_dword v{NEG}, v5, {S_WS}, s{sCUR} offen{ST}")
            a(f"buffer_store_dwordx2 {v(NEG,2)}, v4, {S_WS}, s{sPRV} offen{ST}")
            a(f"buffer_store_dwordx4 {v(NEG,4)}, v10, {S_WS}, s{sCUR} offen{ST}")
        a(f"s_mov_b32 s{sPP}, s{sPRV}")
        a(f"v_xor_b32 v{vKX}, 0x1c000, v{vKX}")
        for r in range(8 if o.acc2 else 4): a(f"v_mov_b32 v{DP+r}, 0")
        stamp_flush(a, o, 'w3')
        ring_advance(a)
        a(f"s_add_u32 s{sSTEP}, s{sSTEP}, 1")
        a(f"s_cmp_lt_u32 s{sSTEP}, {o.nsteps}\n s_cbranch_scc1 {P}_loop")
        a(f"buffer_store_dword v{vMO}, v{vMA}, {S_WS}, s{sMO} offen sc1")
        a("s_branch L_team_done")
        vo_wait(f"{P}_vo")
        a(f"{P}_fail:")
        m_exact(a, P, M, 7)
        a("s_waitcnt lgkmcnt(0)")
        budget_check(a)
        for r in range(8): a(f"v_mov_b32 v{DY+r}, 0")
        count(a, o, 56)
        a(f"s_mov_b32 m0, {L_M + 6144}\n s_barrier")
        a(f"buffer_load_dwordx4 v0, {S_WS}, s{sM1} offen sc1 lds")
        a("s_waitcnt vmcnt(0)\n s_barrier")
        for k in KORD: mread(k)
        a(f"s_branch {P}_y")
        a(f"{P}_smax:")
        r = sets[0]
        a(f"s_waitcnt vmcnt(0)\n buffer_load_dwordx4 {v(r,4)}, v{vSG}, {S_WS}, s{sCUR} offen sc1\n s_waitcnt vmcnt(0)")
        a(f"v_max3_u32 v7, v{r}, v{r+1}, v{r+2}\n v_max_u32 v7, v7, v{r+3}\n v_cmp_eq_u32 vcc, -1, v7\n s_cbranch_vccz {P}_smax2")
        budget_check(a)
        a(f"s_branch {P}_smax\n {P}_smax2:")
        for q in range(4): a(f"v_fma_f32 v{SC+q}, v{r+q}, s{sSC}, v{OWN+q}")
        a(f"v_max3_f32 v7, v{SC}, v{SC+1}, v{SC+2}\n v_max_f32 v7, v7, v{SC+3}")
        for sh in (8, 4, 2, 1):
            a("s_nop 1")
            a(f"v_max_f32_dpp v7, v7, v7 row_ror:{sh} row_mask:0xf bank_mask:0xf")
        for q in range(4): a(f"v_sub_f32 v{SC+q}, v{SC+q}, v7")
        for q in range(4): a(f"v_exp_f32 v{EX+q}, v{SC+q}")
        a(f"v_add_f32 v7, v{EX}, v{EX+1}\n v_add_f32 v11, v{EX+2}, v{EX+3}\n s_branch {P}_sexp")
        a(f"{P}_pfail:")
        a("v_mov_b32 v7, 0")
        for r in range(PR, PR+40, 2): a(f"v_max3_u32 v7, v{r}, v{r+1}, v7")
        a(f"v_cmp_eq_u32 vcc, -1, v7\n s_cbranch_vccnz {P}_pagain")
        a(f"buffer_store_dword v{vMO}, v5, {S_WS}, s{sNXT} offen{ST}\n s_branch {P}_pok")
        a(f"{P}_pagain:")
        budget_check(a)
        count(a, o, 58)
        for r in range(8 if o.acc2 else 4): a(f"v_mov_b32 v{DP+r}, 0")
        pround()
        pu(False)
        a("s_nop 7")
        a(f"s_branch {P}_pchk")
    both_modes(a, P, steps)

def team_body(a, o):
    a(f"""
    s_lshr_b32 s{sH}, s{sRANK}, 1
    s_and_b32 s{sJ}, s{sRANK}, 1
    s_sub_u32 s{sT0}, s{sRANK}, 28
    s_cmp_ge_u32 s{sRANK}, 28
    s_cselect_b32 s{sCT}, s{sT0}, s{sRANK}
    s_mov_b32 s{sFL}, {WS_FL}
    s_mov_b32 s{sSTEP}, 0
    s_mov_b32 s{sCUR}, {WS_RING}
    s_mov_b32 s{sNXT}, {WS_RING + 0x10000}
    s_mov_b32 s{sPRV}, {WS_RING + 0x30000}
    s_mov_b32 s{sPP}, {WS_RING + 0x20000}
    v_and_b32 v60, 63, v0
    v_and_b32 v61, 15, v60
    v_lshrrev_b32 v62, 4, v60
    v_lshlrev_b32 v0, 4, v60
    v_and_b32 v63, 1, v60
    v_cmp_eq_u32 vcc, 1, v63
    v_mov_b32 v1, 0x44444444
    v_mov_b32 v63, 0xeeeeeeee
    v_cndmask_b32 v1, v1, v63, vcc
    """)
    a(f"v_mov_b32 v56, 0\n v_mov_b32 v57, {L_MISC + 128}\n ds_write_b32 v57, v56\n s_waitcnt lgkmcnt(0)\n s_barrier")
    if o.diag: a("s_mov_b32 s56, 0\n s_mov_b32 s57, 0\n s_mov_b32 s58, 0")
    a(f"""
    s_cmp_eq_u32 s{sWAVE}, 3
    s_cbranch_scc1 W3_entry
    s_cmp_eq_u32 s{sWAVE}, 2
    s_cbranch_scc1 Y2_entry
    s_cmp_eq_u32 s{sWAVE}, 1
    s_cbranch_scc1 Y1_entry
    """)
    ywave(a, o, 0)
    a("Y1_entry:"); ywave(a, o, 1)
    a("Y2_entry:"); ywave(a, o, 2)
    a("W3_entry:"); wave3(a, o)
```

```python
from asmlib import *
from layout import *

L_M, L_Y, L_UM, L_MISC, L_S, L_B0, L_X, L_X2, L_B1 = 0, 8192, 12288, 16384, 16640, 18432, 0xc000, 0x10000, 0x13800
TEAM_LDS = L_B1 + 30720
SM = "v_smfmac_f32_16x16x64_bf16"
S_WS, S_X, S_DBG = "s[4:7]", "s[8:11]", "s[12:15]"
sRANK, sWAVE, sH, sJ, sSTEP, sCT = 16, 17, 18, 19, 20, 21
sFL, sMODE = 22, 23
sCUR, sNXT, sPRV, sPP = 24, 25, 26, 27
sVO, sXO, sCN, sMO, sBUD = 30, 31, 32, 33, 35
sT0, sT1, sT2, sT3 = 36, 37, 38, 39
sM1, sXT, sXL = 45, 47, 46
OOB = 0x7ff00000
D_GO = 192
SCALE = 0x3db8aa3b
sSC = 44
XSTEP = 32*896

class Opt:
    def __init__(self, **kw):
        self.trace = None; self.diag = True
        self.nsteps = 63
        self.kf = 3; self.nf1 = 5; self.nf = 5; self.ns = 5; self.f2pos = 0; self.kgo = 3; self.nxa = 14; self.kfirst = 0; self.rlate = 1; self.dum = 1; self.yo = 0; self.so = 1; self.w3b = 0; self.cw = 1; self.stl = 0; self.look = 2; self.lsh = 1; self.puw = list(range(10)); self.acc2 = 0; self.nxb = 0; self.d2 = 0; self.funr = 2; self.nv0 = 11; self.b0p = 2
        self.sleep = 4; self.cpf = 0; self.sst = 2; self.b1a = 2; self.p1 = 1; self.ne = 6; self.pw = 2; self.sdup = 1; self.pk = 1; self.kp = -1; self.pp = [5]; self.by = 1; self.outf = ''; self.tlb = 1; self.bwait = 1; self.gate = True; self.budget = 2000000; self.team_xcc = 0
        self.__dict__.update(kw)

def nops(a, n):
    while n > 0:
        k = min(n, 16); a(f"s_nop {k-1}"); n -= k

def load_regs(a, regs, soff, vaddr="v0", fl=" sc1"):
    for i, r in enumerate(regs):
        if i and i % 4 == 0: a(f"s_add_u32 s{soff}, s{soff}, 4096")
        a(f"buffer_load_dwordx4 {v(r,4)}, {vaddr}, {S_WS}, s{soff} offen offset:{(i%4)*1024}{fl}")

TR_S, TR_V3 = 84, 160
def stamp(a, o, kind, pt):
    if o.trace and pt in o.trace.get(kind, []):
        i = o.trace[kind].index(pt)
        a(f"s_memtime s[{TR_S+2*i}:{TR_S+2*i+1}]")
def stamp_flush(a, o, kind, w=None):
    if not o.trace or kind not in o.trace: return
    n = len(o.trace[kind])
    a(f"s_memtime s[52:53]\n s_memrealtime s[54:55]\n s_mov_b32 m0, s{sSTEP}\n s_waitcnt lgkmcnt(0)")
    if kind == 'y':
        a(f"s_lshl_b32 s50, s{sRANK}, 2\n s_add_u32 s50, s50, {w}\n s_lshl_b32 s50, s50, 12\n s_lshl_b32 s51, s{sSTEP}, 2\n s_add_u32 s50, s50, s51\n s_add_u32 s50, s50, {WS_DIAG + 65536}\n v_mov_b32 v62, 0")
        for i in range(n): a(f"v_mov_b32 v63, s{TR_S+2*i}\n buffer_store_dword v63, v62, {S_WS}, s50 offen offset:{256*i}")
        return
    for i in range(n): a(f"v_writelane_b32 v{TR_V3+i}, s{TR_S+2*i}, m0")
    a(f"v_writelane_b32 v{TR_V3+8}, s52, m0\n v_writelane_b32 v{TR_V3+9}, s54, m0")
def count(a, o, r):
    if o.diag: a(f"s_add_u32 s{r}, s{r}, 1")

def ring_advance(a):
    a(f"""
    s_mov_b32 s{sPRV}, s{sCUR}
    s_mov_b32 s{sCUR}, s{sNXT}
    s_add_u32 s{sNXT}, s{sNXT}, 0x10000
    s_and_b32 s{sNXT}, s{sNXT}, {WS_RING | 0x30000}
    """)

def x_dma(a, lo=0, hi=14):
    for q in range(lo, hi):
        if (q - lo) % 4 == 0: a(f"s_add_u32 m0, s{sXL}, {q*1024}\n s_add_u32 s{sT2}, s{sXO}, {q*1024}")
        a(f"buffer_load_dwordx4 v0, {S_WS}, s{sT2} offen offset:{((q-lo)%4)*1024} sc1 lds")
    a(f"s_add_u32 s{sXO}, s{sXO}, {XSTEP}\n s_xor_b32 s{sXL}, s{sXL}, 0x1c000")

def budget_check(a):
    a(f"s_sub_u32 s{sBUD}, s{sBUD}, 1\n s_cmp_eq_u32 s{sBUD}, 0\n s_cbranch_scc1 L_team_done")

def flag_poll(a, o, P, regs, vaddr, off, s_want, pre=()):
    n = len(regs)
    a("s_mov_b64 exec, 0xff")
    def body(i, wait=True):
        a(f"buffer_load_dword v{regs[i]}, {vaddr}, {S_WS}, s{sFL} offen offset:{off} sc1")
        if wait: a(f"s_waitcnt vmcnt({n-1})")
        a(f"v_cmp_ne_u32 vcc, s{s_want}, v{regs[(i+1)%n]}")
        a(f"s_cbranch_vccz {P}_fok")
    if pre:
        for i in range(n-1):
            a(f"buffer_load_dword v{regs[i]}, {vaddr}, {S_WS}, s{sFL} offen offset:{off} sc1")
            k = i - (n - 1 - len(pre))
            if k >= 0: a(f"s_waitcnt vmcnt({len(pre) - 1 - k + 1 + i + 1})")
            a(f"v_cmp_ne_u32 vcc, s{s_want}, v{pre[max(k, 0)] if k >= 0 else regs[i+1]}")
            a(f"s_cbranch_vccz {P}_fok")
    else:
        for i in range(n-1): body(i, False)
    body(n-1)
    a(f"{P}_fpoll:")
    for _ in range(o.funr):
        for i in range(n): body(i)
    a(f"s_sub_u32 s{sBUD}, s{sBUD}, 1\n s_cmp_lg_u32 s{sBUD}, 0\n s_cbranch_scc1 {P}_fpoll\n s_branch L_team_done")
    a(f"{P}_fok:")
    a("s_mov_b64 exec, -1")

KORD = (0, 1, 2, 6, 3, 4, 5)

def ywave(a, o, w):
    P = f"Y{w}"
    D, M, T = 12, 28, 8
    Aop = lambda t, k: 256 + (t*7 + k)*8
    def Bop(hh, k):
        i = hh*7 + k
        return 256 + 224 + i*8 if i < 4 else 64 + (i-4)*8
    def lds_wait(L, level):
        a(f"""
        v_mov_b32 v57, {L_MISC + 128}
        {L}:
        ds_read_b32 v56, v57
        s_waitcnt lgkmcnt(0)
        v_cmp_gt_u32 vcc, {level}, v56
        s_cbranch_vccz {L}_ok
        s_sleep 1
        s_sub_u32 s{sBUD}, s{sBUD}, 1
        s_cmp_lg_u32 s{sBUD}, 0
        s_cbranch_scc1 {L}
        s_branch L_team_done
        {L}_ok:
        """)
    lds_wait(f"{P}_wa", 1)
    if w == 0: tstamp(a, 4, sWAVE, tmp=(56, 57)); dstamp(a, 5, sWAVE, tmp=(56, 57))
    a(f"s_mul_i32 s{sT0}, s{sRANK}, {A_RANK}\n s_add_u32 s{sT0}, s{sT0}, {WS_A + w*4*7*2048}")
    load_regs(a, [Aop(t,k)+4*hf for t in range(4) for k in range(7) for hf in range(2)], sT0)
    lds_wait(f"{P}_wb", 2)
    if w == 0: dstamp(a, 11, sWAVE, tmp=(56, 57))
    a(f"s_mul_i32 s{sT0}, s{sCT}, {B_CT}\n s_add_u32 s{sT0}, s{sT0}, {WS_B + w*4*7*2048}")
    load_regs(a, [Bop(h,k)+4*hf for h in range(4) for k in range(7) for hf in range(2)][:54 if w < 2 else 56], sT0)
    if w < 2:
        for q in range(30):
            if q % 4 == 0:
                a(f"s_mul_i32 s{sT0}, s{sCT}, {B_CT}\n s_add_u32 s{sT0}, s{sT0}, {WS_B + ((12+2*w)*14 + q if q < 28 else (4*w+3)*14 + 12)*1024}\n s_mov_b32 m0, {(L_B0, L_B1)[w] + q*1024}\n s_nop 0")
            a(f"buffer_load_dwordx4 v0, {S_WS}, s{sT0} offen offset:{(q%4)*1024} sc1 lds")
    y_addr(a, w)
    a(f"""
    v_lshrrev_b32 v63, 1, v62
    v_lshlrev_b32 v6, 8, v63
    v_lshl_add_u32 v6, v61, 4, v6
    v_and_b32 v63, 1, v62
    v_lshl_add_u32 v6, v63, 3, v6
    v_add_u32 v6, {L_UM + w*1024}, v6
    v_add_u32 v7, {(L_B0, L_B1, 0)[w]}, v0
    v_mov_b32 v4, {L_MISC + 64}
    v_and_b32 v2, 31, v60
    v_lshlrev_b32 v2, 2, v2
    """)
    a(f"s_mul_i32 s{sXO}, s{sJ}, 14336\n s_add_u32 s{sXO}, s{sXO}, {WS_XP}\n s_mov_b32 s{sXL}, {L_X}")
    if w == 2:
        lds_wait(f"{P}_ws", 3)
        x_dma(a)
        if o.tlb:
            if o.tlb == 1: a(f"v_min_u32 v56, 14, v60\n v_lshlrev_b32 v56, 21, v56\n s_mov_b32 s{sT0}, {WS_VO}\n buffer_load_dword v57, v56, {S_WS}, s{sT0} offen sc1")
            else: a(f"v_mul_u32_u24 v56, {VO_STEP}, v60\n s_lshl_b32 s{sT0}, s{sCT}, 14\n s_add_u32 s{sT0}, s{sT0}, {WS_VO}\n buffer_load_dword v57, v56, {S_WS}, s{sT0} offen sc1")
        a(f"v_lshlrev_b32 v56, 16, v62\n v_lshl_add_u32 v56, v61, 4, v56\n s_mul_i32 s{sT0}, s{sRANK}, 1280\n s_add_u32 s{sT0}, s{sT0}, {WS_RING}")
        for k in range(5): a(f"buffer_load_dwordx4 v[12:15], v56, {S_WS}, s{sT0} offen offset:{256*k} sc1")
    team_sync(a, o, P, w)
    pc = (w - max(o.b1a, 0)) % 3
    FRG = [56, 57, 58, 59, 60, 61, 62, 63, 8, 9, 10, 11][:o.nf1]
    def steps(P, ST):
        a(f"{P}_loop:")
        a(f"s_add_u32 s{sM1}, s{sCUR}, {pc*1024}")
        for r in range(16): a(f"v_mov_b32 v{D+r}, 0")
        if w == o.pw:
            a(f"s_mul_i32 s{sT3}, s{sSTEP}, 0x01010101")
            for r in FRG[1:]: a(f"v_mov_b32 v{r}, -1")
        if w == 1 and DBGT['on']:
            for st, word in ((4, 7), (32, 8)):
                L = a.uid("DT"); a(f"s_cmp_lg_u32 s{sSTEP}, {st}\n s_cbranch_scc1 {L}"); dstamp(a, word, sWAVE, tmp=(56, 57), wave=1); a(f"{L}:")
        second = w == 1 and o.nxa < 14
        if w == o.pw or second:
            a(f"""
            {P}_go:
            ds_read_b32 v56, v4
            s_waitcnt lgkmcnt(0)
            v_cmp_gt_u32 vcc, s{sSTEP}, v56
            s_cbranch_vccz {P}_go_ok
            s_sub_u32 s{sBUD}, s{sBUD}, 1
            s_cmp_lg_u32 s{sBUD}, 0
            s_cbranch_scc1 {P}_go
            s_branch L_team_done
            {P}_go_ok:
            """)
        if second: x_dma(a, o.nxa, 14)
        if w != o.pw: a("s_waitcnt vmcnt(0)")
        a(f"s_mov_b32 m0, {L_M + pc*1024}")
        if w == o.pw: flag_poll(a, o, P, FRG, "v2", 0, sT3)
        early = w == o.pw == o.b1a
        if early: a(f"buffer_load_dwordx4 v0, {S_WS}, s{sM1} offen sc1 lds")
        a("s_barrier   ; B0")
        stamp(a, o, 'y', 0)
        if o.p1 and w != o.b1a and o.pw != o.b1a: nops(a, o.p1)
        if not early: a(f"buffer_load_dwordx4 v0, {S_WS}, s{sM1} offen sc1 lds")
        a("s_barrier   ; B0'")
        a(f"buffer_load_dwordx4 v0, {S_WS}, s{sM1} offen offset:3072 sc1 lds")
        nx = 0
        sm = lambda t, k: a(f"{SM} {v(D+4*t,4)}, {v(M+4*k,4)}, {v(Aop(t,k),8)}, v1")
        mread = lambda k: a(f"ds_read_b128 {v(M+4*k,4)}, v0 offset:{L_M + 1024*k}")
        if o.b1a >= 0:
            if w == o.b1a: a(f"s_waitcnt vmcnt({1+nx})")
            a("s_barrier   ; B1a"); mread(KORD[0])
        a(f"s_waitcnt vmcnt({1+nx})")
        stamp(a, o, 'y', 11)
        a("s_barrier   ; B1")
        for k in KORD[1 if o.b1a >= 0 else 0:4]: mread(k)
        a("s_waitcnt lgkmcnt(3)")
        stamp(a, o, 'y', 12)
        sm(0,0); sm(1,0); sm(2,0)
        a(f"s_waitcnt vmcnt({nx})\n s_barrier   ; B1'")
        sm(3,0)
        for k in KORD[4:]: mread(k)
        a(f"{P}_y:")
        rest = list(KORD[1:])
        if o.yo == 0:
            a("s_waitcnt lgkmcnt(5)")
            sm(0,1); sm(1,1); sm(2,1); sm(3,1); rest = rest[1:]
        for n, k in enumerate(rest):
            a(f"s_waitcnt lgkmcnt({len(rest)-1-n})"); sm(0,k); sm(1,k)
        z = [f"v_mov_b32 v{D+r}, 0" for r in range(8)]
        fill = [["s_nop 1"], ["s_nop 1"],
                [f"v_add_f32 v{D}, v{D}, v{D+1}", f"v_add_f32 v{D+2}, v{D+2}, v{D+3}"],
                [f"v_add_f32 v{D+4}, v{D+4}, v{D+5}", f"v_add_f32 v{D+6}, v{D+6}, v{D+7}"],
                [f"v_cvt_pk_bf16_f32 v{T}, v{D}, v{D+4}", f"v_cvt_pk_bf16_f32 v{T+1}, v{D+2}, v{D+6}"],
                [f"ds_write2_b32 v3, v{T}, v{T+1} offset0:0 offset1:8", f"v_cmp_u_f32 vcc, v{D}, v{D+2}"],
                z[0:2], z[2:4]]
        fill += [z[4:6]]*(o.by == 2) + [["s_waitcnt lgkmcnt(0)", "s_barrier   ; B1y"]]; left = z[6:] if o.by == 2 else z[4:]
        seq2 = [(t, k) for k in rest for t in (2, 3)]
        for n, (t, k) in enumerate(seq2):
            sm(t, k)
            if n == len(seq2) - 1: break
            if fill:
                for l in fill.pop(0): a(l)
            elif left: a(left.pop(0)); a(left.pop(0))
        assert not fill
        stamp(a, o, 'y', 15)
        for l in left: a(l)
        nops(a, 6 - len(left))
        a(f"v_add_f32 v{D+8}, v{D+8}, v{D+9}\n v_add_f32 v{D+10}, v{D+10}, v{D+11}")
        a(f"v_add_f32 v{D+12}, v{D+12}, v{D+13}\n v_add_f32 v{D+14}, v{D+14}, v{D+15}")
        a(f"v_cvt_pk_bf16_f32 v{T+2}, v{D+8}, v{D+12}")
        a(f"v_cvt_pk_bf16_f32 v{T+3}, v{D+10}, v{D+14}")
        a(f"ds_write2_b32 v5, v{T+2}, v{T+3} offset0:0 offset1:8")
        a(f"s_cbranch_vccnz {P}_fail")
        a(f"{P}_yok:")
        for r in range(8, 16): a(f"v_mov_b32 v{D+r}, 0")
        a("s_waitcnt lgkmcnt(0)")
        stamp(a, o, 'y', 16)
        a("s_barrier   ; B2")
        if w == 2 and o.nxb:
            t = Asm(); x_dma(t, 0, o.nxb)
            for l in t.lines[:-2]: a(l)
        if w < 2: mb_six(a, D, M, T, Bop, w)
        else: mb_four(a, D, M, T, Bop)
        a("s_waitcnt lgkmcnt(0)")
        stamp(a, o, 'y', 4)
        a("s_barrier   ; B3")
        if w == 2 and not getattr(o, 'nox', 0): x_dma(a, o.nxb, o.nxa)
        if w == 0 and o.stl:
            a(f"s_add_u32 s{sT0}, s{sSTEP}, {o.stl}\n s_mul_i32 s{sT0}, s{sT0}, {VO_STEP}\n s_lshl_b32 s{sT1}, s{sCT}, 14\n s_add_u32 s{sT0}, s{sT0}, s{sT1}\n s_add_u32 s{sT0}, s{sT0}, {WS_VO}")
            a(f"s_buffer_load_dword s42, {S_WS}, s{sT0}")
        stamp_flush(a, o, 'y', w)
        ring_advance(a)
        a(f"s_add_u32 s{sSTEP}, s{sSTEP}, 1\n s_cmp_lt_u32 s{sSTEP}, {o.nsteps}\n s_cbranch_scc1 {P}_loop")
        a(f"s_branch L_team_done")
        a(f"{P}_fail:")
        m_exact(a, P, M, 56)
        a("s_waitcnt vmcnt(1) lgkmcnt(0)".replace("vmcnt(1) ", ""))
        budget_check(a)
        for r in range(16): a(f"v_mov_b32 v{D+r}, 0")
        count(a, o, 56)
        a(f"s_mov_b32 m0, {L_M + pc*1024}\n s_barrier")
        a(f"buffer_load_dwordx4 v0, {S_WS}, s{sM1} offen sc1 lds")
        a(f"buffer_load_dwordx4 v0, {S_WS}, s{sM1} offen offset:3072 sc1 lds")
        a("s_waitcnt vmcnt(0)\n s_barrier")
        for k in KORD: mread(k)
        a("s_waitcnt lgkmcnt(6)")
        sm(0,0); sm(1,0); sm(2,0); sm(3,0)
        a(f"s_branch {P}_y")
    both_modes(a, P, steps)

def m_exact(a, P, M, t):
    a(f"v_max_u32 v{t}, v{M}, v{M+1}")
    for r in range(M+2, M+28, 2): a(f"v_max3_u32 v{t}, v{t}, v{r}, v{r+1}")
    a(f"v_cmp_eq_u32 vcc, -1, v{t}\n s_cbranch_vccz {P}_yok")

epi = lambda d, t: [f"v_add_f32 v{d}, v{d}, v{d+1}", f"v_add_f32 v{d+2}, v{d+2}, v{d+3}", f"v_cvt_pk_bf16_f32 v{t}, v{d}, v{d+2}"]

def mb_four(a, D, M, T, Bop):
    pend = []
    for hh in range(4):
        for k in range(7):
            a(f"{SM} {v(D+4*hh,4)}, {v(M+4*k,4)}, {v(Bop(hh,k),8)}, v1")
            if pend and k >= 4:
                if k == 4: a("s_nop 2")
                a(pend.pop(0))
        pend = epi(D + 4*hh, T + hh)
    a("s_nop 7")
    for l in pend: a(l)
    a(f"ds_write_b64 v6, {v(T,2)}")
    a(f"ds_write_b64 v6, {v(T+2,2)} offset:512")

def mb_six(a, D, M, T, Bop, w):
    SB = [56, Bop(3,6)]
    nxt = [0]; q = []
    def fetch():
        i = nxt[0]
        if i >= 15: return
        nxt[0] += 1
        a(f"ds_read_b128 {v(SB[i%2],4)}, v7 offset:{i*2048}")
        a(f"ds_read_b128 {v(SB[i%2]+4,4)}, v7 offset:{i*2048 + 1024}")
        q.extend([("f", i)]*2)
    def need(tag):
        if tag in q:
            last = len(q) - 1 - q[::-1].index(tag)
            a(f"s_waitcnt lgkmcnt({len(q)-1-last})"); del q[:last+1]
    sm = lambda d, k, b: a(f"{SM} {v(d,4)}, {v(M+4*k,4)}, {v(b,8)}, v1")
    for k in range(7):
        sm(D+12, k, Bop(2,k))
        if k in (4, 5): fetch()
    for k in range(7):
        sm(D, k, Bop(0,k)); sm(D+4, k, Bop(1,k))
        need(("f", k)); sm(D+8, k, SB[k%2]); fetch()
        if k == 2:
            for l in epi(D+12, T+2): a(l)
            for r in range(4): a(f"v_mov_b32 v{D+12+r}, 0")
    fill = ["s_nop 3"] + epi(D, T) + epi(D+4, T+1) + [f"v_mov_b32 v{D+r}, 0" for r in range(4)] + [f"ds_write_b64 v6, {v(T,2)}"] + epi(D+8, T)
    for k in range(6):
        sm(D+12, k, Bop(3,k))
        for _ in range(3):
            if fill:
                l = fill.pop(0); a(l)
                if l.startswith("ds_"): q.append("w")
    assert not fill
    for k in range(7):
        need(("f", 7+k)); sm(D, k, SB[(7+k)%2]); fetch()
    need(("f", 14)); sm(D+12, 6, SB[0])
    a("s_nop 6")
    for l in epi(D, T+1) + epi(D+12, T+3): a(l)
    a(f"ds_write_b64 v6, {v(T,2)} offset:{3072 - 512*w}")
    a(f"ds_write_b64 v6, {v(T+2,2)} offset:512")

def y_addr(a, w):
    a(f"""
    v_lshrrev_b32 v63, 3, v61
    v_lshlrev_b32 v3, 8, v63
    v_lshl_add_u32 v3, v62, 6, v3
    v_bfe_u32 v63, v61, 1, 1
    v_lshl_add_u32 v3, v63, 4, v3
    v_bfe_u32 v63, v61, 2, 1
    v_lshl_add_u32 v3, v63, 3, v3
    v_and_b32 v63, 1, v61
    v_lshl_add_u32 v3, v63, 2, v3
    v_add_u32 v3, {L_Y + (w*512 if w < 3 else 3584)}, v3
    """)
    if w < 3: a("v_add_u32 v5, 2048, v3")

def dbg_wait(a, L, off, need, t, fl="sc0 sc1"):
    a(f"""
    v_mov_b32 v{t+1}, {off}
    {L}:
    buffer_load_dword v{t}, v{t+1}, {S_DBG}, 0 offen {fl}
    s_waitcnt vmcnt(0)
    v_readfirstlane_b32 s{sT0}, v{t}
    s_and_b32 s{sT1}, s{sT0}, 0xffff
    s_cmp_ge_u32 s{sT1}, {need}
    s_cbranch_scc1 {L}_ok
    s_sub_u32 s{sBUD}, s{sBUD}, 1
    s_cmp_lg_u32 s{sBUD}, 0
    s_cbranch_scc1 {L}
    s_branch L_team_done
    {L}_ok:
    """)

def wait_done(a, what, t0, t1, dead, sleep=""):
    L = a.uid("WD"); first, n, need = {'A': (0, 4, 64), 'B': (4, 4, 64), 'S': (8, 2, 64), 'a': (0, 1, 64)}[what]
    a(f"""
    v_mbcnt_lo_u32_b32 v{t1}, -1, 0
    v_and_b32 v{t1}, {n-1}, v{t1}
    v_lshlrev_b32 v{t1}, 7, v{t1}
    s_mov_b32 s41, {WS_DONE + first*128}
    {f's_lshr_b32 s40, s{sH}, 2' if what == 'a' else ''}
    {f's_lshl_b32 s40, s40, 7' if what == 'a' else ''}
    {f's_add_u32 s41, s41, s40' if what == 'a' else ''}
    s_mov_b64 exec, {(1 << n) - 1}
    {L}:
    buffer_load_dword v{t0}, v{t1}, {S_WS}, s41 offen sc1
    s_waitcnt vmcnt(0)
    v_cmp_gt_u32 vcc, {hex(need)}, v{t0}
    s_cbranch_vccz {L}_ok
    {sleep}
    s_sub_u32 s{sBUD}, s{sBUD}, 1
    s_cmp_lg_u32 s{sBUD}, 0
    s_cbranch_scc1 {L}
    s_branch {dead}
    {L}_ok:
    s_mov_b64 exec, -1
    """)

def team_sync(a, o, P, w):
    if o.cw:
        t = 56 if w < 3 else 64
        a(f"s_getpc_b64 s[40:41]\n {P}_ref:\n v_lshlrev_b32 v{t}, 2, v0\n v_add_u32 v{t}, {P}_loop - {P}_ref, v{t}")
        a(f"global_load_dword v{t+1}, v{t}, s[40:41]\n v_add_u32 v{t}, 4096, v{t}\n global_load_dword v{t+1}, v{t}, s[40:41]")
    a("s_waitcnt vmcnt(0) lgkmcnt(0)")
    if w == 0: tstamp(a, 9, sWAVE, tmp=(56, 57))
    if w == 1:
        a(f"s_cmp_lg_u32 s{sRANK}, 0\n s_cbranch_scc1 {P}_nogo\n v_mov_b32 v56, 1\n v_mov_b32 v57, {D_GO}\n buffer_store_dword v56, v57, {S_DBG}, 0 offen sc1\n {P}_nogo:")
    a("s_barrier")
    if w < 3: a(f"v_mov_b32 v58, {L_MISC}\n ds_read_b32 v58, v58\n s_waitcnt lgkmcnt(0)\n v_readfirstlane_b32 s{sMODE}, v58")
    if w == 0: tstamp(a, 6, sWAVE, tmp=(56, 57)); dstamp(a, 6, sWAVE, tmp=(56, 57))

def both_modes(a, P, steps):
    a(f"s_cmp_lg_u32 s{sMODE}, 0\n s_cbranch_scc1 {P}_far")
    steps(P, "")
    a(f"{P}_far:")
    steps(P + "f", " sc1")

def wave3(a, o):
    P = "W3"
    DY, DS, M, NEG = 12, 20, 32, 60
    EX, SC, OWN, PR, FR = 64, 68, 76, 96, 136
    vFA, vFS, vST, vXT, vXD, vSG, vPA, vMO, vMA, vCN = 142, 143, 144, 145, 146, 147, 148, 157, 158, 159
    vSX, vS0, vL0, vK0, vK1, vVA, vZ, DP, YO, KM, SET = 170, 171, 172, 173, 174, 176, 184, 84, 192, 208, 236
    vGO, vKX, vCK = 185, 186, 187
    sTH, sT5, sRD, sTG = 50, 51, 28, 29
    U, KX = 256 + 112, 256 + 192
    Aop = lambda t, k: 256 + (t*7 + k)*8
    def watch(level, what):
        wait_done(a, what, 56, 57, "L_team_done", "s_sleep 4" if what == 'S' else "")
        a(f"v_mov_b32 v56, {level}\n v_mov_b32 v57, {L_MISC + 128}\n ds_write_b32 v57, v56")
    watch(1, 'a')
    a("s_mov_b64 exec, 1")
    dbg_wait(a, "W3_seats", 0, 32, 56)
    a(f"s_mov_b64 exec, -1\n s_lshr_b32 s{sMODE}, s{sT0}, 16\n v_mov_b32 v56, s{sMODE}\n v_mov_b32 v57, {L_MISC}\n ds_write_b32 v57, v56")
    y_addr(a, 3)
    for k in range(8):
        a(f"s_add_u32 s{sT0}, s{sRANK}, {k}\n s_and_b32 s{sT0}, s{sT0}, 7")
        a(f"s_lshl_b32 s{sT1}, s{sT0}, 11\n v_add_u32 v{vVA+k}, s{sT1}, v0")
        a(f"s_lshl_b32 s{sT1}, s{sT0}, 10\n s_add_u32 s{sT1}, s{sT1}, {R_P + 2048}\n v_add_u32 v{vPA+k}, s{sT1}, v0")
    a(f"""
    v_add_u32 v{vPA+8}, {R_P}, v0
    v_add_u32 v{vKX}, {L_X}, v0
    v_and_b32 v{vK0}, 7, v61
    v_lshlrev_b32 v{vK0}, 5, v{vK0}
    v_lshrrev_b32 v63, 1, v62
    v_lshl_add_u32 v{vK0}, v63, 8, v{vK0}
    v_and_b32 v63, 1, v62
    v_lshl_add_u32 v{vK0}, v63, 3, v{vK0}
    s_mul_i32 s{sT0}, s{sJ}, {14*256}
    v_add_u32 v{vK0}, s{sT0}, v{vK0}
    v_add_u32 v{vK1}, 2048, v{vK0}
    v_mul_u32_u24 v6, 320, v63
    v_lshl_add_u32 v6, v61, 2, v6
    v_lshrrev_b32 v63, 1, v62
    v_cmp_eq_u32 vcc, s{sJ}, v63
    v_cmp_gt_u32 s[40:41], 8, v61
    s_xor_b32 s{sT0}, s{sRANK}, 1
    s_mul_i32 s{sT0}, s{sT0}, 640
    s_add_u32 s{sT0}, s{sT0}, {R_S}
    v_add_u32 v59, s{sT0}, v6
    v_add_u32 v6, {L_S}, v6
    v_mov_b32 v58, {OOB}
    v_mov_b32 v57, {L_S + 1024}
    v_cndmask_b32 v{vSX}, v59, v58, vcc
    v_cndmask_b32 v6, v57, v6, vcc
    v_cndmask_b32 v{vS0}, v58, v{vSX}, s[40:41]
    v_cndmask_b32 v{vL0}, v57, v6, s[40:41]
    v_cmp_gt_u32 vcc, 10, v61
    v_mov_b32 v63, 0x7f800000
    v_mov_b32 v9, 0x42800000
    v_mul_u32_u24 v2, 160, v62
    v_cndmask_b32 v9, v63, v9, vcc
    v_cndmask_b32 v63, 0, v61, vcc
    v_lshl_add_u32 v2, v63, 4, v2
    s_mul_i32 s{sT0}, s{sRANK}, 640
    s_add_u32 s{sT0}, s{sT0}, {R_S}
    v_add_u32 v{vSG}, s{sT0}, v2
    v_add_u32 v2, {L_S}, v2
    v_mov_b32 v63, {L_S + 1536}
    v_cndmask_b32 v2, v63, v2, vcc
    v_mov_b32 v{SC}, 0xf149f2ca
    v_mov_b32 v{SC+1}, 0xf149f2ca
    v_mov_b32 v{SC+2}, 0xf149f2ca
    v_mov_b32 v{SC+3}, 0xf149f2ca
    ds_write_b128 v63, {v(SC,4)}
    v_cndmask_b32 v10, v58, v{vSG}, vcc
    v_lshrrev_b32 v59, 1, v61
    s_lshl_b32 s{sT0}, s{sH}, 2
    s_add_u32 s{sT0}, s{sT0}, 15
    v_add_u32 v59, s{sT0}, v59
    v_mov_b32 v57, s{sH}
    v_cmp_gt_u32 s[40:41], 2, v61
    s_nop 1
    v_cndmask_b32 v59, v59, v57, s[40:41]    ; u
    v_lshrrev_b32 v57, 1, v59
    v_lshlrev_b32 v4, 8, v57
    v_and_b32 v57, 1, v59
    v_lshl_add_u32 v4, v57, 4, v4
    v_and_b32 v57, 1, v61
    v_lshl_add_u32 v4, v57, 3, v4
    v_lshl_add_u32 v4, v62, 5, v4
    s_lshl_b32 s{sT0}, s{sJ}, 7
    s_add_u32 s{sT0}, s{sT0}, {R_P}
    v_add_u32 v4, s{sT0}, v4
    v_cndmask_b32 v4, v58, v4, vcc
    v_cmp_eq_u32 vcc, 0, v60
    s_nop 0
    v_mov_b32 v57, s{sRANK}
    v_cndmask_b32 v{vFS}, v58, v57, vcc
    v_and_b32 v57, 7, v60
    v_lshlrev_b32 v{vFA}, 2, v57
    v_mov_b32 v{vST}, 0
    v_mov_b32 v{vGO}, {L_MISC + 64}
    ds_write_b32 v{vGO}, v{vST}
    v_and_b32 v58, 1, v61
    v_lshl_add_u32 v59, v62, 1, v58
    v_lshlrev_b32 v5, 5, v59
    v_bfe_u32 v57, v61, 1, 1
    v_lshl_add_u32 v5, v57, 4, v5
    v_lshrrev_b32 v57, 2, v61
    v_lshl_add_u32 v5, v57, 2, v5
    s_lshl_b32 s{sT0}, s{sRANK}, 8
    v_add_u32 v5, s{sT0}, v5
    v_lshlrev_b32 v{vMA}, 4, v59
    v_bfe_u32 v57, v61, 3, 1
    v_lshl_add_u32 v{vMA}, v57, 7, v{vMA}
    v_bfe_u32 v57, v61, 1, 2
    v_lshl_add_u32 v{vMA}, v57, 2, v{vMA}
    v_add_u32 v{vMA}, s{sT0}, v{vMA}
    v_mov_b32 v{vZ}, 0
    v_cmp_eq_u32 vcc, 1, v58
    v_mov_b32 v8, 0x01000504
    v_mov_b32 v57, 0x07060302
    v_cndmask_b32 v8, v8, v57, vcc
    v_mul_u32_u24 v59, 896, v59
    v_lshrrev_b32 v57, 1, v61
    v_lshl_add_u32 v59, v57, 2, v59
    s_lshl_b32 s{sT0}, s{sCT}, 5
    v_add_u32 v59, s{sT0}, v59
    buffer_load_dword v{vMO}, v59, s[60:63], 0 offen
    v_min_u32 v{vXT}, 13, v60
    v_lshlrev_b32 v{vXT}, 6, v{vXT}
    s_lshl_b32 s{sT1}, s{sCT}, 14
    s_add_u32 s{sVO}, s{sT1}, {WS_VO}
    s_mul_i32 s{sXT}, s{sRANK}, 896
    s_add_u32 s{sXT}, s{sXT}, {WS_XP + XSTEP}
    s_mov_b32 s{sMO}, {WS_MO}
    s_mov_b32 s{sSC}, {SCALE}
    s_cmp_eq_u32 s{sRANK}, 31
    s_cselect_b32 s{sT5}, 56, 0
    s_cselect_b32 s{sT0}, 0, {OOB}
    v_mov_b32 v{vCK}, s{sT0}
    s_sub_u32 s49, s{sJ}, 1
    s_not_b32 s48, s49
    s_mov_b32 s{sCN}, {WS_CNT + C_VO}
    """)
    if o.dum:
        a(f"s_cmp_lt_u32 s{sRANK}, 28\n s_cbranch_scc1 W3_real")
        for r in list(range(vPA, vPA+9)) + list(range(vVA, vVA+8)): a(f"v_mov_b32 v{r}, {OOB}")
        a("W3_real:")
    if getattr(o, 'novo', 0):
        for r in range(vVA, vVA+8): a(f"v_mov_b32 v{r}, {OOB}")
    for r in range(20): a(f"v_mov_b32 v{DY+r}, 0")
    for r in range(4): a(f"v_mov_b32 v{NEG+r}, -1\n v_mov_b32 v{DP+r}, 0\n v_mov_b32 v{DP+4+r}, 0")
    for r in range(6): a(f"v_mov_b32 v{FR+r}, 0")
    a(f"ds_write_b128 v0, {v(DY,4)} offset:{L_Y + 1024}")
    a("s_waitcnt vmcnt(0)")
    def init(P, ST):
        a(f"buffer_store_byte v{vST}, v{vFS}, {S_WS}, s{sFL} offen{ST}")
        a(f"buffer_store_byte v{vST}, v{vFS}, {S_WS}, s{sFL} offen offset:2048{ST}")
        for sl in range(4):
            a(f"s_mov_b32 s{sT0}, {WS_RING + sl*0x10000}")
            a(f"buffer_store_dwordx4 {v(NEG,4)}, v10, {S_WS}, s{sT0} offen{ST}")
            a(f"buffer_store_dwordx2 {v(NEG,2)}, v4, {S_WS}, s{sT0} offen{ST}")
            a(f"buffer_store_dword v{NEG if sl else vMO}, v5, {S_WS}, s{sT0} offen{ST}")
        if not ST: a("s_branch W3_inited")
    both_modes(a, "W3i", init)
    a("W3_inited:")
    a(f"s_waitcnt vmcnt(0)\n s_mov_b64 exec, 1\n v_mov_b32 v56, 1\n v_mov_b32 v57, 64\n buffer_atomic_add v56, v57, {S_DBG}, 0 offen")
    a("s_mov_b64 exec, -1")
    watch(2, 'B'); watch(3, 'S')
    a(f"s_mul_i32 s{sT0}, s{sRANK}, {A_RANK}\n s_add_u32 s{sT0}, s{sT0}, {WS_A + 12*7*2048}")
    load_regs(a, [Aop(t,k)+4*hf for t in range(2) for k in range(7) for hf in range(2)], sT0)
    def arm(ahead):
        a(f"""
        s_lshr_b32 s{sT0}, s{sSTEP}, {o.lsh}
        s_add_u32 s{sT0}, s{sT0}, s{sSTEP}
        s_add_u32 s{sT0}, s{sT0}, {ahead + o.look}
        s_min_u32 s{sT0}, s{sT0}, 63
        s_lshl_b32 s{sCN}, s{sT0}, 11
        s_add_u32 s{sCN}, s{sCN}, {WS_CNT + C_VO}
        s_add_u32 s{sT1}, s{sSTEP}, {ahead}
        s_cmp_le_u32 s{sT1}, s{sRD}
        s_cselect_b32 s{sCN}, {OOB}, s{sCN}
        s_cselect_b32 s{sTH}, 0, s{sT5}
        s_cselect_b32 s{sTG}, s{sRD}, s{sT0}
        """)
    def vo_wait(L, ok):
        a(f"""
        {L}:
        buffer_load_dword v{vCN}, v{vZ}, {S_WS}, s{sCN} offen sc1
        s_waitcnt vmcnt(0)
        v_cmp_gt_u32 vcc, 56, v{vCN}
        s_cbranch_vccz {ok}
        s_sub_u32 s{sBUD}, s{sBUD}, 1
        s_cmp_lg_u32 s{sBUD}, 0
        s_cbranch_scc1 {L}
        s_branch L_team_done
        """)
    a("s_mov_b64 exec, 1")
    dbg_wait(a, "W3_tsync", 64, 32, 56)
    a("s_mov_b64 exec, -1")
    vo_wait("W3_vo0", "W3_vo0_ok"); a("W3_vo0_ok:")
    a(f"s_mov_b32 s{sRD}, 0"); arm(1)
    team_sync(a, o, P, 3)
    HORD = (0, 2, 4, 1, 3, 5, 6)
    KT = (KM, KX, KX + 28); KOF = (0, 8, 12, 20)
    def steps(P, ST):
        a(f"s_add_u32 s{sM1}, s{sCUR}, 6144\n s_mov_b32 s{sT3}, 0")
        a(f"{P}_loop:")
        a(f"s_mov_b32 m0, {L_M + 6144}")
        a("s_barrier   ; B0")
        stamp(a, o, 'w3', 0)
        if o.pw != o.b1a: nops(a, o.p1)
        a(f"buffer_load_dwordx4 v0, {S_WS}, s{sM1} offen sc1 lds")
        vq = [f"buffer_store_dword v{vMO}, v{vMA}, {S_WS}, s{sMO} offen sc1",
              f"buffer_load_dword v{vCN}, v{vCK}, {S_WS}, s{sCN} offen sc1",
              f"buffer_load_dword v{vXD}, v{vXT}, {S_WS}, s{sXT} offen sc1"]
        if getattr(o, 'nocn', 0): vq[1] = f"buffer_load_dword v{vXD}, v{vZ}, {S_WS}, s{sFL} offen sc1"
        if getattr(o, 'noxt', 0): vq[2] = f"buffer_load_dword v{vXD}, v{vZ}, {S_WS}, s{sFL} offen sc1"
        if o.rlate:
            vq += [f"buffer_store_dword v{NEG}, v5, {S_WS}, s{sPRV} offen{ST}", f"buffer_store_dwordx2 {v(NEG,2)}, v4, {S_WS}, s{sPP} offen{ST}",
                   f"buffer_store_dwordx4 {v(NEG,4)}, v10, {S_WS}, s{sPRV} offen{ST}"]
        for k in range(8):
            vq.append(f"buffer_load_dwordx4 {v(U+16+8*k,4)}, v{vVA+k}, {S_WS}, s{sVO} offen sc1")
            vq.append(f"buffer_load_dwordx4 {v(U+20+8*k,4)}, v{vVA+k}, {S_WS}, s{sVO} offen offset:1024 sc1")
        a("s_barrier   ; B0'")
        a(f"s_add_u32 s{sXT}, s{sXT}, {XSTEP}\n s_add_u32 s{sT3}, s{sT3}, 0x01010101\n v_add_u32 v{vST}, 1, v{vST}")
        def keys():
            for kt in range(2):
                for n, hh in enumerate(HORD): a(f"ds_read_b128 {v(KX+28*kt+4*n,4)}, v{vKX} offset:{kt*7168 + hh*1024}")
        if o.kfirst == 1: keys()
        else: nops(a, o.b0p)
        nv = min(o.nv0, len(vq))
        for _ in range(nv): a(vq.pop(0))
        if o.kfirst == 0: keys()
        if o.b1a >= 0: a("s_barrier   ; B1a")
        if o.kfirst == 2: keys()
        a(f"s_waitcnt vmcnt({nv})\n s_barrier   ; B1")
        mread = lambda k: a(f"ds_read_b128 {v(M+4*k,4)}, v0 offset:{L_M + 1024*k}")
        for k in KORD[:4]: mread(k)
        a(f"s_barrier   ; B1'")
        for k in KORD[4:]: mread(k)
        while vq: a(vq.pop(0))
        stamp(a, o, 'w3', 10)
        a(f"{P}_y:")
        for n, k in enumerate(KORD):
            a(f"s_waitcnt lgkmcnt({6-n})" if n < 4 else f"s_waitcnt lgkmcnt(0)" if n == 4 else "")
            a(f"{SM} {v(DY,4)}, {v(M+4*k,4)}, {v(Aop(0,k),8)}, v1")
            a(f"{SM} {v(DY+4,4)}, {v(M+4*k,4)}, {v(Aop(1,k),8)}, v1")
            if n >= 4:
                for hn in range(7)[(n-4)*2 : (n-4)*2 + (2 if n < 6 else 3)]:
                    hh = HORD[hn]; base, off = (vK0, hh*512) if hh < 4 else (vK1, (hh-4)*512)
                    a(f"ds_read2_b64 {v(KM+4*hn,4)}, v{base} offset0:{off//8} offset1:{off//8+2}")
        sets = [SET+4*i for i in range(o.ns)]
        yrd = f"s_barrier   ; B1y\n ds_read_b128 {v(YO,4)}, v0 offset:{L_Y}\n ds_read_b128 {v(YO+4,4)}, v0 offset:{L_Y + 1024}"
        if o.w3b: a(yrd)
        for r in sets[1:]: a(f"v_mov_b32 v{r}, -1")
        nops(a, 5 - o.ns)
        a(f"v_add_f32 v{DY}, v{DY}, v{DY+1}\n v_add_f32 v{DY+2}, v{DY+2}, v{DY+3}")
        a(f"v_cmp_u_f32 vcc, v{DY}, v{DY+2}")
        a(f"v_add_f32 v{DY+4}, v{DY+4}, v{DY+5}\n v_add_f32 v{DY+6}, v{DY+6}, v{DY+7}")
        a(f"v_cvt_pk_bf16_f32 v{DY}, v{DY}, v{DY+4}\n v_cvt_pk_bf16_f32 v{DY+2}, v{DY+2}, v{DY+6}")
        a(f"ds_write2_b32 v3, v{DY}, v{DY+2} offset0:0 offset1:8")
        stamp(a, o, 'w3', 11)
        if not o.w3b: a(yrd)
        a(f"s_cbranch_vccnz {P}_fail")
        a(f"{P}_yok:")
        ssm = lambda kt, st: a(f"{SM} {v(DS+4*kt,4)}, {v(YO+4*st,4)}, {v(KT[kt]+KOF[st],8)}, v1")
        sseq = [(kt, st) for st in range(2) for kt in range(3)]
        sseq += [(kt, st) for kt in range(3) for st in (2, 3)] if o.so else [(kt, st) for st in (2, 3) for kt in range(3)]
        a(f"s_waitcnt lgkmcnt({2 if o.w3b else 1})")
        for n, (kt, st) in enumerate(sseq):
            if n == o.ne:
                a("s_barrier   ; B2")
                stamp(a, o, 'w3', 1)
                a(f"ds_read_b128 {v(YO+8,4)}, v0 offset:{L_Y + 2048}\n ds_read_b128 {v(YO+12,4)}, v0 offset:{L_Y + 3072}")
            if kt == 0 and st: a(f"s_waitcnt lgkmcnt({3-st if n >= o.ne else 0})")
            ssm(kt, st)
            if o.so and n == 11: a("s_nop 3")
        if not o.so: a("s_nop 5")
        sst = lambda kt, aa: a(f"buffer_store_dword v{DS + 4*kt + 2*aa}, v{vSX if kt else vS0}, {S_WS}, s{sCUR} offen offset:{(0, 32, 96)[kt] + 160*aa}{ST}")
        sad = lambda kt, aa: a(f"v_add_f32 v{DS + 4*kt + 2*aa}, v{DS + 4*kt + 2*aa}, v{DS + 4*kt + 2*aa + 1}")
        if o.sst == 0:
            for kt in range(3):
                for aa in range(2): sad(kt, aa); sst(kt, aa)
        else:
            for kt in range(3):
                for aa in range(2): sad(kt, aa)
            if o.sst == 2: a("s_mov_b64 exec, s[48:49]")
            for kt in range(3):
                for aa in range(2): sst(kt, aa)
            if o.sst == 2: a("s_mov_b64 exec, -1")
        stamp(a, o, 'w3', 2)
        for kt in range(3):
            o0 = (0, 8, 24)[kt]
            a(f"ds_write2_b32 v{6 if kt else vL0}, v{DS+4*kt}, v{DS+4*kt+2} offset0:{o0} offset1:{o0+40}")
        a(f"ds_read_b128 {v(OWN,4)}, v2")
        for r in range(o.d2, 20): a(f"v_mov_b32 v{DY+r}, 0")
        a("s_waitcnt lgkmcnt(0)")
        for q in range(4): a(f"v_mul_f32 v{OWN+q}, s{sSC}, v{OWN+q}")
        n = o.ns
        f2 = f"buffer_store_byte v{vST}, v{vFS}, {S_WS}, s{sFL} offen offset:2048{ST}"
        cnt = [0]
        def sbody(i, wait):
            a(f"buffer_load_dwordx4 {v(sets[i],4)}, v{vSG}, {S_WS}, s{sCUR} offen sc1")
            extra = 1 if 0 <= cnt[0] - o.kp - 1 < n - 1 and o.kp >= 0 else 0
            if wait: a(f"s_waitcnt vmcnt({n-1+extra})")
            if cnt[0] == o.kp: a(f2)
            cnt[0] += 1
            a(f"v_cmp_eq_u32 vcc, -1, v{sets[(i+1) % n]}\n s_cbranch_vccz {P}_sok{i}")
        for i in range(n-1): sbody(i, False)
        sbody(n-1, True)
        if o.kp >= 0:
            for _ in range(2):
                for i in range(n): sbody(i, True)
        a(f"{P}_spoll:")
        for i in range(n): sbody(i, True)
        count(a, o, 57)
        a(f"s_sub_u32 s{sBUD}, s{sBUD}, 1\n s_cmp_lg_u32 s{sBUD}, 0\n s_cbranch_scc1 {P}_spoll\n s_branch L_team_done")
        def rest():
            a("v_add_f32 v7, v7, v11")
            for k, sh in enumerate((8, 4, 2, 1)):
                if k + 1 == o.f2pos: a(f2 + "\n s_nop 0")
                elif k in o.pp: a(f"buffer_load_dword v{80 + o.pp.index(k)}, v{vFA}, {S_WS}, s{sFL} offen offset:2048 sc1\n s_nop 0")
                else: a("s_nop 1")
                a(f"v_add_f32_dpp v7, v7, v7 row_ror:{sh} row_mask:0xf bank_mask:0xf")
            if o.pk:
                ppl = lambda k, alt: a(f"buffer_load_dword v{80 + o.pp.index(k)}, v{vFA}, {S_WS}, s{sFL} offen offset:2048 sc1" if k in o.pp else alt)
                a(f"v_rcp_f32 v74, v7"); ppl(4, "s_nop 0")
                a(f"v_pk_mul_f32 {v(SC,2)}, {v(EX,2)}, v[74:75] op_sel_hi:[1,0]\n v_pk_mul_f32 {v(SC+2,2)}, {v(EX+2,2)}, v[74:75] op_sel_hi:[1,0]")
                a(f"v_cvt_pk_bf16_f32 v{SC+4}, v{SC}, v{SC+1}\n v_cvt_pk_bf16_f32 v{SC+5}, v{SC+2}, v{SC+3}")
                ppl(5, "")
            else:
                a("v_rcp_f32 v7, v7\n s_nop 0")
                a(f"v_mul_f32 v{SC}, v{EX}, v7\n v_mul_f32 v{SC+1}, v{EX+1}, v7\n v_mul_f32 v{SC+2}, v{EX+2}, v7")
                a(f"v_cvt_pk_bf16_f32 v{SC+4}, v{SC}, v{SC+1}\n v_mul_f32 v{SC+3}, v{EX+3}, v7\n v_cvt_pk_bf16_f32 v{SC+5}, v{SC+2}, v{SC+3}")
            a(f"buffer_store_dwordx2 {v(SC+4,2)}, v4, {S_WS}, s{sCUR} offen{ST}")
        for i in range(n):
            r = sets[(i+1) % n]
            a(f"{P}_sok{i}:")
            stamp(a, o, 'w3', 3)
            if o.f2pos == 0: a(f2)
            for q in range(4): a(f"v_fma_f32 v{SC+q}, v{r+q}, s{sSC}, v{OWN+q}")
            a(f"v_maximum3_f32 v7, |v{SC}|, |v{SC+1}|, |v{SC+2}|")
            a(f"v_exp_f32 v{EX}, v{SC}")
            a(f"v_maximum3_f32 v7, v7, |v{SC+3}|, |v{SC+3}|")
            a(f"v_exp_f32 v{EX+1}, v{SC+1}")
            a(f"v_cmp_nle_f32 vcc, v7, v9")
            a(f"v_exp_f32 v{EX+2}, v{SC+2}\n v_exp_f32 v{EX+3}, v{SC+3}")
            a(f"v_add_f32 v7, v{EX}, v{EX+1}\n v_add_f32 v11, v{EX+2}, v{EX+3}")
            if o.sdup:
                a(f"s_cbranch_vccnz {P}_smax")
                if i == n-1: a(f"{P}_sexp:")
                rest()
                if i != n-1: a(f"s_branch {P}_pub")
            elif i != n-1: a(f"s_cbranch_vccz {P}_sexp\n s_branch {P}_smax")
            else: a(f"s_cbranch_vccnz {P}_smax")
        if not o.sdup:
            a(f"{P}_sexp:"); rest()
        a(f"{P}_pub:")
        stamp(a, o, 'w3', 4)
        order = list(range(2,10)) + [0, 1]
        def pround():
            for k in order:
                if k < 2: a(f"buffer_load_dwordx4 {v(PR+4*k,4)}, v{vPA+8}, {S_WS}, s{sCUR} offen offset:{k*1024} sc1")
                else: a(f"buffer_load_dwordx4 {v(PR+4*k,4)}, v{vPA+k-2}, {S_WS}, s{sCUR} offen sc1")
        flag_poll(a, o, P, list(range(FR, FR+o.nf)), f"v{vFA}", 2048, sT3, [80 + i for i in range(len(o.pp))])
        stamp(a, o, 'w3', 40)
        for r in range(o.d2): a(f"v_mov_b32 v{DY+r}, 0")
        pround()
        if o.kf < 0: a(f"buffer_store_byte v{vST}, v{vFS}, {S_WS}, s{sFL} offen{ST}")
        a("s_barrier   ; B3")
        for q in range(4): a(f"ds_read_b128 {v(U+4*q,4)}, v0 offset:{L_UM + 1024*q}")
        a(f"s_add_u32 s{sVO}, s{sVO}, {VO_STEP}\n s_add_u32 s{sM1}, s{sNXT}, 6144\n s_add_u32 s{sMO}, s{sMO}, 8192")
        a(f"v_cmp_gt_u32 vcc, s{sTH}, v{vCN}\n s_cbranch_vccnz {P}_vo\n s_mov_b32 s{sRD}, s{sTG}\n {P}_vo_ok:")
        arm(2)
        def pu(first):
            for n, k in enumerate(order):
                if n in o.puw:
                    upto = min([x for x in o.puw if x > n] + [10]) - 1
                    a(f"s_waitcnt vmcnt({9-upto + (1 if (first and n > o.kf) else 0)})" + (" lgkmcnt(0)" if upto >= 8 else ""))
                if first: stamp(a, o, 'w3', 50+n)
                a(f"{SM} {v(DP + (4*(n & 1) if o.acc2 else 0),4)}, {v(PR+4*k,4)}, {v(U+8*k,8)}, v1")
                if first and n == o.kf: a(f"buffer_store_byte v{vST}, v{vFS}, {S_WS}, s{sFL} offen{ST}")
                if first and n == o.kgo: a(f"ds_write_b32 v{vGO}, v{vST}")
        pu(True)
        a("s_nop 7" if not o.acc2 else "s_nop 6")
        a(f"{P}_pchk:")
        if o.acc2:
            a(f"v_add_f32 v{DP}, v{DP}, v{DP+1}\n v_add_f32 v{DP+2}, v{DP+2}, v{DP+3}")
            a(f"v_add_f32 v{DP+1}, v{DP+4}, v{DP+5}\n v_add_f32 v{DP+3}, v{DP+6}, v{DP+7}")
        a(f"v_add_f32 v{DP}, v{DP}, v{DP+1}\n v_add_f32 v{DP+2}, v{DP+2}, v{DP+3}")
        a(f"v_cvt_pk_bf16_f32 v7, v{DP}, v{DP+2}")
        a(f"v_cmp_u_f32 vcc, v{DP}, v{DP+2}\n s_nop 0")
        a("v_mov_b32_dpp v11, v7 quad_perm:[1,0,3,2] row_mask:0xf bank_mask:0xf")
        a(f"v_perm_b32 v{vMO}, v7, v11, v8")
        a(f"v_cndmask_b32 v7, v{vMO}, v{NEG}, vcc")
        a(f"buffer_store_dword v7, v5, {S_WS}, s{sNXT} offen{ST}")
        stamp(a, o, 'w3', 5)
        a(f"s_cbranch_vccnz {P}_pfail")
        a(f"{P}_pok:")
        if not o.rlate:
            a(f"buffer_store_dword v{NEG}, v5, {S_WS}, s{sCUR} offen{ST}")
            a(f"buffer_store_dwordx2 {v(NEG,2)}, v4, {S_WS}, s{sPRV} offen{ST}")
            a(f"buffer_store_dwordx4 {v(NEG,4)}, v10, {S_WS}, s{sCUR} offen{ST}")
        a(f"s_mov_b32 s{sPP}, s{sPRV}")
        a(f"v_xor_b32 v{vKX}, 0x1c000, v{vKX}")
        for r in range(8 if o.acc2 else 4): a(f"v_mov_b32 v{DP+r}, 0")
        stamp_flush(a, o, 'w3')
        ring_advance(a)
        a(f"s_add_u32 s{sSTEP}, s{sSTEP}, 1")
        a(f"s_cmp_lt_u32 s{sSTEP}, {o.nsteps}\n s_cbranch_scc1 {P}_loop")
        a(f"buffer_store_dword v{vMO}, v{vMA}, {S_WS}, s{sMO} offen sc1")
        a("s_branch L_team_done")
        a(f"{P}_vo:\n s_add_u32 s{sRD}, s{sSTEP}, 1\n s_lshl_b32 s{sCN}, s{sRD}, 11\n s_add_u32 s{sCN}, s{sCN}, {WS_CNT + C_VO}")
        vo_wait(f"{P}_vos", f"{P}_vo_ok")
        a(f"{P}_fail:")
        m_exact(a, P, M, 7)
        a("s_waitcnt lgkmcnt(0)")
        budget_check(a)
        for r in range(8): a(f"v_mov_b32 v{DY+r}, 0")
        count(a, o, 56)
        a(f"s_mov_b32 m0, {L_M + 6144}\n s_barrier")
        a(f"buffer_load_dwordx4 v0, {S_WS}, s{sM1} offen sc1 lds")
        a("s_waitcnt vmcnt(0)\n s_barrier")
        for k in KORD: mread(k)
        a(f"s_branch {P}_y")
        a(f"{P}_smax:")
        r = sets[0]
        a(f"s_waitcnt vmcnt(0)\n buffer_load_dwordx4 {v(r,4)}, v{vSG}, {S_WS}, s{sCUR} offen sc1\n s_waitcnt vmcnt(0)")
        a(f"v_max3_u32 v7, v{r}, v{r+1}, v{r+2}\n v_max_u32 v7, v7, v{r+3}\n v_cmp_eq_u32 vcc, -1, v7\n s_cbranch_vccz {P}_smax2")
        budget_check(a)
        a(f"s_branch {P}_smax\n {P}_smax2:")
        for q in range(4): a(f"v_fma_f32 v{SC+q}, v{r+q}, s{sSC}, v{OWN+q}")
        a(f"v_max3_f32 v7, v{SC}, v{SC+1}, v{SC+2}\n v_max_f32 v7, v7, v{SC+3}")
        for sh in (8, 4, 2, 1):
            a("s_nop 1")
            a(f"v_max_f32_dpp v7, v7, v7 row_ror:{sh} row_mask:0xf bank_mask:0xf")
        for q in range(4): a(f"v_sub_f32 v{SC+q}, v{SC+q}, v7")
        for q in range(4): a(f"v_exp_f32 v{EX+q}, v{SC+q}")
        a(f"v_add_f32 v7, v{EX}, v{EX+1}\n v_add_f32 v11, v{EX+2}, v{EX+3}\n s_branch {P}_sexp")
        a(f"{P}_pfail:")
        a("v_mov_b32 v7, 0")
        for r in range(PR, PR+40, 2): a(f"v_max3_u32 v7, v{r}, v{r+1}, v7")
        a(f"v_cmp_eq_u32 vcc, -1, v7\n s_cbranch_vccnz {P}_pagain")
        a(f"buffer_store_dword v{vMO}, v5, {S_WS}, s{sNXT} offen{ST}\n s_branch {P}_pok")
        a(f"{P}_pagain:")
        budget_check(a)
        count(a, o, 58)
        for r in range(8 if o.acc2 else 4): a(f"v_mov_b32 v{DP+r}, 0")
        pround()
        pu(False)
        a("s_nop 7")
        a(f"s_branch {P}_pchk")
    both_modes(a, P, steps)

def team_body(a, o):
    a(f"""
    s_lshr_b32 s{sH}, s{sRANK}, 1
    s_and_b32 s{sJ}, s{sRANK}, 1
    s_sub_u32 s{sT0}, s{sRANK}, 28
    s_cmp_ge_u32 s{sRANK}, 28
    s_cselect_b32 s{sCT}, s{sT0}, s{sRANK}
    s_mov_b32 s{sFL}, {WS_FL}
    s_mov_b32 s{sSTEP}, 0
    s_mov_b32 s{sCUR}, {WS_RING}
    s_mov_b32 s{sNXT}, {WS_RING + 0x10000}
    s_mov_b32 s{sPRV}, {WS_RING + 0x30000}
    s_mov_b32 s{sPP}, {WS_RING + 0x20000}
    v_and_b32 v60, 63, v0
    v_and_b32 v61, 15, v60
    v_lshrrev_b32 v62, 4, v60
    v_lshlrev_b32 v0, 4, v60
    v_and_b32 v63, 1, v60
    v_cmp_eq_u32 vcc, 1, v63
    v_mov_b32 v1, 0x44444444
    v_mov_b32 v63, 0xeeeeeeee
    v_cndmask_b32 v1, v1, v63, vcc
    """)
    a(f"v_mov_b32 v56, 0\n v_mov_b32 v57, {L_MISC + 128}\n ds_write_b32 v57, v56\n s_waitcnt lgkmcnt(0)\n s_barrier")
    if o.diag: a("s_mov_b32 s56, 0\n s_mov_b32 s57, 0\n s_mov_b32 s58, 0")
    a(f"""
    s_cmp_eq_u32 s{sWAVE}, 3
    s_cbranch_scc1 W3_entry
    s_cmp_eq_u32 s{sWAVE}, 2
    s_cbranch_scc1 Y2_entry
    s_cmp_eq_u32 s{sWAVE}, 1
    s_cbranch_scc1 Y1_entry
    """)
    ywave(a, o, 0)
    a("Y1_entry:"); ywave(a, o, 1)
    a("Y2_entry:"); ywave(a, o, 2)
    a("W3_entry:"); wave3(a, o)
```
